```python
import torch

def _softmax(x, axis=-1):
    return torch.softmax(x, dim=axis)
def _gelu(x):
    return torch.nn.functional.gelu(x, approximate="tanh")
def _silu(x):
    return torch.nn.functional.silu(x)
def _sigmoid(x):
    return torch.sigmoid(x)
def _layernorm(x, axis=-1, eps=1e-5):
    m = x.mean(dim=axis, keepdim=True)
    v = x.var(dim=axis, keepdim=True, unbiased=False)
    return (x - m) / torch.sqrt(v + eps)
def _scatter_add(tgt, idx, src, axis=0):
    return tgt.clone().index_add_(axis, idx, src)
def _segment_sum(src, seg, n):
    out = torch.zeros((n,) + src.shape[1:], dtype=src.dtype)
    return out.index_add_(0, seg, src)
def _pad(x, pw):
    flat = tuple(v for pair in reversed(pw) for v in pair)
    return torch.nn.functional.pad(x, flat)

kernel_name = 'interleave_layers__softmax_full_mha__glu_gated_swiglu__prompt'

def setup_inputs():

    _w = (lambda a: (lambda t: t.to(torch.bfloat16) if t.is_floating_point() else t)(torch.as_tensor(a)))
    def _A_setup():
        B, S, D = 1, 2048, 512
        return {
            "x": _w((lambda *s: torch.randn(*s, dtype=torch.bfloat16) * 0.05)(B, S, D)),
            "wqkv": _w((lambda *s: torch.randn(*s, dtype=torch.bfloat16) * 0.05)(D, 3 * D)),
            "wo": _w((lambda *s: torch.randn(*s, dtype=torch.bfloat16) * 0.05)(D, D)),
        }
    _A_in = _A_setup()

    def _B_setup():
        B, S, D, F = 1, 2048, 512, 1792
        return {
            "x": _w((lambda *s: torch.randn(*s, dtype=torch.bfloat16) * 0.05)(B, S, D)),
            "w1": _w((lambda *s: torch.randn(*s, dtype=torch.bfloat16) * 0.4)(D, F) * (2.0 / D) ** 0.5),
            "w3": _w((lambda *s: torch.randn(*s, dtype=torch.bfloat16) * 0.4)(D, F) * (2.0 / D) ** 0.5),
            "w2": _w((lambda *s: torch.randn(*s, dtype=torch.bfloat16) * 0.4)(F, D) * (2.0 / F) ** 0.5),
        }
    _B_in = _B_setup()

    return {
        "A_x": _A_in["x"],
        "A_wqkv": _A_in["wqkv"],
        "A_wo": _A_in["wo"],
        "B_x": _B_in["x"],
        "B_w1": _B_in["w1"],
        "B_w3": _B_in["w3"],
        "B_w2": _B_in["w2"],
    }

def reference(A_x, A_wqkv, A_wo, B_x, B_w1, B_w3, B_w2):
    def _A_ref(x, wqkv, wo):
        B, S, D = x.shape
        H = 32; Dh = D // H
        qkv = (lambda x, *d: x.permute(*d))((x @ wqkv).reshape(B, S, 3, H, Dh), 2, 0, 3, 1, 4)
        q, k, v = qkv[0], qkv[1], qkv[2]
        scale = Dh ** -0.5
        scores = torch.einsum("bhqd,bhkd->bhqk", q, k) * scale
        p = _softmax(scores, axis=-1)
        o = torch.einsum("bhqk,bhkd->bhqd", p, v)
        return (lambda x, *d: x.permute(*d))(o, 0, 2, 1, 3).reshape(B, S, D) @ wo

    def _B_ref(x, w1, w3, w2):
        gate = torch.einsum("bsd,df->bsf", x, w1)
        up = torch.einsum("bsd,df->bsf", x, w3)
        h = _silu(gate) * up
        out = torch.einsum("bsf,fd->bsd", h, w2)
        return out

    x = A_x
    x = x + _A_ref(_layernorm(x, axis=-1), A_wqkv, A_wo)
    x = x + _B_ref(_layernorm(x, axis=-1), B_w1, B_w3, B_w2)
    x = x + _A_ref(_layernorm(x, axis=-1), A_wqkv, A_wo)
    x = x + _B_ref(_layernorm(x, axis=-1), B_w1, B_w3, B_w2)
    return x
```

```python
import re

def vr(a, n=1):
    return f"v{a}" if n == 1 else f"v[{a}:{a+n-1}]"
def sr(a, n=1):
    return f"s{a}" if n == 1 else f"s[{a}:{a+n-1}]"

_REG = re.compile(r"^(-|abs\(|\|)?([vsa])(\d+|\[(\d+):(\d+)\])")
def regs_of(op):
    op = op.strip()
    if op in ("vcc", "vcc_lo", "vcc_hi"): return [("s", "vcc")]
    if op in ("exec", "exec_lo", "exec_hi"): return [("s", "exec")]
    if op == "m0": return [("s", "m0")]
    m = _REG.match(op)
    if not m: return []
    k = m.group(2)
    if m.group(4) is not None:
        return [(k, i) for i in range(int(m.group(4)), int(m.group(5)) + 1)]
    return [(k, int(m.group(3)))]

TRANS = ("v_exp_f32", "v_log_f32", "v_rcp_f32", "v_rsq_f32", "v_sqrt_f32", "v_sin_f32", "v_cos_f32")
def split_ops(s):
    out, depth, cur = [], 0, ""
    for ch in s:
        if ch in "[(": depth += 1
        if ch in "])": depth -= 1
        if ch == "," and depth == 0:
            out.append(cur.strip()); cur = ""
        else: cur += ch
    if cur.strip(): out.append(cur.strip())
    return out

class Ins:
    def __init__(self, text):
        self.text = text
        t = text.split(";")[0].strip()
        self.label = t.endswith(":")
        self.directive = t.startswith(".")
        self.empty = (t == "")
        self.op = ""; self.w = []; self.r = []; self.kind = "none"; self.cread = []; self.abread = []; self.passes = 0
        self.states = 0; self.dpp = False; self.store_data = []
        if self.label or self.directive or self.empty: return
        parts = t.split(None, 1)
        op = parts[0]; self.op = op
        rest = parts[1] if len(parts) > 1 else ""
        ops = split_ops(rest)
        ops = [o.split()[0] if o else o for o in ops]
        self.states = 1
        R = lambda i: regs_of(ops[i]) if i < len(ops) else []
        if op == "s_nop":
            self.kind = "salu"; self.states = int(ops[0], 0) + 1
        elif op.startswith("v_mfma") or op.startswith("v_smfmac"):
            self.kind = "mfma"
            self.passes = 8 if "32x32" in op else (4 if "16x16" in op else 2)
            self.w = R(0)
            if op.startswith("v_smfmac"):
                self.abread = R(1) + R(2) + R(3); self.cread = R(0)
            else:
                self.abread = R(1) + R(2); self.cread = R(3)
            self.r = self.abread + self.cread
        elif op.startswith("v_"):
            self.kind = "trans" if op.replace("_e32", "").replace("_e64", "") in TRANS else "valu"
            self.dpp = "_dpp" in op
            if op.startswith("v_permlane"):
                self.w = R(0) + R(1); self.r = R(0) + R(1)
            elif op.startswith("v_cmp"):
                self.w = R(0); self.r = sum((R(i) for i in range(1, len(ops))), [])
            elif op.startswith(("v_add_co", "v_sub_co", "v_addc_co")):
                self.w = R(0) + R(1); self.r = sum((R(i) for i in range(2, len(ops))), [])
            else:
                self.w = R(0); self.r = sum((R(i) for i in range(1, len(ops))), [])
                if op.startswith(("v_fmac", "v_dot2c")) or self.dpp: self.r += R(0)
        elif op.startswith("ds_"):
            self.kind = "ds"
            if op.startswith(("ds_read", "ds_bpermute", "ds_permute", "ds_swizzle")) or "_rtn" in op:
                self.w = R(0); self.r = sum((R(i) for i in range(1, len(ops))), [])
            else:
                self.r = sum((R(i) for i in range(len(ops))), [])
        elif op.startswith(("buffer_", "global_")):
            self.kind = "vmem"
            lds = bool(re.search(r"\blds\b", rest))
            self.lds = lds
            if op in ("buffer_wbl2", "buffer_inv"):
                pass
            elif "load" in op and not lds:
                self.w = R(0); self.r = sum((R(i) for i in range(1, len(ops))), [])
            else:
                self.r = sum((R(i) for i in range(len(ops))), [])
                if lds: self.r.append(("s", "m0"))
                if "store" in op and ("x4" in op or "x3" in op):
                    self.store_data = R(0) if op.startswith("buffer_") else R(1)
        elif op.startswith("s_"):
            self.kind = "salu"
            if op.startswith(("s_cmp", "s_bitcmp", "s_cbranch", "s_branch", "s_waitcnt", "s_barrier", "s_setprio", "s_endpgm", "s_sleep", "s_setpc")):
                self.r = sum((R(i) for i in range(len(ops))), [])
            else:
                self.w = R(0); self.r = sum((R(i) for i in range(1, len(ops))), [])
        else:
            raise ValueError("unknown instr " + text)

def need(p, c):
    n = 0
    pw, cr, cw = set(p.w), set(c.r), set(c.w)
    isvalu = lambda x: x.kind in ("valu", "trans")
    if isvalu(p):
        vw = {x for x in pw if x[0] in "va"}; sw = {x for x in pw if x[0] == "s"}
        if c.kind == "mfma" and vw & cr: n = max(n, 2)
        if isvalu(c):
            if vw & cr:
                if c.op.startswith("v_permlane") or c.dpp: n = max(n, 2)
                if c.op.startswith(("v_readlane", "v_readfirstlane")): n = max(n, 1)
                if p.kind == "trans" and c.kind != "trans": n = max(n, 1)
            if sw & cr:
                n = max(n, 4 if c.op.startswith(("v_readlane", "v_writelane")) else 2)
        if p.kind == "trans" and c.kind in ("ds", "vmem") and vw & cr: n = max(n, 1)
        if c.kind == "vmem" and sw & cr: n = max(n, 5)
        if c.kind == "salu" and sw & cr and not c.op.startswith("s_cbranch"): n = max(n, 1)
    if p.kind == "mfma":
        big = {2: 5, 4: 8, 8: 12}[p.passes]
        if c.kind == "mfma":
            if pw & set(c.abread): n = max(n, big)
            if pw & set(c.cread):
                if not (p.w == c.cread and p.passes == c.passes): n = max(n, {2: 4, 4: 6, 8: 10}[p.passes])
                elif p.passes == 2: n = max(n, 2)
        elif c.kind in ("valu", "trans", "ds", "vmem"):
            if pw & (cr | cw): n = max(n, big)
            if isvalu(c) and set(p.cread) & cw: n = max(n, {2: 1, 4: 3, 8: 7}[p.passes])
    if p.kind == "salu" and ("s", "m0") in pw and c.kind == "vmem" and getattr(c, "lds", False): n = max(n, 1)
    if p.store_data and set(p.store_data) & cw:
        n = max(n, 2 if isvalu(c) else 1)
    return n

class Asm:
    def __init__(self):
        self.lines = []
        self.uid = 0
    def __call__(self, text):
        for l in text.split("\n"):
            self.lines.append(l.strip())
    def label(self, name): self.lines.append(name + ":")
    def newlabel(self, base="L"):
        self.uid += 1
        return f"{base}_{self.uid}"
    def finish(self, verbose=False):
        out = []; hist = []
        nins = 0
        for l in self.lines:
            ins = Ins(l)
            if ins.kind == "none":
                out.append(l); continue
            dist = 0; req = 0
            for p in reversed(hist):
                k = need(p, ins)
                if k - dist > req: req = k - dist
                dist += p.states
                if dist >= 20: break
            while req > 0:
                k = min(req, 16)
                nop = Ins(f"s_nop {k-1}")
                out.append(f"s_nop {k-1}"); hist.append(nop); req -= k; nins += 1
            out.append(l); hist.append(ins)
            if len(hist) > 40: hist = hist[-24:]
        if verbose: print("inserted nops:", nins)
        return "\n".join(("" if (x.endswith(":") or x.startswith(".") or x.startswith(";")) else "    ") + x for x in out) + "\n"
```

```python
import sys, math, struct
from asmlib import *

NAME = "interleave_layers__softmax_full_mha__glu_gated_swiglu__prompt"
MB = 1 << 20; KB = 1 << 10
XF = 0; XF_STR = 2 * MB
OF = 8 * MB; OF_STR = 2 * MB
KVG = 12 * MB; KV_STR = 4 * MB
HF = 20 * MB; HF_STR = 8 * MB
ST = 36 * MB; ST_STR = 256 * KB
PWO = 37 * MB
PW13 = 38 * MB
CS13 = 41 * MB + 512 * KB
PW2 = 42 * MB
WQ = 44 * MB
FL = 60 * MB; FL_STR = 16 * KB
F_LF, F_SF, F_PF, F_GH, F_KV = 0, 1024, 2048, 2176, 4096
TSB = 61 * MB
WS_USED = 62 * MB
U = lambda i: i * 16384
LDS_TOTAL = 163840
TSTR = 2064; SLOT = 8 * TSTR; KVB = LDS_TOTAL - 2 * SLOT
SLICE = U(3)
WS, SA, SB, DBG = 4, 8, 12, 16
P_X, P_WQKV, P_WO, P_BX, P_W1, P_W3, P_W2, P_OUT, P_DBG, P_WS = 20, 22, 24, 26, 28, 30, 32, 34, 36, 38
sG, sJ, sW, sXCC, sLAY, sSLOW, sTMO, sFB, sMYF, sCODE = range(40, 50)
sT0, sT1, sT2, sT3, sT4, sT5, sT6, sT7 = range(50, 58)
sFG = 58
sTT = 59
sXIN, sSTIN = 60, 61
sPDST, sPCS, sPTYPE, sPC0, sPC1, sPSTR = 62, 63, 64, 65, 66, 67
sKVH = 68
sW13, sW2, sWO = 69, 70, 71
sTS = (72, 73); sTSI = 74
sEX = 76
sHI = 78
sN16 = 80
C_P0, C_O, C_X1, C_H, C_X2 = 1, 2, 3, 4, 12
LOG2E = 1.4426950408889634
def f2u(x): return struct.unpack("<I", struct.pack("<f", x))[0]
TBOUND2 = 48.0 * 48.0

class Gen:
    def __init__(self, stop=None, stamps=False, force_slow=False, force_fallback=False, remap=False, passes=(3, 2, 1, 1)):
        self.a = Asm(); self.stop = stop; self.stamps = stamps
        self.force_slow = force_slow; self.force_fallback = force_fallback
        self.passes = passes; self.remap = remap
        self.nstamp = 0

    def stamp(self, name=""):
        if not self.stamps: return
        a = self.a
        self.nstamp += 1
        a(f"s_memtime s[{sTS[0]}:{sTS[1]}]")
        a("s_waitcnt lgkmcnt(0)")
        a(f"v_mov_b32 v255, s{sTS[0]}")
        a("s_mov_b64 exec, 1")
        a(f"buffer_store_dword v255, off, s[{WS}:{WS+3}], s{sTSI}")
        a("s_mov_b64 exec, -1")
        a(f"s_add_u32 s{sTSI}, s{sTSI}, 4")

    def maybe_stop(self, name):
        if self.stop == name:
            self.a("s_waitcnt vmcnt(0) lgkmcnt(0)")
            self.a("s_endpgm")

    def srd(self, d, p, size):
        a = self.a
        a(f"s_mov_b32 s{d}, s{p}")
        a(f"s_and_b32 s{d+1}, s{p+1}, 0xffff")
        a(f"s_mov_b32 s{d+2}, {size}")
        a(f"s_mov_b32 s{d+3}, 0x20000")

    def loads(self, dst, n, soff, vaddr, flags="sc1", tmp=sT7):
        a = self.a
        for i in range(n):
            if i % 4 == 0:
                if i == 0: a(f"s_mov_b32 s{tmp}, s{soff}")
                else: a(f"s_add_u32 s{tmp}, s{tmp}, 4096")
            a(f"buffer_load_dwordx4 {vr(dst+4*i,4)}, v{vaddr}, s[{WS}:{WS+3}], s{tmp} offen offset:{(i%4)*1024} {flags}")

    def dma4(self, ldsbase_s, ldsconst, src_s, srcconst, vaddr, n=4, first=0):
        a = self.a
        a(f"s_add_u32 m0, s{ldsbase_s}, {ldsconst}")
        a(f"s_add_u32 s{sT7}, s{src_s}, {srcconst}")
        for i in range(first, n):
            a(f"buffer_load_dwordx4 v{vaddr}, s[{WS}:{WS+3}], s{sT7} offen offset:{i*1024} sc1 lds")

    def poll(self, vaddr, vtmp, code):
        a = self.a
        L, D = a.newlabel("poll"), a.newlabel("polld")
        a(f"s_add_u32 s{sT6}, s{sCODE}, {code << 4}")
        a.label(L)
        a(f"buffer_load_dword v{vtmp}, v{vaddr}, s[{WS}:{WS+3}], s{sFB} offen sc1")
        a("s_waitcnt vmcnt(0)")
        a(f"v_cmp_gt_u32 vcc, s{sT6}, v{vtmp}")
        a(f"s_cbranch_vccz {D}")
        a(f"s_sub_u32 s{sTMO}, s{sTMO}, 1")
        a(f"s_cbranch_scc0 {L}")
        a(f"s_mov_b32 s{sTMO}, 0")
        a.label(D)
        self.acquire()

    def acquire(self):
        a = self.a
        F = a.newlabel("acq")
        a(f"s_cmp_eq_u32 s{sSLOW}, 0")
        a(f"s_cbranch_scc1 {F}")
        a("buffer_inv sc1")
        a("s_waitcnt vmcnt(0)")
        a.label(F)

    def publish(self, vtmp, code, wait="vmcnt(0)"):
        a = self.a
        S, D = a.newlabel("pubs"), a.newlabel("pubd")
        a(f"s_add_u32 s{sT6}, s{sCODE}, {code << 4}")
        a(f"s_or_b32 s{sT6}, s{sT6}, s{sXCC}")
        a(f"v_mov_b32 v{vtmp}, s{sT6}")
        a(f"s_waitcnt {wait}")
        a("s_mov_b64 exec, 1")
        a(f"s_cmp_lg_u32 s{sSLOW}, 0")
        a(f"s_cbranch_scc1 {S}")
        a(f"buffer_store_dword v{vtmp}, off, s[{WS}:{WS+3}], s{sMYF}")
        a(f"s_branch {D}")
        a.label(S)
        a("s_waitcnt vmcnt(0)")
        a("buffer_wbl2 sc1")
        a("s_waitcnt vmcnt(0)")
        a(f"buffer_store_dword v{vtmp}, off, s[{WS}:{WS+3}], s{sMYF} sc1")
        a.label(D)
        a("s_mov_b64 exec, -1")

    def split_pair(self, dst, c, tmp):
        a = self.a
        a(f"v_cvt_pk_bf16_f32 v{dst}, v{c}, v{c}")
        a(f"v_and_b32 v{tmp}, 0xffff0000, v{dst}")
        a(f"v_sub_f32 v{tmp}, v{c}, v{tmp}")
        a(f"v_cvt_pk_bf16_f32 v{dst+1}, v{tmp}, v{tmp}")

    def stats_ops(self, st, mu2, rstd, vare, t0):
        L = []
        for k in (8, 4, 2, 1):
            for i in range(k):
                L.append(f"v_add_f32 v{st+i}, v{st+i}, v{st+i+k}")
        L.append(f"v_mov_b32 v{st+1}, v{st}")
        L.append(f"v_permlane32_swap_b32 v{st}, v{st+1}")
        L.append(f"v_mul_f32 v{st}, {hex(f2u(-1.0/512))}, v{st}")
        L.append(f"v_mul_f32 v{t0}, v{st}, v{st}")
        L.append(f"v_mov_b32 v{st+2}, {hex(f2u(1.0/512))}")
        L.append(f"v_fma_f32 v{vare}, v{st+1}, v{st+2}, -v{t0}")
        L.append(f"v_max_f32 v{vare}, 0, v{vare}")
        L.append(f"v_add_f32 v{vare}, {hex(f2u(1e-5))}, v{vare}")
        L.append(f"v_rsq_f32 v{rstd}, v{vare}")
        L.append(f"v_cndmask_b32 v{st}, v{st}, 0, s[{sHI}:{sHI+1}]")
        L.append(f"v_cvt_pk_bf16_f32 v{t0}, v{st}, v{st}")
        L.append(f"v_and_b32 v{t0}, 0xffff0000, v{t0}")
        L.append(f"v_sub_f32 v{t0}, v{st}, v{t0}")
        L.append(f"v_cvt_pk_bf16_f32 v{mu2}, v{st}, v{t0}")
        L.append(f"v_mov_b32 v{mu2+1}, v{mu2}")
        return L

    def stream(self, items, D, ring, pre_issued=0, pair=2):
        a = self.a
        n = len(items)
        rd = [i for i in range(n) if items[i].get("read")]
        slot = {i: ring + 4 * (k % D) for k, i in enumerate(rd)}
        pos = {i: k for k, i in enumerate(rd)}
        issued = pre_issued
        done = 0
        def issue(k):
            i = rd[k]; va, off = items[i]["read"]
            a(f"ds_read_b128 {vr(slot[i],4)}, v{va} offset:{off}")
        def try_issue(limit, consumed):
            nonlocal issued, done
            while issued < min(limit, len(rd)):
                i = rd[issued]
                if items[i].get("bar"):
                    if issued - consumed > D // 2: return
                    a("s_waitcnt lgkmcnt(0)"); done = issued
                    for t in items[i].get("barpre", []): a(t)
                    a("s_barrier")
                    items[i]["bar"] = False
                issue(issued); issued += 1
        try_issue(D, 0)
        consumed = 0
        for i, it in enumerate(items):
            for t in it.get("pre", []): a(t)
            if it.get("read"):
                k = pos[i]
                if k >= issued: try_issue(k + 1, k)
                if k >= done:
                    tgt = min(k + pair, issued)
                    a(f"s_waitcnt lgkmcnt({issued - tgt})"); done = tgt
                a(it["mfma"](slot[i]))
                consumed = k + 1
                try_issue(consumed + D, consumed)
            else:
                a(it["mfma"](None))
            for t in it.get("post", []): a(t)

    def prologue(self):
        a = self.a
        a("s_cmp_ge_u32 s2, 256")
        a("s_cbranch_scc1 L_exit")
        a("s_load_dwordx16 s[20:35], s[0:1], 0")
        a("s_load_dwordx4 s[36:39], s[0:1], 64")
        a(f"s_getpc_b64 s[{sT0}:{sT1}]")
        a.label("L_pc")
        if self.remap:
            a(f"s_lshr_b32 s{sG}, s2, 5")
            a(f"s_and_b32 s{sJ}, s2, 31")
        else:
            a(f"s_and_b32 s{sG}, s2, 7")
            a(f"s_lshr_b32 s{sJ}, s2, 3")
        a("v_lshrrev_b32 v1, 6, v0")
        a("v_and_b32 v0, 63, v0")
        a(f"v_readfirstlane_b32 s{sW}, v1")
        a("v_and_b32 v2, 15, v0")
        a(f"s_lshl_b32 s{sT2}, s{sJ}, 4")
        a(f"v_add_lshl_u32 v2, v2, s{sT2}, 7")
        a("v_min_u32 v2, L_end-L_pc-4, v2")
        a(f"global_load_dword v3, v2, s[{sT0}:{sT1}]")
        a(f"s_getreg_b32 s{sXCC}, hwreg(HW_REG_XCC_ID, 0, 4)")
        if self.force_slow:
            a(f"s_and_b32 s{sXCC}, s{sJ}, 1")
        a("v_lshlrev_b32 v1, 4, v0")
        a("v_lshrrev_b32 v4, 1, v0")
        a("v_and_b32 v5, 1, v0")
        a("v_lshlrev_b32 v6, 5, v4")
        a("v_lshl_add_u32 v6, v5, 3, v6")
        a(f"s_lshl_b32 s{sT2}, s{sG}, 8")
        a(f"s_lshl_b32 s{sT3}, s{sJ}, 3")
        a(f"s_add_u32 s{sT2}, s{sT2}, s{sT3}")
        a(f"s_add_u32 s{sT2}, s{sT2}, s{sW}")
        a(f"s_lshl_b32 s{sT2}, s{sT2}, 10")
        a(f"s_lshl_b32 s{sFG}, s{sG}, 14")
        a(f"s_add_u32 s{sFG}, s{sFG}, {FL}")
        a("s_waitcnt lgkmcnt(0)")
        self.srd(SA, P_X, 2 * MB)
        a(f"buffer_load_dwordx2 v[8:9], v6, s[{SA}:{SA+3}], s{sT2} offen")
        a(f"buffer_load_dwordx2 v[10:11], v6, s[{SA}:{SA+3}], s{sT2} offen offset:16")
        self.srd(WS, P_WS, WS_USED)
        self.srd(DBG, P_DBG, 256)
        self.srd(SB, P_WQKV, 512 * 3072)
        a(f"s_lshl_b32 s{sT5}, s{sG}, 2")
        a(f"s_cmp_lg_u32 s{sJ}, 0")
        a("s_cbranch_scc1 L_notlead")
        a(f"s_cmp_lg_u32 s{sW}, 7")
        a("s_cbranch_scc1 L_notlead")
        for r in range(12, 16): a(f"v_mov_b32 v{r}, 0")
        a("v_lshlrev_b32 v7, 7, v4")
        a("v_lshl_add_u32 v7, v5, 4, v7")
        a(f"s_add_u32 s{sT3}, s{sFG}, {F_KV}")
        a(f"s_add_u32 s{sT4}, s{sFG}, {F_KV+4096}")
        for o in (0, 1024, 2048):
            a(f"buffer_store_dwordx4 v[12:15], v1, s[{WS}:{WS+3}], s{sFG} offen offset:{o} sc1")
        a(f"buffer_store_dwordx4 v[12:15], v7, s[{WS}:{WS+3}], s{sT3} offen sc1")
        a(f"buffer_store_dwordx4 v[12:15], v7, s[{WS}:{WS+3}], s{sT4} offen sc1")
        a("v_mov_b32 v16, 1")
        a("s_waitcnt vmcnt(0)")
        a("s_mov_b64 exec, 1")
        a(f"buffer_store_dword v16, off, s[{DBG}:{DBG+3}], s{sT5} sc1")
        a("s_mov_b64 exec, -1")
        a.label("L_notlead")
        a("v_mul_u32_u24 v7, 3072, v4")
        a("v_lshl_add_u32 v7, v5, 4, v7")
        a(f"s_mul_i32 s{sT3}, s{sW}, {64*3072}")
        a(f"s_lshl_b32 s{sT4}, s{sJ}, 5")
        a(f"s_add_u32 s{sT3}, s{sT3}, s{sT4}")
        a(f"s_mul_i32 s{sT4}, s{sW}, 6144")
        for pc in range(2):
            a(f"s_add_u32 m0, s{sT4}, {pc*3072}")
            if pc: a(f"s_add_u32 s{sT3}, s{sT3}, {32*3072}")
            for part in range(3):
                a(f"buffer_load_dwordx4 v7, s[{SB}:{SB+3}], s{sT3} offen offset:{part*1024} lds")
        a(f"s_mov_b32 s{sLAY}, 0")
        a(f"s_mov_b32 s{sSLOW}, 0")
        a(f"s_mov_b32 s{sCODE}, 0")
        a(f"s_mov_b32 s{sTMO}, 100000")
        a(f"s_mov_b32 s{sHI}, 0")
        a(f"s_mov_b32 s{sHI+1}, -1")
        a(f"s_mov_b32 s{sN16}, 0xffff0000")
        a(f"s_mov_b32 s{sN16+1}, 0xffff0000")
        a(f"s_mov_b32 s{sFB}, s{sFG}")
        a(f"s_lshl_b32 s{sMYF}, s{sJ}, 3")
        a(f"s_add_u32 s{sMYF}, s{sMYF}, s{sW}")
        a(f"s_lshl_b32 s{sMYF}, s{sMYF}, 2")
        a(f"s_add_u32 s{sMYF}, s{sMYF}, s{sFG}")
        if self.stamps:
            a(f"s_lshl_b32 s{sTSI}, s2, 3")
            a(f"s_add_u32 s{sTSI}, s{sTSI}, s{sW}")
            a(f"s_lshl_b32 s{sTSI}, s{sTSI}, 8")
            a(f"s_add_u32 s{sTSI}, s{sTSI}, {TSB}")
        a(f"s_and_b32 s{sT3}, s{sJ}, 7")
        a(f"s_lshl_b32 s{sWO}, s{sT3}, 16")
        a(f"s_add_u32 s{sWO}, s{sWO}, {PWO}")
        a(f"s_mul_i32 s{sW2}, s{sT3}, {7*32768}")
        a(f"s_add_u32 s{sW2}, s{sW2}, {PW2}")
        a(f"s_and_b32 s{sT3}, s{sJ}, 15")
        a(f"s_mul_i32 s{sW13}, s{sT3}, {7*32768}")
        a(f"s_add_u32 s{sW13}, s{sW13}, {PW13}")
        a("v_lshlrev_b32 v6, 10, v4")
        a("v_lshl_add_u32 v6, v5, 9, v6")
        a(f"s_lshr_b32 s{sT2}, s{sJ}, 2")
        a(f"s_lshl_b32 s{sT3}, s{sG}, 3")
        a(f"s_add_u32 s{sT2}, s{sT2}, s{sT3}")
        a(f"s_and_b32 s{sT3}, s{sJ}, 3")
        a(f"s_lshl_b32 s{sT3}, s{sT3}, 3")
        a(f"s_add_u32 s{sT3}, s{sT3}, s{sW}")
        a(f"s_lshl_b32 s{sT3}, s{sT3}, 4")
        a(f"s_lshl_b32 s{sT4}, s{sT2}, 15")
        a(f"s_add_u32 s{sT4}, s{sT4}, s{sT3}")
        a(f"s_lshl_b32 s{sT2}, s{sT2}, 12")
        a(f"s_add_u32 s{sT2}, s{sT2}, s{sT3}")
        a(f"s_add_u32 s{sT2}, s{sT2}, {ST}")
        a("v_lshrrev_b32 v20, 4, v0")
        a("v_lshlrev_b32 v20, 10, v20")
        a("v_lshl_add_u32 v20, v5, 9, v20")
        a("v_and_b32 v21, 12, v0")
        a("v_add_u32 v20, v20, v21")
        a("s_waitcnt vmcnt(6)")
        a(f"buffer_store_dwordx4 v[8:11], v6, s[{WS}:{WS+3}], s{sT4} offen")
        for i in range(4):
            a(f"v_lshlrev_b32 v{12+2*i}, 16, v{8+i}")
            a(f"v_and_b32 v{13+2*i}, 0xffff0000, v{8+i}")
        a("v_add_f32 v22, v12, v13")
        a("v_mul_f32 v23, v12, v12")
        a("v_fmac_f32 v23, v13, v13")
        for i in range(2, 8):
            a(f"v_add_f32 v22, v22, v{12+i}")
            a(f"v_fmac_f32 v23, v{12+i}, v{12+i}")
        for qp in ("[1,0,3,2]", "[2,3,0,1]"):
            a(f"v_add_f32_dpp v22, v22, v22 quad_perm:{qp} row_mask:0xf bank_mask:0xf")
            a(f"v_add_f32_dpp v23, v23, v23 quad_perm:{qp} row_mask:0xf bank_mask:0xf")
        a("v_cmp_eq_u32 vcc, 1, v5")
        a("v_cndmask_b32 v22, v22, v23, vcc")
        a(f"buffer_store_dword v22, v20, s[{WS}:{WS+3}], s{sT2} offen")
        a.label("L_rdy")
        a(f"buffer_load_dword v24, off, s[{DBG}:{DBG+3}], s{sT5} sc1")
        a("s_waitcnt vmcnt(0)")
        a("v_cmp_eq_u32 vcc, 0, v24")
        a("s_cbranch_vccz L_rdyd")
        a(f"s_sub_u32 s{sTMO}, s{sTMO}, 1")
        a("s_cbranch_scc0 L_rdy")
        a(f"s_mov_b32 s{sTMO}, 0")
        a.label("L_rdyd")
        a(f"s_or_b32 s{sT6}, s{sXCC}, 16")
        a(f"v_mov_b32 v24, s{sT6}")
        a("s_mov_b64 exec, 1")
        a(f"buffer_store_dword v24, off, s[{WS}:{WS+3}], s{sMYF}")
        a(f"s_cmp_lg_u32 s{sW}, 0")
        a("s_cbranch_scc1 L_nohello")
        a(f"s_lshl_b32 s{sT2}, s{sJ}, 2")
        a(f"s_add_u32 s{sT2}, s{sT2}, s{sFG}")
        a(f"buffer_store_dword v24, off, s[{WS}:{WS+3}], s{sT2} offset:{F_GH} sc1")
        a.label("L_nohello")
        a("s_mov_b64 exec, -1")
        self.stamp("p0 published")
        a("v_and_b32 v10, 3, v0")
        a("v_lshlrev_b32 v10, 3, v10")
        a("v_bfe_u32 v11, v0, 2, 2")
        a("v_lshl_add_u32 v10, v11, 5, v10")
        a("v_lshrrev_b32 v11, 5, v0")
        a("v_lshl_add_u32 v10, v11, 7, v10")
        a("v_bfe_u32 v11, v0, 4, 1")
        a(f"s_mul_i32 s{sT4}, s{sW}, 6144")
        a(f"v_add_u32 v10, s{sT4}, v10")
        a("v_lshl_add_u32 v12, v11, 10, v10")
        a("v_lshl_add_u32 v13, v11, 9, v10")
        F = 32
        for pc in range(2):
            for i in range(2):
                for h2 in range(2):
                    a(f"ds_read_b64_tr_b16 {vr(F+12*pc+4*i+2*h2,2)}, v12 offset:{pc*3072+i*512+h2*256}")
            for h2 in range(2):
                a(f"ds_read_b64_tr_b16 {vr(F+12*pc+8+2*h2,2)}, v13 offset:{pc*3072+2048+h2*256}")
        for r in range(28, 32): a(f"v_mov_b32 v{r}, 0x3f803f80")
        a(f"v_add_u32 v14, s{sT4}, v1")
        a(f"s_lshl_b32 s{sT2}, s2, 16")
        a(f"s_add_u32 s{sT2}, s{sT2}, {WQ}")
        a(f"s_add_u32 s{sT2}, s{sT2}, s{sT4}")
        a(f"s_add_u32 s{sT3}, s{sT2}, 3072")
        a("s_waitcnt lgkmcnt(0)")
        for k in range(6):
            a(f"ds_write_b128 v14, {vr(F+4*k,4)} offset:{SLICE+1024*k}")
        for k in range(6):
            acc = 80 if k % 3 == 2 else 64
            first = k in (0, 2)
            a(f"v_mfma_f32_32x32x16_bf16 {vr(acc,16)}, v[28:31], {vr(F+4*k,4)}, {'0' if first else vr(acc,16)}")
        for k in range(6):
            a(f"buffer_store_dwordx4 {vr(F+4*k,4)}, v1, s[{WS}:{WS+3}], s{sT2 if k < 3 else sT3} offen offset:{(k%3)*1024}")
        a(f"v_cndmask_b32 v64, v64, v80, s[{sHI}:{sHI+1}]")
        a("v_lshlrev_b32 v15, 1, v1")
        a(f"s_lshl_b32 s{sT2}, s{sW}, 2")
        a(f"s_add_u32 s{sT2}, s{sT2}, {U(6)}")
        a(f"v_add_u32 v15, s{sT2}, v15")
        a("ds_write_b32 v15, v64")
        a("s_waitcnt lgkmcnt(0)")
        a("s_barrier")
        a("v_and_b32 v15, 31, v0")
        a("v_lshlrev_b32 v15, 5, v15")
        a(f"v_add_u32 v15, {U(6)}, v15")
        a("v_and_b32 v16, 15, v0")
        a("v_lshlrev_b32 v16, 5, v16")
        a(f"v_add_u32 v16, {U(6)}, v16")
        a("ds_read_b128 v[32:35], v15")
        a("ds_read_b128 v[36:39], v15 offset:16")
        for k in range(4):
            a(f"ds_read_b128 {vr(40+4*k,4)}, v16 offset:{1024 + (k>>1)*512 + (k&1)*16}")
        a("s_waitcnt lgkmcnt(0)")
        for k in (4, 2, 1):
            for i in range(k): a(f"v_add_f32 v{32+i}, v{32+i}, v{32+i+k}")
        for k in (8, 4, 2, 1):
            for i in range(k): a(f"v_add_f32 v{40+i}, v{40+i}, v{40+i+k}")
        CSQ = self.CSQ = 4
        self.split_pair(CSQ, 32, 33)
        self.split_pair(CSQ + 2, 40, 41)
        a(f"s_lshl_b32 s{sT2}, s2, 16")
        a(f"s_add_u32 s{sT2}, s{sT2}, {WQ + 49152}")
        a(f"buffer_store_dwordx4 {vr(CSQ,4)}, v1, s[{WS}:{WS+3}], s{sT2} offen")
        a("v_and_b32 v10, 31, v0")
        a("v_lshlrev_b32 v10, 2, v10")
        a.label("L_s0")
        a(f"buffer_load_dwordx4 v[12:15], v1, s[{WS}:{WS+3}], s{sFG} offen sc1")
        a(f"buffer_load_dword v16, v10, s[{WS}:{WS+3}], s{sFG} offen offset:{F_GH} sc1")
        a("s_waitcnt vmcnt(1)")
        a("v_min_u32 v17, v12, v13")
        a("v_min3_u32 v17, v14, v15, v17")
        for r in range(12, 16): a(f"v_xor_b32 v{r}, s{sXCC}, v{r}")
        a("v_or_b32 v12, v12, v13")
        a("v_or3_b32 v12, v14, v15, v12")
        a("v_and_b32 v12, 15, v12")
        a("v_cmp_gt_u32 vcc, 16, v17")
        a(f"v_cmp_ne_u32 s[{sEX}:{sEX+1}], 0, v12")
        a(f"s_or_b64 vcc, vcc, s[{sEX}:{sEX+1}]")
        a("s_cbranch_scc0 L_s0d")
        a("s_waitcnt vmcnt(0)")
        a(f"v_cmp_ne_u32 vcc, s{sT6}, v16")
        a(f"v_cmp_ne_u32 s[{sEX}:{sEX+1}], 0, v16")
        a(f"s_and_b64 vcc, vcc, s[{sEX}:{sEX+1}]")
        a("s_cbranch_scc1 L_s0slow")
        a(f"s_sub_u32 s{sTMO}, s{sTMO}, 1")
        a("s_cbranch_scc0 L_s0")
        a(f"s_mov_b32 s{sTMO}, 0")
        a("s_branch L_s0d")
        a.label("L_s0slow")
        a(f"s_mov_b32 s{sSLOW}, 1")
        a(f"s_add_u32 s{sFB}, s{sFB}, {F_SF}")
        a(f"s_add_u32 s{sMYF}, s{sMYF}, {F_SF}")
        self.publish(16, C_P0)
        for q in range(4):
            a(f"v_add_u32 v11, {4*q}, v1")
            self.poll(11, 16, C_P0)
        a.label("L_s0d")
        a(f"s_mov_b32 s{sXIN}, {XF}")
        a(f"s_mov_b32 s{sSTIN}, {ST}")
        self.stamp("sync0")

    QF, KA, VA0, VA1, IDX, Q2, KM = 8, 12, 13, 14, 15, 16, 17
    S0, S1, CC, OO, KF, VF = 32, 48, 64, 80, 96, 104

    def qkv(self):
        a = self.a
        X = 128; AQ, AV, RING, STT = 32, 48, 64, 96
        a.label("L_layer")
        a(f"s_lshl_b32 s{sTT}, s{sG}, 3")
        a(f"s_add_u32 s{sTT}, s{sTT}, s{sW}")
        a(f"s_lshl_b32 s{sT0}, s{sTT}, 15")
        a(f"s_add_u32 s{sT0}, s{sT0}, s{sXIN}")
        self.loads(X, 32, sT0, 1)
        a(f"s_lshl_b32 s{sT0}, s{sTT}, 12")
        a(f"s_add_u32 s{sT0}, s{sT0}, s{sSTIN}")
        self.loads(STT, 4, sT0, 1)
        a(f"v_add_u32 v20, {SLICE}, v1")
        a("v_and_b32 v21, 0x2f0, v1")
        a(f"v_add_u32 v21, {SLICE+2048}, v21")
        items = []
        for ks in range(32):
            items.append(dict(read=(20, (ks >> 1) * 3072 + (ks & 1) * 1024), pre=[f"s_waitcnt vmcnt({35-ks})"],
                              mfma=lambda r, ks=ks: f"v_mfma_f32_32x32x16_bf16 {vr(AQ,16)}, {vr(r,4)}, {vr(X+4*ks,4)}, {vr(AQ,16) if ks else '0'}"))
            items.append(dict(read=(21, (ks >> 1) * 3072 + (ks & 1) * 256),
                              mfma=lambda r, ks=ks: f"v_mfma_f32_32x32x16_bf16 {vr(AV,16)}, {vr(X+4*ks,4)}, {vr(r,4)}, {vr(AV,16) if ks else '0'}"))
        self.stream(items, 8, RING)
        self.stamp("qkv main")
        MU, RS, VE = 22, 24, 25
        a("s_waitcnt vmcnt(0)")
        for t in self.stats_ops(STT, MU, RS, VE, 26): a(t)
        a(f"s_lshl_b32 s{sT0}, s{sW}, 7")
        a(f"s_add_u32 s{sT0}, s{sT0}, {U(6)+4096}")
        a("v_and_b32 v26, 31, v0")
        a(f"v_lshl_add_u32 v26, v26, 2, s{sT0}")
        a(f"ds_write_b32 v26, v{RS}")
        CSQ = self.CSQ
        a(f"v_mfma_f32_32x32x8_bf16 {vr(AQ,16)}, {vr(CSQ,2)}, {vr(MU,2)}, {vr(AQ,16)}")
        a(f"v_mfma_f32_32x32x8_bf16 {vr(AV,16)}, {vr(MU,2)}, {vr(CSQ+2,2)}, {vr(AV,16)}")
        a("v_bfe_u32 v26, v0, 4, 1")
        a("v_lshrrev_b32 v27, 5, v0")
        a("v_lshlrev_b32 v28, 6, v26")
        a("v_lshl_add_u32 v28, v27, 4, v28")
        a(f"v_add_u32 v28, s{sT0}, v28")
        a("s_waitcnt lgkmcnt(0)")
        a(f"ds_read_b128 {vr(RING,4)}, v28")
        a(f"ds_read_b128 {vr(RING+4,4)}, v28 offset:32")
        a("v_and_b32 v29, 0x330, v1")
        a("v_bfe_u32 v30, v0, 2, 1")
        a("v_lshl_add_u32 v29, v30, 7, v29")
        a("v_bfe_u32 v30, v0, 3, 1")
        a("v_lshl_add_u32 v29, v30, 6, v29")
        a("v_and_b32 v30, 0xf0, v1")
        a("v_lshl_add_u32 v30, v27, 8, v30")
        a("v_lshl_add_u32 v31, v26, 9, v30")
        a(f"s_mul_i32 s{sT1}, s{sLAY}, {KV_STR}")
        a(f"s_lshl_b32 s{sKVH}, s{sJ}, 17")
        a(f"s_add_u32 s{sKVH}, s{sKVH}, s{sT1}")
        a(f"s_lshl_b32 s{sT1}, s{sW}, 11")
        a(f"s_add_u32 s{sKVH}, s{sKVH}, s{sT1}")
        a(f"s_add_u32 s{sKVH}, s{sKVH}, {KVG}")
        a(f"s_lshl_b32 s{sT1}, s{sG}, 14")
        a(f"s_add_u32 s{sT1}, s{sT1}, s{sKVH}")
        a(f"s_mul_i32 s{sT2}, s{sW}, {TSTR}")
        a(f"s_add_u32 s{sT2}, s{sT2}, {KVB}")
        T = 112
        for i in range(8): a(f"v_mul_f32 v{AQ+8+i}, v{RS}, v{AQ+8+i}")
        for i in range(4): a(f"v_cvt_pk_bf16_f32 v{T+i}, v{AQ+8+2*i}, v{AQ+9+2*i}")
        a(f"buffer_store_dwordx4 {vr(T,4)}, v29, s[{WS}:{WS+3}], s{sT1} offen sc1")
        a(f"v_add_u32 v29, s{sT2}, v29")
        a(f"ds_write_b128 v29, {vr(T,4)}")
        for i in range(8): a(f"v_cndmask_b32 v{AV+i}, v{AV+i}, v{AV+8+i}, s[{sN16}:{sN16+1}]")
        a("s_waitcnt lgkmcnt(1)")
        for i in range(8): a(f"v_mul_f32 v{AV+i}, v{RING+i}, v{AV+i}")
        for i in range(4): a(f"v_cvt_pk_bf16_f32 v{T+4+i}, v{AV+2*i}, v{AV+1+2*i}")
        a(f"buffer_store_dwordx4 {vr(T+4,4)}, v31, s[{WS}:{WS+3}], s{sT1} offen offset:1024 sc1")
        a(f"v_add_u32 v31, s{sT2}, v31")
        a(f"ds_write_b128 v31, {vr(T+4,4)} offset:1024")
        for r in range(4): a(f"v_mov_b32 v{T+8+r}, 0x3f803f80")
        a(f"v_mov_b32 v29, s{sT2}")
        a("s_mov_b64 exec, 1")
        a(f"ds_write_b128 v29, {vr(T+8,4)} offset:2048")
        a(f"ds_write_b128 v29, {vr(T+8,4)} offset:{SLOT+2048}")
        a("s_mov_b64 exec, -1")
        QF, Q2, KM = self.QF, self.Q2, self.KM
        a(f"v_mul_f32 v{VE}, {hex(f2u(0.25*LOG2E))}, v{RS}")
        for i in range(8): a(f"v_mul_f32 v{AQ+i}, v{VE}, v{AQ+i}")
        for i in range(4): a(f"v_cvt_pk_bf16_f32 v{QF+i}, v{AQ+2*i}, v{AQ+1+2*i}")
        a(f"v_mul_f32 v{Q2}, v{AQ}, v{AQ}")
        a(f"v_mul_f32 v{KM}, v{AQ+8}, v{AQ+8}")
        for i in range(1, 8):
            a(f"v_fmac_f32 v{Q2}, v{AQ+i}, v{AQ+i}")
            a(f"v_fmac_f32 v{KM}, v{AQ+8+i}, v{AQ+8+i}")
        a(f"v_permlane32_swap_b32 v{Q2}, v{KM}")
        a(f"v_add_f32 v{Q2}, v{Q2}, v{KM}")
        a(f"v_mov_b32 v{KM}, v{Q2}")
        a(f"v_permlane32_swap_b32 v{Q2}, v{KM}")
        self.wave_umax(KM, 26, rows32=True)
        a(f"v_or_b32 v{KM}, 1, v{KM}")
        a(f"v_mul_f32 v26, v{Q2}, v{KM}")
        a("v_sqrt_f32 v26, v26")
        a(f"v_add_u32 v{self.KA}, {KVB}, v1")
        a(f"v_mov_b32 v27, {KVB+2048}")
        a(f"v_add_u32 v28, {KVB+1024}, v30")
        a(f"v_cndmask_b32 v{self.VA0}, v28, v27, s[{sN16}:{sN16+1}]")
        a(f"v_add_u32 v28, 512, v28")
        a(f"v_cndmask_b32 v{self.VA1}, v28, v27, s[{sN16}:{sN16+1}]")
        a(f"v_mov_b32 v{self.IDX}, 0xdddddddd")
        for i in range(16): a(f"v_sub_f32 v{self.CC+i}, 0, v26")
        for i in range(16): a(f"v_mov_b32 v{self.OO+i}, 0")
        a("s_waitcnt lgkmcnt(0)")
        a("s_barrier")
        self.stamp("qkv done")

    def wave_umax(self, r, t, rows32=False):
        a = self.a
        a(f"v_max_u32_dpp v{r}, v{r}, v{r} quad_perm:[1,0,3,2] row_mask:0xf bank_mask:0xf")
        a(f"v_max_u32_dpp v{r}, v{r}, v{r} quad_perm:[2,3,0,1] row_mask:0xf bank_mask:0xf")
        a(f"v_max_u32_dpp v{r}, v{r}, v{r} row_half_mirror row_mask:0xf bank_mask:0xf")
        a(f"v_max_u32_dpp v{r}, v{r}, v{r} row_mirror row_mask:0xf bank_mask:0xf")
        a(f"v_mov_b32 v{t}, v{r}")
        a(f"v_permlane16_swap_b32 v{r}, v{t}")
        a(f"v_max_u32 v{r}, v{r}, v{t}")
        if not rows32:
            a(f"v_mov_b32 v{t}, v{r}")
            a(f"v_permlane32_swap_b32 v{r}, v{t}")
            a(f"v_max_u32 v{r}, v{r}, v{t}")

    def kv_dma(self, s):
        a = self.a
        a(f"s_add_u32 s{sT0}, s{sG}, {s}")
        a(f"s_and_b32 s{sT0}, s{sT0}, 7")
        a(f"s_lshl_b32 s{sT0}, s{sT0}, 14")
        a(f"s_add_u32 s{sT0}, s{sT0}, s{sKVH}")
        a(f"s_mul_i32 s{sT1}, s{sW}, {TSTR}")
        a(f"s_add_u32 m0, s{sT1}, {KVB + (s & 1) * SLOT}")
        a(f"buffer_load_dwordx4 v1, s[{WS}:{WS+3}], s{sT0} offen sc1 lds")
        a(f"buffer_load_dwordx4 v1, s[{WS}:{WS+3}], s{sT0} offen offset:1024 sc1 lds")

    def layer0_only(self, fn):
        a = self.a
        L = a.newlabel("l0")
        a(f"s_cmp_lg_u32 s{sLAY}, 0")
        a(f"s_cbranch_scc1 {L}")
        fn(L)
        a.label(L)

    def prep_issue(self, skip):
        a = self.a
        a(f"s_mov_b32 s{sPTYPE}, 0")
        a(f"s_cmp_ge_u32 s{sJ}, 24")
        a(f"s_cbranch_scc1 {skip}")
        a(f"s_mul_i32 s{sT0}, s{sG}, 24")
        a(f"s_add_u32 s{sT0}, s{sT0}, s{sJ}")
        a(f"s_cmp_ge_u32 s{sT0}, 112")
        a("s_cbranch_scc1 L_pr_o")
        self.srd(SA, P_W1, 512 * 3584)
        self.srd(SB, P_W3, 512 * 3584)
        a(f"s_mov_b32 s{sPSTR}, 3584")
        a(f"s_lshl_b32 s{sPC0}, s{sT0}, 5")
        a(f"s_mov_b32 s{sPC1}, s{sPC0}")
        a(f"s_and_b32 s{sT1}, s{sT0}, 15")
        a(f"s_mul_i32 s{sT1}, s{sT1}, 7")
        a(f"s_lshr_b32 s{sT2}, s{sT0}, 4")
        a(f"s_add_u32 s{sT1}, s{sT1}, s{sT2}")
        a(f"s_lshl_b32 s{sPCS}, s{sT1}, 9")
        a(f"s_add_u32 s{sPCS}, s{sPCS}, {CS13}")
        a(f"s_lshl_b32 s{sPDST}, s{sT1}, 15")
        a(f"s_lshl_b32 s{sT2}, s{sW}, 12")
        a(f"s_add_u32 s{sPDST}, s{sPDST}, s{sT2}")
        a(f"s_add_u32 s{sPDST}, s{sPDST}, {PW13}")
        a(f"s_mov_b32 s{sPTYPE}, 2")
        a("s_branch L_pr_go")
        a.label("L_pr_o")
        a(f"s_and_b32 s{sT1}, s{sT0}, 15")
        a(f"s_lshl_b32 s{sPC0}, s{sT1}, 6")
        a(f"s_mov_b32 s{sPSTR}, 1024")
        a(f"s_and_b32 s{sT2}, s{sT1}, 1")
        a(f"s_lshl_b32 s{sPDST}, s{sT2}, 12")
        a(f"s_lshr_b32 s{sT1}, s{sT1}, 1")
        a(f"s_cmp_ge_u32 s{sT0}, 128")
        a("s_cbranch_scc1 L_pr_2")
        self.srd(SA, P_WO, 512 * 1024)
        self.srd(SB, P_WO, 512 * 1024)
        a(f"s_lshl_b32 s{sT1}, s{sT1}, 16")
        a(f"s_add_u32 s{sPDST}, s{sPDST}, s{sT1}")
        a(f"s_and_b32 s{sT1}, s{sW}, 3")
        a(f"s_lshl_b32 s{sT1}, s{sT1}, 14")
        a(f"s_add_u32 s{sPDST}, s{sPDST}, s{sT1}")
        a(f"s_lshr_b32 s{sT1}, s{sW}, 2")
        a(f"s_lshl_b32 s{sT1}, s{sT1}, 13")
        a(f"s_add_u32 s{sPDST}, s{sPDST}, s{sT1}")
        a(f"s_add_u32 s{sPDST}, s{sPDST}, {PWO}")
        a("s_branch L_pr_o2")
        a.label("L_pr_2")
        self.srd(SA, P_W2, 1792 * 1024)
        self.srd(SB, P_W2, 1792 * 1024)
        a(f"s_mul_i32 s{sT1}, s{sT1}, {7*32768}")
        a(f"s_add_u32 s{sPDST}, s{sPDST}, s{sT1}")
        a(f"s_sub_u32 s{sT0}, s{sT0}, 128")
        a(f"s_lshr_b32 s{sT0}, s{sT0}, 4")
        a(f"s_lshl_b32 s{sT1}, s{sT0}, 19")
        a(f"s_add_u32 s{sPC0}, s{sPC0}, s{sT1}")
        a(f"s_lshl_b32 s{sT0}, s{sT0}, 1")
        a(f"s_lshr_b32 s{sT1}, s{sW}, 2")
        a(f"s_add_u32 s{sT0}, s{sT0}, s{sT1}")
        a(f"s_cmp_ge_u32 s{sT0}, 7")
        a(f"s_cbranch_scc1 {skip}")
        a(f"s_lshl_b32 s{sT0}, s{sT0}, 15")
        a(f"s_add_u32 s{sPDST}, s{sPDST}, s{sT0}")
        a(f"s_and_b32 s{sT1}, s{sW}, 1")
        a(f"s_lshl_b32 s{sT1}, s{sT1}, 14")
        a(f"s_add_u32 s{sPDST}, s{sPDST}, s{sT1}")
        a(f"s_and_b32 s{sT1}, s{sW}, 2")
        a(f"s_lshl_b32 s{sT1}, s{sT1}, 12")
        a(f"s_add_u32 s{sPDST}, s{sPDST}, s{sT1}")
        a(f"s_add_u32 s{sPDST}, s{sPDST}, {PW2}")
        a.label("L_pr_o2")
        a(f"s_add_u32 s{sPC1}, s{sPC0}, 32")
        a(f"s_mov_b32 s{sPTYPE}, 1")
        a.label("L_pr_go")
        a("v_lshrrev_b32 v120, 1, v0")
        a(f"v_mul_lo_u32 v120, v120, s{sPSTR}")
        a("v_and_b32 v121, 16, v1")
        a("v_add_u32 v120, v120, v121")
        a(f"s_lshl_b32 s{sT0}, s{sPSTR}, 5")
        a(f"s_mul_i32 s{sT1}, s{sT0}, s{sW}")
        a(f"s_lshl_b32 s{sT1}, s{sT1}, 1")
        a(f"s_lshl_b32 s{sT2}, s{sW}, 12")
        for pc in range(2):
            if pc: a(f"s_add_u32 s{sT1}, s{sT1}, s{sT0}")
            for part in range(2):
                a(f"s_add_u32 m0, s{sT2}, {pc*2048+part*1024}")
                a(f"s_add_u32 s{sT3}, s{sT1}, s{sPC1 if part else sPC0}")
                S = SB if part else SA
                a(f"buffer_load_dwordx4 v120, s[{S}:{S+3}], s{sT3} offen lds")

    def prep_store(self, skip):
        a = self.a
        a(f"s_cmp_eq_u32 s{sPTYPE}, 0")
        a(f"s_cbranch_scc1 {skip}")
        a("v_and_b32 v120, 3, v0")
        a("v_lshlrev_b32 v120, 3, v120")
        a("v_bfe_u32 v121, v0, 2, 2")
        a("v_lshl_add_u32 v120, v121, 5, v120")
        a("v_lshrrev_b32 v121, 5, v0")
        a("v_lshl_add_u32 v120, v121, 7, v120")
        a("v_bfe_u32 v121, v0, 4, 1")
        a("v_lshl_add_u32 v120, v121, 10, v120")
        a(f"s_lshl_b32 s{sT2}, s{sW}, 12")
        a(f"v_add_u32 v120, s{sT2}, v120")
        F = 128
        for i in range(4):
            for h2 in range(2):
                a(f"ds_read_b64_tr_b16 {vr(F+4*i+2*h2,2)}, v120 offset:{(i>>1)*2048+(i&1)*512+h2*256}")
        for r in range(124, 128): a(f"v_mov_b32 v{r}, 0x3f803f80")
        a("s_waitcnt lgkmcnt(0)")
        for i in range(4):
            a(f"buffer_store_dwordx4 {vr(F+4*i,4)}, v1, s[{WS}:{WS+3}], s{sPDST} offen offset:{i*1024} sc1")
        for i in range(4):
            a(f"v_mfma_f32_32x32x16_bf16 v[144:159], v[124:127], {vr(F+4*i,4)}, {'v[144:159]' if i else '0'}")
        a("v_lshlrev_b32 v120, 1, v1")
        a(f"s_lshl_b32 s{sT2}, s{sW}, 2")
        a(f"s_add_u32 s{sT2}, s{sT2}, {U(2)}")
        a(f"v_add_u32 v120, s{sT2}, v120")
        a("ds_write_b32 v120, v144")
        a("s_waitcnt lgkmcnt(0)")

    def prep_colsum(self, skip):
        a = self.a
        a(f"s_cmp_lg_u32 s{sPTYPE}, 2")
        a(f"s_cbranch_scc1 {skip}")
        a(f"s_cmp_lg_u32 s{sW}, 0")
        a(f"s_cbranch_scc1 {skip}")
        a("v_lshlrev_b32 v120, 1, v1")
        a(f"ds_read_b128 v[128:131], v120 offset:{U(2)}")
        a(f"ds_read_b128 v[132:135], v120 offset:{U(2)+16}")
        a("s_waitcnt lgkmcnt(0)")
        for k in (4, 2, 1):
            for i in range(k): a(f"v_add_f32 v{128+i}, v{128+i}, v{128+i+k}")
        self.split_pair(130, 128, 129)
        a("v_lshrrev_b32 v120, 1, v1")
        a(f"buffer_store_dwordx2 v[130:131], v120, s[{WS}:{WS+3}], s{sPCS} offen sc1")

    def prep_flag(self, skip):
        a = self.a
        a(f"s_cmp_lg_u32 s{sW}, 0")
        a(f"s_cbranch_scc1 {skip}")
        a(f"s_lshl_b32 s{sT2}, s{sJ}, 2")
        a(f"s_add_u32 s{sT2}, s{sT2}, s{sFG}")
        a("v_mov_b32 v120, 1")
        a("s_mov_b64 exec, 1")
        a(f"buffer_store_dword v120, off, s[{WS}:{WS+3}], s{sT2} offset:{F_PF} sc1")
        a("s_mov_b64 exec, -1")

    def spin(self, body, L=None):
        a = self.a
        L, D = a.newlabel("spin"), a.newlabel("spind")
        a.label(L)
        body()
        a(f"s_cbranch_vccz {D}")
        a(f"s_sub_u32 s{sTMO}, s{sTMO}, 1")
        a(f"s_cbranch_scc0 {L}")
        a(f"s_mov_b32 s{sTMO}, 0")
        a.label(D)

    def prep_wait(self, skip):
        a = self.a
        a("v_lshrrev_b32 v120, 3, v0")
        a("v_lshlrev_b32 v120, 14, v120")
        a("v_and_b32 v121, 0x70, v1")
        a("v_add_u32 v120, v120, v121")
        a(f"s_mov_b32 s{sT2}, {FL + F_PF}")
        def body():
            a(f"buffer_load_dwordx4 v[124:127], v120, s[{WS}:{WS+3}], s{sT2} offen sc1")
            a("s_waitcnt vmcnt(0)")
            a("v_min_u32 v124, v124, v125")
            a("v_min3_u32 v124, v126, v127, v124")
            a("v_cmp_eq_u32 vcc, 0, v124")
        self.spin(body)

    def kv_publish(self):
        a = self.a
        a(f"s_lshl_b32 s{sT0}, s{sLAY}, 12")
        a(f"s_lshl_b32 s{sT1}, s{sJ}, 7")
        a(f"s_add_u32 s{sT0}, s{sT0}, s{sT1}")
        a(f"s_add_u32 s{sT0}, s{sT0}, {F_KV}")
        a(f"s_lshl_b32 s{sT1}, s{sW}, 2")
        a(f"s_add_u32 s{sT1}, s{sT1}, s{sT0}")
        a(f"s_add_u32 s{sT1}, s{sT1}, s{sFG}")
        a("s_waitcnt vmcnt(0)")
        a("s_mov_b64 exec, 1")
        a(f"buffer_store_dword v{self.KM}, off, s[{WS}:{WS+3}], s{sT1} sc1")
        a("s_mov_b64 exec, -1")

    def kv_wait(self):
        a = self.a
        def rdy(skip):
            a("v_and_b32 v120, 7, v0")
            a("v_lshlrev_b32 v120, 2, v120")
            def body():
                a(f"buffer_load_dword v121, v120, s[{DBG}:{DBG+3}], 0 offen sc1")
                a("s_waitcnt vmcnt(0)")
                a("v_cmp_eq_u32 vcc, 0, v121")
            self.spin(body)
        self.layer0_only(rdy)
        a("v_lshrrev_b32 v120, 3, v0")
        a("v_lshlrev_b32 v120, 14, v120")
        a("v_and_b32 v121, 7, v0")
        a("v_lshl_add_u32 v120, v121, 2, v120")
        a(f"s_lshl_b32 s{sT0}, s{sLAY}, 12")
        a(f"s_lshl_b32 s{sT1}, s{sJ}, 7")
        a(f"s_add_u32 s{sT0}, s{sT0}, s{sT1}")
        a(f"s_add_u32 s{sT0}, s{sT0}, {FL + F_KV}")
        def body():
            a(f"buffer_load_dword v{self.KM}, v120, s[{WS}:{WS+3}], s{sT0} offen sc1")
            a("s_waitcnt vmcnt(0)")
            a(f"v_cmp_eq_u32 vcc, 0, v{self.KM}")
        self.spin(body)

    def wpref(self, rnd):
        a = self.a
        a(f"s_lshl_b32 s{sT0}, s{sW}, 12")
        src = sWO if rnd < 2 else sW13
        a(f"s_add_u32 s{sT1}, s{sT0}, s{src}")
        if rnd < 3:
            self.dma4(sT0, rnd * 32768, sT1, (rnd & 1) * 32768, 1)
        else:
            self.dma4(sT0, rnd * 32768, sT1, 32768, 1, n=3)
            L = a.newlabel("wp")
            a(f"s_cmp_eq_u32 s{sW}, 7")
            a(f"s_cbranch_scc1 {L}")
            a(f"buffer_load_dwordx4 v1, s[{WS}:{WS+3}], s{sT7} offen offset:3072 sc1 lds")
            a.label(L)

    def attention(self):
        a = self.a
        S = [self.S0, self.S1]; K = [self.KF, self.KF + 4]; V = [self.VF, self.VF + 8]
        Q, C, O, IDX = self.QF, self.CC, self.OO, self.IDX
        off = lambda t: ((t >> 3) & 1) * SLOT + (t & 7) * TSTR
        kread = lambda t: f"ds_read_b128 {vr(K[t&1],4)}, v{self.KA} offset:{off(t)}"
        vread = lambda t, u: f"ds_read_b128 {vr(V[t&1]+4*u,4)}, v{self.VA1 if u else self.VA0} offset:{off(t)}"
        qk = lambda t: f"v_mfma_f32_32x32x16_bf16 {vr(S[t&1],16)}, {vr(K[t&1],4)}, {vr(Q,4)}, {vr(C,16)}"
        pv = lambda t, u: f"v_smfmac_f32_32x32x32_bf16 {vr(O,16)}, {vr(V[t&1]+4*u,4)}, {vr(S[t&1]+8*u,8)}, v{IDX}"
        a(kread(0)); a(vread(0, 0)); a(vread(0, 1)); a(kread(1))
        a("s_waitcnt lgkmcnt(3)")
        a(qk(0))
        def point(s):
            a("s_waitcnt vmcnt(0) lgkmcnt(0)")
            a("s_barrier")
            if s < 7: self.kv_dma(s + 1)
            if s == 1: self.layer0_only(self.prep_issue)
            if s == 2: self.layer0_only(self.prep_store)
            if s == 3: self.layer0_only(self.prep_colsum)
            if s == 4: self.layer0_only(self.prep_flag)
            if s == 6:
                self.layer0_only(self.prep_wait)
                self.wpref(0); self.wpref(1)
            if s == 7:
                self.wpref(2); self.wpref(3)
        for t in range(64):
            c = S[t & 1]
            for i in range(16):
                if i == 2:
                    if t > 0: a(pv(t - 1, 1))
                    if t < 63:
                        a(vread(t + 1, 0))
                        a("s_waitcnt lgkmcnt(1)")
                    else: a("s_waitcnt lgkmcnt(0)")
                if i == 6 and t < 63:
                    a(qk(t + 1)); a(vread(t + 1, 1))
                if i == 11:
                    a(pv(t, 0))
                    if t < 62:
                        if (t & 7) == 6: point((t + 2) >> 3)
                        a(kread(t + 2))
                    if t == 2: self.kv_publish()
                    if t == 5:
                        self.kv_wait(); self.kv_dma(1)
                a(f"v_exp_f32 v{c+i}, v{c+i}")
        a(pv(63, 1))
        self.stamp("attn loop")
        self.wave_umax(self.KM, 26)
        a(f"v_mul_f32 v26, v{self.Q2}, v{self.KM}")
        a(f"v_cmp_nge_f32 vcc, {hex(f2u(-1.0 if self.force_fallback else TBOUND2))}, v26")
        a("s_cbranch_vccnz L_fallback")
        a.label("L_attn_fin")
        a("s_nop 7")
        a(f"v_rcp_f32 v26, v{O+8}")
        a(f"s_mul_i32 s{sT0}, s{sLAY}, {OF_STR}")
        a(f"s_lshl_b32 s{sT1}, s{sTT}, 15")
        a(f"s_add_u32 s{sT0}, s{sT0}, s{sT1}")
        a(f"s_lshl_b32 s{sT1}, s{sJ}, 10")
        a(f"s_add_u32 s{sT0}, s{sT0}, s{sT1}")
        a(f"s_add_u32 s{sT0}, s{sT0}, {OF}")
        for i in range(8): a(f"v_mul_f32 v{O+i}, v26, v{O+i}")
        for i in range(4): a(f"v_cvt_pk_bf16_f32 v{28+i}, v{O+2*i}, v{O+1+2*i}")
        a(f"buffer_store_dwordx4 v[28:31], v1, s[{WS}:{WS+3}], s{sT0} offen")
        self.publish(26, C_O)
        a("s_barrier")
        self.stamp("attn done")

    def fallback(self):
        a = self.a
        S, K, V, Q, C, O, IDX = self.S0, self.KF, self.VF, self.QF, self.CC, self.OO, self.IDX
        a.label("L_fallback")
        a(f"s_lshl_b32 s{sT1}, s{sW}, 11")
        a(f"s_sub_u32 s{sT2}, s{sKVH}, s{sT1}")
        a(f"s_mov_b32 s{sT0}, s{sT2}")
        a(f"s_add_u32 s{sT3}, s{sT2}, 131072")
        a("v_mov_b32 v26, 0xff800000")
        a.label("L_fb1")
        a(f"buffer_load_dwordx4 {vr(K,4)}, v1, s[{WS}:{WS+3}], s{sT0} offen sc1")
        a("s_waitcnt vmcnt(0)")
        a(f"v_mfma_f32_32x32x16_bf16 {vr(S,16)}, {vr(K,4)}, {vr(Q,4)}, 0")
        for i in range(8): a(f"v_max3_f32 v26, v{S+2*i}, v{S+2*i+1}, v26")
        a(f"s_add_u32 s{sT0}, s{sT0}, 2048")
        a(f"s_cmp_lt_u32 s{sT0}, s{sT3}")
        a("s_cbranch_scc1 L_fb1")
        a("v_mov_b32 v27, v26")
        a("v_permlane32_swap_b32 v26, v27")
        a("v_max_f32 v26, v26, v27")
        for i in range(16): a(f"v_sub_f32 v{C+i}, 0, v26")
        for i in range(16): a(f"v_mov_b32 v{O+i}, 0")
        for i in range(8): a(f"v_mov_b32 v{V+i}, 0x3f803f80")
        a(f"v_subrev_u32 v27, {KVB}, v{self.VA0}")
        a(f"s_mov_b32 s{sT0}, s{sT2}")
        a.label("L_fb2")
        a(f"buffer_load_dwordx4 {vr(K,4)}, v1, s[{WS}:{WS+3}], s{sT0} offen sc1")
        a(f"s_not_b64 exec, s[{sN16}:{sN16+1}]")
        a(f"buffer_load_dwordx4 {vr(V,4)}, v27, s[{WS}:{WS+3}], s{sT0} offen sc1")
        a(f"buffer_load_dwordx4 {vr(V+4,4)}, v27, s[{WS}:{WS+3}], s{sT0} offen offset:512 sc1")
        a("s_mov_b64 exec, -1")
        a("s_waitcnt vmcnt(0)")
        a(f"v_mfma_f32_32x32x16_bf16 {vr(S,16)}, {vr(K,4)}, {vr(Q,4)}, {vr(C,16)}")
        for i in range(16): a(f"v_exp_f32 v{S+i}, v{S+i}")
        for u in range(2):
            a(f"v_smfmac_f32_32x32x32_bf16 {vr(O,16)}, {vr(V+4*u,4)}, {vr(S+8*u,8)}, v{IDX}")
        a("s_nop 7")
        a(f"s_add_u32 s{sT0}, s{sT0}, 2048")
        a(f"s_cmp_lt_u32 s{sT0}, s{sT3}")
        a("s_cbranch_scc1 L_fb2")
        a("s_branch L_attn_fin")

    def loader(self):
        a = self.a
        a.label("L_loader")
        sL, s13, s2, sQ = sT0, sT1, sT2, sT3
        a(f"s_sub_u32 s{sL}, s{sW}, 4")
        a(f"s_lshl_b32 s{sL}, s{sL}, 12")
        a(f"s_add_u32 s{s13}, s{sW13}, s{sL}")
        a(f"s_add_u32 s{s2}, s{sW2}, s{sL}")
        a(f"s_lshl_b32 s{sQ}, s2, 16")
        a(f"s_add_u32 s{sQ}, s{sQ}, s{sL}")
        a(f"s_add_u32 s{sQ}, s{sQ}, {WQ}")
        t = lambda c, h, u: self.dma4(sL, U(u), s13, c * 32768 + h * 16384, 1)
        c2 = lambda c, h, u: self.dma4(sL, U(u), s2, c * 32768 + h * 16384, 1)
        q = lambda i: self.dma4(sL, U(3 + i), sQ, i * 16384, 1)
        def bar(n):
            if n is not None: a(f"s_waitcnt vmcnt({n})")
            a("s_barrier")
        a(f"s_mov_b32 m0, {U(8)-1024}")
        a(f"s_add_u32 s{sT7}, s{sW13}, {65536-1024}")
        a(f"buffer_load_dwordx4 v1, s[{WS}:{WS+3}], s{sT7} offen sc1 lds")
        t(2, 0, 8)
        bar(None)
        t(2, 1, 0); t(3, 0, 1); t(3, 1, 2); t(4, 0, 3)
        bar(12)
        t(4, 1, 9)
        bar(0)
        t(5, 0, 4); t(5, 1, 5); t(6, 0, 6); t(6, 1, 7); c2(0, 0, 8); c2(0, 1, 0)
        bar(16)
        c2(1, 0, 1); c2(1, 1, 2); c2(2, 0, 3); c2(2, 1, 9)
        bar(24)
        c2(3, 0, 4); c2(3, 1, 5)
        bar(24)
        c2(4, 0, 6); c2(4, 1, 7)
        bar(24)
        c2(5, 0, 8); c2(5, 1, 0)
        bar(24)
        c2(6, 0, 1); c2(6, 1, 2)
        bar(24)
        q(0)
        bar(20)
        q(1); q(2)
        bar(20)
        bar(12)
        bar(None)
        a("s_branch L_next")

    T13U = {0: (4, 5), 1: (6, 7), 2: (8, 0), 3: (1, 2), 4: (3, 9), 5: (4, 5), 6: (6, 7)}
    C2U = {0: (8, 0), 1: (1, 2), 2: (3, 9), 3: (4, 5), 4: (6, 7), 5: (8, 0), 6: (1, 2)}

    def ksplit_setup(self, res_const):
        a = self.a
        AA = 32
        a(f"s_lshr_b32 s{sT0}, s{sJ}, 3")
        a(f"s_lshl_b32 s{sT0}, s{sT0}, 1")
        a(f"s_and_b32 s{sT1}, s{sW}, 1")
        a(f"s_add_u32 s{sT0}, s{sT0}, s{sT1}")
        a(f"s_lshl_b32 s{sTT}, s{sG}, 3")
        a(f"s_add_u32 s{sTT}, s{sTT}, s{sT0}")
        a(f"s_lshr_b32 s{sT1}, s{sW}, 1")
        a(f"s_and_b32 s{sT2}, s{sJ}, 7")
        a(f"s_lshl_b32 s{sT2}, s{sT2}, 1")
        a(f"s_add_u32 s{sT2}, s{sT2}, s{sT1}")
        a(f"s_lshl_b32 s{sT3}, s{sTT}, 15")
        a(f"s_lshl_b32 s{sT4}, s{sT2}, 11")
        a(f"s_add_u32 s{sT3}, s{sT3}, s{sT4}")
        a(f"s_add_u32 s{sT4}, s{sT3}, s{sXIN}")
        if res_const: a(f"s_add_u32 s{sT4}, s{sT4}, {res_const}")
        a(f"buffer_load_dwordx4 v[20:23], v1, s[{WS}:{WS+3}], s{sT4} offen sc1")
        a(f"buffer_load_dwordx4 v[24:27], v1, s[{WS}:{WS+3}], s{sT4} offen offset:1024 sc1")
        a(f"s_mul_i32 s{sT4}, s{sT1}, 12288")
        a(f"s_lshl_b32 s{sT5}, s{sT1}, 12")
        a(f"s_add_u32 s{sT5}, s{sT5}, 4096")
        a(f"v_add_u32 v8, s{sT4}, v1")
        a(f"v_add_u32 v11, s{sT5}, v1")
        for k in (1, 2):
            a(f"v_add_u32 v{8+k}, {65536*k}, v8")
            a(f"v_add_u32 v{11+k}, {65536*k}, v11")

    def res_unpack(self):
        a = self.a
        for i in range(8):
            a(f"v_lshlrev_b32 v{32+2*i}, 16, v{20+i}")
            a(f"v_and_b32 v{33+2*i}, 0xffff0000, v{20+i}")

    def ksplit_finish(self, out_const, code, final_branch):
        a = self.a
        AA, AB = 32, 48
        a(f"s_lshl_b32 s{sT4}, s{sW}, 12")
        a(f"s_add_u32 s{sT4}, s{sT4}, {U(9)}")
        a(f"v_add_u32 v14, s{sT4}, v1")
        a("v_xor_b32 v15, 8192, v14")
        for q in range(4): a(f"ds_write_b128 v14, {vr(AB+4*q,4)} offset:{q*1024}")
        a("s_waitcnt lgkmcnt(0)")
        a("s_barrier")
        for q in range(4): a(f"ds_read_b128 {vr(AB+4*q,4)}, v15 offset:{q*1024}")
        for q in range(4):
            a(f"s_waitcnt lgkmcnt({3-q})")
            for i in range(4): a(f"v_add_f32 v{AA+4*q+i}, v{AA+4*q+i}, v{AB+4*q+i}")
            for i in range(2): a(f"v_cvt_pk_bf16_f32 v{20+2*q+i}, v{AA+4*q+2*i}, v{AA+4*q+2*i+1}")
        if final_branch:
            a(f"s_cmp_lg_u32 s{sLAY}, 0")
            a("s_cbranch_scc1 L_final")
        a(f"s_add_u32 s{sT4}, s{sT3}, s{sXIN}")
        a(f"s_add_u32 s{sT4}, s{sT4}, {out_const}")
        a(f"buffer_store_dwordx4 v[20:23], v1, s[{WS}:{WS+3}], s{sT4} offen")
        a(f"buffer_store_dwordx4 v[24:27], v1, s[{WS}:{WS+3}], s{sT4} offen offset:1024")
        a(f"v_add_f32 v28, v{AA}, v{AA+1}")
        a(f"v_mul_f32 v29, v{AA}, v{AA}")
        a(f"v_fmac_f32 v29, v{AA+1}, v{AA+1}")
        for i in range(2, 16):
            a(f"v_add_f32 v28, v28, v{AA+i}")
            a(f"v_fmac_f32 v29, v{AA+i}, v{AA+i}")
        a(f"s_lshl_b32 s{sT4}, s{sTT}, 12")
        a(f"s_lshr_b32 s{sT5}, s{sT2}, 2")
        a(f"s_lshl_b32 s{sT5}, s{sT5}, 10")
        a(f"s_add_u32 s{sT4}, s{sT4}, s{sT5}")
        a(f"s_and_b32 s{sT5}, s{sT2}, 3")
        a(f"s_lshl_b32 s{sT5}, s{sT5}, 2")
        a(f"s_add_u32 s{sT4}, s{sT4}, s{sT5}")
        a(f"s_add_u32 s{sT4}, s{sT4}, s{sSTIN}")
        a(f"s_add_u32 s{sT4}, s{sT4}, {out_const // XF_STR * ST_STR}")
        a("v_permlane32_swap_b32 v28, v29")
        a("v_add_f32 v28, v28, v29")
        a(f"buffer_store_dword v28, v1, s[{WS}:{WS+3}], s{sT4} offen")
        self.publish(30, code)

    def lds_ab(self, addr):
        return (8 + (addr >> 16), addr & 0xffff), (11 + (addr >> 16), addr & 0xffff)

    def wo(self):
        a = self.a
        AA, AB, RING, X = 32, 48, 64, 128
        a(f"s_cmp_ge_u32 s{sW}, 4")
        a("s_cbranch_scc1 L_loader")
        self.ksplit_setup(0)
        a("v_and_b32 v14, 15, v0")
        a(f"s_lshl_b32 s{sT4}, s{sT1}, 9")
        a(f"s_lshl_b32 s{sT5}, s{sT0}, 2")
        a(f"s_add_u32 s{sT4}, s{sT4}, s{sT5}")
        a(f"v_lshl_add_u32 v14, v14, 5, s{sT4}")
        a(f"s_mul_i32 s{sT4}, s{sLAY}, {OF_STR}")
        a(f"s_lshl_b32 s{sT5}, s{sTT}, 15")
        a(f"s_add_u32 s{sT4}, s{sT4}, s{sT5}")
        a(f"s_lshl_b32 s{sT5}, s{sT1}, 14")
        a(f"s_add_u32 s{sT4}, s{sT4}, s{sT5}")
        a(f"s_add_u32 s{sT4}, s{sT4}, {OF}")
        self.poll(14, 15, C_O)
        self.stamp("wo polled")
        self.loads(X, 16, sT4, 1)
        self.res_unpack()
        items = []
        for i in range(16):
            A, B = self.lds_ab(U(i >> 2) + (i & 3) * 1024)
            items.append(dict(read=A, pre=[f"s_waitcnt vmcnt({15-i})"],
                              mfma=lambda r, i=i: f"v_mfma_f32_32x32x16_bf16 {vr(AA,16)}, {vr(r,4)}, {vr(X+4*i,4)}, {vr(AA,16)}"))
            items.append(dict(read=B, mfma=lambda r, i=i: f"v_mfma_f32_32x32x16_bf16 {vr(AB,16)}, {vr(r,4)}, {vr(X+4*i,4)}, {vr(AB,16) if i else '0'}"))
        self.stream(items, 8, RING)
        self.ksplit_finish(XF_STR, C_X1, False)
        self.stamp("wo done")

    def up(self):
        a = self.a
        X = 128; ACC = [16, 32, 48, 64, 80]; RING = 96; D = 6
        CS, MU, EA, EC, TM = 8, 12, 14, 15, 120
        W = (2, 3, 4)
        a(f"s_lshr_b32 s{sT0}, s{sJ}, 4")
        a(f"s_lshl_b32 s{sT0}, s{sT0}, 2")
        a(f"s_add_u32 s{sT0}, s{sT0}, s{sW}")
        a(f"s_lshl_b32 s{sTT}, s{sG}, 3")
        a(f"s_add_u32 s{sTT}, s{sTT}, s{sT0}")
        a("v_and_b32 v14, 7, v0")
        a("v_lshlrev_b32 v14, 5, v14")
        a("v_and_b32 v15, 8, v0")
        a("v_add_u32 v14, v14, v15")
        a(f"s_lshr_b32 s{sT1}, s{sT0}, 1")
        a(f"s_lshl_b32 s{sT1}, s{sT1}, 8")
        a(f"s_and_b32 s{sT2}, s{sT0}, 1")
        a(f"s_lshl_b32 s{sT2}, s{sT2}, 2")
        a(f"s_add_u32 s{sT1}, s{sT1}, s{sT2}")
        a(f"v_add_u32 v14, s{sT1}, v14")
        a("v_mov_b32 v2, v1")
        a("v_add_u32 v3, 0x10000, v1")
        a("v_add_u32 v4, 0x20000, v1")
        a("v_lshrrev_b32 v5, 1, v1")
        a(f"s_lshl_b32 s{sT1}, s{sTT}, 15")
        a(f"s_add_u32 s{sT1}, s{sT1}, s{sXIN}")
        a(f"s_add_u32 s{sT1}, s{sT1}, {XF_STR}")
        a(f"s_lshl_b32 s{sT2}, s{sTT}, 12")
        a(f"s_add_u32 s{sT2}, s{sT2}, s{sSTIN}")
        a(f"s_add_u32 s{sT2}, s{sT2}, {ST_STR}")
        a(f"s_and_b32 s{sT3}, s{sJ}, 15")
        a(f"s_mul_i32 s{sT4}, s{sT3}, {7*512}")
        a(f"s_add_u32 s{sT4}, s{sT4}, {CS13}")
        a(f"s_mul_i32 s{sT5}, s{sTT}, {112*1024}")
        a(f"s_lshl_b32 s{sT3}, s{sT3}, 10")
        a(f"s_add_u32 s{sT5}, s{sT5}, s{sT3}")
        a(f"s_mul_i32 s{sT3}, s{sLAY}, {HF_STR}")
        a(f"s_add_u32 s{sT5}, s{sT5}, s{sT3}")
        a(f"s_add_u32 s{sT5}, s{sT5}, {HF}")
        self.poll(14, 15, C_X1)
        self.stamp("up polled")
        self.loads(X, 32, sT1, 1)
        STT = ACC[3]
        self.loads(STT, 4, sT2, 1)
        CSR = [ACC[4] + 2 * c for c in range(3)] + [8, 10, 6, 8]
        for c in (0, 1, 2, 3, 4, 5):
            a(f"buffer_load_dwordx2 {vr(CSR[c],2)}, v5, s[{WS}:{WS+3}], s{sT4} offen offset:{c*512} sc1")
        nv = 32 + 4 + 6
        def epi(c, acc):
            L = []
            for b in range(1):
                for i in range(8): L.append(f"v_mul_f32 v{TM+i}, v{EA}, v{acc+i}")
                for i in range(8): L.append(f"v_exp_f32 v{TM+i}, v{TM+i}")
                for i in range(8): L.append(f"v_mul_f32 v{acc+8+i}, v{acc+i}, v{acc+8+i}")
                for i in range(8): L.append(f"v_fma_f32 v{TM+i}, v{TM+i}, v{EC}, v{EC}")
                for i in range(8): L.append(f"v_rcp_f32 v{TM+i}, v{TM+i}")
                for i in range(8): L.append(f"v_mul_f32 v{acc+8+i}, v{TM+i}, v{acc+8+i}")
                for i in range(4): L.append(f"v_cvt_pk_bf16_f32 v{TM+i}, v{acc+8+2*i}, v{acc+9+2*i}")
            L.append(f"s_add_u32 s{sT3}, s{sT5}, {c*16384}")
            L.append(f"buffer_store_dwordx4 {vr(TM,4)}, v1, s[{WS}:{WS+3}], s{sT3} offen")
            return L
        items = []; c0 = 0; pending = []
        accof = {}
        free = list(ACC)
        for pi, n in enumerate(self.passes):
            tiles = list(range(c0, c0 + n)); c0 += n
            for c in tiles: accof[c] = ACC[c % 5]
            start = len(items)
            for ks in range(32):
                for c in tiles:
                    addr = U(self.T13U[c][ks >> 4]) + (ks & 15) * 1024
                    it = dict(read=(W[addr >> 16], addr & 0xffff),
                              mfma=lambda r, ks=ks, c=c: f"v_mfma_f32_32x32x16_bf16 {vr(accof[c],16)}, {vr(r,4)}, {vr(X+4*ks,4)}, {vr(accof[c],16) if ks else '0'}")
                    if ks == 0 and c == tiles[0]: it["bar"] = True
                    if pi == 0 and c == tiles[0]:
                        it["pre"] = [f"s_waitcnt vmcnt({nv-1-ks})"]
                    items.append(it)
            nm = len(items) - start
            fill = []
            if pi == 0:
                st = ["s_waitcnt vmcnt(0)"] + self.stats_ops(STT, MU, EA, EC, TM) + [f"v_mul_f32 v{EA}, {hex(f2u(-LOG2E))}, v{EA}"]
                items[-1]["post"] = st
            else:
                for c in pending: fill += epi(c, accof[c])
                if 6 in tiles or (5 in tiles):
                    pass
                lo = 3
                per = math.ceil(len(fill) / (nm - lo - 1))
                k = 0
                for m in range(lo, nm):
                    items[start + m].setdefault("post", []).extend(fill[k:k + per]); k += per
                assert k >= len(fill)
            for c in tiles:
                it = dict(mfma=lambda r, c=c: f"v_mfma_f32_32x32x8_bf16 {vr(accof[c],16)}, {vr(CSR[c],2)}, {vr(MU,2)}, {vr(accof[c],16)}")
                if c == 6: it["pre"] = ["s_waitcnt vmcnt(1)"]
                if c == 4: it["post"] = [f"buffer_load_dwordx2 {vr(CSR[6],2)}, v5, s[{WS}:{WS+3}], s{sT4} offen offset:{6*512} sc1"]
                items.append(it)
            pending = tiles
        self.stream(items, D, RING)
        a("s_barrier")
        for c in pending:
            for t in epi(c, accof[c]): a(t)
        self.publish(14, C_H + 6)
        self.stamp("up done")

    def down(self):
        a = self.a
        AA, AB, RING, X = 32, 48, 64, 128
        self.ksplit_setup(XF_STR)
        a("v_and_b32 v14, 7, v0")
        a(f"s_and_b32 s{sT4}, s{sJ}, 16")
        a(f"s_lshl_b32 s{sT4}, s{sT4}, 5")
        a(f"s_lshl_b32 s{sT5}, s{sT1}, 8")
        a(f"s_add_u32 s{sT4}, s{sT4}, s{sT5}")
        a(f"s_and_b32 s{sT5}, s{sT0}, 3")
        a(f"s_lshl_b32 s{sT5}, s{sT5}, 2")
        a(f"s_add_u32 s{sT4}, s{sT4}, s{sT5}")
        a(f"v_lshl_add_u32 v14, v14, 5, s{sT4}")
        a(f"s_mul_i32 s{sT4}, s{sTT}, {112*1024}")
        a(f"s_mul_i32 s{sT5}, s{sLAY}, {HF_STR}")
        a(f"s_add_u32 s{sT4}, s{sT4}, s{sT5}")
        a(f"s_lshl_b32 s{sT5}, s{sT1}, 13")
        a(f"s_add_u32 s{sT4}, s{sT4}, s{sT5}")
        a(f"s_add_u32 s{sT4}, s{sT4}, {HF}")
        self.poll(14, 15, C_H + 6)
        self.stamp("down polled")
        def hload(i):
            L = []
            if i % 4 == 0: L.append(f"s_add_u32 s{sT7}, s{sT4}, {(i>>3)*16384 + (i&4)*1024}")
            L.append(f"buffer_load_dwordx4 {vr(X+4*(i%32),4)}, v1, s[{WS}:{WS+3}], s{sT7} offen offset:{(i%4)*1024} sc1")
            return L
        for i in range(32):
            for t in hload(i): a(t)
        self.res_unpack()
        items = []
        for i in range(56):
            c = i >> 3
            A, B = self.lds_ab(U(self.C2U[c][(i >> 2) & 1]) + (i & 3) * 1024)
            it = dict(read=A, pre=[f"s_waitcnt vmcnt({min(31, 55-i)})"],
                      mfma=lambda r, i=i: f"v_mfma_f32_32x32x16_bf16 {vr(AA,16)}, {vr(r,4)}, {vr(X+4*(i%32),4)}, {vr(AA,16)}")
            if i and i % 8 == 0: it["bar"] = True
            items.append(it)
            it = dict(read=B, mfma=lambda r, i=i: f"v_mfma_f32_32x32x16_bf16 {vr(AB,16)}, {vr(r,4)}, {vr(X+4*(i%32),4)}, {vr(AB,16) if i else '0'}")
            if i + 32 < 56: it["post"] = hload(i + 32)
            items.append(it)
        self.stream(items, 8, RING)
        self.stamp("down main")
        self.ksplit_finish(2 * XF_STR, C_X2, True)
        self.stamp("down done")

    def nextlayer(self):
        a = self.a
        a.label("L_next")
        a(f"s_cmp_lg_u32 s{sLAY}, 0")
        a("s_cbranch_scc1 L_exit")
        a(f"s_lshl_b32 s{sT2}, s2, 16")
        a(f"s_add_u32 s{sT2}, s{sT2}, {WQ + 49152}")
        a(f"buffer_load_dwordx4 {vr(self.CSQ,4)}, v1, s[{WS}:{WS+3}], s{sT2} offen sc1")
        a("v_and_b32 v14, 7, v0")
        a("v_lshlrev_b32 v14, 5, v14")
        a("v_and_b32 v15, 8, v0")
        a("v_add_u32 v14, v14, v15")
        a(f"s_lshr_b32 s{sT1}, s{sW}, 1")
        a(f"s_lshl_b32 s{sT1}, s{sT1}, 8")
        a(f"s_and_b32 s{sT2}, s{sW}, 1")
        a(f"s_lshl_b32 s{sT2}, s{sT2}, 2")
        a(f"s_add_u32 s{sT1}, s{sT1}, s{sT2}")
        a(f"v_add_u32 v14, s{sT1}, v14")
        a("s_waitcnt vmcnt(0)")
        a("s_barrier")
        self.poll(14, 15, C_X2)
        a(f"s_mov_b32 s{sLAY}, 1")
        a(f"s_mov_b32 s{sCODE}, 256")
        a(f"s_mov_b32 s{sXIN}, {XF + 2*XF_STR}")
        a(f"s_mov_b32 s{sSTIN}, {ST + 2*ST_STR}")
        self.stamp("x2 polled")
        a("s_branch L_layer")

    def final(self):
        a = self.a
        a.label("L_final")
        self.srd(SB, P_OUT, 2 * MB)
        a("v_and_b32 v14, 31, v0")
        a("v_lshlrev_b32 v14, 10, v14")
        a("v_lshrrev_b32 v15, 5, v0")
        a("v_lshl_add_u32 v14, v15, 4, v14")
        a(f"s_lshl_b32 s{sT4}, s{sTT}, 15")
        a(f"s_lshl_b32 s{sT5}, s{sT2}, 6")
        a(f"s_add_u32 s{sT4}, s{sT4}, s{sT5}")
        for b in (20, 24):
            a(f"v_permlane32_swap_b32 v{b}, v{b+2}")
            a(f"v_permlane32_swap_b32 v{b+1}, v{b+3}")
        a(f"buffer_store_dwordx4 v[20:23], v14, s[{SB}:{SB+3}], s{sT4} offen")
        a(f"buffer_store_dwordx4 v[24:27], v14, s[{SB}:{SB+3}], s{sT4} offen offset:32")
        self.stamp("end")
        a.label("L_exit")
        a("s_endpgm")

    def build(self):
        self.prologue(); self.maybe_stop("p0")
        self.qkv(); self.maybe_stop("qkv")
        self.attention(); self.maybe_stop("attn")
        self.wo(); self.up(); self.down()
        self.nextlayer()
        self.loader()
        self.fallback()
        self.final()
        self.a.label("L_end")
        body = self.a.finish()
        hdr = open("cdna_kernels/" + NAME + ".s.ref").read().split("; Override launch")[0]
        txt = hdr + f"; @launch grid=(256,1,1) block=(512,1,1) lds={LDS_TOTAL}\n"
        txt += f""".amdgcn_target "amdgcn-amd-amdhsa--gfx950"
.text
.globl {NAME}_kernel
.p2align 8
.type {NAME}_kernel,@function
{NAME}_kernel:
{body}.section .rodata,"a"
.p2align 6
.amdhsa_kernel {NAME}_kernel
  .amdhsa_next_free_vgpr 256
  .amdhsa_next_free_sgpr 96
  .amdhsa_accum_offset 256
  .amdhsa_group_segment_fixed_size 0
  .amdhsa_kernarg_size 80
  .amdhsa_user_sgpr_count 2
  .amdhsa_user_sgpr_kernarg_segment_ptr 1
  .amdhsa_system_sgpr_workgroup_id_x 1
.end_amdhsa_kernel
"""
        return txt

def stamp_order(names):
    i0 = names.index("sync0") + 1
    pre = names[:i0]
    rest = names[i0:]
    common = rest[:rest.index("attn done") + 1]
    comp = rest[rest.index("attn done") + 1: rest.index("x2 polled")]
    c = pre + common + comp + ["x2 polled"] + common + comp[:-1] + ["end"]
    l = pre + common + ["x2 polled"] + common
    return c, l

if __name__ == "__main__":
    import argparse
    ap = argparse.ArgumentParser()
    ap.add_argument("-o", default="cdna_kernels/" + NAME + ".s")
    ap.add_argument("--stop"); ap.add_argument("--stamps", action="store_true")
    ap.add_argument("--slow", action="store_true"); ap.add_argument("--fallback", action="store_true"); ap.add_argument("--remap", action="store_true")
    x = ap.parse_args()
    open(x.o, "w").write(Gen(stop=x.stop, stamps=x.stamps, force_slow=x.slow, force_fallback=x.fallback, remap=x.remap).build())
```

```python
import sys, math, struct, os
from asmlib import *

NAME = "interleave_layers__softmax_full_mha__glu_gated_swiglu__prompt"
MB = 1 << 20; KB = 1 << 10
XF = 0; XF_STR = 2 * MB
OF = 4 * MB
HF = 6 * MB
ST = 13 * MB; ST_STR = 256 * KB
PWO = 13 * MB + 512 * KB
PW13 = 14 * MB
CS13 = 17 * MB + 512 * KB
PW2 = 18 * MB
WQ = 20 * MB
KVG = 22 * MB; KV_STR = 4 * MB
FL = 30 * MB; FL_STR = 16 * KB
F_LF, F_SF, F_PF, F_KV = 0, 1024, 2048, 4096
TSB = 31 * MB
WS_USED = 33 * MB
OOB = 0x7ff00000
D_LRDY, D_GRDY, D_SHOUT = 0, 128, 160
U = lambda i: i * 16384
LDS_TOTAL = 163840
TSTR = 2064; SLOT = 8 * TSTR; KVB = LDS_TOTAL - 2 * SLOT
SLICE = U(3)
SCR = U(6) + 4096
WS, SA, SB, DBG = 4, 8, 12, 16
P_X, P_WQKV, P_WO, P_BX, P_W1, P_W3, P_W2, P_OUT, P_DBG, P_WS = 20, 22, 24, 26, 28, 30, 32, 34, 36, 38
sG, sJ, sW, sXCC, sLAY, sSLOW, sTMO, sFB, sMYF, sCODE = range(40, 50)
sT0, sT1, sT2, sT3, sT4, sT5, sT6, sT7 = range(50, 58)
sFG, sQX, sQS, sKVH, sKVO, sKVF, sKVA, sOD = range(58, 66)
sKT, sKS, sOS, sHS, sOUT, sUX, sUS, sUC, sHD, sKH, sTL = range(66, 77)
sL, s13, s2_, sWOs, sQ, sPD, sPA, sPB, sPCS, sPSTR, sTCH = range(66, 77)
sTSI = 77
sEX = 78; sHI = 80; sN16 = 82; sRDY = 84; sBAD = 86
sTS = 88; sTR = 90; sE0 = 92; sE1 = 94
C_P0, C_O, C_X1, C_H3, C_H6, C_X2 = 1, 2, 3, 4, 5, 6
LOG2E = 1.4426950408889634
def f2u(x): return struct.unpack("<I", struct.pack("<f", x))[0]
TBOUND2 = 48.0 * 48.0
cost = lambda t: 0 if callable(t) else (8 if t.split()[0] in TRANS else 4)
SRD = lambda r: f"s[{r}:{r+3}]"

class Gen:
    def __init__(self, stop=None, stamps=False, force_slow=False, force_fallback=False, remap=False, opt=None):
        self.a = Asm(); self.stop = stop; self.stamps = stamps
        self.force_slow = force_slow; self.force_fallback = force_fallback
        self.remap = remap; self.opt = opt or {}
        self.dst = []
        self.vq = []; self.dq = []
    def o(self, k, d): return int(self.opt.get(k, d))

    def vm(self, text, tag=None):
        self.a(text); self.vq.append(tag)
    def ds(self, text, tag=None):
        self.a(text); self.dq.append(tag)
    def _wait(self, q, tag, name, mx):
        if tag not in q: return None
        i = len(q) - 1 - q[::-1].index(tag)
        n = min(len(q) - 1 - i, mx)
        del q[:len(q) - n]
        return f"{name}({n})"
    def wait(self, vm=None, ds=None):
        w = []
        if vm == "all": w.append("vmcnt(0)"); self.vq.clear()
        elif vm is not None: w.append(self._wait(self.vq, vm, "vmcnt", 63))
        if ds == "all": w.append("lgkmcnt(0)"); self.dq.clear()
        elif ds is not None: w.append(self._wait(self.dq, ds, "lgkmcnt", 15))
        w = [x for x in w if x]
        if w: self.a("s_waitcnt " + " ".join(w))
    def emit(self, L):
        for t in L:
            if callable(t): t()
            else: self.a(t)

    def stamp(self, name):
        if not self.stamps: return
        a = self.a
        a(f"s_memtime s[{sTS}:{sTS+1}]")
        a(f"s_memrealtime s[{sTR}:{sTR+1}]")
        a("s_waitcnt lgkmcnt(0)")
        a(f"v_mov_b32 v18, s{sTS}")
        a(f"v_mov_b32 v19, s{sTR}")
        a("s_mov_b64 exec, 1")
        a(f"buffer_store_dwordx2 v[18:19], off, {SRD(WS)}, s{sTSI}")
        a("s_mov_b64 exec, -1")
        a(f"s_add_u32 s{sTSI}, s{sTSI}, 8")
    def dstamp(self, name, base):
        if not self.stamps: return
        k = len(self.dst); self.dst.append((name, base + 2 * k))
        self.a(f"s_memtime s[{sTS}:{sTS+1}]")
        self.a(f"s_memrealtime s[{sTR}:{sTR+1}]")
        self.a("s_waitcnt lgkmcnt(0)")
        self.a(f"v_mov_b32 v{base+2*k}, s{sTS}")
        self.a(f"v_mov_b32 v{base+2*k+1}, s{sTR}")
    def dflush(self):
        if not self.stamps: return
        a = self.a
        a("s_mov_b64 exec, 1")
        for name, r in self.dst:
            a(f"buffer_store_dwordx2 v[{r}:{r+1}], off, {SRD(WS)}, s{sTSI}")
            a(f"s_add_u32 s{sTSI}, s{sTSI}, 8")
        a("s_mov_b64 exec, -1")
        self.dst = []

    def srd(self, d, p, size):
        a = self.a
        a(f"s_mov_b32 s{d}, s{p}")
        a(f"s_and_b32 s{d+1}, s{p+1}, 0xffff")
        a(f"s_mov_b32 s{d+2}, {size}")
        a(f"s_mov_b32 s{d+3}, 0x20000")

    def sx(self, dst, const, *terms):
        a = self.a
        first = True
        for tm in terms:
            r, mul = tm[0], tm[1]; shr = tm[2] if len(tm) > 2 else 0; mask = tm[3] if len(tm) > 3 else None
            t = dst if first else sT7
            assert r != dst or first
            cur = r
            if shr: a(f"s_lshr_b32 s{t}, s{cur}, {shr}"); cur = t
            if mask is not None: a(f"s_and_b32 s{t}, s{cur}, {mask}"); cur = t
            if mul != 1:
                if mul & (mul - 1) == 0: a(f"s_lshl_b32 s{t}, s{cur}, {mul.bit_length()-1}")
                else: a(f"s_mul_i32 s{t}, s{cur}, {mul}")
                cur = t
            if first:
                if cur != dst: a(f"s_mov_b32 s{dst}, s{cur}")
            else: a(f"s_add_u32 s{dst}, s{dst}, s{cur}")
            first = False
        if const: a(f"s_add_u32 s{dst}, s{dst}, {const}")

    def fload(self, dst, base, off, tag, tmp=sT7, flags="sc1"):
        def f():
            key = (base, off >> 12)
            if getattr(self, "_tmpkey", {}).get(tmp) != key:
                self.a(f"s_add_u32 s{tmp}, s{base}, {off & ~4095}")
                self._tmpkey = dict(getattr(self, "_tmpkey", {})); self._tmpkey[tmp] = key
            self.vm(f"buffer_load_dwordx4 {vr(dst,4)}, v1, {SRD(WS)}, s{tmp} offen offset:{off & 4095} {flags}", tag)
        return f
    def forget(self): self._tmpkey = {}

    def dma(self, ldsb, ldsc, src, srcc, idx, tag=None, pol="sc1"):
        a = self.a
        a(f"s_add_u32 m0, s{ldsb}, {ldsc}")
        a(f"s_add_u32 s{sT7}, s{src}, {srcc}")
        for i in idx:
            self.vm(f"buffer_load_dwordx4 v1, {SRD(WS)}, s{sT7} offen offset:{i*1024} {pol} lds", tag)

    def spin(self, body):
        a = self.a
        L, D = a.newlabel("spin"), a.newlabel("spind")
        a.label(L)
        body()
        a(f"s_cbranch_vccz {D}")
        a(f"s_sub_u32 s{sTMO}, s{sTMO}, 1")
        a(f"s_cbranch_scc0 {L}")
        a(f"s_mov_b32 s{sTMO}, 0")
        a.label(D)

    def poll(self, vaddr, vtmp, code):
        a = self.a
        a(f"s_add_u32 s{sT6}, s{sCODE}, {code}")
        def body():
            a(f"buffer_load_dword v{vtmp}, v{vaddr}, {SRD(WS)}, s{sFB} offen sc1")
            a("s_waitcnt vmcnt(0)")
            a(f"v_cmp_gt_u32 vcc, s{sT6}, v{vtmp}")
        self.spin(body)
        self.vq.clear()
        self.acquire()
    def poll_issue(self, vaddr, vtmp):
        self.vm(f"buffer_load_dword v{vtmp}, v{vaddr}, {SRD(WS)}, s{sFB} offen sc1", "poll")
    def poll_check(self, vaddr, vtmp, code):
        a = self.a
        D = a.newlabel("pc")
        a(f"s_add_u32 s{sT6}, s{sCODE}, {code}")
        self.wait(vm="poll")
        a(f"v_cmp_gt_u32 vcc, s{sT6}, v{vtmp}")
        a(f"s_or_b32 vcc_lo, vcc_lo, s{sSLOW}")
        a(f"s_cbranch_scc0 {D}")
        q = list(self.vq)
        self.poll(vaddr, vtmp, code)
        self.vq = q
        a.label(D)

    def acquire(self):
        a = self.a
        F = a.newlabel("acq")
        a(f"s_cmp_eq_u32 s{sSLOW}, 0")
        a(f"s_cbranch_scc1 {F}")
        a("buffer_inv sc1")
        a("s_waitcnt vmcnt(0)")
        a.label(F)

    def publish(self, vtmp, code, tag="all"):
        a = self.a
        S, D = a.newlabel("pubs"), a.newlabel("pubd")
        a(f"s_add_u32 s{sT6}, s{sCODE}, {code}")
        a(f"v_mov_b32 v{vtmp}, s{sT6}")
        a("s_mov_b64 exec, 1")
        a(f"s_cmp_lg_u32 s{sSLOW}, 0")
        a(f"s_cbranch_scc1 {S}")
        self.wait(vm=tag)
        self.vm(f"buffer_store_dword v{vtmp}, off, {SRD(WS)}, s{sMYF}")
        self.tails.append((S, D, vtmp))
        a.label(D)
        a("s_mov_b64 exec, -1")
    def publish_tails(self):
        a = self.a
        for S, D, vtmp in self.tails:
            a.label(S)
            a("s_waitcnt vmcnt(0)")
            a("buffer_wbl2 sc1")
            a("s_waitcnt vmcnt(0)")
            a(f"buffer_store_dword v{vtmp}, off, {SRD(WS)}, s{sMYF} sc1")
            a(f"s_branch {D}")

    def split_pair(self, dst, c, tmp):
        return [f"v_cvt_pk_bf16_f32 v{dst}, v{c}, v{c}", f"v_and_b32 v{tmp}, 0xffff0000, v{dst}",
                f"v_sub_f32 v{tmp}, v{c}, v{tmp}", f"v_cvt_pk_bf16_f32 v{dst+1}, v{tmp}, v{tmp}"]

    def stats_ops(self, st, mu4, rstd, vare):
        L = []
        for k in (8, 4, 2, 1):
            for i in range(k):
                L.append(f"v_add_f32 v{st+i}, v{st+i}, v{st+i+k}")
        t0 = st + 3
        L.append(f"v_mov_b32 v{st+1}, v{st}")
        L.append(f"v_mov_b32 v{st+2}, {hex(f2u(1.0/512))}")
        L.append(f"v_permlane32_swap_b32 v{st}, v{st+1}")
        L.append(f"v_mul_f32 v{st}, {hex(f2u(-1.0/512))}, v{st}")
        L.append(f"v_mul_f32 v{t0}, v{st}, v{st}")
        L.append(f"v_fma_f32 v{vare}, v{st+1}, v{st+2}, -v{t0}")
        L.append(f"v_cvt_pk_bf16_f32 v{t0}, v{st}, v{st}")
        L.append(f"v_max_f32 v{vare}, 0, v{vare}")
        L.append(f"v_and_b32 v{t0}, 0xffff0000, v{t0}")
        L.append(f"v_add_f32 v{vare}, {hex(f2u(1e-5))}, v{vare}")
        L.append(f"v_sub_f32 v{t0}, v{st}, v{t0}")
        L.append(f"v_rsq_f32 v{rstd}, v{vare}")
        for i in range(4): L.append(f"v_cvt_pk_bf16_f32 v{mu4+i}, v{st}, v{t0}")
        return L

    def spread(self, items, lo, hi, fill):
        tot = sum(map(cost, fill)); n = hi - lo; k = 0; acc = 0
        for m in range(n):
            while k < len(fill) and (acc + cost(fill[k]) / 2 <= tot * (m + 1) / n or m == n - 1):
                items[lo + m].setdefault("post", []).append(fill[k]); acc += cost(fill[k]); k += 1

    def stream_begin(self, items, D, ring):
        self.S = dict(items=items, D=D, issued=0)
        rd = [i for i in range(len(items)) if items[i].get("read")]
        self.S.update(rd=rd, slot={i: ring + 4 * (k % D) for k, i in enumerate(rd)}, pos={i: k for k, i in enumerate(rd)})
        self._try(D, 0)
    def _try(self, limit, consumed):
        S = self.S; items, rd = S["items"], S["rd"]
        while S["issued"] < min(limit, len(rd)):
            i = rd[S["issued"]]
            if items[i].get("bar"):
                if S["issued"] - consumed > S["D"] // 2: return
                self.wait(ds="all")
                self.a("s_barrier")
                items[i]["bar"] = False
            va, off = items[i]["read"]
            self.ds(f"ds_read_b128 {vr(S['slot'][i],4)}, v{va} offset:{off}", ("rd", S["issued"]))
            S["issued"] += 1
    def stream_run(self, pair=2):
        S = self.S; items = S["items"]
        for i, it in enumerate(items):
            self.emit(it.get("pre", []))
            dtag = None
            if it.get("read"):
                k = S["pos"][i]
                if k >= S["issued"]: self._try(k + 1, k)
                if ("rd", k) in self.dq: dtag = ("rd", min(k + pair, S["issued"]) - 1)
            self.wait(vm=it.get("vm"), ds=dtag)
            self.a(it["mfma"](S["slot"].get(i)))
            if it.get("read"): self._try(k + 1 + S["D"], k + 1)
            self.emit(it.get("post", []))

    @staticmethod
    def ramp(seq, nsteps, n0, wd):
        init, per, k = [], {}, 0
        lead = lambda step: sum(1 for q, _ in seq[:k] if q > step)
        while k < min(n0, len(seq)): init.append(seq[k][1]); k += 1
        for st in range(nsteps):
            n = 0
            while k < len(seq) and (seq[k][0] <= st + 1 or (n < 2 and lead(st) < wd)):
                per.setdefault(st, []).append(seq[k][1]); k += 1; n += 1
        assert k == len(seq)
        return init, per

    def layer0(self, fn):
        a = self.a
        L = a.newlabel("l0")
        a(f"s_cmp_lg_u32 s{sLAY}, 0")
        a(f"s_cbranch_scc1 {L}")
        vq, dq = list(self.vq), list(self.dq)
        fn()
        self.vq, self.dq = vq, dq
        a.label(L)

    def prologue(self):
        a = self.a
        a("s_cmp_ge_u32 s2, 256")
        a("s_cbranch_scc1 L_exit")
        if self.stamps:
            a(f"s_memtime s[{sE0}:{sE0+1}]")
            a(f"s_memrealtime s[{sE1}:{sE1+1}]")
        a("s_load_dwordx16 s[20:35], s[0:1], 0")
        a("s_load_dwordx4 s[36:39], s[0:1], 64")
        a(f"s_getpc_b64 s[{sT0}:{sT1}]")
        a.label("L_pc")
        if self.remap:
            a(f"s_lshr_b32 s{sG}, s2, 5")
            a(f"s_and_b32 s{sJ}, s2, 31")
        else:
            a(f"s_and_b32 s{sG}, s2, 7")
            a(f"s_lshr_b32 s{sJ}, s2, 3")
        a("v_bfe_u32 v2, v0, 4, 4")
        a("v_lshrrev_b32 v1, 6, v0")
        a("v_and_b32 v0, 63, v0")
        a(f"v_readfirstlane_b32 s{sW}, v1")
        a(f"s_getreg_b32 s{sXCC}, hwreg(HW_REG_XCC_ID, 0, 4)")
        if self.force_slow: a(f"s_and_b32 s{sXCC}, s{sJ}, 1")
        a("v_lshlrev_b32 v1, 4, v0")
        self.sx(sFG, FL, (sG, FL_STR))
        a(f"s_cmp_ge_u32 s{sW}, 4")
        a("s_cbranch_scc1 L_startL")
        a("v_lshrrev_b32 v4, 3, v0")
        a("v_and_b32 v5, 0x70, v1")
        a("v_lshl_add_u32 v6, v4, 10, v5")
        self.sx(sT2, 0, (sG, 256 * 1024), (sJ, 8 * 1024), (sW, 256))
        a("s_waitcnt lgkmcnt(0)")
        self.srd(WS, P_WS, WS_USED)
        self.srd(SA, P_X, 2 * MB)
        for r in range(20, 24): a(f"v_mov_b32 v{r}, 0")
        self.sx(sT6, 0, (sJ, 8), (sW, 1))
        a(f"s_cmp_lg_u32 s{sT6}, 0")
        a("s_cbranch_scc1 L_notlead0")
        a(f"buffer_store_dwordx4 v[20:23], v1, {SRD(WS)}, s{sFG} offen")
        a.label("L_notlead0")
        self.vm(f"buffer_load_dwordx4 v[8:11], v6, {SRD(SA)}, s{sT2} offen", "x")
        self.vm(f"buffer_load_dwordx4 v[12:15], v6, {SRD(SA)}, s{sT2} offen offset:128", "x")
        self.srd(DBG, P_DBG, 256)
        a(f"s_lshl_b32 s{sT5}, s{sG}, 2")
        a(f"s_or_b32 s{sXCC}, s{sXCC}, 16")
        a(f"s_cmp_lg_u32 s{sT6}, 0")
        a("s_cbranch_scc1 L_notlead")
        a(f"v_mov_b32 v24, s{sXCC}")
        a("s_mov_b64 exec, 1")
        a("s_waitcnt vmcnt(2)")
        a(f"buffer_store_dword v24, off, {SRD(DBG)}, s{sT5} offset:{D_LRDY}")
        a("s_mov_b64 exec, -1")
        a.label("L_notlead")
        self.sx(sT3, XF, (sG, 8 * 32768), (sJ, 32768, 2), (sW, 8192), (sJ, 128, 0, 3))
        self.sx(sT4, ST, (sG, 8 * 4096), (sJ, 4096, 2), (sW, 1024), (sJ, 128, 0, 3))
        a("v_lshrrev_b32 v7, 2, v0")
        a("v_lshlrev_b32 v7, 9, v7")
        self.vm(f"buffer_load_dword v16, v7, {SRD(WS)}, s{sT3} offen sc1")
        a("v_and_b32 v7, 0x200, v1")
        self.vm(f"buffer_load_dword v16, v7, {SRD(WS)}, s{sT4} offen sc1")
        a("v_lshlrev_b32 v7, 7, v4")
        self.vm(f"buffer_load_dword v16, v7, {SRD(WS)}, s{sFG} offen sc1")
        a(f"s_cmp_lg_u32 s{sT6}, 1")
        a("s_cbranch_scc1 L_notlead1")
        a("v_lshrrev_b32 v7, 1, v0")
        a("v_lshlrev_b32 v7, 7, v7")
        a("v_and_b32 v24, 16, v1")
        a("v_add_u32 v7, v7, v24")
        a(f"s_add_u32 s{sT0}, s{sFG}, {F_KV}")
        a(f"s_add_u32 s{sT1}, s{sFG}, {F_KV+4096}")
        for o in (1024, 2048):
            a(f"buffer_store_dwordx4 v[20:23], v1, {SRD(WS)}, s{sFG} offen offset:{o} sc1")
        a(f"buffer_store_dwordx4 v[20:23], v7, {SRD(WS)}, s{sT0} offen sc1")
        a(f"buffer_store_dwordx4 v[20:23], v7, {SRD(WS)}, s{sT1} offen sc1")
        a.label("L_notlead1")
        self.consts()
        a(f"s_lshr_b32 s{sKH}, s{sW}, 1")
        self.sx(sTL, 0, (sJ, 2, 3), (sW, 1, 0, 1))
        self.sx(sT0, 0, (sJ, 2, 0, 7), (sKH, 1))
        self.sx(sT1, 0, (sG, 8), (sTL, 1))
        self.sx(sKT, XF, (sT1, 32768), (sT0, 2048))
        self.sx(sKS, ST, (sT1, 4096), (sT0, 1024, 2), (sT0, 4, 0, 3))
        self.sx(sOS, OF, (sT1, 32768), (sKH, 16384))
        self.sx(sHS, HF, (sT1, 112 * 1024), (sKH, 8192))
        self.sx(sOUT, 0, (sT1, 32768), (sT0, 64))
        self.sx(sT1, 0, (sG, 8), (sJ, 4, 4), (sW, 1))
        self.sx(sUX, XF + XF_STR, (sT1, 32768))
        self.sx(sUS, ST + ST_STR, (sT1, 4096))
        self.sx(sUC, CS13, (sJ, 7 * 1024, 0, 15))
        self.sx(sHD, HF, (sT1, 112 * 1024), (sJ, 1024, 0, 15))
        self.sx(sT2, U(7), (sW, 2048))
        a(f"v_add_u32 v7, s{sT2}, v1")
        a("v_lshlrev_b32 v24, 3, v5")
        a("v_lshrrev_b32 v25, 4, v0")
        a("v_lshl_add_u32 v24, v25, 5, v24")
        a("v_and_b32 v25, 8, v0")
        a(f"v_add3_u32 v24, v24, v25, s{sT2}")
        a("v_lshl_add_u32 v25, v4, 9, v5")
        a("v_and_b32 v26, 1, v0")
        a("v_lshlrev_b32 v27, 9, v26")
        a("v_lshl_add_u32 v27, v4, 4, v27")
        a("v_and_b32 v28, 2, v0")
        a("v_lshl_add_u32 v27, v28, 2, v27")
        a("v_and_b32 v29, 4, v0")
        a("v_add_u32 v27, v27, v29")
        a(f"s_add_u32 s{sT2}, s{sT3}, 4096")
        self.dstamp("issued", 200)
        a("s_waitcnt vmcnt(7)")
        a(f"s_cmp_eq_u32 s{sT6}, 1")
        a("s_cbranch_scc1 L_xw")
        self.wait(vm="x")
        a.label("L_xw")
        self.dstamp("x landed", 200)
        a("ds_write_b128 v7, v[8:11]")
        a("ds_write_b128 v7, v[12:15] offset:1024")
        a("ds_read2_b64 v[32:35], v24 offset0:0 offset1:2")
        a("ds_read2_b64 v[36:39], v24 offset0:128 offset1:130")
        for u in range(2):
            for i in range(4):
                a(f"v_lshlrev_b32 v{40+8*u+2*i}, 16, v{8+4*u+i}")
                a(f"v_and_b32 v{41+8*u+2*i}, 0xffff0000, v{8+4*u+i}")
        a("s_waitcnt lgkmcnt(1)")
        self.vm(f"buffer_store_dwordx4 v[32:35], v25, {SRD(WS)}, s{sT3} offen")
        a("s_waitcnt lgkmcnt(0)")
        self.vm(f"buffer_store_dwordx4 v[36:39], v25, {SRD(WS)}, s{sT2} offen")
        for u in range(2):
            b = 40 + 8 * u
            a(f"v_pk_mul_f32 v[{56+4*u}:{57+4*u}], v[{b}:{b+1}], v[{b}:{b+1}]")
            a(f"v_pk_add_f32 v[{58+4*u}:{59+4*u}], v[{b}:{b+1}], v[{b+2}:{b+3}]")
            for i in (2, 4, 6):
                a(f"v_pk_fma_f32 v[{56+4*u}:{57+4*u}], v[{b+i}:{b+i+1}], v[{b+i}:{b+i+1}], v[{56+4*u}:{57+4*u}]")
                if i > 2: a(f"v_pk_add_f32 v[{58+4*u}:{59+4*u}], v[{58+4*u}:{59+4*u}], v[{b+i}:{b+i+1}]")
        for r in (56, 58, 60, 62): a(f"v_add_f32 v{r}, v{r}, v{r+1}")
        for qp in ("[1,0,3,2]", "[2,3,0,1]"):
            for r in (56, 58, 60, 62): a(f"v_add_f32_dpp v{r}, v{r}, v{r} quad_perm:{qp} row_mask:0xf bank_mask:0xf")
        a("v_cmp_eq_u32 vcc, 1, v26")
        a(f"v_cmp_eq_u32 s[{sEX}:{sEX+1}], 2, v28")
        a("v_cndmask_b32 v56, v58, v56, vcc")
        a("v_cndmask_b32 v60, v62, v60, vcc")
        a(f"v_cndmask_b32 v56, v56, v60, s[{sEX}:{sEX+1}]")
        self.vm(f"buffer_store_dword v56, v27, {SRD(WS)}, s{sT4} offen")
        a("v_lshlrev_b32 v7, 7, v26")
        a("s_mov_b64 exec, 3")
        def body():
            a(f"buffer_load_dword v16, v7, {SRD(DBG)}, s{sT5} offen sc1")
            a("s_waitcnt vmcnt(0)")
            a(f"v_readlane_b32 s{sT0}, v16, 0")
            a(f"v_readlane_b32 s{sT1}, v16, 1")
            a(f"s_or_b32 s{sT0}, s{sT0}, s{sT1}")
            a(f"v_cmp_eq_u32 vcc, s{sT0}, 0")
        self.spin(body)
        a("s_mov_b64 exec, -1")
        a(f"s_cmp_lg_u32 s{sT0}, s{sXCC}")
        a("s_cbranch_scc1 L_shout")
        a(f"v_mov_b32 v16, {C_P0}")
        a(f"v_mov_b32 v24, s{sXCC}")
        a("s_mov_b64 exec, 1")
        a(f"buffer_store_dword v16, off, {SRD(WS)}, s{sMYF}")
        a(f"s_cmp_lg_u32 s{sT6}, 1")
        a("s_cbranch_scc1 L_notlead2")
        a(f"buffer_store_dword v24, off, {SRD(DBG)}, s{sT5} offset:{D_GRDY} sc1")
        a.label("L_notlead2")
        a("s_mov_b64 exec, -1")
        self.dstamp("p0 published", 200)
        a("v_and_b32 v7, 31, v0")
        a("v_lshlrev_b32 v7, 5, v7")
        a.label("L_s0")
        a(f"buffer_load_dwordx4 v[12:15], v7, {SRD(WS)}, s{sFG} offen sc1")
        a("s_waitcnt vmcnt(0)")
        a("v_min_u32 v12, v12, v13")
        a("v_min3_u32 v12, v14, v15, v12")
        a("v_cmp_eq_u32 vcc, 0, v12")
        a("s_cbranch_vccz L_s0d")
        a(f"s_sub_u32 s{sTMO}, s{sTMO}, 1")
        a("s_cbranch_scc1 L_s0t")
        a(f"s_and_b32 s{sT0}, s{sTMO}, 7")
        a("s_cbranch_scc1 L_s0")
        a(f"buffer_load_dword v16, off, {SRD(DBG)}, s{sT5} offset:{D_SHOUT} sc1")
        a("s_waitcnt vmcnt(0)")
        a("v_cmp_eq_u32 vcc, 0, v16")
        a("s_cbranch_vccnz L_s0")
        a("s_branch L_slow")
        a.label("L_shout")
        a("v_mov_b32 v16, 1")
        a("s_mov_b64 exec, 1")
        a(f"buffer_store_dword v16, off, {SRD(DBG)}, s{sT5} offset:{D_SHOUT} sc1")
        a("s_mov_b64 exec, -1")
        a.label("L_slow")
        def body():
            a(f"buffer_load_dword v16, off, {SRD(DBG)}, s{sT5} offset:{D_GRDY} sc1")
            a("s_waitcnt vmcnt(0)")
            a("v_cmp_eq_u32 vcc, 0, v16")
        self.spin(body)
        a(f"s_mov_b32 s{sSLOW}, 1")
        a(f"s_add_u32 s{sFB}, s{sFB}, {F_SF}")
        a(f"s_add_u32 s{sMYF}, s{sMYF}, {F_SF}")
        self.publish(16, C_P0)
        a("v_and_b32 v7, 31, v0")
        a("v_lshlrev_b32 v7, 5, v7")
        for q in range(4):
            a(f"v_add_u32 v11, {4*q}, v7")
            self.poll(11, 16, C_P0)
        a("s_branch L_s0d")
        a.label("L_s0t")
        a(f"s_mov_b32 s{sTMO}, 0")
        a.label("L_s0d")
        a(f"v_mov_b32 v16, s{sSLOW}")
        a(f"v_mov_b32 v17, {SCR+1024}")
        a("ds_write_b32 v17, v16")
        self.dstamp("sync0", 200)
        a("s_waitcnt lgkmcnt(0)")
        a("s_barrier")
        self.entry_flush()
        a("s_branch L_layer")
        a.label("L_startL")
        self.vq.clear()
        a(f"s_lshl_b32 s{sT2}, s{sJ}, 4")
        a(f"v_add_lshl_u32 v2, v2, s{sT2}, 7")
        a("v_min_u32 v2, L_end-L_pc-4, v2")
        a(f"global_load_dword v3, v2, s[{sT0}:{sT1}]")
        a("v_lshrrev_b32 v4, 1, v0")
        a("v_mul_u32_u24 v4, 3072, v4")
        a("v_and_b32 v5, 16, v1")
        a("v_add_u32 v4, v4, v5")
        a(f"s_sub_u32 s{sL}, s{sW}, 4")
        self.sx(sT3, 0, (sL, 128 * 3072), (sJ, 32))
        a(f"s_mul_i32 s{sT4}, s{sL}, 12288")
        a("s_waitcnt lgkmcnt(0)")
        self.srd(SB, P_WQKV, 512 * 3072)
        for pc in range(4):
            a(f"s_add_u32 s{sT5}, s{sJ}, {pc}")
            a(f"s_and_b32 s{sT5}, s{sT5}, 3")
            a(f"s_mul_i32 s{sT5}, s{sT5}, {32*3072}")
            a(f"s_add_u32 m0, s{sT4}, {pc*3072}")
            a(f"s_add_u32 s{sT5}, s{sT5}, s{sT3}")
            for part in range(3):
                self.vm(f"buffer_load_dwordx4 v4, {SRD(SB)}, s{sT5} offen offset:{part*1024} lds", ("w", pc))
        self.dstamp("issued", 200)
        self.srd(WS, P_WS, WS_USED)
        self.srd(DBG, P_DBG, 256)
        self.consts()
        self.tr_addr(10, 11)
        a(f"v_add_u32 v10, s{sT4}, v10")
        a("v_lshl_add_u32 v12, v11, 10, v10")
        a("v_lshl_add_u32 v13, v11, 9, v10")
        for pc in range(4):
            a(f"s_add_u32 s{sT5}, s{sJ}, {pc}")
            a(f"s_and_b32 s{sT5}, s{sT5}, 3")
            a(f"s_mul_i32 s{sT5}, s{sT5}, 3072")
            a(f"s_add_u32 s{sT5}, s{sT5}, s{sT4}")
            a(f"v_add_u32 v{20+pc}, s{sT5}, v1")
        for r in range(28, 32): a(f"v_mov_b32 v{r}, 0x3f803f80")
        self.sx(sT2, SLICE + 49152, (sL, 512, 1), (sL, 8, 0, 1))
        a("v_and_b32 v15, 0x1f0, v1")
        a("v_and_b32 v16, 0x200, v1")
        a("v_lshl_add_u32 v15, v16, 1, v15")
        a(f"v_add_u32 v15, s{sT2}, v15")
        a(f"s_lshl_b32 s{sL}, s{sL}, 12")
        self.sx(s13, PW13, (sJ, 7 * 32768, 0, 15), (sL, 1))
        self.sx(s2_, PW2, (sJ, 7 * 32768, 0, 7), (sL, 1))
        self.sx(sWOs, PWO, (sJ, 65536, 0, 7), (sL, 1))
        self.sx(sQ, WQ, (sJ, 65536), (sL, 1))
        for pc in range(4):
            F = 32 + 12 * (pc & 1)
            self.wait(vm=("w", pc))
            for i in range(2):
                for h2 in range(2):
                    a(f"ds_read_b64_tr_b16 {vr(F+4*i+2*h2,2)}, v12 offset:{pc*3072+i*512+h2*256}")
            for h2 in range(2):
                a(f"ds_read_b64_tr_b16 {vr(F+8+2*h2,2)}, v13 offset:{pc*3072+2048+h2*256}")
            a("s_waitcnt lgkmcnt(0)")
            for k in range(3):
                acc = 80 if k == 2 else 64
                a(f"v_mfma_f32_32x32x16_bf16 {vr(acc,16)}, v[28:31], {vr(F+4*k,4)}, {'0' if pc == 0 and k != 1 else vr(acc,16)}")
                a(f"ds_write_b128 v{20+pc}, {vr(F+4*k,4)} offset:{SLICE+1024*k}")
        self.dstamp("x landed", 200)
        a("v_mov_b32 v81, v80")
        a("v_permlane16_swap_b32 v80, v81")
        a("v_add_f32 v80, v80, v81")
        a(f"v_cndmask_b32 v64, v64, v80, s[{sHI}:{sHI+1}]")
        self.emit(self.split_pair(66, 64, 65))
        a("ds_write_b64 v15, v[66:67]")
        self.dstamp("p0 published", 200)
        a("s_waitcnt lgkmcnt(0)")
        a("s_barrier")
        a(f"v_mov_b32 v17, {SCR+1024}")
        a("ds_read_b32 v16, v17")
        a("s_waitcnt lgkmcnt(0)")
        a(f"v_readfirstlane_b32 s{sSLOW}, v16")
        a(f"s_lshl_b32 s{sT0}, s{sSLOW}, 10")
        a(f"s_add_u32 s{sFB}, s{sFB}, s{sT0}")
        a(f"s_add_u32 s{sMYF}, s{sMYF}, s{sT0}")
        self.dstamp("sync0", 200)
        self.entry_flush(names=False)

    def entry_flush(self, names=True):
        if not self.stamps: return
        a = self.a
        a(f"v_mov_b32 v198, s{sE0}")
        a(f"v_mov_b32 v199, s{sE1}")
        self.dst.insert(0, ("entry", 198))
        if not names: self.dst = [("~" + n, r) for n, r in self.dst]
        self.dflush()

    def tr_addr(self, r, t):
        a = self.a
        a(f"v_and_b32 v{r}, 15, v0")
        a(f"v_lshlrev_b32 v{r}, 3, v{r}")
        a(f"v_lshrrev_b32 v{t}, 5, v0")
        a(f"v_lshl_add_u32 v{r}, v{t}, 7, v{r}")
        a(f"v_bfe_u32 v{t}, v0, 4, 1")

    def consts(self):
        a = self.a
        a(f"s_mov_b32 s{sLAY}, 0")
        a(f"s_mov_b32 s{sSLOW}, 0")
        a(f"s_mov_b32 s{sCODE}, 0")
        a(f"s_mov_b32 s{sTMO}, 100000")
        a(f"s_mov_b32 s{sHI}, 0")
        a(f"s_mov_b32 s{sHI+1}, -1")
        a(f"s_mov_b32 s{sN16}, 0xffff0000")
        a(f"s_mov_b32 s{sN16+1}, 0xffff0000")
        a(f"s_mov_b32 s{sFB}, s{sFG}")
        self.sx(sMYF, 0, (sJ, 32), (sW, 4), (sFG, 1))
        self.sx(sT0, 0, (sG, 8), (sW, 1))
        self.sx(sQX, XF, (sT0, 32768))
        self.sx(sQS, ST, (sT0, 4096))
        self.sx(sOD, OF, (sT0, 32768), (sJ, 1024))
        self.sx(sKVH, KVG, (sJ, 131072))
        self.sx(sKVO, 0, (sT0, 2048), (sKVH, 1))
        self.sx(sKVA, FL + F_KV, (sJ, 128))
        self.sx(sKVF, 0, (sG, FL_STR), (sW, 4), (sKVA, 1))
        if self.stamps:
            a(f"s_lshl_b32 s{sTSI}, s2, 3")
            self.sx(sTSI, TSB, (sTSI, 1024), (sW, 1024))

    QF, KA, VA0, VA1, IDX, Q2, KM = 8, 12, 13, 14, 15, 16, 17
    S0, S1, CC, OO, KF, VF = 32, 48, 64, 80, 96, 104

    def qkv(self):
        a = self.a
        X, NX, WD = 128, 16, self.o("qw", 5)
        AQ, AV, RING, STT, RR, ON, MU, RS, RQ, T = 32, 48, 192, 224, 240, 248, 24, 6, 7, 120
        a.label("L_layer")
        self.vq.clear(); self.dq.clear(); self.forget()
        xl = lambda ks: self.fload(X + 4 * (ks % NX), sQX, ks * 1024, ("x", ks), tmp=sT5)
        seq = [(ks, xl(ks)) for ks in range(32)]
        for q in range(4): seq.insert(4 + q, (4, self.fload(STT + 4 * q, sQS, q * 1024, "st", tmp=sT4)))
        init, per = self.ramp(seq, 32, self.o("q0", 2), WD)
        self.emit(init)
        a(f"v_add_u32 v20, {SLICE}, v1")
        a("v_and_b32 v21, 0x2f0, v1")
        a(f"v_add_u32 v21, {SLICE+2048}, v21")
        items = []
        for ks in range(32):
            xr = vr(X + 4 * (ks % NX), 4)
            items.append(dict(read=(20, (ks >> 1) * 3072 + (ks & 1) * 1024), vm=("x", ks),
                              mfma=lambda r, ks=ks, xr=xr: f"v_mfma_f32_32x32x16_bf16 {vr(AQ,16)}, {vr(r,4)}, {xr}, {vr(AQ,16) if ks else '0'}"))
            items.append(dict(read=(21, (ks >> 1) * 3072 + (ks & 1) * 256),
                              mfma=lambda r, ks=ks, xr=xr: f"v_mfma_f32_32x32x16_bf16 {vr(AV,16)}, {xr}, {vr(r,4)}, {vr(AV,16) if ks else '0'}"))
            items[-1]["post"] = list(per.get(ks, []))
            qb = self.o("qbar", 4)
            if qb and ks % qb == qb - 1 and ks < 31: items[-1].setdefault("post", []).append("s_barrier")
            if ks == 15:
                items.append(dict(read=(20, 49152), mfma=lambda r: f"v_mfma_f32_32x32x16_bf16 {vr(AQ,16)}, {vr(r,4)}, {vr(MU,4)}, {vr(AQ,16)}"))
                items.append(dict(read=(20, 50176), mfma=lambda r: f"v_mfma_f32_32x32x16_bf16 {vr(AV,16)}, {vr(MU,4)}, {vr(r,4)}, {vr(AV,16)}"))
        self.spread(items, 8, 30, self.stats_ops(STT, MU, RS, RQ))
        f = [f"s_lshl_b32 s{sT0}, s{sW}, 7", f"s_add_u32 s{sT0}, s{sT0}, {SCR}",
             "v_and_b32 v22, 31, v0", f"v_lshl_add_u32 v22, v22, 2, s{sT0}",
             lambda: self.ds(f"ds_write_b32 v22, v{RS}", "rsw"),
             "v_bfe_u32 v28, v0, 4, 1", "v_lshrrev_b32 v29, 5, v0", "v_lshlrev_b32 v23, 6, v28",
             "v_lshl_add_u32 v23, v29, 4, v23", f"v_add_u32 v23, s{sT0}, v23",
             lambda: self.ds(f"ds_read_b128 {vr(RR,4)}, v23", "rr"), lambda: self.ds(f"ds_read_b128 {vr(RR+4,4)}, v23 offset:32", "rr"),
             f"v_mul_f32 v{RQ}, {hex(f2u(0.25*LOG2E))}, v{RS}",
             "v_and_b32 v2, 0x330, v1", "v_bfe_u32 v30, v0, 2, 1", "v_lshl_add_u32 v2, v30, 7, v2",
             "v_bfe_u32 v30, v0, 3, 1", "v_lshl_add_u32 v2, v30, 6, v2",
             "v_and_b32 v30, 0xf0, v1", "v_lshl_add_u32 v30, v29, 8, v30", "v_lshl_add_u32 v3, v28, 9, v30",
             f"s_mul_i32 s{sT2}, s{sW}, {TSTR}", f"s_add_u32 s{sT2}, s{sT2}, {KVB}",
             f"v_add_u32 v4, s{sT2}, v2", f"v_add_u32 v5, s{sT2}, v3"]
        f += [f"v_mov_b32 v{ON+r}, 0x3f803f80" for r in range(4)]
        f += [f"v_mul_u32_u24 v22, {SLOT}, v29", f"v_add_u32 v22, s{sT2}, v22",
              lambda: self.ds(f"ds_write_b128 v22, {vr(ON,4)} offset:2048")]
        f += [f"v_add_u32 v{self.KA}, {KVB}, v1", f"v_mov_b32 v23, {KVB+2048}", "v_mov_b32 v31, 0x30000",
              f"v_cmp_eq_u32 vcc, 0, v30", f"v_cmp_eq_u32 s[{sEX}:{sEX+1}], 1, v29", ] if False else []
        f += [f"v_add_u32 v{self.KA}, {KVB}, v1",
              "v_and_b32 v31, 15, v0", "v_min_u32 v31, 1, v31", f"v_mov_b32 v23, {KVB+2048}",
              "v_lshl_add_u32 v23, v31, 16, v23",
              f"v_add_u32 v30, {KVB+1024}, v30", f"v_cndmask_b32 v{self.VA0}, v30, v23, s[{sN16}:{sN16+1}]",
              "v_add_u32 v30, 512, v30", f"v_cndmask_b32 v{self.VA1}, v30, v23, s[{sN16}:{sN16+1}]",
              f"v_mov_b32 v{self.IDX}, 0xdddddddd"]
        f += [f"v_mov_b32 v{self.OO+i}, 0" for i in range(16)]
        self.spread(items, 30, 62, f)
        self.stream_begin(items, 8, RING)
        self.stream_run()
        self.stamp("qkv main")
        QF, Q2, KM = self.QF, self.Q2, self.KM
        for i in range(8): a(f"v_mul_f32 v{AQ+8+i}, v{RS}, v{AQ+8+i}")
        for i in range(4): a(f"v_cvt_pk_bf16_f32 v{T+i}, v{AQ+8+2*i}, v{AQ+9+2*i}")
        self.vm(f"buffer_store_dwordx4 {vr(T,4)}, v2, {SRD(WS)}, s{sKVO} offen sc1")
        self.ds(f"ds_write_b128 v4, {vr(T,4)}")
        for i in range(8): a(f"v_cndmask_b32 v{AV+i}, v{AV+i}, v{AV+8+i}, s[{sN16}:{sN16+1}]")
        for i in range(8): a(f"v_mul_f32 v{AV+i}, v{RR+i}, v{AV+i}")
        for i in range(4): a(f"v_cvt_pk_bf16_f32 v{T+4+i}, v{AV+2*i}, v{AV+1+2*i}")
        self.vm(f"buffer_store_dwordx4 {vr(T+4,4)}, v3, {SRD(WS)}, s{sKVO} offen offset:1024 sc1")
        self.ds(f"ds_write_b128 v5, {vr(T+4,4)} offset:1024")
        for i in range(8): a(f"v_mul_f32 v{AQ+i}, v{RQ}, v{AQ+i}")
        for i in range(4): a(f"v_cvt_pk_bf16_f32 v{QF+i}, v{AQ+2*i}, v{AQ+1+2*i}")
        a(f"v_pk_mul_f32 v[28:29], {vr(AQ,2)}, {vr(AQ,2)}")
        a(f"v_pk_mul_f32 v[30:31], {vr(AQ+8,2)}, {vr(AQ+8,2)}")
        for i in (2, 4, 6):
            a(f"v_pk_fma_f32 v[28:29], {vr(AQ+i,2)}, {vr(AQ+i,2)}, v[28:29]")
            a(f"v_pk_fma_f32 v[30:31], {vr(AQ+8+i,2)}, {vr(AQ+8+i,2)}, v[30:31]")
        a(f"v_add_f32 v{Q2}, v28, v29")
        a(f"v_add_f32 v{KM}, v30, v31")
        a(f"v_permlane32_swap_b32 v{Q2}, v{KM}")
        a(f"v_add_f32 v{Q2}, v{Q2}, v{KM}")
        a(f"v_mov_b32 v{KM}, v{Q2}")
        a(f"v_permlane32_swap_b32 v{Q2}, v{KM}")
        a(f"v_mul_f32 v22, v{Q2}, v{KM}")
        a("v_sqrt_f32 v22, v22")
        a(f"v_sub_f32 v{self.CC}, 0, v22")
        a(f"v_sub_f32 v{self.CC+1}, 0, v22")
        for i in range(2, 16, 2): a(f"v_pk_mov_b32 {vr(self.CC+i,2)}, {vr(self.CC,2)}, {vr(self.CC,2)}")
        self.wait(ds="all")
        a("s_barrier")
        self.stamp("qkv done")

    def wave_umax(self, r, t, rows32=False):
        L = [f"v_max_u32_dpp v{r}, v{r}, v{r} {m} row_mask:0xf bank_mask:0xf"
             for m in ("quad_perm:[1,0,3,2]", "quad_perm:[2,3,0,1]", "row_half_mirror", "row_mirror")]
        L += [f"v_mov_b32 v{t}, v{r}", f"v_permlane16_swap_b32 v{r}, v{t}", f"v_max_u32 v{r}, v{r}, v{t}"]
        if not rows32: L += [f"v_mov_b32 v{t}, v{r}", f"v_permlane32_swap_b32 v{r}, v{t}", f"v_max_u32 v{r}, v{r}, v{t}"]
        return L

    def kv_publish(self):
        a = self.a
        self.emit(self.wave_umax(self.KM, 22, rows32=True))
        a(f"v_or_b32 v{self.KM}, 1, v{self.KM}")
        a("s_mov_b64 exec, 1")
        self.wait(vm="all")
        self.vm(f"buffer_store_dword v{self.KM}, off, {SRD(WS)}, s{sKVF} sc1")
        a("s_mov_b64 exec, -1")

    def kv_fetch(self, s):
        a = self.a
        L, D, N = a.newlabel("kvn"), a.newlabel("kvd"), a.newlabel("kvr")
        a(f"s_add_u32 s{sT0}, s{sG}, {s}")
        a(f"s_and_b32 s{sT0}, s{sT0}, 7")
        a(f"s_lshl_b32 s{sT1}, s{sT0}, 3")
        a.label(L)
        a(f"s_lshr_b64 s[{sT2}:{sT3}], s[{sRDY}:{sRDY+1}], s{sT1}")
        a(f"s_andn2_b32 s{sT2}, 0xff, s{sT2}")
        a(f"s_cbranch_scc0 {D}")
        a(f"s_mov_b64 s[{sEX}:{sEX+1}], -1")
        a(f"s_cmp_lg_u32 s{sLAY}, 0")
        a(f"s_cbranch_scc1 {N}")
        a(f"buffer_load_dword v22, v23, {SRD(DBG)}, 0 offen offset:{D_GRDY} sc1")
        a("s_waitcnt vmcnt(0)")
        a(f"v_cmp_ne_u32 s[{sEX}:{sEX+1}], 0, v22")
        a.label(N)
        a(f"buffer_load_dword v22, v24, {SRD(WS)}, s{sKVA} offen sc1")
        a("s_waitcnt vmcnt(0)")
        a("v_cmp_ne_u32 vcc, 0, v22")
        a(f"s_and_b64 s[{sRDY}:{sRDY+1}], vcc, s[{sEX}:{sEX+1}]")
        a(f"s_sub_u32 s{sTMO}, s{sTMO}, 1")
        a(f"s_cbranch_scc0 {L}")
        a(f"s_mov_b32 s{sTMO}, 0")
        a.label(D)
        a(f"s_lshl_b32 s{sT0}, s{sT0}, 14")
        a(f"s_add_u32 s{sT0}, s{sT0}, s{sKVH}")
        a(f"s_add_u32 s{sT0}, s{sT0}, s{sL}")
        a(f"s_lshr_b32 s{sT1}, s{sL}, 7")
        a(f"s_add_u32 s{sT1}, s{sT1}, s{sL}")
        pol = "sc1 nt" if self.o("kvnt", 1) else "sc1"
        self.dma(sT1, KVB + (s & 1) * SLOT, sT0, 0, (0, 1), ("kv", s), pol)
        a(f"s_add_u32 m0, m0, 16")
        for i in (2, 3):
            self.vm(f"buffer_load_dwordx4 v1, {SRD(WS)}, s{sT7} offen offset:{i*1024} {pol} lds", ("kv", s))

    def prep_setup(self):
        a = self.a
        a(f"s_lshr_b32 s{sT4}, s{sL}, 12")
        self.sx(sT0, 0, (sG, 23), (sJ, 1))
        a(f"s_mov_b32 s{sPCS}, {OOB}")
        a(f"s_cmp_ge_u32 s{sJ}, 23")
        a("s_cbranch_scc1 L_pr_none")
        a(f"s_cmp_ge_u32 s{sT0}, 112")
        a("s_cbranch_scc1 L_pr_o")
        self.srd(SA, P_W1, 512 * 3584)
        self.srd(SB, P_W3, 512 * 3584)
        a(f"s_mov_b32 s{sPSTR}, 3584")
        self.sx(sPA, 0, (sT0, 128, 2), (sT0, 128 * 3584, 0, 3))
        a(f"s_mov_b32 s{sPB}, s{sPA}")
        self.sx(sT2, 0, (sT0, 4, 2), (sT4, 1))
        self.sx(sT1, 0, (sT2, 7, 0, 15), (sT2, 1, 4))
        self.sx(sPCS, CS13, (sT1, 1024), (sT0, 512, 1, 1), (sT0, 8, 0, 1))
        self.sx(sPD, PW13, (sT1, 32768), (sT0, 8192, 0, 3))
        a(f"s_mov_b32 s{sTCH}, 4096")
        a(f"s_lshl_b32 s{sT2}, s{sT4}, 5")
        a(f"s_mov_b32 s{sT3}, 16384")
        a("s_branch L_pr_go")
        a.label("L_pr_o")
        self.sx(sT2, 0, (sT0, 2, 0, 3), (sT4, 1, 1))
        a(f"s_cmp_ge_u32 s{sT0}, 128")
        a("s_cbranch_scc1 L_pr_2")
        self.srd(SA, P_WO, 512 * 1024)
        self.srd(SB, P_WO, 512 * 1024)
        a(f"s_sub_u32 s{sT0}, s{sT0}, 112")
        self.sx(sPD, PWO, (sT2, 65536), (sT0, 32768, 2, 1), (sT0, 8192, 3), (sT4, 4096, 0, 1))
        a("s_branch L_pr_o2")
        a.label("L_pr_2")
        self.srd(SA, P_W2, 1792 * 1024)
        self.srd(SB, P_W2, 1792 * 1024)
        a(f"s_sub_u32 s{sT0}, s{sT0}, 128")
        self.sx(sPD, PW2, (sT2, 7 * 32768), (sT0, 32768, 3), (sT0, 8192, 2, 1), (sT4, 4096, 0, 1))
        a("s_branch L_pr_o2")
        a.label("L_pr_none")
        self.srd(SA, P_WO, 0)
        self.srd(SB, P_WO, 0)
        a(f"s_mov_b32 s{sT0}, 0")
        a(f"s_mov_b32 s{sPD}, {OOB}")
        a.label("L_pr_o2")
        a(f"s_mov_b32 s{sPSTR}, 1024")
        a(f"s_mov_b32 s{sTCH}, 16384")
        self.sx(sPA, 0, (sT0, 256, 0, 3), (sT0, 128 * 1024, 2))
        a(f"s_add_u32 s{sPB}, s{sPA}, 128")
        self.sx(sT2, 0, (sT4, 16384, 1), (sT4, 64, 0, 1))
        a(f"s_mov_b32 s{sT3}, 32")
        a.label("L_pr_go")
        a("v_lshrrev_b32 v25, 3, v0")
        a(f"v_mul_lo_u32 v25, v25, s{sPSTR}")
        a("v_and_b32 v22, 0x70, v1")
        a("v_add_u32 v25, v25, v22")
        a(f"s_lshl_b32 s{sPSTR}, s{sPSTR}, 3")
        a(f"s_mul_i32 s{sT1}, s{sPSTR}, s{sT4}")
        a(f"s_lshl_b32 s{sT1}, s{sT1}, 2")
        a(f"s_add_u32 s{sPA}, s{sPA}, s{sT1}")
        a(f"s_add_u32 s{sPB}, s{sPB}, s{sT1}")
        a("v_bfe_u32 v20, v0, 4, 1")
        a(f"v_mul_lo_u32 v20, v20, s{sT3}")
        a("v_and_b32 v22, 3, v0")
        a("v_lshl_add_u32 v20, v22, 3, v20")
        a("v_bfe_u32 v22, v0, 2, 2")
        a("v_lshl_add_u32 v20, v22, 7, v20")
        a("v_and_b32 v22, 0x200, v1")
        a(f"v_add3_u32 v20, v20, v22, s{sT2}")

    def prep_gather(self, pc):
        a = self.a
        for part in range(2):
            r = sPB if part else sPA
            a(f"s_add_u32 m0, s{sL}, {pc*1024+part*16384}")
            a(f"buffer_load_dwordx4 v25, {SRD(SB if part else SA)}, s{r} offen lds")
            a(f"s_add_u32 s{r}, s{r}, s{sPSTR}")

    def prep_store(self):
        a = self.a
        F = 128
        for i in range(8):
            for h2 in range(2):
                a(f"ds_read_b64_tr_b16 {vr(F+4*i+2*h2,2)}, v20 offset:{i*2048+h2*1024}")
        self.sx(sT0, 0, (sG, 8192), (sL, 1, 1))
        a(f"v_add_u32 v22, s{sT0}, v1")
        a(f"s_cmp_lt_u32 s{sT0}, {50*1024}")
        a(f"s_cselect_b32 s{sT0}, s{sT0}, {OOB}")
        a(f"s_lshl_b32 s{sT1}, s{sJ}, 16")
        a(f"s_add_u32 s{sT0}, s{sT0}, s{sT1}")
        a(f"s_add_u32 s{sT0}, s{sT0}, {WQ}")
        a(f"ds_read_b128 v[180:183], v22 offset:{SLICE}")
        a(f"ds_read_b128 v[184:187], v22 offset:{SLICE+1024}")
        for r in range(176, 180): a(f"v_mov_b32 v{r}, 0x3f803f80")
        a(f"s_add_u32 s{sT1}, s{sPD}, s{sTCH}")
        a("s_waitcnt lgkmcnt(0)")
        for i in range(8):
            a(f"v_mfma_f32_32x32x16_bf16 v[160:175], v[176:179], {vr(F+4*i,4)}, {'v[160:175]' if i else '0'}")
            a(f"buffer_store_dwordx4 {vr(F+4*i,4)}, v1, {SRD(WS)}, s{sPD if i < 4 else sT1} offen offset:{(i&3)*1024} sc1")
        a(f"buffer_store_dwordx4 v[180:183], v1, {SRD(WS)}, s{sT0} offen sc1")
        a(f"buffer_store_dwordx4 v[184:187], v1, {SRD(WS)}, s{sT0} offen offset:1024 sc1")
        a("v_and_b32 v22, 0x1f0, v1")
        self.emit(self.split_pair(162, 160, 161))
        a(f"buffer_store_dwordx2 v[162:163], v22, {SRD(WS)}, s{sPCS} offen sc1")

    def prep_flag(self):
        a = self.a
        L = a.newlabel("pf")
        a(f"s_cmp_lg_u32 s{sW}, 4")
        a(f"s_cbranch_scc1 {L}")
        self.sx(sT2, 0, (sJ, 4), (sFG, 1))
        a("v_mov_b32 v22, 1")
        a("s_mov_b64 exec, 1")
        a(f"buffer_store_dword v22, off, {SRD(WS)}, s{sT2} offset:{F_PF} sc1")
        a("s_mov_b64 exec, -1")
        a.label(L)

    def prep_wait(self):
        a = self.a
        def rdy():
            a(f"buffer_load_dword v22, v23, {SRD(DBG)}, 0 offen offset:{D_GRDY} sc1")
            a("s_waitcnt vmcnt(0)")
            a("v_cmp_eq_u32 vcc, 0, v22")
        self.spin(rdy)
        a("v_lshlrev_b32 v25, 12, v23")
        a("v_and_b32 v22, 0x70, v1")
        a("v_add_u32 v25, v25, v22")
        a(f"s_mov_b32 s{sT2}, {FL + F_PF}")
        def body():
            a(f"buffer_load_dwordx4 v[28:31], v25, {SRD(WS)}, s{sT2} offen sc1")
            a("s_waitcnt vmcnt(0)")
            a("v_min_u32 v28, v28, v29")
            a("v_min3_u32 v28, v30, v31, v28")
            a("v_cmp_eq_u32 vcc, 0, v28")
        self.spin(body)

    RW = 128
    def rload(self, slot, src, off, base=None, n=4):
        self.forget()
        b = self.RW + 16 * slot if base is None else base
        for i in range(n): self.fload(b + 4 * i, src, off + i * 1024, ("r", b))()
    def attention(self, role):
        a = self.a
        S = [self.S0, self.S1]; K = [self.KF, self.KF + 4]; V = [self.VF, self.VF + 8]
        Q, C, O, IDX = self.QF, self.CC, self.OO, self.IDX
        off = lambda t: ((t >> 3) & 1) * SLOT + (t & 7) * TSTR
        kread = lambda t: f"ds_read_b128 {vr(K[t&1],4)}, v{self.KA} offset:{off(t)}"
        vread = lambda t, u: f"ds_read_b128 {vr(V[t&1]+4*u,4)}, v{self.VA1 if u else self.VA0} offset:{off(t)}"
        qk = lambda t: f"v_mfma_f32_32x32x16_bf16 {vr(S[t&1],16)}, {vr(K[t&1],4)}, {vr(Q,4)}, {vr(C,16)}"
        pv = lambda t, u: f"v_smfmac_f32_32x32x32_bf16 {vr(O,16)}, {vr(V[t&1]+4*u,4)}, {vr(S[t&1]+8*u,8)}, v{IDX}"
        Lr = role == "L"
        ast = self.o("ast", 0) and not Lr
        self.vq = ["kvst"]; self.forget()
        if Lr and self.o("prio", 1): a("s_setprio 1")
        a(kread(0)); a(vread(0, 0)); a(vread(0, 1)); a(kread(1))
        a("v_lshrrev_b32 v23, 3, v0")
        a("v_and_b32 v22, 7, v0")
        a("v_lshlrev_b32 v22, 2, v22")
        a("v_lshl_add_u32 v24, v23, 14, v22")
        a("v_lshlrev_b32 v23, 2, v23")
        if Lr: a(f"s_mov_b64 s[{sRDY}:{sRDY+1}], 0")
        else: self.kv_publish()
        a("s_waitcnt lgkmcnt(3)")
        a(qk(0))
        jobs = {}
        def job(t, f): jobs.setdefault(t, []).append(f)
        def touch(base_terms, const, vexpr):
            def f():
                self.sx(sT0, const, *base_terms)
                for x in vexpr: a(x)
                self.vm(f"buffer_load_dword v21, v22, {SRD(WS)}, s{sT0} offen sc1")
            return f
        if Lr:
            job(self.o("pubt", 3), self.kv_publish)
            job(self.o("fet", 4), lambda: self.kv_fetch(1))
            job(1, lambda: self.layer0(self.prep_setup))
            for k in range(4): job(6 + k, lambda k=k: self.layer0(lambda: self.prep_gather(k)))
            job(14, lambda: self.layer0(self.prep_store))
            job(22, lambda: self.layer0(self.prep_flag))
            t0 = self.o("pw", 33)
            job(t0, lambda: self.layer0(self.prep_wait))
            pf = [lambda u=u: self.dma(sL, U(u), sWOs, u * 16384, range(4), "wp") for u in range(4)]
            pf += [lambda u=u: self.dma(sL, U(4 + u), s13, u * 16384, range(4), "wp") for u in range(3)]
            def last():
                self.dma(sL, U(7), s13, 3 * 16384, range(3), "wp")
                self.vm(f"buffer_load_dwordx4 v[124:127], v1, {SRD(WS)}, s{sT7} offen offset:3072 sc1")
            pf.append(last)
            pf += [lambda u=u: self.rload(u, s13, (4 + u) * 16384) for u in range(6)]
            pf += [lambda u=u: self.rload(6 + u, s2_, (12 + u) * 16384) for u in range(2)]
            pf.append(touch([(sG, 8 * 112 * 1024), (sJ, 4 * 112 * 1024, 4), (sL, 28), (sJ, 1024, 0, 15)], HF,
                          ["v_lshrrev_b32 v22, 3, v0", "v_min_u32 v22, 6, v22", "v_lshlrev_b32 v22, 14, v22", "v_and_b32 v27, 7, v0", "v_lshl_add_u32 v22, v27, 7, v22"]))
            pf.append(touch([(sG, 8 * 32768), (sJ, 1024), (sL, 16)], OF,
                          ["v_lshrrev_b32 v22, 5, v0", "v_lshlrev_b32 v22, 15, v22", "v_bfe_u32 v27, v0, 2, 3", "v_lshl_add_u32 v22, v27, 7, v22"]))
            pf.append(touch([(sG, 8 * 32768), (sJ, 65536, 3), (sJ, 4096, 0, 7), (sL, 1, 2)], XF + XF_STR, []))
            pf.append(touch([(sG, 8 * 4096), (sJ, 8192, 3), (sJ, 1024, 1, 3)], ST + ST_STR,
                          ["v_lshrrev_b32 v22, 5, v0", "v_lshlrev_b32 v22, 12, v22", "v_lshl_add_u32 v22, v27, 7, v22"]))
            tt = t0 + 1
            for f in pf:
                while (tt & 7) in (5, 6): tt += 1
                job(tt, f); tt += 1
            assert tt <= 62, tt
        job(55, lambda: self.vm(f"buffer_load_dword v{self.KM}, v24, {SRD(WS)}, s{sKVA} offen sc1", "km"))
        def check():
            self.wait(vm="km")
            self.emit(self.wave_umax(self.KM, 22))
            a(f"v_mul_f32 v22, v{self.Q2}, v{self.KM}")
            a(f"v_cmp_nge_f32 vcc, {hex(f2u(-1.0 if self.force_fallback else TBOUND2))}, v22")
            a(f"s_mov_b64 s[{sBAD}:{sBAD+1}], vcc")
        job(61, check)
        def point(s):
            if ast: self.dstamp(f"a{s} arr", 200)
            if Lr:
                if s in (2, 3): self.wait(vm="all")
                else: self.wait(vm=("kv", s))
            a("s_waitcnt lgkmcnt(0)")
            a("s_barrier")
            if ast: self.dstamp(f"a{s} bar", 200)
            if Lr and s < 7: jobs.setdefault(8 * s - 2, []).insert(0, lambda: self.kv_fetch(s + 1))
        for t in range(64):
            c = S[t & 1]
            for i in range(16):
                if i == 2:
                    if t > 0: a(pv(t - 1, 1))
                    if t < 63:
                        a(vread(t + 1, 0))
                        a("s_waitcnt lgkmcnt(1)")
                    else: a("s_waitcnt lgkmcnt(0)")
                if i == 6 and t < 63:
                    a(qk(t + 1)); a(vread(t + 1, 1))
                if i == 11:
                    a(pv(t, 0))
                    if t < 62:
                        if (t & 7) == 6: point((t + 2) >> 3)
                        a(kread(t + 2))
                    for f in jobs.get(t, []): f()
                a(f"v_exp_f32 v{c+i}, v{c+i}")
        a(pv(63, 1))
        a(f"s_cmp_lg_u64 s[{sBAD}:{sBAD+1}], 0")
        a("s_cbranch_scc1 L_fallback")
        a.label("L_attn_fin" + role)
        if ast: self.dflush()
        self.stamp(("~" if Lr else "") + "attn loop")
        a(f"v_mov_b32 v22, v{O+8}")
        a(f"v_mov_b32 v26, v{O+8}")
        a("v_permlane32_swap_b32 v22, v26")
        a("v_rcp_f32 v22, v22")
        for i in range(0, 8, 2): a(f"v_pk_mul_f32 {vr(O+i,2)}, {vr(O+i,2)}, v[22:23] op_sel_hi:[1,0]")
        for i in range(4): a(f"v_cvt_pk_bf16_f32 v{28+i}, v{O+2*i}, v{O+1+2*i}")
        self.vm(f"buffer_store_dwordx4 v[28:31], v1, {SRD(WS)}, s{sOD} offen", "o")
        if Lr:
            a("s_setprio 0")
            self.publish(26, C_O)
            a("s_barrier")
            self.stamp("~attn done")

    def fallback(self):
        a = self.a
        S, K, V, Q, C, O, IDX = self.S0, self.KF, self.VF, self.QF, self.CC, self.OO, self.IDX
        a.label("L_fallback")
        a(f"s_mov_b32 s{sT0}, s{sKVH}")
        a(f"s_add_u32 s{sT3}, s{sKVH}, 131072")
        a("v_mov_b32 v26, 0xff800000")
        a("s_waitcnt vmcnt(0)")
        a("v_mov_b32 v26, 0xff800000")
        a.label("L_fb1")
        a(f"buffer_load_dwordx4 {vr(K,4)}, v1, {SRD(WS)}, s{sT0} offen sc1")
        a("s_waitcnt vmcnt(0)")
        a(f"v_mfma_f32_32x32x16_bf16 {vr(S,16)}, {vr(K,4)}, {vr(Q,4)}, 0")
        for i in range(8): a(f"v_max3_f32 v26, v{S+2*i}, v{S+2*i+1}, v26")
        a(f"s_add_u32 s{sT0}, s{sT0}, 2048")
        a(f"s_cmp_lt_u32 s{sT0}, s{sT3}")
        a("s_cbranch_scc1 L_fb1")
        a("v_mov_b32 v27, v26")
        a("v_permlane32_swap_b32 v26, v27")
        a("v_max_f32 v26, v26, v27")
        for i in range(16): a(f"v_sub_f32 v{C+i}, 0, v26")
        for i in range(16): a(f"v_mov_b32 v{O+i}, 0")
        for i in range(8): a(f"v_mov_b32 v{V+i}, 0x3f803f80")
        a(f"v_subrev_u32 v27, {KVB}, v{self.VA0}")
        a(f"s_mov_b32 s{sT0}, s{sKVH}")
        a.label("L_fb2")
        a(f"buffer_load_dwordx4 {vr(K,4)}, v1, {SRD(WS)}, s{sT0} offen sc1")
        a(f"s_not_b64 exec, s[{sN16}:{sN16+1}]")
        a(f"buffer_load_dwordx4 {vr(V,4)}, v27, {SRD(WS)}, s{sT0} offen sc1")
        a(f"buffer_load_dwordx4 {vr(V+4,4)}, v27, {SRD(WS)}, s{sT0} offen offset:512 sc1")
        a("s_mov_b64 exec, -1")
        a("s_waitcnt vmcnt(0)")
        a(f"v_mfma_f32_32x32x16_bf16 {vr(S,16)}, {vr(K,4)}, {vr(Q,4)}, {vr(C,16)}")
        for i in range(16): a(f"v_exp_f32 v{S+i}, v{S+i}")
        for u in range(2):
            a(f"v_smfmac_f32_32x32x32_bf16 {vr(O,16)}, {vr(V+4*u,4)}, {vr(S+8*u,8)}, v{IDX}")
        a("s_nop 11")
        a(f"s_add_u32 s{sT0}, s{sT0}, 2048")
        a(f"s_cmp_lt_u32 s{sT0}, s{sT3}")
        a("s_cbranch_scc1 L_fb2")
        a(f"s_cmp_ge_u32 s{sW}, 4")
        a("s_cbranch_scc1 L_attn_finL")
        a("s_branch L_attn_finC")

    def loader(self):
        a = self.a
        self.vq.clear()
        t = lambda c, h, u: self.dma(sL, U(u), s13, c * 32768 + h * 16384, range(4), ("t", c))
        c2 = lambda c, h, u: self.dma(sL, U(u), s2_, c * 32768 + h * 16384, range(4), ("c", c))
        def wr(slot, u, base=None):
            b = self.RW + 16 * slot if base is None else base
            self.wait(vm=("r", b))
            for i in range(4):
                a(f"ds_write_b128 v{2 + (U(u) >> 16)}, {vr(b + 4*i, 4)} offset:{(U(u) & 0xffff) + i*1024}")
        def bar(nm, tag=None, ds=None):
            self.wait(vm=tag)
            if ds is not None: a(f"s_waitcnt lgkmcnt({ds})")
            self.dstamp("L:" + nm + " arr", 84)
            a("s_barrier")
            self.dstamp("L:" + nm, 84)
        def touch(const, terms):
            self.sx(sT0, const, *terms)
            self.vm(f"buffer_load_dword v21, v22, {SRD(WS)}, s{sT0} offen sc1")
        a(f"v_add_u32 v2, s{sL}, v1")
        a("v_add_u32 v3, 0x10000, v2")
        a("v_add_u32 v4, 0x20000, v2")
        a(f"ds_write_b128 v3, v[124:127] offset:{U(7) - 65536 + 3072}")
        wr(0, 8)
        bar("W1")
        wr(1, 0); wr(2, 1); wr(3, 2); wr(4, 3)
        bar("B0", ds=12)
        wr(5, 9)
        a("s_waitcnt lgkmcnt(0)")
        a("s_barrier")
        for u in range(4): self.rload(u, s2_, (8 + u) * 16384)
        bar("B1")
        t(5, 0, 4); t(5, 1, 5); t(6, 0, 6); t(6, 1, 7); c2(0, 0, 8); c2(0, 1, 0)
        bar("B2", ("t", 5))
        c2(1, 0, 1); c2(1, 1, 2); c2(2, 0, 3); c2(2, 1, 9)
        bar("B3", ("t", 6))
        c2(3, 0, 4); c2(3, 1, 5)
        def l0a():
            for x in ["v_lshrrev_b32 v22, 5, v0", "v_lshlrev_b32 v22, 15, v22", "v_bfe_u32 v27, v0, 2, 3", "v_lshl_add_u32 v22, v27, 7, v22"]: a(x)
            touch(XF, [(sG, 8 * 32768), (sJ, 65536, 3), (sJ, 4096, 0, 7), (sL, 1, 2)])
            for x in ["v_lshrrev_b32 v22, 5, v0", "v_lshlrev_b32 v22, 12, v22", "v_lshl_add_u32 v22, v27, 7, v22"]: a(x)
            touch(ST, [(sG, 8 * 4096), (sJ, 8192, 3), (sJ, 1024, 1, 3)])
            for i in range(3): self.rload(None, sQ, i * 16384, base=32 + 16 * i)
            self.sx(sT0, WQ + 49152, (sJ, 65536), (sL, 1024, 12, 1))
            a(f"buffer_load_dwordx4 v[80:83], v1, {SRD(WS)}, s{sT0} offen sc1")
        self.wait(vm=("c", 1))
        self.layer0(l0a)
        bar("B4")
        wr(0, 6); wr(1, 7)
        L = a.newlabel("lw")
        a("s_waitcnt vmcnt(15)")
        a(f"s_cmp_eq_u32 s{sLAY}, 0")
        a(f"s_cbranch_scc1 {L}")
        self.wait(vm="all")
        a.label(L)
        bar("D1")
        wr(2, 8); wr(3, 0); wr(6, 1); wr(7, 2)
        bar("D3", ds=0)
        def l0b():
            a("s_waitcnt vmcnt(0)")
            for i in range(3): wr(None, 3 + i, base=32 + 16 * i)
        self.layer0(l0b)
        bar("D6")
        self.sx(sT0, U(6), (sL, 1024, 12, 1))
        a(f"v_add_u32 v5, s{sT0}, v1")
        a("ds_write_b128 v5, v[80:83]")
        self.dflush()
        a("s_waitcnt lgkmcnt(0)")
        a("s_branch L_next")

    T13U = {0: (4, 5), 1: (6, 7), 2: (8, 0), 3: (1, 2), 4: (3, 9), 5: (4, 5), 6: (6, 7)}
    C2U = {0: (8, 0), 1: (1, 2), 2: (3, 9), 3: (4, 5), 4: (6, 7), 5: (8, 0), 6: (1, 2)}

    def ks_bases(self, b):
        L = [f"s_mul_i32 s{sT0}, s{sKH}, 12288", f"s_lshl_b32 s{sT1}, s{sKH}, 12", f"s_add_u32 s{sT1}, s{sT1}, 4096",
             f"v_add_u32 v{b}, s{sT0}, v1", f"v_add_u32 v{b+3}, s{sT1}, v1"]
        for k in (1, 2): L += [f"v_add_u32 v{b+k}, {65536*k}, v{b}", f"v_add_u32 v{b+3+k}, {65536*k}, v{b+3}"]
        return L
    def res_load(self, R, const):
        self.a(f"s_add_u32 s{sT0}, s{sKT}, {const}")
        self.vm(f"buffer_load_dwordx4 {vr(R,4)}, v1, {SRD(WS)}, s{sT0} offen sc1", "res")
        self.vm(f"buffer_load_dwordx4 {vr(R+4,4)}, v1, {SRD(WS)}, s{sT0} offen offset:1024 sc1", "res")
    def res_unpack(self, R, AA):
        L = []
        for i in range(8): L += [f"v_lshlrev_b32 v{AA+2*i}, 16, v{R+i}", f"v_and_b32 v{AA+2*i+1}, 0xffff0000, v{R+i}"]
        return L

    def ks_finish(self, AA, AB, P, out_const, code, final_branch):
        a = self.a
        for q in range(4): a(f"ds_write_b128 v14, {vr(AB+4*q,4)} offset:{q*1024}")
        a(f"s_add_u32 s{sT0}, s{sKT}, {out_const}")
        a(f"s_add_u32 s{sT1}, s{sKS}, {out_const // XF_STR * ST_STR}")
        a("s_waitcnt lgkmcnt(0)")
        a("s_barrier")
        for q in range(4): a(f"ds_read_b128 {vr(AB+4*q,4)}, v15 offset:{q*1024}")
        for q in range(4):
            a(f"s_waitcnt lgkmcnt({3-q})")
            for i in (0, 2): a(f"v_pk_add_f32 {vr(AA+4*q+i,2)}, {vr(AA+4*q+i,2)}, {vr(AB+4*q+i,2)}")
            for i in range(2): a(f"v_cvt_pk_bf16_f32 v{P+2*q+i}, v{AA+4*q+2*i}, v{AA+4*q+2*i+1}")
            if q == 1 and not final_branch: self.vm(f"buffer_store_dwordx4 {vr(P,4)}, v1, {SRD(WS)}, s{sT0} offen")
        if final_branch:
            a(f"s_cmp_lg_u32 s{sLAY}, 0")
            a("s_cbranch_scc1 L_final")
            self.vm(f"buffer_store_dwordx4 {vr(P,4)}, v1, {SRD(WS)}, s{sT0} offen")
        self.vm(f"buffer_store_dwordx4 {vr(P+4,4)}, v1, {SRD(WS)}, s{sT0} offen offset:1024")
        a(f"v_pk_add_f32 {vr(AB,2)}, {vr(AA,2)}, {vr(AA+2,2)}")
        a(f"v_pk_mul_f32 {vr(AB+2,2)}, {vr(AA,2)}, {vr(AA,2)}")
        a(f"v_pk_fma_f32 {vr(AB+2,2)}, {vr(AA+2,2)}, {vr(AA+2,2)}, {vr(AB+2,2)}")
        for i in range(4, 16, 2):
            a(f"v_pk_add_f32 {vr(AB,2)}, {vr(AB,2)}, {vr(AA+i,2)}")
            a(f"v_pk_fma_f32 {vr(AB+2,2)}, {vr(AA+i,2)}, {vr(AA+i,2)}, {vr(AB+2,2)}")
        a(f"v_add_f32 v{AB}, v{AB}, v{AB+1}")
        a(f"v_add_f32 v{AB+2}, v{AB+2}, v{AB+3}")
        a(f"v_permlane32_swap_b32 v{AB}, v{AB+2}")
        a(f"v_add_f32 v{AB}, v{AB}, v{AB+2}")
        self.vm(f"buffer_store_dword v{AB}, v1, {SRD(WS)}, s{sT1} offen")
    def scr_addr(self):
        return [f"s_lshl_b32 s{sT0}, s{sW}, 12", f"s_add_u32 s{sT0}, s{sT0}, {U(9)}", f"v_add_u32 v14, s{sT0}, v1", "v_xor_b32 v15, 8192, v14"]
    def x_flag_addr(self, r, t, sreg, extra=None):
        return [f"v_and_b32 v{r}, 7, v0", f"v_lshlrev_b32 v{r}, 5, v{r}", f"v_and_b32 v{t}, 8, v0",
                lambda: self.sx(sT0, 0, (sreg, 256, 1), (sreg, 4, 0, 1)), f"v_add3_u32 v{r}, v{r}, v{t}, s{sT0}"]

    def wo(self):
        a = self.a
        AA, AB, RING, X, R, B = 32, 48, 64, 128, 96, 2
        WD = self.o("ww", 8)
        self.res_load(R, 0)
        self.emit(self.ks_bases(B))
        self.emit(self.scr_addr())
        a("v_and_b32 v10, 15, v0")
        self.sx(sT0, 0, (sKH, 512), (sTL, 4))
        a(f"v_lshl_add_u32 v10, v10, 5, s{sT0}")
        self.publish(26, C_O, tag="o")
        a("s_barrier")
        self.stamp("attn done")
        self.dq.clear(); self.forget()
        xl = lambda i: self.fload(X + 4 * i, sOS, i * 1024, ("x", i), tmp=sT5)
        init, per = self.ramp([(i, xl(i)) for i in range(16)], 16, self.o("w0", 5), WD)
        items = []
        for i in range(16):
            addr = U(i >> 2) + (i & 3) * 1024
            items.append(dict(read=(B + 3, addr), vm=("x", i),
                              mfma=lambda r, i=i: f"v_mfma_f32_32x32x16_bf16 {vr(AB,16)}, {vr(r,4)}, {vr(X+4*i,4)}, {vr(AB,16) if i else '0'}"))
            items.append(dict(read=(B, addr), mfma=lambda r, i=i: f"v_mfma_f32_32x32x16_bf16 {vr(AA,16)}, {vr(r,4)}, {vr(X+4*i,4)}, {vr(AA,16)}"))
            items[-1]["post"] = list(per.get(i, []))
        self.stream_begin(items, 8, RING)
        self.wait(vm="res")
        self.emit(self.res_unpack(R, AA))
        self.poll(10, 11, C_O)
        self.stamp("wo polled")
        self.emit(init)
        self.stream_run()
        self.ks_finish(AA, AB, 20, XF_STR, C_X1, False)

    def up(self):
        a = self.a
        X = 128; ACC = [16, 32, 48, 64, 80]; RING = 96; D = 6; TM = 120
        MU, CS, EA, EC, PA, PT = 4, 8, 12, 13, 14, 15
        W = (1, 2, 3)
        WD = self.o("uw", 8)
        self.sx(sT1, 0, (sJ, 4, 4), (sW, 1))
        self.emit(self.x_flag_addr(PA, PT, sT1))
        a("v_add_u32 v2, 0x10000, v1")
        a("v_add_u32 v3, 0x20000, v1")
        self.publish(PT, C_X1)
        self.stamp("wo done")
        self.forget()
        CSR = [ACC[4], ACC[4] + 4, ACC[4] + 8, CS, TM, CS, CS]
        csl = lambda c: self.fload(CSR[c], sUC, c * 1024, ("cs", c), tmp=sT4)
        for c in range(5): csl(c)()
        xl = lambda i: self.fload(X + 4 * i, sUX, i * 1024, ("x", i), tmp=sT5)
        STT = ACC[3]
        seq = [(i, xl(i)) for i in range(32)]
        for q in range(4): seq.insert(10 + 2 * q, (10 + q, self.fload(STT + 4 * q, sUS, q * 1024, "st", tmp=sT2)))
        init, per = self.ramp(seq, 32, self.o("u0", 4), WD)
        def epi(c, acc):
            L = []
            for i in range(8): L += [f"v_mul_f32 v{TM+i}, v{EA}, v{acc+i}", f"v_exp_f32 v{TM+i}, v{TM+i}", f"v_mul_f32 v{acc+8+i}, v{acc+i}, v{acc+8+i}"]
            for i in range(8):
                L += [f"v_fma_f32 v{TM+i}, v{TM+i}, v{EC}, v{EC}", f"v_rcp_f32 v{TM+i}, v{TM+i}"]
                if i: L.append(f"v_mul_f32 v{acc+7+i}, v{TM+i-1}, v{acc+7+i}")
            L.append(f"s_add_u32 s{sT3}, s{sHD}, {c*16384}")
            L.append(f"v_mul_f32 v{acc+15}, v{TM+7}, v{acc+15}")
            for i in range(4): L.append(f"v_cvt_pk_bf16_f32 v{acc+i}, v{acc+8+2*i}, v{acc+9+2*i}")
            L.append(lambda: self.vm(f"buffer_store_dwordx4 {vr(acc,4)}, v1, {SRD(WS)}, s{sT3} offen", ("h", c)))
            return L
        items = []; c0 = 0; start = []
        acc = lambda c: vr(ACC[c % 5], 16)
        corr = lambda c, first: dict(vm=("cs", c), mfma=lambda r: f"v_mfma_f32_32x32x16_bf16 {acc(c)}, {vr(CSR[c],4)}, {vr(MU,4)}, {'0' if first else acc(c)}")
        for pi, n in enumerate((3, 2, 1, 1)):
            tiles = list(range(c0, c0 + n)); c0 += n
            start.append(len(items))
            if pi:
                for c in tiles: items.append(corr(c, True))
                if pi < 3: items[-1]["post"] = [csl(c0)]
            for ks in range(32):
                for c in tiles:
                    addr = U(self.T13U[c][ks >> 4]) + (ks & 15) * 1024
                    it = dict(read=(W[addr >> 16], addr & 0xffff),
                              mfma=lambda r, ks=ks, c=c, z=(ks == 0 and pi == 0): f"v_mfma_f32_32x32x16_bf16 {acc(c)}, {vr(r,4)}, {vr(X+4*ks,4)}, {'0' if z else acc(c)}")
                    if ks == 0 and c == tiles[0]: it["bar"] = True
                    if pi == 0 and c == 0: it["vm"] = ("x", ks)
                    if pi == 0 and c < 2: it["post"] = list(per.get(ks, [])[c::2])
                    items.append(it)
                if pi == 0 and ks == self.o("ub", 18): items[-1].setdefault("post", []).append("s_barrier")
                if pi == 0 and ks == 27:
                    for c in tiles: items.append(corr(c, False))
        start.append(len(items))
        st = [lambda: self.wait(vm="st")] + self.stats_ops(STT, MU, EA, EC) + [f"v_mul_f32 v{EA}, {hex(f2u(-LOG2E))}, v{EA}"]
        self.spread(items, 45, 80, st)
        lo = 5
        self.spread(items, start[1] + lo, start[2], epi(0, ACC[0]) + epi(1, ACC[1]) + epi(2, ACC[2]))
        e34 = epi(3, ACC[3]) + epi(4, ACC[4]); nsplit = start[3] + 13
        self.spread(items, start[2] + lo, nsplit, e34)
        self.spread(items, nsplit, start[4], epi(5, ACC[0]))
        items[start[3] + 4].setdefault("post", []).insert(0, lambda: self.publish(PT, C_H3, tag=("h", 3)))
        hf = ["v_and_b32 v14, 7, v0", lambda: self.sx(sT0, 0, (sJ, 512, 4), (sKH, 256), (sTL, 4, 0, 3)), f"v_lshl_add_u32 v14, v14, 5, s{sT0}"]
        items[start[1] + 2].setdefault("post", []).extend(hf)
        items[start[4] - self.o("hp", 8)].setdefault("post", []).insert(0, lambda: self.poll_issue(PA, PT))
        self.stream_begin(items, D, RING)
        self.poll(PA, PT, C_X1)
        self.stamp("up polled")
        self.emit(init)
        self.stream_run()
        a("s_barrier")
        self.epi6 = epi(6, ACC[1])

    def down(self):
        a = self.a
        AA, AB, RING, X, R, B = 48, 64, 80, 128, 112, 2
        PA, PT = 14, 15
        NX = 32; WD = self.o("dw", 8)
        self.forget()
        self.poll_check(PA, PT, C_H3)
        self.stamp("down polled")
        hl = lambda i: self.fload(X + 4 * (i % NX), sHS, (i >> 3) * 16384 + (i & 7) * 1024, ("x", i), tmp=sT5)
        self.res_load(R, XF_STR)
        for i in range(WD): hl(i)()
        self.emit(self.ks_bases(B))
        items = []
        for i in range(56):
            addr = U(self.C2U[i >> 3][(i >> 2) & 1]) + (i & 3) * 1024
            xr = vr(X + 4 * (i % NX), 4)
            it = dict(read=(B + 3 + (addr >> 16), addr & 0xffff), vm=("x", i),
                      mfma=lambda r, i=i, xr=xr: f"v_mfma_f32_32x32x16_bf16 {vr(AB,16)}, {vr(r,4)}, {xr}, {vr(AB,16) if i else '0'}")
            if i in (16, 32): it["bar"] = True
            items.append(it)
            it = dict(read=(B + (addr >> 16), addr & 0xffff), mfma=lambda r, xr=xr: f"v_mfma_f32_32x32x16_bf16 {vr(AA,16)}, {vr(r,4)}, {xr}, {vr(AA,16)}")
            it["post"] = []
            if i == self.o("dpub", 3): it["post"].append(lambda: self.publish(11, C_H6, tag=("h", 6)))
            if i == 32 - 2 * WD: it["post"].append(lambda: self.poll_issue(PA, PT))
            if i == 32 - WD: it["post"].append(lambda: self.poll_check(PA, PT, C_H6))
            if i + WD < 56: it["post"].append(hl(i + WD))
            if i == 40: it["post"] += self.scr_addr()
            items.append(it)
        self.stream_begin(items, 8, RING)
        self.emit(self.epi6)
        self.wait(vm="res")
        self.emit(self.res_unpack(R, AA))
        self.stream_run()
        self.stamp("down main")
        self.P = 20
        self.ks_finish(AA, AB, 20, 0, C_X2, True)
        self.publish(11, C_X2)
        self.stamp("down done")

    def nextlayer(self):
        a = self.a
        a.label("L_next")
        a(f"s_cmp_lg_u32 s{sLAY}, 0")
        a("s_cbranch_scc1 L_exit")
        self.emit(self.x_flag_addr(14, 15, sW))
        a(f"s_add_u32 s{sKVH}, s{sKVH}, {KV_STR}")
        a(f"s_add_u32 s{sKVO}, s{sKVO}, {KV_STR}")
        a(f"s_add_u32 s{sKVA}, s{sKVA}, 4096")
        a(f"s_add_u32 s{sKVF}, s{sKVF}, 4096")
        a(f"s_mov_b32 s{sLAY}, 1")
        self.poll(14, 15, C_X2)
        a("s_barrier")
        a(f"s_mov_b32 s{sCODE}, 16")
        self.stamp("x2 polled")
        a("s_branch L_layer")

    def final(self):
        a = self.a
        a.label("L_final")
        self.srd(SB, P_OUT, 2 * MB)
        a("v_and_b32 v14, 31, v0")
        a("v_lshlrev_b32 v14, 10, v14")
        a("v_lshrrev_b32 v15, 5, v0")
        a("v_lshl_add_u32 v14, v15, 4, v14")
        for b in (20, 24):
            a(f"v_permlane32_swap_b32 v{b}, v{b+2}")
            a(f"v_permlane32_swap_b32 v{b+1}, v{b+3}")
        a(f"buffer_store_dwordx4 v[20:23], v14, {SRD(SB)}, s{sOUT} offen")
        a(f"buffer_store_dwordx4 v[24:27], v14, {SRD(SB)}, s{sOUT} offen offset:32")
        self.stamp("end")
        a.label("L_exit")
        a("s_endpgm")

    def build(self):
        a = self.a
        self.tails = []
        self.prologue()
        self.qkv()
        a(f"s_cmp_ge_u32 s{sW}, 4")
        a("s_cbranch_scc1 L_attnL")
        self.attention("C")
        self.wo(); self.up(); self.down()
        self.nextlayer()
        a.label("L_attnL")
        self.attention("L")
        self.loader()
        self.fallback()
        self.publish_tails()
        self.final()
        a.label("L_end")
        body = a.finish()
        refp = "cdna_kernels/" + NAME + ".s.ref"
        hdr = open(refp).read().split("; Override launch")[0] if os.path.exists(refp) else ""
        txt = hdr + f"; @launch grid=(256,1,1) block=(512,1,1) lds={LDS_TOTAL}\n"
        txt += f""".amdgcn_target "amdgcn-amd-amdhsa--gfx950"
.text
.globl {NAME}_kernel
.p2align 8
.type {NAME}_kernel,@function
{NAME}_kernel:
{body}.section .rodata,"a"
.p2align 6
.amdhsa_kernel {NAME}_kernel
  .amdhsa_next_free_vgpr 256
  .amdhsa_next_free_sgpr 96
  .amdhsa_accum_offset 256
  .amdhsa_group_segment_fixed_size 0
  .amdhsa_kernarg_size 80
  .amdhsa_user_sgpr_count 2
  .amdhsa_user_sgpr_kernarg_segment_ptr 1
  .amdhsa_system_sgpr_workgroup_id_x 1
.end_amdhsa_kernel
"""
        return txt

def stamp_order(names):
    cn = [n for n in names if not n.startswith(("~", "L:"))]
    i0 = cn.index("sync0") + 1
    pre, rest = cn[:i0], cn[i0:]
    body = rest[:rest.index("x2 polled")]
    c = pre + body + ["x2 polled"] + body[:-1] + ["end"]
    ld = ["qkv main", "qkv done", "attn loop", "attn done"] + [n for n in names if n.startswith("L:")]
    l = pre + ld + ["x2 polled"] + ld
    return c, l

def from_spec(spec):
    opt = dict((kv.split('=') + ['1'])[:2] for kv in spec.split(',') if kv)
    return Gen(stop=opt.pop("stop", None), stamps=bool(opt.pop("stamps", 0)), force_slow=bool(opt.pop("slow", 0)),
               force_fallback=bool(opt.pop("fallback", 0)), remap=bool(opt.pop("remap", 0)), opt=opt).build()

if __name__ == "__main__":
    out = sys.argv[2] if len(sys.argv) > 2 else "cdna_kernels/" + NAME + ".s"
    open(out, "w").write(from_spec(sys.argv[1].lstrip(":") if len(sys.argv) > 1 else ""))
```

```python
import sys, math, struct, os
from asmlib import *

NAME = "interleave_layers__softmax_full_mha__glu_gated_swiglu__prompt"
MB = 1 << 20; KB = 1 << 10
XF = 0; XF_STR = 2 * MB
OF = 4 * MB
HF = 6 * MB
ST = 13 * MB; ST_STR = 256 * KB
PWO = 13 * MB + 512 * KB
PW13 = 14 * MB
CS13 = 17 * MB + 512 * KB
PW2 = 18 * MB
WQ = 20 * MB
KVG = 22 * MB; KV_STR = 4 * MB
FL = 30 * MB; FL_STR = 16 * KB
F_LF, F_SF, F_PF, F_KV = 0, 1024, 2048, 4096
TSB = 31 * MB
WS_USED = 33 * MB
OOB = 0x7ff00000
D_LRDY, D_GRDY, D_SHOUT = 0, 128, 160
U = lambda i: i * 16384
LDS_TOTAL = 163840
TSTR = 2064; SLOT = 8 * TSTR; KVB = LDS_TOTAL - 2 * SLOT
SLICE = U(3)
SCR = U(6) + 4096
CNT = KVB - 16
WS, SA, SB, DBG = 4, 8, 12, 16
P_X, P_WQKV, P_WO, P_BX, P_W1, P_W3, P_W2, P_OUT, P_DBG, P_WS = 20, 22, 24, 26, 28, 30, 32, 34, 36, 38
sG, sJ, sW, sXCC, sLAY, sSLOW, sTMO, sFB, sMYF, sCODE = range(40, 50)
sT0, sT1, sT2, sT3, sT4, sT5, sT6, sT7 = range(50, 58)
sFG, sQX, sQS, sKVH, sKVO, sKVF, sKVA, sOD = range(58, 66)
sKT, sKS, sOS, sHS, sOUT, sUX, sUS, sUC, sHD, sKH, sTL = range(66, 77)
sL, s13, s2_, sWOs, sQ, sPD, sPA, sPB, sPCS, sPSTR, sTCH = range(66, 77)
sTSI = 77
sEX = 78; sHI = 80; sN16 = 82; sRDY = 84; sBAD = 86
sTS = 88; sTR = 90; sE0 = 92; sE1 = 94; sPC = 96
C_P0, C_O, C_X1, C_H3, C_H6, C_X2 = 1, 2, 3, 4, 5, 6
LOG2E = 1.4426950408889634
def f2u(x): return struct.unpack("<I", struct.pack("<f", x))[0]
TBOUND2 = 48.0 * 48.0
cost = lambda t: 0 if callable(t) else (8 if t.split()[0] in TRANS else 4)
SRD = lambda r: f"s[{r}:{r+3}]"

class Gen:
    def __init__(self, stop=None, stamps=False, force_slow=False, force_fallback=False, remap=False, opt=None):
        self.a = Asm(); self.stop = stop; self.stamps = stamps
        self.force_slow = force_slow; self.force_fallback = force_fallback
        self.remap = remap; self.opt = opt or {}
        self.dst = []
        self.vq = []; self.dq = []
    def o(self, k, d): return int(self.opt.get(k, d))

    def vm(self, text, tag=None):
        self.a(text); self.vq.append(tag)
    def ds(self, text, tag=None):
        self.a(text); self.dq.append(tag)
    def _wait(self, q, tag, name, mx):
        if tag not in q: return None
        i = len(q) - 1 - q[::-1].index(tag)
        n = min(len(q) - 1 - i, mx)
        del q[:len(q) - n]
        return f"{name}({n})"
    def wait(self, vm=None, ds=None):
        w = []
        if vm == "all": w.append("vmcnt(0)"); self.vq.clear()
        elif vm is not None: w.append(self._wait(self.vq, vm, "vmcnt", 63))
        if ds == "all": w.append("lgkmcnt(0)"); self.dq.clear()
        elif ds is not None: w.append(self._wait(self.dq, ds, "lgkmcnt", 15))
        w = [x for x in w if x]
        if w: self.a("s_waitcnt " + " ".join(w))
    def emit(self, L):
        for t in L:
            if callable(t): t()
            else: self.a(t)

    def stamp(self, name):
        if not self.stamps: return
        a = self.a
        a(f"s_memtime s[{sTS}:{sTS+1}]")
        a(f"s_memrealtime s[{sTR}:{sTR+1}]")
        a("s_waitcnt lgkmcnt(0)")
        a(f"v_mov_b32 v18, s{sTS}")
        a(f"v_mov_b32 v19, s{sTR}")
        a("s_mov_b64 exec, 1")
        a(f"buffer_store_dwordx2 v[18:19], off, {SRD(WS)}, s{sTSI}")
        a("s_mov_b64 exec, -1")
        a(f"s_add_u32 s{sTSI}, s{sTSI}, 8")
    def dstamp(self, name, base):
        if not self.stamps: return
        k = len(self.dst); self.dst.append((name, base + 2 * k))
        self.a(f"s_memtime s[{sTS}:{sTS+1}]")
        self.a(f"s_memrealtime s[{sTR}:{sTR+1}]")
        self.a("s_waitcnt lgkmcnt(0)")
        self.a(f"v_mov_b32 v{base+2*k}, s{sTS}")
        self.a(f"v_mov_b32 v{base+2*k+1}, s{sTR}")
    def dflush(self):
        if not self.stamps: return
        a = self.a
        a("s_mov_b64 exec, 1")
        for name, r in self.dst:
            a(f"buffer_store_dwordx2 v[{r}:{r+1}], off, {SRD(WS)}, s{sTSI}")
            a(f"s_add_u32 s{sTSI}, s{sTSI}, 8")
        a("s_mov_b64 exec, -1")
        self.dst = []

    def srd(self, d, p, size):
        a = self.a
        a(f"s_mov_b32 s{d}, s{p}")
        a(f"s_and_b32 s{d+1}, s{p+1}, 0xffff")
        a(f"s_mov_b32 s{d+2}, {size}")
        a(f"s_mov_b32 s{d+3}, 0x20000")

    def sx(self, dst, const, *terms):
        a = self.a
        first = True
        for tm in terms:
            r, mul = tm[0], tm[1]; shr = tm[2] if len(tm) > 2 else 0; mask = tm[3] if len(tm) > 3 else None
            t = dst if first else sT7
            assert r != dst or first
            cur = r
            if shr: a(f"s_lshr_b32 s{t}, s{cur}, {shr}"); cur = t
            if mask is not None: a(f"s_and_b32 s{t}, s{cur}, {mask}"); cur = t
            if mul != 1:
                if mul & (mul - 1) == 0: a(f"s_lshl_b32 s{t}, s{cur}, {mul.bit_length()-1}")
                else: a(f"s_mul_i32 s{t}, s{cur}, {mul}")
                cur = t
            if first:
                if cur != dst: a(f"s_mov_b32 s{dst}, s{cur}")
            else: a(f"s_add_u32 s{dst}, s{dst}, s{cur}")
            first = False
        if const: a(f"s_add_u32 s{dst}, s{dst}, {const}")

    def fload(self, dst, base, off, tag, tmp=sT7, flags="sc1"):
        def f():
            key = (base, off >> 12)
            if getattr(self, "_tmpkey", {}).get(tmp) != key:
                self.a(f"s_add_u32 s{tmp}, s{base}, {off & ~4095}")
                self._tmpkey = dict(getattr(self, "_tmpkey", {})); self._tmpkey[tmp] = key
            self.vm(f"buffer_load_dwordx4 {vr(dst,4)}, v1, {SRD(WS)}, s{tmp} offen offset:{off & 4095} {flags}", tag)
        return f
    def forget(self): self._tmpkey = {}

    def dma(self, ldsb, ldsc, src, srcc, idx, tag=None, pol="sc1"):
        a = self.a
        a(f"s_add_u32 m0, s{ldsb}, {ldsc}")
        a(f"s_add_u32 s{sT7}, s{src}, {srcc}")
        for i in idx:
            self.vm(f"buffer_load_dwordx4 v1, {SRD(WS)}, s{sT7} offen offset:{i*1024} {pol} lds", tag)

    def spin(self, body):
        a = self.a
        L, D = a.newlabel("spin"), a.newlabel("spind")
        a.label(L)
        body()
        a(f"s_cbranch_vccz {D}")
        a(f"s_sub_u32 s{sTMO}, s{sTMO}, 1")
        a(f"s_cbranch_scc0 {L}")
        a(f"s_mov_b32 s{sTMO}, 0")
        a.label(D)

    def poll(self, vaddr, vtmp, code):
        a = self.a
        a(f"s_add_u32 s{sT6}, s{sCODE}, {code}")
        def body():
            a(f"buffer_load_dword v{vtmp}, v{vaddr}, {SRD(WS)}, s{sFB} offen sc1")
            a("s_waitcnt vmcnt(0)")
            a(f"v_cmp_gt_u32 vcc, s{sT6}, v{vtmp}")
        self.spin(body)
        self.vq.clear()
        self.acquire()
    def poll_issue(self, vaddr, vtmp):
        self.vm(f"buffer_load_dword v{vtmp}, v{vaddr}, {SRD(WS)}, s{sFB} offen sc1", "poll")
    def poll_check(self, vaddr, vtmp, code):
        a = self.a
        D = a.newlabel("pc")
        a(f"s_add_u32 s{sT6}, s{sCODE}, {code}")
        self.wait(vm="poll")
        a(f"v_cmp_gt_u32 vcc, s{sT6}, v{vtmp}")
        a(f"s_or_b32 vcc_lo, vcc_lo, s{sSLOW}")
        a(f"s_cbranch_scc0 {D}")
        q = list(self.vq)
        self.poll(vaddr, vtmp, code)
        self.vq = q
        a.label(D)

    def acquire(self):
        a = self.a
        F = a.newlabel("acq")
        a(f"s_cmp_eq_u32 s{sSLOW}, 0")
        a(f"s_cbranch_scc1 {F}")
        a("buffer_inv sc1")
        a("s_waitcnt vmcnt(0)")
        a.label(F)

    def publish(self, vtmp, code, tag="all"):
        a = self.a
        S, D = a.newlabel("pubs"), a.newlabel("pubd")
        a(f"s_add_u32 s{sT6}, s{sCODE}, {code}")
        a(f"v_mov_b32 v{vtmp}, s{sT6}")
        a("s_mov_b64 exec, 1")
        a(f"s_cmp_lg_u32 s{sSLOW}, 0")
        a(f"s_cbranch_scc1 {S}")
        self.wait(vm=tag)
        self.vm(f"buffer_store_dword v{vtmp}, off, {SRD(WS)}, s{sMYF}")
        self.tails.append((S, D, vtmp))
        a.label(D)
        a("s_mov_b64 exec, -1")
    def publish_tails(self):
        a = self.a
        for S, D, vtmp in self.tails:
            a.label(S)
            a("s_waitcnt vmcnt(0)")
            a("buffer_wbl2 sc1")
            a("s_waitcnt vmcnt(0)")
            a(f"buffer_store_dword v{vtmp}, off, {SRD(WS)}, s{sMYF} sc1")
            a(f"s_branch {D}")

    def split_pair(self, dst, c, tmp):
        return [f"v_cvt_pk_bf16_f32 v{dst}, v{c}, v{c}", f"v_and_b32 v{tmp}, 0xffff0000, v{dst}",
                f"v_sub_f32 v{tmp}, v{c}, v{tmp}", f"v_cvt_pk_bf16_f32 v{dst+1}, v{tmp}, v{tmp}"]

    def stats_ops(self, st, mu4, rstd, vare):
        L = []
        for k in (8, 4, 2, 1):
            for i in range(k):
                L.append(f"v_add_f32 v{st+i}, v{st+i}, v{st+i+k}")
        t0 = st + 3
        L.append(f"v_mov_b32 v{st+1}, v{st}")
        L.append(f"v_mov_b32 v{st+2}, {hex(f2u(1.0/512))}")
        L.append(f"v_permlane32_swap_b32 v{st}, v{st+1}")
        L.append(f"v_mul_f32 v{st}, {hex(f2u(-1.0/512))}, v{st}")
        L.append(f"v_mul_f32 v{t0}, v{st}, v{st}")
        L.append(f"v_fma_f32 v{vare}, v{st+1}, v{st+2}, -v{t0}")
        L.append(f"v_cvt_pk_bf16_f32 v{t0}, v{st}, v{st}")
        L.append(f"v_max_f32 v{vare}, 0, v{vare}")
        L.append(f"v_and_b32 v{t0}, 0xffff0000, v{t0}")
        L.append(f"v_add_f32 v{vare}, {hex(f2u(1e-5))}, v{vare}")
        L.append(f"v_sub_f32 v{t0}, v{st}, v{t0}")
        L.append(f"v_rsq_f32 v{rstd}, v{vare}")
        for i in range(4): L.append(f"v_cvt_pk_bf16_f32 v{mu4+i}, v{st}, v{t0}")
        return L

    def spread(self, items, lo, hi, fill):
        tot = sum(map(cost, fill)); n = hi - lo; k = 0; acc = 0
        for m in range(n):
            while k < len(fill) and (acc + cost(fill[k]) / 2 <= tot * (m + 1) / n or m == n - 1):
                items[lo + m].setdefault("post", []).append(fill[k]); acc += cost(fill[k]); k += 1

    def stream_begin(self, items, D, ring):
        self.S = dict(items=items, D=D, issued=0)
        rd = [i for i in range(len(items)) if items[i].get("read")]
        self.S.update(rd=rd, slot={i: ring + 4 * (k % D) for k, i in enumerate(rd)}, pos={i: k for k, i in enumerate(rd)})
        self._try(D, 0)
    def _try(self, limit, consumed):
        S = self.S; items, rd = S["items"], S["rd"]
        while S["issued"] < min(limit, len(rd)):
            i = rd[S["issued"]]
            if items[i].get("bar"):
                if S["issued"] - consumed > S["D"] // 2: return
                self.wait(ds="all")
                self.a("s_barrier")
                items[i]["bar"] = False
            va, off = items[i]["read"]
            self.ds(f"ds_read_b128 {vr(S['slot'][i],4)}, v{va} offset:{off}", ("rd", S["issued"]))
            S["issued"] += 1
    def stream_run(self, pair=2):
        S = self.S; items = S["items"]
        for i, it in enumerate(items):
            self.emit(it.get("pre", []))
            dtag = None
            if it.get("read"):
                k = S["pos"][i]
                if k >= S["issued"]: self._try(k + 1, k)
                if ("rd", k) in self.dq: dtag = ("rd", min(k + pair, S["issued"]) - 1)
            self.wait(vm=it.get("vm"), ds=dtag)
            self.a(it["mfma"](S["slot"].get(i)))
            if it.get("read"): self._try(k + 1 + S["D"], k + 1)
            self.emit(it.get("post", []))

    @staticmethod
    def ramp(seq, nsteps, n0, wd):
        init, per, k = [], {}, 0
        lead = lambda step: sum(1 for q, _ in seq[:k] if q > step)
        while k < min(n0, len(seq)): init.append(seq[k][1]); k += 1
        for st in range(nsteps):
            n = 0
            while k < len(seq) and (seq[k][0] <= st + 1 or (n < 2 and lead(st) < wd)):
                per.setdefault(st, []).append(seq[k][1]); k += 1; n += 1
        assert k == len(seq)
        return init, per

    def layer0(self, fn):
        a = self.a
        L = a.newlabel("l0")
        a(f"s_cmp_lg_u32 s{sLAY}, 0")
        a(f"s_cbranch_scc1 {L}")
        vq, dq = list(self.vq), list(self.dq)
        fn()
        self.vq, self.dq = vq, dq
        a.label(L)

    def prologue(self):
        a = self.a
        a(f"s_getpc_b64 s[{sPC}:{sPC+1}]")
        a.label("L_pc")
        a("s_load_dwordx16 s[20:35], s[0:1], 0")
        a("v_lshrrev_b32 v2, 5, v0")
        if self.remap: a(f"s_and_b32 s{sJ}, s2, 31")
        else: a(f"s_lshr_b32 s{sJ}, s2, 3")
        a(f"v_lshl_add_u32 v2, s{sJ}, 4, v2")
        a("v_lshlrev_b32 v2, 7, v2")
        a("v_min_u32 v2, L_end-L_pc-4, v2")
        a(f"global_load_dword v3, v2, s[{sPC}:{sPC+1}]")
        a("s_load_dwordx4 s[36:39], s[0:1], 64")
        a("s_cmp_ge_u32 s2, 256")
        a("s_cbranch_scc1 L_exit")
        if self.stamps:
            a(f"s_memtime s[{sE0}:{sE0+1}]")
            a(f"s_memrealtime s[{sE1}:{sE1+1}]")
        if self.remap: a(f"s_lshr_b32 s{sG}, s2, 5")
        else: a(f"s_and_b32 s{sG}, s2, 7")
        a("v_lshrrev_b32 v1, 6, v0")
        a("v_and_b32 v0, 63, v0")
        a(f"v_readfirstlane_b32 s{sW}, v1")
        a(f"s_getreg_b32 s{sXCC}, hwreg(HW_REG_XCC_ID, 0, 4)")
        if self.force_slow: a(f"s_and_b32 s{sXCC}, s{sJ}, 1")
        a("v_lshlrev_b32 v1, 4, v0")
        self.sx(sFG, FL, (sG, FL_STR))
        a(f"s_cmp_ge_u32 s{sW}, 4")
        a("s_cbranch_scc1 L_startL")
        a("v_lshrrev_b32 v4, 3, v0")
        a("v_and_b32 v5, 0x70, v1")
        a("v_lshl_add_u32 v6, v4, 10, v5")
        self.sx(sT2, 0, (sG, 256 * 1024), (sJ, 8 * 1024), (sW, 256))
        a("s_waitcnt lgkmcnt(0)")
        self.dstamp("kernarg", 180)
        self.srd(WS, P_WS, WS_USED)
        self.srd(SA, P_X, 2 * MB)
        if "probe" in self.opt:
            kind, off = self.opt["probe"].split("@")
            self.srd(SB, {"ws": P_WS, "bx": P_BX, "out": P_OUT}[kind], 0x10000000 if kind == "ws" else 2 * MB)
            a(f"s_mov_b32 s{sT0}, {int(off) * MB}")
            a(f"s_add_u32 s{sT1}, s{sT0}, {200 * 8192}")
            a(f"s_or_b32 s{sT3}, s2, s{sW}")
            a("s_cbranch_scc1 L_probed")
            a.label("L_probe")
            a(f"buffer_load_dword v20, off, {SRD(SB)}, s{sT0} sc1")
            a("s_waitcnt vmcnt(0)")
            a(f"s_add_u32 s{sT0}, s{sT0}, 8192")
            a(f"s_cmp_lt_u32 s{sT0}, s{sT1}")
            a("s_cbranch_scc1 L_probe")
            a.label("L_probed")
        for r in range(20, 24): a(f"v_mov_b32 v{r}, 0")
        self.sx(sT6, 0, (sJ, 8), (sW, 1))
        a(f"s_cmp_lg_u32 s{sT6}, 0")
        a("s_cbranch_scc1 L_notlead0")
        a(f"buffer_store_dwordx4 v[20:23], v1, {SRD(WS)}, s{sFG} offen")
        a.label("L_notlead0")
        self.vm(f"buffer_load_dwordx4 v[8:11], v6, {SRD(SA)}, s{sT2} offen", "x")
        self.vm(f"buffer_load_dwordx4 v[12:15], v6, {SRD(SA)}, s{sT2} offen offset:128", "x")
        self.srd(DBG, P_DBG, 256)
        a(f"s_lshl_b32 s{sT5}, s{sG}, 2")
        a(f"s_or_b32 s{sXCC}, s{sXCC}, 16")
        a(f"s_cmp_lg_u32 s{sT6}, 0")
        a("s_cbranch_scc1 L_notlead")
        a(f"v_mov_b32 v24, s{sXCC}")
        a("s_mov_b64 exec, 1")
        a("s_waitcnt vmcnt(2)")
        a(f"buffer_store_dword v24, off, {SRD(DBG)}, s{sT5} offset:{D_LRDY}")
        a("s_mov_b64 exec, -1")
        a.label("L_notlead")
        self.sx(sT3, XF, (sG, 8 * 32768), (sJ, 32768, 2), (sW, 8192), (sJ, 128, 0, 3))
        self.sx(sT4, ST, (sG, 8 * 4096), (sJ, 4096, 2), (sW, 1024), (sJ, 128, 0, 3))
        a("v_lshrrev_b32 v7, 2, v0")
        a("v_lshlrev_b32 v7, 9, v7")
        self.vm(f"buffer_load_dword v16, v7, {SRD(WS)}, s{sT3} offen sc1")
        a("v_and_b32 v7, 0x200, v1")
        self.vm(f"buffer_load_dword v16, v7, {SRD(WS)}, s{sT4} offen sc1")
        a("v_lshlrev_b32 v7, 7, v4")
        self.vm(f"buffer_load_dword v16, v7, {SRD(WS)}, s{sFG} offen sc1")
        a(f"s_cmp_lg_u32 s{sT6}, 1")
        a("s_cbranch_scc1 L_notlead1")
        a("v_lshrrev_b32 v7, 1, v0")
        a("v_lshlrev_b32 v7, 7, v7")
        a("v_and_b32 v24, 16, v1")
        a("v_add_u32 v7, v7, v24")
        a(f"s_add_u32 s{sT0}, s{sFG}, {F_KV}")
        a(f"s_add_u32 s{sT1}, s{sFG}, {F_KV+4096}")
        for o in (1024, 2048):
            a(f"buffer_store_dwordx4 v[20:23], v1, {SRD(WS)}, s{sFG} offen offset:{o} sc1")
        a(f"buffer_store_dwordx4 v[20:23], v7, {SRD(WS)}, s{sT0} offen sc1")
        a(f"buffer_store_dwordx4 v[20:23], v7, {SRD(WS)}, s{sT1} offen sc1")
        a.label("L_notlead1")
        self.consts()
        a(f"s_lshr_b32 s{sKH}, s{sW}, 1")
        self.sx(sTL, 0, (sJ, 2, 3), (sW, 1, 0, 1))
        self.sx(sT0, 0, (sJ, 2, 0, 7), (sKH, 1))
        self.sx(sT1, 0, (sG, 8), (sTL, 1))
        self.sx(sKT, XF, (sT1, 32768), (sT0, 2048))
        self.sx(sKS, ST, (sT1, 4096), (sT0, 1024, 2), (sT0, 4, 0, 3))
        self.sx(sOS, OF, (sT1, 32768), (sKH, 16384))
        self.sx(sHS, HF, (sT1, 112 * 1024), (sKH, 8192))
        self.sx(sOUT, 0, (sT1, 32768), (sT0, 64))
        self.sx(sT1, 0, (sG, 8), (sJ, 4, 4), (sW, 1))
        self.sx(sUX, XF + XF_STR, (sT1, 32768))
        self.sx(sUS, ST + ST_STR, (sT1, 4096))
        self.sx(sUC, CS13, (sJ, 7 * 1024, 0, 15))
        self.sx(sHD, HF, (sT1, 112 * 1024), (sJ, 1024, 0, 15))
        self.sx(sT2, U(7), (sW, 2048))
        a(f"v_add_u32 v7, s{sT2}, v1")
        a("v_lshlrev_b32 v24, 3, v5")
        a("v_lshrrev_b32 v25, 4, v0")
        a("v_lshl_add_u32 v24, v25, 5, v24")
        a("v_and_b32 v25, 8, v0")
        a(f"v_add3_u32 v24, v24, v25, s{sT2}")
        a("v_lshl_add_u32 v25, v4, 9, v5")
        a("v_and_b32 v26, 1, v0")
        a("v_lshlrev_b32 v27, 9, v26")
        a("v_lshl_add_u32 v27, v4, 4, v27")
        a("v_and_b32 v28, 2, v0")
        a("v_lshl_add_u32 v27, v28, 2, v27")
        a("v_and_b32 v29, 4, v0")
        a("v_add_u32 v27, v27, v29")
        a(f"s_add_u32 s{sT2}, s{sT3}, 4096")
        self.dstamp("issued", 180)
        a("s_waitcnt vmcnt(7)")
        a(f"s_cmp_eq_u32 s{sT6}, 1")
        a("s_cbranch_scc1 L_xw")
        self.wait(vm="x")
        a.label("L_xw")
        self.dstamp("x landed", 180)
        a("ds_write_b128 v7, v[8:11]")
        a("ds_write_b128 v7, v[12:15] offset:1024")
        a("ds_read2_b64 v[32:35], v24 offset0:0 offset1:2")
        a("ds_read2_b64 v[36:39], v24 offset0:128 offset1:130")
        for u in range(2):
            for i in range(4):
                a(f"v_lshlrev_b32 v{40+8*u+2*i}, 16, v{8+4*u+i}")
                a(f"v_and_b32 v{41+8*u+2*i}, 0xffff0000, v{8+4*u+i}")
        a("s_waitcnt lgkmcnt(1)")
        self.vm(f"buffer_store_dwordx4 v[32:35], v25, {SRD(WS)}, s{sT3} offen")
        a("s_waitcnt lgkmcnt(0)")
        self.vm(f"buffer_store_dwordx4 v[36:39], v25, {SRD(WS)}, s{sT2} offen")
        for u in range(2):
            b = 40 + 8 * u
            a(f"v_pk_mul_f32 v[{56+4*u}:{57+4*u}], v[{b}:{b+1}], v[{b}:{b+1}]")
            a(f"v_pk_add_f32 v[{58+4*u}:{59+4*u}], v[{b}:{b+1}], v[{b+2}:{b+3}]")
            for i in (2, 4, 6):
                a(f"v_pk_fma_f32 v[{56+4*u}:{57+4*u}], v[{b+i}:{b+i+1}], v[{b+i}:{b+i+1}], v[{56+4*u}:{57+4*u}]")
                if i > 2: a(f"v_pk_add_f32 v[{58+4*u}:{59+4*u}], v[{58+4*u}:{59+4*u}], v[{b+i}:{b+i+1}]")
        for r in (56, 58, 60, 62): a(f"v_add_f32 v{r}, v{r}, v{r+1}")
        for qp in ("[1,0,3,2]", "[2,3,0,1]"):
            for r in (56, 58, 60, 62): a(f"v_add_f32_dpp v{r}, v{r}, v{r} quad_perm:{qp} row_mask:0xf bank_mask:0xf")
        a("v_cmp_eq_u32 vcc, 1, v26")
        a(f"v_cmp_eq_u32 s[{sEX}:{sEX+1}], 2, v28")
        a("v_cndmask_b32 v56, v58, v56, vcc")
        a("v_cndmask_b32 v60, v62, v60, vcc")
        a(f"v_cndmask_b32 v56, v56, v60, s[{sEX}:{sEX+1}]")
        self.vm(f"buffer_store_dword v56, v27, {SRD(WS)}, s{sT4} offen")
        a("v_lshlrev_b32 v7, 7, v26")
        a("s_mov_b64 exec, 3")
        def body():
            a(f"buffer_load_dword v16, v7, {SRD(DBG)}, s{sT5} offen sc1")
            a("s_waitcnt vmcnt(0)")
            a(f"v_readlane_b32 s{sT0}, v16, 0")
            a(f"v_readlane_b32 s{sT1}, v16, 1")
            a(f"s_or_b32 s{sT0}, s{sT0}, s{sT1}")
            a(f"v_cmp_eq_u32 vcc, s{sT0}, 0")
        self.spin(body)
        a("s_mov_b64 exec, -1")
        a(f"s_cmp_lg_u32 s{sT0}, s{sXCC}")
        a("s_cbranch_scc1 L_shout")
        a(f"v_mov_b32 v16, {C_P0}")
        a(f"v_mov_b32 v24, s{sXCC}")
        a("s_mov_b64 exec, 1")
        a(f"buffer_store_dword v16, off, {SRD(WS)}, s{sMYF}")
        a(f"s_cmp_lg_u32 s{sT6}, 1")
        a("s_cbranch_scc1 L_notlead2")
        a(f"buffer_store_dword v24, off, {SRD(DBG)}, s{sT5} offset:{D_GRDY} sc1")
        a.label("L_notlead2")
        a("s_mov_b64 exec, -1")
        self.dstamp("p0 published", 180)
        a("v_and_b32 v7, 31, v0")
        a("v_lshlrev_b32 v7, 5, v7")
        a.label("L_s0")
        a(f"buffer_load_dwordx4 v[12:15], v7, {SRD(WS)}, s{sFG} offen sc1")
        a("s_waitcnt vmcnt(0)")
        a("v_min_u32 v12, v12, v13")
        a("v_min3_u32 v12, v14, v15, v12")
        a("v_cmp_eq_u32 vcc, 0, v12")
        a("s_cbranch_vccz L_s0d")
        a(f"s_sub_u32 s{sTMO}, s{sTMO}, 1")
        a("s_cbranch_scc1 L_s0t")
        a(f"s_and_b32 s{sT0}, s{sTMO}, 7")
        a("s_cbranch_scc1 L_s0")
        a(f"buffer_load_dword v16, off, {SRD(DBG)}, s{sT5} offset:{D_SHOUT} sc1")
        a("s_waitcnt vmcnt(0)")
        a("v_cmp_eq_u32 vcc, 0, v16")
        a("s_cbranch_vccnz L_s0")
        a("s_branch L_slow")
        a.label("L_shout")
        a("v_mov_b32 v16, 1")
        a("s_mov_b64 exec, 1")
        a(f"buffer_store_dword v16, off, {SRD(DBG)}, s{sT5} offset:{D_SHOUT} sc1")
        a("s_mov_b64 exec, -1")
        a.label("L_slow")
        def body():
            a(f"buffer_load_dword v16, off, {SRD(DBG)}, s{sT5} offset:{D_GRDY} sc1")
            a("s_waitcnt vmcnt(0)")
            a("v_cmp_eq_u32 vcc, 0, v16")
        self.spin(body)
        a(f"s_mov_b32 s{sSLOW}, 1")
        a(f"s_add_u32 s{sFB}, s{sFB}, {F_SF}")
        a(f"s_add_u32 s{sMYF}, s{sMYF}, {F_SF}")
        self.publish(16, C_P0)
        a("v_and_b32 v7, 31, v0")
        a("v_lshlrev_b32 v7, 5, v7")
        for q in range(4):
            a(f"v_add_u32 v11, {4*q}, v7")
            self.poll(11, 16, C_P0)
        a("s_branch L_s0d")
        a.label("L_s0t")
        a(f"s_mov_b32 s{sTMO}, 0")
        a.label("L_s0d")
        a(f"v_mov_b32 v16, s{sSLOW}")
        a(f"v_mov_b32 v17, {SCR+1024}")
        a("ds_write_b32 v17, v16")
        self.dstamp("sync0", 180)
        a("s_waitcnt lgkmcnt(0)")
        a("s_barrier")
        self.entry_flush()
        a("s_branch L_layer")
        a.label("L_startL")
        self.vq.clear()
        a("v_lshrrev_b32 v4, 1, v0")
        a("v_mul_u32_u24 v4, 3072, v4")
        a("v_and_b32 v5, 16, v1")
        a("v_add_u32 v4, v4, v5")
        a(f"s_sub_u32 s{sL}, s{sW}, 4")
        self.sx(sT3, 0, (sL, 128 * 3072), (sJ, 32))
        a(f"s_mul_i32 s{sT4}, s{sL}, 12288")
        a("s_waitcnt lgkmcnt(0)")
        self.dstamp("kernarg", 180)
        self.srd(SB, P_WQKV, 512 * 3072)
        for pc in range(4):
            a(f"s_add_u32 s{sT5}, s{sJ}, {pc}")
            a(f"s_and_b32 s{sT5}, s{sT5}, 3")
            a(f"s_mul_i32 s{sT5}, s{sT5}, {32*3072}")
            a(f"s_add_u32 m0, s{sT4}, {pc*3072}")
            a(f"s_add_u32 s{sT5}, s{sT5}, s{sT3}")
            for part in range(3):
                self.vm(f"buffer_load_dwordx4 v4, {SRD(SB)}, s{sT5} offen offset:{part*1024} lds", ("w", pc))
        self.dstamp("issued", 180)
        self.srd(WS, P_WS, WS_USED)
        self.srd(DBG, P_DBG, 256)
        self.consts()
        self.tr_addr(10, 11)
        a(f"v_add_u32 v10, s{sT4}, v10")
        a("v_lshl_add_u32 v12, v11, 10, v10")
        a("v_lshl_add_u32 v13, v11, 9, v10")
        for r in range(28, 32): a(f"v_mov_b32 v{r}, 0x3f803f80")
        a(f"s_lshl_b32 s{sL}, s{sL}, 12")
        self.sx(s13, PW13, (sJ, 7 * 32768, 0, 15), (sL, 1))
        self.sx(s2_, PW2, (sJ, 7 * 32768, 0, 7), (sL, 1))
        self.sx(sWOs, PWO, (sJ, 65536, 0, 7), (sL, 1))
        self.slice_addr()
        for pc in range(4):
            F = self.HOLD + 12 * pc
            self.wait(vm=("w", pc))
            for i in range(2):
                for h2 in range(2):
                    a(f"ds_read_b64_tr_b16 {vr(F+4*i+2*h2,2)}, v12 offset:{pc*3072+i*512+h2*256}")
            for h2 in range(2):
                a(f"ds_read_b64_tr_b16 {vr(F+8+2*h2,2)}, v13 offset:{pc*3072+2048+h2*256}")
            a("s_waitcnt lgkmcnt(0)")
            for k in range(3):
                acc = 80 if k == 2 else 64
                a(f"v_mfma_f32_32x32x16_bf16 {vr(acc,16)}, v[28:31], {vr(F+4*k,4)}, {'0' if pc == 0 and k != 1 else vr(acc,16)}")
                a(f"ds_write_b128 v{20+pc}, {vr(F+4*k,4)} offset:{SLICE+1024*k}")
        self.dstamp("x landed", 180)
        a("v_mov_b32 v81, v80")
        a("v_permlane16_swap_b32 v80, v81")
        a("v_add_f32 v80, v80, v81")
        a(f"v_cndmask_b32 v64, v64, v80, s[{sHI}:{sHI+1}]")
        self.emit(self.split_pair(self.HOLD + 48, 64, 65))
        a(f"ds_write_b64 v15, {vr(self.HOLD+48,2)}")
        self.dstamp("p0 published", 180)
        a("s_waitcnt lgkmcnt(0)")
        a("s_barrier")
        a(f"v_mov_b32 v17, {SCR+1024}")
        a("ds_read_b32 v16, v17")
        a("s_waitcnt lgkmcnt(0)")
        a(f"v_readfirstlane_b32 s{sSLOW}, v16")
        a(f"s_lshl_b32 s{sT0}, s{sSLOW}, 10")
        a(f"s_add_u32 s{sFB}, s{sFB}, s{sT0}")
        a(f"s_add_u32 s{sMYF}, s{sMYF}, s{sT0}")
        self.dstamp("sync0", 180)
        self.entry_flush(names=False)

    HOLD = 204
    def slice_addr(self):
        a = self.a
        for pc in range(4):
            a(f"s_add_u32 s{sT5}, s{sJ}, {pc}")
            self.sx(sT5, 0, (sT5, 3072, 0, 3), (sL, 3))
            a(f"v_add_u32 v{20+pc}, s{sT5}, v1")
        self.sx(sT2, SLICE + 49152, (sL, 512, 13), (sL, 8, 12, 1))
        a("v_and_b32 v15, 0x1f0, v1")
        a("v_and_b32 v16, 0x200, v1")
        a("v_lshl_add_u32 v15, v16, 1, v15")
        a(f"v_add_u32 v15, s{sT2}, v15")

    def entry_flush(self, names=True):
        if not self.stamps: return
        a = self.a
        a(f"v_mov_b32 v178, s{sE0}")
        a(f"v_mov_b32 v179, s{sE1}")
        self.dst.insert(0, ("entry", 178))
        if not names: self.dst = [("~" + n, r) for n, r in self.dst]
        self.dflush()

    def tr_addr(self, r, t):
        a = self.a
        a(f"v_and_b32 v{r}, 15, v0")
        a(f"v_lshlrev_b32 v{r}, 3, v{r}")
        a(f"v_lshrrev_b32 v{t}, 5, v0")
        a(f"v_lshl_add_u32 v{r}, v{t}, 7, v{r}")
        a(f"v_bfe_u32 v{t}, v0, 4, 1")

    def consts(self):
        a = self.a
        a(f"s_mov_b32 s{sLAY}, 0")
        a(f"s_mov_b32 s{sSLOW}, 0")
        a(f"s_mov_b32 s{sCODE}, 0")
        a(f"s_mov_b32 s{sTMO}, 100000")
        a(f"s_mov_b32 s{sHI}, 0")
        a(f"s_mov_b32 s{sHI+1}, -1")
        a(f"s_mov_b32 s{sN16}, 0xffff0000")
        a(f"s_mov_b32 s{sN16+1}, 0xffff0000")
        a(f"s_mov_b32 s{sFB}, s{sFG}")
        self.sx(sMYF, 0, (sJ, 32), (sW, 4), (sFG, 1))
        self.sx(sT0, 0, (sG, 8), (sW, 1))
        self.sx(sQX, XF, (sT0, 32768))
        self.sx(sQS, ST, (sT0, 4096))
        self.sx(sOD, OF, (sT0, 32768), (sJ, 1024))
        self.sx(sKVH, KVG, (sJ, 131072))
        self.sx(sKVO, 0, (sT0, 2048), (sKVH, 1))
        self.sx(sKVA, FL + F_KV, (sJ, 128))
        self.sx(sKVF, 0, (sG, FL_STR), (sKVA, 1))
        if self.stamps:
            a(f"s_lshl_b32 s{sTSI}, s2, 3")
            self.sx(sTSI, TSB, (sTSI, 1024), (sW, 1024))

    QF, KA, VA0, VA1, IDX, Q2, KM = 8, 12, 13, 14, 15, 16, 17
    S0, S1, CC, OO, KF, VF = 32, 48, 64, 80, 96, 104

    def qkv(self):
        a = self.a
        X, NX, WD = 128, 8, self.o("qw", 5)
        assert WD < NX
        AQ, AV, RING, STT, RR, ON, MU, RS, RQ, T = 32, 48, 160, 64, 96, 104, 24, 6, 7, 120
        a.label("L_layer")
        self.vq.clear(); self.dq.clear(); self.forget()
        xl = lambda ks: self.fload(X + 4 * (ks % NX), sQX, ks * 1024, ("x", ks), tmp=sT5)
        seq = [(ks, xl(ks)) for ks in range(32)]
        for q in range(4): seq.insert(4 + q, (4, self.fload(STT + 4 * q, sQS, q * 1024, "st", tmp=sT4)))
        init, per = self.ramp(seq, 32, self.o("q0", 2), WD)
        self.emit(init)
        a(f"v_add_u32 v20, {SLICE}, v1")
        a("v_and_b32 v21, 0x2f0, v1")
        a(f"v_add_u32 v21, {SLICE+2048}, v21")
        items = []
        for ks in range(32):
            xr = vr(X + 4 * (ks % NX), 4)
            items.append(dict(read=(20, (ks >> 1) * 3072 + (ks & 1) * 1024), vm=("x", ks),
                              mfma=lambda r, ks=ks, xr=xr: f"v_mfma_f32_32x32x16_bf16 {vr(AQ,16)}, {vr(r,4)}, {xr}, {vr(AQ,16) if ks else '0'}"))
            items.append(dict(read=(21, (ks >> 1) * 3072 + (ks & 1) * 256),
                              mfma=lambda r, ks=ks, xr=xr: f"v_mfma_f32_32x32x16_bf16 {vr(AV,16)}, {xr}, {vr(r,4)}, {vr(AV,16) if ks else '0'}"))
            items[-1]["post"] = list(per.get(ks, []))
            qb = self.o("qbar", 4)
            if qb and ks % qb == qb - 1 and ks < 31: items[-1].setdefault("post", []).append("s_barrier")
            if ks == 15:
                items.append(dict(read=(20, 49152), mfma=lambda r: f"v_mfma_f32_32x32x16_bf16 {vr(AQ,16)}, {vr(r,4)}, {vr(MU,4)}, {vr(AQ,16)}"))
                items.append(dict(read=(20, 50176), mfma=lambda r: f"v_mfma_f32_32x32x16_bf16 {vr(AV,16)}, {vr(MU,4)}, {vr(r,4)}, {vr(AV,16)}"))
        self.spread(items, 8, 30, self.stats_ops(STT, MU, RS, RQ))
        f = [f"s_lshl_b32 s{sT0}, s{sW}, 7", f"s_add_u32 s{sT0}, s{sT0}, {SCR}",
             "v_and_b32 v22, 31, v0", f"v_lshl_add_u32 v22, v22, 2, s{sT0}",
             lambda: self.ds(f"ds_write_b32 v22, v{RS}", "rsw"),
             "v_bfe_u32 v28, v0, 4, 1", "v_lshrrev_b32 v29, 5, v0", "v_lshlrev_b32 v23, 6, v28",
             "v_lshl_add_u32 v23, v29, 4, v23", f"v_add_u32 v23, s{sT0}, v23",
             lambda: self.ds(f"ds_read_b128 {vr(RR,4)}, v23", "rr"), lambda: self.ds(f"ds_read_b128 {vr(RR+4,4)}, v23 offset:32", "rr"),
             f"v_mul_f32 v{RQ}, {hex(f2u(0.25*LOG2E))}, v{RS}",
             "v_and_b32 v2, 0x330, v1", "v_bfe_u32 v30, v0, 2, 1", "v_lshl_add_u32 v2, v30, 7, v2",
             "v_bfe_u32 v30, v0, 3, 1", "v_lshl_add_u32 v2, v30, 6, v2",
             "v_and_b32 v30, 0xf0, v1", "v_lshl_add_u32 v30, v29, 8, v30", "v_lshl_add_u32 v3, v28, 9, v30",
             f"s_mul_i32 s{sT2}, s{sW}, {TSTR}", f"s_add_u32 s{sT2}, s{sT2}, {KVB}",
             f"v_add_u32 v4, s{sT2}, v2", f"v_add_u32 v5, s{sT2}, v3"]
        f += [f"v_mov_b32 v{ON+r}, 0x3f803f80" for r in range(4)]
        f += [f"v_mul_u32_u24 v22, {SLOT}, v29", f"v_add_u32 v22, s{sT2}, v22",
              lambda: self.ds(f"ds_write_b128 v22, {vr(ON,4)} offset:2048")]
        f += [f"v_add_u32 v{self.KA}, {KVB}, v1", f"v_mov_b32 v23, {KVB+2048}", "v_mov_b32 v31, 0x30000",
              f"v_cmp_eq_u32 vcc, 0, v30", f"v_cmp_eq_u32 s[{sEX}:{sEX+1}], 1, v29", ] if False else []
        f += [f"v_add_u32 v{self.KA}, {KVB}, v1",
              "v_and_b32 v31, 15, v0", "v_min_u32 v31, 1, v31", f"v_mov_b32 v23, {KVB+2048}",
              "v_lshl_add_u32 v23, v31, 16, v23",
              f"v_add_u32 v30, {KVB+1024}, v30", f"v_cndmask_b32 v{self.VA0}, v30, v23, s[{sN16}:{sN16+1}]",
              "v_add_u32 v30, 512, v30", f"v_cndmask_b32 v{self.VA1}, v30, v23, s[{sN16}:{sN16+1}]",
              f"v_mov_b32 v{self.IDX}, 0xdddddddd"]
        f += [f"v_mov_b32 v{self.OO+i}, 0" for i in range(16)]
        f += [f"v_mov_b32 v22, {CNT}", "v_mov_b32 v28, 1", "v_mov_b32 v29, 0", lambda: self.ds("ds_write_b64 v22, v[28:29]")]
        self.spread(items, 30, 62, f)
        self.stream_begin(items, 8, RING)
        self.stream_run()
        self.stamp("qkv main")
        QF, Q2, KM = self.QF, self.Q2, self.KM
        for i in range(8): a(f"v_mul_f32 v{AQ+8+i}, v{RS}, v{AQ+8+i}")
        for i in range(4): a(f"v_cvt_pk_bf16_f32 v{T+i}, v{AQ+8+2*i}, v{AQ+9+2*i}")
        self.vm(f"buffer_store_dwordx4 {vr(T,4)}, v2, {SRD(WS)}, s{sKVO} offen sc1")
        self.ds(f"ds_write_b128 v4, {vr(T,4)}")
        for i in range(8): a(f"v_cndmask_b32 v{AV+i}, v{AV+i}, v{AV+8+i}, s[{sN16}:{sN16+1}]")
        for i in range(8): a(f"v_mul_f32 v{AV+i}, v{RR+i}, v{AV+i}")
        for i in range(4): a(f"v_cvt_pk_bf16_f32 v{T+4+i}, v{AV+2*i}, v{AV+1+2*i}")
        self.vm(f"buffer_store_dwordx4 {vr(T+4,4)}, v3, {SRD(WS)}, s{sKVO} offen offset:1024 sc1")
        self.ds(f"ds_write_b128 v5, {vr(T+4,4)} offset:1024")
        for i in range(8): a(f"v_mul_f32 v{AQ+i}, v{RQ}, v{AQ+i}")
        for i in range(4): a(f"v_cvt_pk_bf16_f32 v{QF+i}, v{AQ+2*i}, v{AQ+1+2*i}")
        a(f"v_pk_mul_f32 v[28:29], {vr(AQ,2)}, {vr(AQ,2)}")
        a(f"v_pk_mul_f32 v[30:31], {vr(AQ+8,2)}, {vr(AQ+8,2)}")
        for i in (2, 4, 6):
            a(f"v_pk_fma_f32 v[28:29], {vr(AQ+i,2)}, {vr(AQ+i,2)}, v[28:29]")
            a(f"v_pk_fma_f32 v[30:31], {vr(AQ+8+i,2)}, {vr(AQ+8+i,2)}, v[30:31]")
        a(f"v_add_f32 v{Q2}, v28, v29")
        a(f"v_add_f32 v{KM}, v30, v31")
        a(f"v_permlane32_swap_b32 v{Q2}, v{KM}")
        a(f"v_add_f32 v{Q2}, v{Q2}, v{KM}")
        a(f"v_mov_b32 v{KM}, v{Q2}")
        a(f"v_permlane32_swap_b32 v{Q2}, v{KM}")
        a(f"v_mul_f32 v22, v{Q2}, v{KM}")
        a("v_sqrt_f32 v22, v22")
        a(f"v_sub_f32 v{self.CC}, 0, v22")
        a(f"v_sub_f32 v{self.CC+1}, 0, v22")
        for i in range(2, 16, 2): a(f"v_pk_mov_b32 {vr(self.CC+i,2)}, {vr(self.CC,2)}, {vr(self.CC,2)}")
        self.wait(ds="all")
        a("s_barrier")
        self.stamp("qkv done")

    def code_touch(self, setup):
        a = self.a
        if not self.o("ct", 1): return
        if setup:
            self.sx(sT0, 0, (sJ, 16), (sL, 4, 12))
            a("v_lshrrev_b32 v5, 4, v0")
            a(f"v_add_lshl_u32 v5, v5, s{sT0}, 7")
            a("v_min_u32 v5, L_end-L_pc-4, v5")
        self.vm(f"global_load_dword v21, v5, s[{sPC}:{sPC+1}]")

    def wave_umax(self, r, t, rows32=False):
        L = [f"v_max_u32_dpp v{r}, v{r}, v{r} {m} row_mask:0xf bank_mask:0xf"
             for m in ("quad_perm:[1,0,3,2]", "quad_perm:[2,3,0,1]", "row_half_mirror", "row_mirror")]
        L += [f"v_mov_b32 v{t}, v{r}", f"v_permlane16_swap_b32 v{r}, v{t}", f"v_max_u32 v{r}, v{r}, v{t}"]
        if not rows32: L += [f"v_mov_b32 v{t}, v{r}", f"v_permlane32_swap_b32 v{r}, v{t}", f"v_max_u32 v{r}, v{r}, v{t}"]
        return L

    def kv_publish(self):
        a = self.a
        L = a.newlabel("kvp")
        self.emit(self.wave_umax(self.KM, 22, rows32=True))
        a(f"v_mov_b32 v22, {CNT}")
        a("v_mov_b32 v27, 1")
        a("s_mov_b64 exec, 1")
        a(f"ds_max_u32 v22, v{self.KM}")
        self.wait(vm="kvst")
        a("ds_add_rtn_u32 v27, v22, v27 offset:4")
        a(f"ds_read_b32 v{self.KM}, v22")
        a("s_waitcnt lgkmcnt(0)")
        a("v_cmp_eq_u32 vcc, 7, v27")
        a(f"s_cbranch_vccz {L}")
        a(f"buffer_store_dword v{self.KM}, off, {SRD(WS)}, s{sKVF} sc1")
        a.label(L)
        a("s_mov_b64 exec, -1")

    def kv_fetch(self, s, layer):
        a = self.a
        L, D, N = a.newlabel("kvn"), a.newlabel("kvd"), a.newlabel("kvr")
        a(f"s_add_u32 s{sT0}, s{sG}, {s}")
        a(f"s_and_b32 s{sT0}, s{sT0}, 7")
        a.label(L)
        a(f"s_bitcmp1_b32 s{sRDY}, s{sT0}")
        a(f"s_cbranch_scc1 {D}")
        if layer == 0:
            a(f"s_cmp_eq_u64 s[{sEX}:{sEX+1}], -1")
            a(f"s_cbranch_scc1 {N}")
            a(f"buffer_load_dword v22, v23, {SRD(DBG)}, 0 offen offset:{D_GRDY} sc1")
            a("s_waitcnt vmcnt(0)")
            a(f"v_cmp_ne_u32 s[{sEX}:{sEX+1}], 0, v22")
            a.label(N)
        a("s_mov_b64 exec, 0xff")
        a(f"buffer_load_dword v22, v24, {SRD(WS)}, s{sKVA} offen sc1")
        a("s_mov_b64 exec, -1")
        a("s_waitcnt vmcnt(0)")
        if layer == 0:
            a("v_cmp_ne_u32 vcc, 0, v22")
            a(f"s_and_b64 s[{sRDY}:{sRDY+1}], vcc, s[{sEX}:{sEX+1}]")
        else:
            a(f"v_cmp_ne_u32 s[{sRDY}:{sRDY+1}], 0, v22")
        a(f"s_sub_u32 s{sTMO}, s{sTMO}, 1")
        a(f"s_cbranch_scc0 {L}")
        a(f"s_mov_b32 s{sTMO}, 0")
        a.label(D)
        a(f"s_lshl_b32 s{sT0}, s{sT0}, 14")
        a(f"s_add_u32 s{sT0}, s{sT0}, s{sKVH}")
        a(f"s_add_u32 s{sT0}, s{sT0}, s{sL}")
        a(f"s_lshr_b32 s{sT1}, s{sL}, 7")
        a(f"s_add_u32 s{sT1}, s{sT1}, s{sL}")
        pol = "sc1 nt" if self.o("kvnt", 1) else "sc1"
        self.dma(sT1, KVB + (s & 1) * SLOT, sT0, 0, (0, 1), ("kv", s), pol)
        a(f"s_add_u32 m0, m0, 16")
        for i in (2, 3):
            self.vm(f"buffer_load_dwordx4 v1, {SRD(WS)}, s{sT7} offen offset:{i*1024} {pol} lds", ("kv", s))

    def prep_setup(self):
        a = self.a
        a(f"s_lshr_b32 s{sT4}, s{sL}, 12")
        self.sx(sT0, 0, (sG, 23), (sJ, 1))
        a(f"s_mov_b32 s{sPCS}, {OOB}")
        a(f"s_cmp_ge_u32 s{sJ}, 23")
        a("s_cbranch_scc1 L_pr_none")
        a(f"s_cmp_ge_u32 s{sT0}, 112")
        a("s_cbranch_scc1 L_pr_o")
        self.srd(SA, P_W1, 512 * 3584)
        self.srd(SB, P_W3, 512 * 3584)
        a(f"s_mov_b32 s{sPSTR}, 3584")
        self.sx(sPA, 0, (sT0, 128, 2), (sT0, 128 * 3584, 0, 3))
        a(f"s_mov_b32 s{sPB}, s{sPA}")
        self.sx(sT2, 0, (sT0, 4, 2), (sT4, 1))
        self.sx(sT1, 0, (sT2, 7, 0, 15), (sT2, 1, 4))
        self.sx(sPCS, CS13, (sT1, 1024), (sT0, 512, 1, 1), (sT0, 8, 0, 1))
        self.sx(sPD, PW13, (sT1, 32768), (sT0, 8192, 0, 3))
        a(f"s_mov_b32 s{sTCH}, 4096")
        a(f"s_lshl_b32 s{sT2}, s{sT4}, 5")
        a(f"s_mov_b32 s{sT3}, 16384")
        a("s_branch L_pr_go")
        a.label("L_pr_o")
        self.sx(sT2, 0, (sT0, 2, 0, 3), (sT4, 1, 1))
        a(f"s_cmp_ge_u32 s{sT0}, 128")
        a("s_cbranch_scc1 L_pr_2")
        self.srd(SA, P_WO, 512 * 1024)
        self.srd(SB, P_WO, 512 * 1024)
        a(f"s_sub_u32 s{sT0}, s{sT0}, 112")
        self.sx(sPD, PWO, (sT2, 65536), (sT0, 32768, 2, 1), (sT0, 8192, 3), (sT4, 4096, 0, 1))
        a("s_branch L_pr_o2")
        a.label("L_pr_2")
        self.srd(SA, P_W2, 1792 * 1024)
        self.srd(SB, P_W2, 1792 * 1024)
        a(f"s_sub_u32 s{sT0}, s{sT0}, 128")
        self.sx(sPD, PW2, (sT2, 7 * 32768), (sT0, 32768, 3), (sT0, 8192, 2, 1), (sT4, 4096, 0, 1))
        a("s_branch L_pr_o2")
        a.label("L_pr_none")
        self.srd(SA, P_WO, 0)
        self.srd(SB, P_WO, 0)
        a(f"s_mov_b32 s{sT0}, 0")
        a(f"s_mov_b32 s{sPD}, {OOB}")
        a.label("L_pr_o2")
        a(f"s_mov_b32 s{sPSTR}, 1024")
        a(f"s_mov_b32 s{sTCH}, 16384")
        self.sx(sPA, 0, (sT0, 256, 0, 3), (sT0, 128 * 1024, 2))
        a(f"s_add_u32 s{sPB}, s{sPA}, 128")
        self.sx(sT2, 0, (sT4, 16384, 1), (sT4, 64, 0, 1))
        a(f"s_mov_b32 s{sT3}, 32")
        a.label("L_pr_go")
        a("v_lshrrev_b32 v25, 3, v0")
        a(f"v_mul_lo_u32 v25, v25, s{sPSTR}")
        a("v_and_b32 v22, 0x70, v1")
        a("v_add_u32 v25, v25, v22")
        a(f"s_lshl_b32 s{sPSTR}, s{sPSTR}, 3")
        a(f"s_mul_i32 s{sT1}, s{sPSTR}, s{sT4}")
        a(f"s_lshl_b32 s{sT1}, s{sT1}, 2")
        a(f"s_add_u32 s{sPA}, s{sPA}, s{sT1}")
        a(f"s_add_u32 s{sPB}, s{sPB}, s{sT1}")
        a("v_bfe_u32 v20, v0, 4, 1")
        a(f"v_mul_lo_u32 v20, v20, s{sT3}")
        a("v_and_b32 v22, 3, v0")
        a("v_lshl_add_u32 v20, v22, 3, v20")
        a("v_bfe_u32 v22, v0, 2, 2")
        a("v_lshl_add_u32 v20, v22, 7, v20")
        a("v_and_b32 v22, 0x200, v1")
        a(f"v_add3_u32 v20, v20, v22, s{sT2}")

    def prep_gather(self, pc):
        a = self.a
        for part in range(2):
            r = sPB if part else sPA
            a(f"s_add_u32 m0, s{sL}, {pc*1024+part*16384}")
            self.vm(f"buffer_load_dwordx4 v25, {SRD(SB if part else SA)}, s{r} offen lds", "pg")
            a(f"s_add_u32 s{r}, s{r}, s{sPSTR}")

    def prep_store(self):
        a = self.a
        F = 128
        for i in range(8):
            for h2 in range(2):
                a(f"ds_read_b64_tr_b16 {vr(F+4*i+2*h2,2)}, v20 offset:{i*2048+h2*1024}")
        for r in range(176, 180): a(f"v_mov_b32 v{r}, 0x3f803f80")
        a(f"s_add_u32 s{sT1}, s{sPD}, s{sTCH}")
        a("s_waitcnt lgkmcnt(0)")
        for i in range(8):
            a(f"v_mfma_f32_32x32x16_bf16 v[160:175], v[176:179], {vr(F+4*i,4)}, {'v[160:175]' if i else '0'}")
            self.vm(f"buffer_store_dwordx4 {vr(F+4*i,4)}, v1, {SRD(WS)}, s{sPD if i < 4 else sT1} offen offset:{(i&3)*1024} sc1")
        a("v_and_b32 v22, 0x1f0, v1")
        self.emit(self.split_pair(162, 160, 161))
        self.vm(f"buffer_store_dwordx2 v[162:163], v22, {SRD(WS)}, s{sPCS} offen sc1", "pst")

    def prep_flag(self):
        a = self.a
        L = a.newlabel("pf")
        q = list(self.vq)
        a(f"s_cmp_lg_u32 s{sW}, 4")
        a(f"s_cbranch_scc1 {L}")
        self.publish(22, C_P0, tag=None)
        a(f"s_cmp_lg_u32 s{sJ}, 31")
        a(f"s_cbranch_scc1 {L}")
        a("v_and_b32 v25, 31, v0")
        a("v_lshl_add_u32 v25, v25, 5, 16")
        self.poll(25, 22, C_P0)
        a("v_mov_b32 v22, 1")
        a("s_mov_b64 exec, 1")
        a(f"buffer_store_dword v22, off, {SRD(WS)}, s{sFG} offset:{F_PF} sc1")
        a("s_mov_b64 exec, -1")
        a.label(L)
        self.vq = q

    def prep_wait(self):
        a = self.a
        N = a.newlabel("pwn")
        a(f"s_cmp_eq_u64 s[{sEX}:{sEX+1}], -1")
        a(f"s_cbranch_scc1 {N}")
        def rdy():
            a(f"buffer_load_dword v22, v23, {SRD(DBG)}, 0 offen offset:{D_GRDY} sc1")
            a("s_waitcnt vmcnt(0)")
            a("v_cmp_eq_u32 vcc, 0, v22")
        self.spin(rdy)
        a.label(N)
        a(f"s_mov_b32 s{sT2}, {FL + F_PF}")
        a("s_mov_b64 exec, 0xff")
        def body():
            a(f"buffer_load_dword v22, v24, {SRD(WS)}, s{sT2} offen sc1")
            a("s_waitcnt vmcnt(0)")
            a("v_cmp_eq_u32 vcc, 0, v22")
        self.spin(body)
        a("s_mov_b64 exec, -1")

    RW = 124
    def rload(self, slot, src, off, base=None, n=4):
        self.forget()
        b = self.RW + 16 * slot if base is None else base
        for i in range(n): self.fload(b + 4 * i, src, off + i * 1024, ("r", b))()
    def attention(self, role, layer=None):
        a = self.a
        S = [self.S0, self.S1]; K = [self.KF, self.KF + 4]; V = [self.VF, self.VF + 8]
        Q, C, O, IDX = self.QF, self.CC, self.OO, self.IDX
        off = lambda t: ((t >> 3) & 1) * SLOT + (t & 7) * TSTR
        kread = lambda t: f"ds_read_b128 {vr(K[t&1],4)}, v{self.KA} offset:{off(t)}"
        vread = lambda t, u: f"ds_read_b128 {vr(V[t&1]+4*u,4)}, v{self.VA1 if u else self.VA0} offset:{off(t)}"
        qk = lambda t: f"v_mfma_f32_32x32x16_bf16 {vr(S[t&1],16)}, {vr(K[t&1],4)}, {vr(Q,4)}, {vr(C,16)}"
        pv = lambda t, u: f"v_smfmac_f32_32x32x32_bf16 {vr(O,16)}, {vr(V[t&1]+4*u,4)}, {vr(S[t&1]+8*u,8)}, v{IDX}"
        Lr = role == "L"
        ast = self.o("ast", 0) and not Lr
        self.vq = ["kvst"]; self.forget()
        if Lr and self.o("prio", 1): a("s_setprio 1")
        a(kread(0)); a(vread(0, 0)); a(vread(0, 1)); a(kread(1))
        a("v_and_b32 v23, 7, v0")
        a("v_lshlrev_b32 v24, 14, v23")
        a("v_lshlrev_b32 v23, 2, v23")
        if Lr:
            a(f"s_mov_b64 s[{sRDY}:{sRDY+1}], 0")
            if layer == 0:
                self.vm(f"buffer_load_dword v26, v23, {SRD(DBG)}, 0 offen offset:{D_GRDY} sc1", "grdy")
                self.prep_setup()
                for k in range(4): self.prep_gather(k)
        else: self.kv_publish()
        a("s_waitcnt lgkmcnt(3)")
        a(qk(0))
        jobs = {}
        def job(t, f): jobs.setdefault(t, []).append(f)
        def touch(base_terms, const, vexpr):
            def f():
                self.sx(sT0, const, *base_terms)
                for x in vexpr: a(x)
                self.vm(f"buffer_load_dword v21, v22, {SRD(WS)}, s{sT0} offen sc1")
            return f
        if Lr:
            job(self.o("pubt", 3), self.kv_publish)
            if layer == 0:
                def grdy():
                    self.wait(vm="grdy")
                    a(f"v_cmp_ne_u32 s[{sEX}:{sEX+1}], 0, v26")
                job(self.o("pubt", 3), grdy)
            job(self.o("fet", 4), lambda: self.kv_fetch(1, layer))
            pf = [lambda u=u: self.dma(sL, U(u), sWOs, u * 16384, range(4), "wp") for u in range(4)]
            pf += [lambda u=u: self.dma(sL, U(4 + u), s13, u * 16384, range(4), "wp") for u in range(3)]
            def last():
                self.dma(sL, U(7), s13, 3 * 16384, range(3), "wp")
                self.vm(f"buffer_load_dwordx4 v[120:123], v1, {SRD(WS)}, s{sT7} offen offset:3072 sc1")
            pf.append(last)
            pf += [lambda u=u: self.rload(u, s13, (4 + u) * 16384) for u in range(6 if layer else 5)]
            if layer: pf += [lambda u=u: self.rload(6 + u, s2_, (12 + u) * 16384) for u in range(2)]
            th = touch([(sG, 8 * 112 * 1024), (sJ, 4 * 112 * 1024, 4), (sL, 28), (sJ, 1024, 0, 15)], HF,
                       ["v_lshrrev_b32 v22, 3, v0", "v_min_u32 v22, 6, v22", "v_lshlrev_b32 v22, 14, v22", "v_and_b32 v27, 7, v0", "v_lshl_add_u32 v22, v27, 7, v22"])
            t1 = touch([(sG, 8 * 32768), (sJ, 1024), (sL, 16)], OF,
                       ["v_lshrrev_b32 v22, 5, v0", "v_lshlrev_b32 v22, 15, v22", "v_bfe_u32 v27, v0, 2, 3", "v_lshl_add_u32 v22, v27, 7, v22"])
            t2 = touch([(sG, 8 * 32768), (sJ, 65536, 3), (sJ, 4096, 0, 7), (sL, 1, 2)], XF + XF_STR, [])
            t3 = touch([(sG, 8 * 4096), (sJ, 8192, 3), (sJ, 1024, 1, 3)], ST + ST_STR,
                       ["v_lshrrev_b32 v22, 5, v0", "v_lshlrev_b32 v22, 12, v22", "v_lshl_add_u32 v22, v27, 7, v22"])
            for k in range(8 if layer == 0 else 7): job(8 * k + (1 if k else 0), lambda k=k: self.code_touch(k == 0))
            def tox(): t1(); t2(); t3()
            def place(fs, lo, hi):
                for k, f in enumerate(fs): job(lo + (hi - lo) * k // len(fs), f)
            if layer == 0:
                job(7, self.prep_store)
                job(15, th); job(17, tox)
                job(22, self.prep_flag)
                t0 = self.o("pw", 29)
                job(t0, self.prep_wait)
                place(pf, t0 + 1, self.o("pe0", 58))
                if self.o("retouch", 1): job(56, tox)
            else:
                place(pf, 7, self.o("pe1", 54))
                job(50, th); job(52, tox)
        job(55, lambda: self.vm(f"buffer_load_dword v{self.KM}, v24, {SRD(WS)}, s{sKVA} offen sc1", "km"))
        def check():
            self.wait(vm="km")
            self.emit(self.wave_umax(self.KM, 22)[:3])
            a(f"v_mul_f32 v22, v{self.Q2}, v{self.KM}")
            a(f"v_cmp_nge_f32 vcc, {hex(f2u(-1.0 if self.force_fallback else TBOUND2))}, v22")
            a(f"s_mov_b64 s[{sBAD}:{sBAD+1}], vcc")
        job(61, check)
        def point(s):
            if ast: self.dstamp(f"a{s} arr", 200)
            if Lr:
                self.wait(vm=("kv", s))
            a("s_waitcnt lgkmcnt(0)")
            a("s_barrier")
            if ast: self.dstamp(f"a{s} bar", 200)
            if Lr and s < 7: jobs.setdefault(8 * s - 2, []).insert(0, lambda: self.kv_fetch(s + 1, layer))
        for t in range(64):
            c = S[t & 1]
            for i in range(16):
                if i == 2:
                    if t > 0: a(pv(t - 1, 1))
                    if t < 63:
                        a(vread(t + 1, 0))
                        a("s_waitcnt lgkmcnt(1)")
                    else: a("s_waitcnt lgkmcnt(0)")
                if i == 6 and t < 63:
                    a(qk(t + 1)); a(vread(t + 1, 1))
                if i == 11:
                    a(pv(t, 0))
                    if t < 62:
                        if (t & 7) == 6: point((t + 2) >> 3)
                        a(kread(t + 2))
                    lst = self.o("lst", 0) and Lr and layer == 0 and self.o("lst", 0) <= t < self.o("lst", 0) + 18
                    if lst: self.dstamp(f"A:t{t}", 128 if t > 8 else 182)
                    for f in jobs.get(t, []): f()
                    if lst and jobs.get(t): self.dstamp(f"A:t{t}j", 128 if t > 8 else 182)
                    if lst and t == self.o("lst", 0) + 17: self.dflush()
                a(f"v_exp_f32 v{c+i}, v{c+i}")
        a(pv(63, 1))
        a(f"s_cmp_lg_u64 s[{sBAD}:{sBAD+1}], 0")
        a("s_cbranch_scc1 L_fallback")
        a.label("L_attn_fin" + role + (str(layer) if Lr else ""))
        if ast: self.dflush()
        self.stamp(("~" if Lr else "") + "attn loop")
        a(f"v_mov_b32 v22, v{O+8}")
        a(f"v_mov_b32 v26, v{O+8}")
        a("v_permlane32_swap_b32 v22, v26")
        a("v_rcp_f32 v22, v22")
        for i in range(0, 8, 2): a(f"v_pk_mul_f32 {vr(O+i,2)}, {vr(O+i,2)}, v[22:23] op_sel_hi:[1,0]")
        for i in range(4): a(f"v_cvt_pk_bf16_f32 v{28+i}, v{O+2*i}, v{O+1+2*i}")
        self.vm(f"buffer_store_dwordx4 v[28:31], v1, {SRD(WS)}, s{sOD} offen", "o")
        if Lr:
            a("s_setprio 0")
            self.publish(26, C_O)
            a("s_barrier")
            self.stamp("~attn done")

    def fallback(self):
        a = self.a
        S, K, V, Q, C, O, IDX = self.S0, self.KF, self.VF, self.QF, self.CC, self.OO, self.IDX
        a.label("L_fallback")
        a(f"s_mov_b32 s{sT0}, s{sKVH}")
        a(f"s_add_u32 s{sT3}, s{sKVH}, 131072")
        a("v_mov_b32 v26, 0xff800000")
        a("s_waitcnt vmcnt(0)")
        a("v_mov_b32 v26, 0xff800000")
        a.label("L_fb1")
        a(f"buffer_load_dwordx4 {vr(K,4)}, v1, {SRD(WS)}, s{sT0} offen sc1")
        a("s_waitcnt vmcnt(0)")
        a(f"v_mfma_f32_32x32x16_bf16 {vr(S,16)}, {vr(K,4)}, {vr(Q,4)}, 0")
        for i in range(8): a(f"v_max3_f32 v26, v{S+2*i}, v{S+2*i+1}, v26")
        a(f"s_add_u32 s{sT0}, s{sT0}, 2048")
        a(f"s_cmp_lt_u32 s{sT0}, s{sT3}")
        a("s_cbranch_scc1 L_fb1")
        a("v_mov_b32 v27, v26")
        a("v_permlane32_swap_b32 v26, v27")
        a("v_max_f32 v26, v26, v27")
        for i in range(16): a(f"v_sub_f32 v{C+i}, 0, v26")
        for i in range(16): a(f"v_mov_b32 v{O+i}, 0")
        for i in range(8): a(f"v_mov_b32 v{V+i}, 0x3f803f80")
        a(f"v_subrev_u32 v27, {KVB}, v{self.VA0}")
        a(f"s_mov_b32 s{sT0}, s{sKVH}")
        a.label("L_fb2")
        a(f"buffer_load_dwordx4 {vr(K,4)}, v1, {SRD(WS)}, s{sT0} offen sc1")
        a(f"s_not_b64 exec, s[{sN16}:{sN16+1}]")
        a(f"buffer_load_dwordx4 {vr(V,4)}, v27, {SRD(WS)}, s{sT0} offen sc1")
        a(f"buffer_load_dwordx4 {vr(V+4,4)}, v27, {SRD(WS)}, s{sT0} offen offset:512 sc1")
        a("s_mov_b64 exec, -1")
        a("s_waitcnt vmcnt(0)")
        a(f"v_mfma_f32_32x32x16_bf16 {vr(S,16)}, {vr(K,4)}, {vr(Q,4)}, {vr(C,16)}")
        for i in range(16): a(f"v_exp_f32 v{S+i}, v{S+i}")
        for u in range(2):
            a(f"v_smfmac_f32_32x32x32_bf16 {vr(O,16)}, {vr(V+4*u,4)}, {vr(S+8*u,8)}, v{IDX}")
        a("s_nop 11")
        a(f"s_add_u32 s{sT0}, s{sT0}, 2048")
        a(f"s_cmp_lt_u32 s{sT0}, s{sT3}")
        a("s_cbranch_scc1 L_fb2")
        a(f"s_cmp_lt_u32 s{sW}, 4")
        a("s_cbranch_scc1 L_attn_finC")
        a(f"s_cmp_eq_u32 s{sLAY}, 0")
        a("s_cbranch_scc1 L_attn_finL0")
        a("s_branch L_attn_finL1")

    def loader(self, layer):
        a = self.a
        self.vq.clear()
        pre = "L:" if layer == 0 else "~L:"
        t = lambda c, h, u: self.dma(sL, U(u), s13, c * 32768 + h * 16384, range(4), ("t", c))
        c2 = lambda c, h, u: self.dma(sL, U(u), s2_, c * 32768 + h * 16384, range(4), ("c", c))
        def wr(b, u):
            self.wait(vm=("r", b))
            for i in range(4):
                a(f"ds_write_b128 v{2 + (U(u) >> 16)}, {vr(b + 4*i, 4)} offset:{(U(u) & 0xffff) + i*1024}")
        def bar(nm, tag=None, ds=None):
            self.wait(vm=tag)
            if ds is not None: a(f"s_waitcnt lgkmcnt({ds})")
            self.dstamp(pre + nm + " arr", 64)
            a("s_barrier")
            self.dstamp(pre + nm, 64)
        def touch(const, terms):
            self.sx(sT0, const, *terms)
            self.vm(f"buffer_load_dword v21, v22, {SRD(WS)}, s{sT0} offen sc1")
        sl = lambda k: self.RW + 16 * k
        c6 = (sl(6), sl(7)) if layer else (32, 48)
        a(f"v_add_u32 v2, s{sL}, v1")
        a("v_add_u32 v3, 0x10000, v2")
        a("v_add_u32 v4, 0x20000, v2")
        a(f"ds_write_b128 v3, v[120:123] offset:{U(7) - 65536 + 3072}")
        wr(sl(0), 8)
        bar("W1")
        wr(sl(1), 0); wr(sl(2), 1); wr(sl(3), 2); wr(sl(4), 3)
        bar("B0", ds=12)
        if layer: wr(sl(5), 9)
        a("s_waitcnt lgkmcnt(0)")
        a("s_barrier")
        if not layer: t(4, 1, 9)
        for u in range(4): self.rload(u, s2_, (8 + u) * 16384)
        if not layer:
            for u in range(2): self.rload(None, s2_, (12 + u) * 16384, base=c6[u])
        if not layer: self.code_touch(False)
        bar("B1", ("t", 4))
        t(5, 0, 4); t(5, 1, 5); t(6, 0, 6); t(6, 1, 7); c2(0, 0, 8); c2(0, 1, 0)
        bar("B2", ("t", 5))
        c2(1, 0, 1); c2(1, 1, 2); c2(2, 0, 3); c2(2, 1, 9)
        bar("B3", ("t", 6))
        c2(3, 0, 4); c2(3, 1, 5)
        if not layer:
            for x in ["v_lshrrev_b32 v22, 5, v0", "v_lshlrev_b32 v22, 15, v22", "v_bfe_u32 v27, v0, 2, 3", "v_lshl_add_u32 v22, v27, 7, v22"]: a(x)
            touch(XF, [(sG, 8 * 32768), (sJ, 65536, 3), (sJ, 4096, 0, 7), (sL, 1, 2)])
            for x in ["v_lshrrev_b32 v22, 5, v0", "v_lshlrev_b32 v22, 12, v22", "v_lshl_add_u32 v22, v27, 7, v22"]: a(x)
            touch(ST, [(sG, 8 * 4096), (sJ, 8192, 3), (sJ, 1024, 1, 3)])
        if not layer: self.code_touch(False)
        bar("B4", ("c", 1))
        wr(sl(0), 6); wr(sl(1), 7)
        bar("D1", "all")
        wr(sl(2), 8); wr(sl(3), 0); wr(c6[0], 1); wr(c6[1], 2)
        if not layer: self.slice_addr()
        bar("D3", ds=0)
        if not layer:
            for pc in range(4):
                for k in range(3): a(f"ds_write_b128 v{20+pc}, {vr(self.HOLD+12*pc+4*k,4)} offset:{SLICE+1024*k}")
        bar("D6")
        if not layer: a(f"ds_write_b64 v15, {vr(self.HOLD+48,2)}")
        self.dflush()
        if layer: a("s_endpgm")
        else:
            a("s_waitcnt lgkmcnt(0)")
            a("s_branch L_next")

    T13U = {0: (4, 5), 1: (6, 7), 2: (8, 0), 3: (1, 2), 4: (3, 9), 5: (4, 5), 6: (6, 7)}
    C2U = {0: (8, 0), 1: (1, 2), 2: (3, 9), 3: (4, 5), 4: (6, 7), 5: (8, 0), 6: (1, 2)}

    def ks_bases(self, b):
        L = [f"s_mul_i32 s{sT0}, s{sKH}, 12288", f"s_lshl_b32 s{sT1}, s{sKH}, 12", f"s_add_u32 s{sT1}, s{sT1}, 4096",
             f"v_add_u32 v{b}, s{sT0}, v1", f"v_add_u32 v{b+3}, s{sT1}, v1"]
        for k in (1, 2): L += [f"v_add_u32 v{b+k}, {65536*k}, v{b}", f"v_add_u32 v{b+3+k}, {65536*k}, v{b+3}"]
        return L
    def res_load(self, R, const):
        self.a(f"s_add_u32 s{sT0}, s{sKT}, {const}")
        self.vm(f"buffer_load_dwordx4 {vr(R,4)}, v1, {SRD(WS)}, s{sT0} offen sc1", "res")
        self.vm(f"buffer_load_dwordx4 {vr(R+4,4)}, v1, {SRD(WS)}, s{sT0} offen offset:1024 sc1", "res")
    def res_unpack(self, R, AA):
        L = []
        for i in range(8): L += [f"v_lshlrev_b32 v{AA+2*i}, 16, v{R+i}", f"v_and_b32 v{AA+2*i+1}, 0xffff0000, v{R+i}"]
        return L

    def ks_finish(self, AA, AB, P, out_const, code, final_branch):
        a = self.a
        for q in range(4): a(f"ds_write_b128 v14, {vr(AB+4*q,4)} offset:{q*1024}")
        a(f"s_add_u32 s{sT0}, s{sKT}, {out_const}")
        a(f"s_add_u32 s{sT1}, s{sKS}, {out_const // XF_STR * ST_STR}")
        a("s_waitcnt lgkmcnt(0)")
        a("s_barrier")
        for q in range(4): a(f"ds_read_b128 {vr(AB+4*q,4)}, v15 offset:{q*1024}")
        for q in range(4):
            a(f"s_waitcnt lgkmcnt({3-q})")
            for i in (0, 2): a(f"v_pk_add_f32 {vr(AA+4*q+i,2)}, {vr(AA+4*q+i,2)}, {vr(AB+4*q+i,2)}")
            for i in range(2): a(f"v_cvt_pk_bf16_f32 v{P+2*q+i}, v{AA+4*q+2*i}, v{AA+4*q+2*i+1}")
            if q == 1 and not final_branch: self.vm(f"buffer_store_dwordx4 {vr(P,4)}, v1, {SRD(WS)}, s{sT0} offen")
        if final_branch:
            a(f"s_cmp_lg_u32 s{sLAY}, 0")
            a("s_cbranch_scc1 L_final")
            self.vm(f"buffer_store_dwordx4 {vr(P,4)}, v1, {SRD(WS)}, s{sT0} offen")
        self.vm(f"buffer_store_dwordx4 {vr(P+4,4)}, v1, {SRD(WS)}, s{sT0} offen offset:1024")
        a(f"v_pk_add_f32 {vr(AB,2)}, {vr(AA,2)}, {vr(AA+2,2)}")
        a(f"v_pk_mul_f32 {vr(AB+2,2)}, {vr(AA,2)}, {vr(AA,2)}")
        a(f"v_pk_fma_f32 {vr(AB+2,2)}, {vr(AA+2,2)}, {vr(AA+2,2)}, {vr(AB+2,2)}")
        for i in range(4, 16, 2):
            a(f"v_pk_add_f32 {vr(AB,2)}, {vr(AB,2)}, {vr(AA+i,2)}")
            a(f"v_pk_fma_f32 {vr(AB+2,2)}, {vr(AA+i,2)}, {vr(AA+i,2)}, {vr(AB+2,2)}")
        a(f"v_add_f32 v{AB}, v{AB}, v{AB+1}")
        a(f"v_add_f32 v{AB+2}, v{AB+2}, v{AB+3}")
        a(f"v_permlane32_swap_b32 v{AB}, v{AB+2}")
        a(f"v_add_f32 v{AB}, v{AB}, v{AB+2}")
        self.vm(f"buffer_store_dword v{AB}, v1, {SRD(WS)}, s{sT1} offen")
    def scr_addr(self):
        return [f"s_lshl_b32 s{sT0}, s{sW}, 12", f"s_add_u32 s{sT0}, s{sT0}, {U(9)}", f"v_add_u32 v14, s{sT0}, v1", "v_xor_b32 v15, 8192, v14"]
    def x_flag_addr(self, r, t, sreg, extra=None):
        return [f"v_and_b32 v{r}, 7, v0", f"v_lshlrev_b32 v{r}, 5, v{r}", f"v_and_b32 v{t}, 8, v0",
                lambda: self.sx(sT0, 0, (sreg, 256, 1), (sreg, 4, 0, 1)), f"v_add3_u32 v{r}, v{r}, v{t}, s{sT0}"]

    def wo(self):
        a = self.a
        AA, AB, RING, X, R, B = 32, 48, 64, 128, 96, 2
        WD = self.o("ww", 8)
        self.res_load(R, 0)
        self.emit(self.ks_bases(B))
        self.emit(self.scr_addr())
        a("v_and_b32 v10, 15, v0")
        self.sx(sT0, 0, (sKH, 512), (sTL, 4))
        a(f"v_lshl_add_u32 v10, v10, 5, s{sT0}")
        self.publish(26, C_O, tag="o")
        a("s_barrier")
        self.stamp("attn done")
        self.dq.clear(); self.forget()
        xl = lambda i: self.fload(X + 4 * i, sOS, i * 1024, ("x", i), tmp=sT5)
        init, per = self.ramp([(i, xl(i)) for i in range(16)], 16, self.o("w0", 5), WD)
        items = []
        for i in range(16):
            addr = U(i >> 2) + (i & 3) * 1024
            items.append(dict(read=(B + 3, addr), vm=("x", i),
                              mfma=lambda r, i=i: f"v_mfma_f32_32x32x16_bf16 {vr(AB,16)}, {vr(r,4)}, {vr(X+4*i,4)}, {vr(AB,16) if i else '0'}"))
            items.append(dict(read=(B, addr), mfma=lambda r, i=i: f"v_mfma_f32_32x32x16_bf16 {vr(AA,16)}, {vr(r,4)}, {vr(X+4*i,4)}, {vr(AA,16)}"))
            items[-1]["post"] = list(per.get(i, []))
        self.stream_begin(items, 8, RING)
        self.wait(vm="res")
        self.emit(self.res_unpack(R, AA))
        self.poll(10, 11, C_O)
        self.stamp("wo polled")
        self.emit(init)
        self.stream_run()
        self.ks_finish(AA, AB, 20, XF_STR, C_X1, False)

    def up(self):
        a = self.a
        X = 128; ACC = [16, 32, 48, 64, 80]; RING = 96; D = 6; TM = 120
        MU, CS, EA, EC, PA, PT = 4, 8, 12, 13, 14, 15
        W = (1, 2, 3)
        WD = self.o("uw", 12)
        self.sx(sT1, 0, (sJ, 4, 4), (sW, 1))
        self.emit(self.x_flag_addr(PA, PT, sT1))
        a("v_add_u32 v2, 0x10000, v1")
        a("v_add_u32 v3, 0x20000, v1")
        self.publish(PT, C_X1)
        self.stamp("wo done")
        self.forget()
        CSR = [ACC[4], ACC[4] + 4, ACC[4] + 8, CS, TM, CS, CS]
        csl = lambda c: self.fload(CSR[c], sUC, c * 1024, ("cs", c), tmp=sT4)
        for c in range(5): csl(c)()
        xl = lambda i: self.fload(X + 4 * i, sUX, i * 1024, ("x", i), tmp=sT5)
        STT = ACC[3]
        seq = [(i, xl(i)) for i in range(32)]
        for q in range(4): seq.insert(10 + 2 * q, (10 + q, self.fload(STT + 4 * q, sUS, q * 1024, "st", tmp=sT2)))
        init, per = self.ramp(seq, 32, self.o("u0", 4), WD)
        def epi(c, acc):
            L = []
            for i in range(8): L += [f"v_mul_f32 v{TM+i}, v{EA}, v{acc+i}", f"v_exp_f32 v{TM+i}, v{TM+i}", f"v_mul_f32 v{acc+8+i}, v{acc+i}, v{acc+8+i}"]
            for i in range(8):
                L += [f"v_fma_f32 v{TM+i}, v{TM+i}, v{EC}, v{EC}", f"v_rcp_f32 v{TM+i}, v{TM+i}"]
                if i: L.append(f"v_mul_f32 v{acc+7+i}, v{TM+i-1}, v{acc+7+i}")
            L.append(f"s_add_u32 s{sT3}, s{sHD}, {c*16384}")
            L.append(f"v_mul_f32 v{acc+15}, v{TM+7}, v{acc+15}")
            for i in range(4): L.append(f"v_cvt_pk_bf16_f32 v{acc+i}, v{acc+8+2*i}, v{acc+9+2*i}")
            L.append(lambda: self.vm(f"buffer_store_dwordx4 {vr(acc,4)}, v1, {SRD(WS)}, s{sT3} offen", ("h", c)))
            return L
        items = []; c0 = 0; start = []
        acc = lambda c: vr(ACC[c % 5], 16)
        corr = lambda c, first: dict(vm=("cs", c), mfma=lambda r: f"v_mfma_f32_32x32x16_bf16 {acc(c)}, {vr(CSR[c],4)}, {vr(MU,4)}, {'0' if first else acc(c)}")
        for pi, n in enumerate((3, 2, 1, 1)):
            tiles = list(range(c0, c0 + n)); c0 += n
            start.append(len(items))
            if pi:
                for c in tiles: items.append(corr(c, True))
                if pi < 3: items[-1]["post"] = [csl(c0)]
            for ks in range(32):
                for c in tiles:
                    addr = U(self.T13U[c][ks >> 4]) + (ks & 15) * 1024
                    it = dict(read=(W[addr >> 16], addr & 0xffff),
                              mfma=lambda r, ks=ks, c=c, z=(ks == 0 and pi == 0): f"v_mfma_f32_32x32x16_bf16 {acc(c)}, {vr(r,4)}, {vr(X+4*ks,4)}, {'0' if z else acc(c)}")
                    if ks == 0 and c == tiles[0]: it["bar"] = True
                    if pi == 0 and c == 0: it["vm"] = ("x", ks)
                    if pi == 0 and c < 2: it["post"] = list(per.get(ks, [])[c::2])
                    items.append(it)
                if pi == 0 and ks == self.o("ub", 16): items[-1].setdefault("post", []).append("s_barrier")
                if pi == 0 and ks == 27:
                    for c in tiles: items.append(corr(c, False))
        start.append(len(items))
        st = [lambda: self.wait(vm="st")] + self.stats_ops(STT, MU, EA, EC) + [f"v_mul_f32 v{EA}, {hex(f2u(-LOG2E))}, v{EA}"]
        self.spread(items, 45, 80, st)
        lo = 5
        self.spread(items, start[1] + lo, start[2], epi(0, ACC[0]) + epi(1, ACC[1]) + epi(2, ACC[2]))
        e34 = epi(3, ACC[3]) + epi(4, ACC[4]); nsplit = start[3] + 13
        self.spread(items, start[2] + lo, nsplit, e34)
        self.spread(items, nsplit, start[4], epi(5, ACC[0]))
        items[start[3] + 4].setdefault("post", []).insert(0, lambda: self.publish(PT, C_H3, tag=("h", 3)))
        hf = ["v_and_b32 v14, 7, v0", lambda: self.sx(sT0, 0, (sJ, 512, 4), (sKH, 256), (sTL, 4, 0, 3)), f"v_lshl_add_u32 v14, v14, 5, s{sT0}"]
        items[start[1] + 2].setdefault("post", []).extend(hf)
        items[start[4] - self.o("hp", 8)].setdefault("post", []).insert(0, lambda: self.poll_issue(PA, PT))
        self.stream_begin(items, D, RING)
        self.poll(PA, PT, C_X1)
        self.stamp("up polled")
        self.emit(init)
        self.stream_run()
        a("s_barrier")
        self.epi6 = epi(6, ACC[1])

    def down(self):
        a = self.a
        AA, AB, RING, X, R, B = 48, 64, 80, 128, 112, 2
        PA, PT = 14, 15
        NX = 32; WD = self.o("dw", 8)
        self.forget()
        self.poll_check(PA, PT, C_H3)
        self.stamp("down polled")
        hl = lambda i: self.fload(X + 4 * (i % NX), sHS, (i >> 3) * 16384 + (i & 7) * 1024, ("x", i), tmp=sT5)
        self.res_load(R, XF_STR)
        for i in range(WD): hl(i)()
        self.emit(self.ks_bases(B))
        items = []
        for i in range(56):
            addr = U(self.C2U[i >> 3][(i >> 2) & 1]) + (i & 3) * 1024
            xr = vr(X + 4 * (i % NX), 4)
            it = dict(read=(B + 3 + (addr >> 16), addr & 0xffff), vm=("x", i),
                      mfma=lambda r, i=i, xr=xr: f"v_mfma_f32_32x32x16_bf16 {vr(AB,16)}, {vr(r,4)}, {xr}, {vr(AB,16) if i else '0'}")
            if i in (16, 32): it["bar"] = True
            items.append(it)
            it = dict(read=(B + (addr >> 16), addr & 0xffff), mfma=lambda r, xr=xr: f"v_mfma_f32_32x32x16_bf16 {vr(AA,16)}, {vr(r,4)}, {xr}, {vr(AA,16)}")
            it["post"] = []
            if i == self.o("dpub", 3): it["post"].append(lambda: self.publish(11, C_H6, tag=("h", 6)))
            if i == 32 - 2 * WD: it["post"].append(lambda: self.poll_issue(PA, PT))
            if i == 32 - WD: it["post"].append(lambda: self.poll_check(PA, PT, C_H6))
            if i + WD < 56: it["post"].append(hl(i + WD))
            if i == 40: it["post"] += self.scr_addr()
            items.append(it)
        self.stream_begin(items, 8, RING)
        self.emit(self.epi6)
        self.wait(vm="res")
        self.emit(self.res_unpack(R, AA))
        self.stream_run()
        self.stamp("down main")
        self.P = 20
        self.ks_finish(AA, AB, 20, 0, C_X2, True)
        self.publish(11, C_X2)
        self.stamp("down done")

    def nextlayer(self):
        a = self.a
        a.label("L_next")
        self.emit(self.x_flag_addr(14, 15, sW))
        a(f"s_add_u32 s{sKVH}, s{sKVH}, {KV_STR}")
        a(f"s_add_u32 s{sKVO}, s{sKVO}, {KV_STR}")
        a(f"s_add_u32 s{sKVA}, s{sKVA}, 4096")
        a(f"s_add_u32 s{sKVF}, s{sKVF}, 4096")
        a(f"s_mov_b32 s{sLAY}, 1")
        self.poll(14, 15, C_X2)
        a("s_barrier")
        a(f"s_mov_b32 s{sCODE}, 16")
        self.stamp("x2 polled")
        a("s_branch L_layer")

    def final(self):
        a = self.a
        a.label("L_final")
        self.srd(SB, P_OUT, 2 * MB)
        a("v_and_b32 v14, 31, v0")
        a("v_lshlrev_b32 v14, 10, v14")
        a("v_lshrrev_b32 v15, 5, v0")
        a("v_lshl_add_u32 v14, v15, 4, v14")
        for b in (20, 24):
            a(f"v_permlane32_swap_b32 v{b}, v{b+2}")
            a(f"v_permlane32_swap_b32 v{b+1}, v{b+3}")
        a(f"buffer_store_dwordx4 v[20:23], v14, {SRD(SB)}, s{sOUT} offen")
        a(f"buffer_store_dwordx4 v[24:27], v14, {SRD(SB)}, s{sOUT} offen offset:32")
        self.stamp("end")
        a.label("L_exit")
        a("s_endpgm")

    def build(self):
        a = self.a
        self.tails = []
        self.prologue()
        self.qkv()
        a(f"s_cmp_ge_u32 s{sW}, 4")
        a("s_cbranch_scc1 L_attnL")
        self.attention("C")
        self.wo(); self.up(); self.down()
        self.nextlayer()
        a.label("L_attnL")
        a(f"s_cmp_lg_u32 s{sLAY}, 0")
        a("s_cbranch_scc1 L_attnL1")
        self.attention("L", 0)
        self.loader(0)
        a.label("L_attnL1")
        self.attention("L", 1)
        self.loader(1)
        self.fallback()
        self.publish_tails()
        self.final()
        a.label("L_end")
        body = a.finish()
        refp = "cdna_kernels/" + NAME + ".s.ref"
        hdr = open(refp).read().split("; Override launch")[0] if os.path.exists(refp) else ""
        txt = hdr + f"; @launch grid=(256,1,1) block=(512,1,1) lds={LDS_TOTAL}\n"
        txt += f""".amdgcn_target "amdgcn-amd-amdhsa--gfx950"
.text
.globl {NAME}_kernel
.p2align 8
.type {NAME}_kernel,@function
{NAME}_kernel:
{body}.section .rodata,"a"
.p2align 6
.amdhsa_kernel {NAME}_kernel
  .amdhsa_next_free_vgpr 256
  .amdhsa_next_free_sgpr 98
  .amdhsa_accum_offset 256
  .amdhsa_group_segment_fixed_size 0
  .amdhsa_kernarg_size 80
  .amdhsa_user_sgpr_count 2
  .amdhsa_user_sgpr_kernarg_segment_ptr 1
  .amdhsa_system_sgpr_workgroup_id_x 1
.end_amdhsa_kernel
"""
        return txt

def stamp_order(names):
    cn = [n for n in names if not n.startswith(("~", "L:", "A:"))]
    i0 = cn.index("sync0") + 1
    pre, rest = cn[:i0], cn[i0:]
    body = rest[:rest.index("x2 polled")]
    c = pre + body + ["x2 polled"] + body[:-1] + ["end"]
    ld = ["qkv main", "qkv done", "attn loop", "attn done"] + [n for n in names if n.startswith("L:")]
    l = pre + ld[:2] + [n for n in names if n.startswith("A:")] + ld[2:] + ["x2 polled"] + ld
    return c, l

def from_spec(spec):
    opt = dict((kv.split('=') + ['1'])[:2] for kv in spec.split(',') if kv)
    return Gen(stop=opt.pop("stop", None), stamps=bool(opt.pop("stamps", 0)), force_slow=bool(opt.pop("slow", 0)),
               force_fallback=bool(opt.pop("fallback", 0)), remap=bool(opt.pop("remap", 0)), opt=opt).build()

if __name__ == "__main__":
    out = sys.argv[2] if len(sys.argv) > 2 else "cdna_kernels/" + NAME + ".s"
    open(out, "w").write(from_spec(sys.argv[1].lstrip(":") if len(sys.argv) > 1 else ""))
```

```python
import sys, math, struct, os
from asmlib import *

NAME = "interleave_layers__softmax_full_mha__glu_gated_swiglu__prompt"
MB = 1 << 20; KB = 1 << 10
XF = 0
HF = 2 * MB
ST = 9 * MB
PWO = 9 * MB + 512 * KB
PW13 = 10 * MB
CS13 = 13 * MB + 512 * KB
PW2 = 14 * MB
KVG = 16 * MB; KV_STR = 4 * MB
FL = 24 * MB; FL_STR = 16 * KB
HT = 112 * 1024
F_LF, F_SF, F_PF, F_KV = 0, 1024, 2048, 4096
TSB = 25 * MB
WS_USED = 27 * MB
OOB = 0x7ff00000
D_LRDY, D_GRDY, D_SHOUT = 0, 128, 160
U = lambda i: i * 16384
LDS_TOTAL = 163840
TSTR = 2064; SLOT = 8 * TSTR; KVB = LDS_TOTAL - 2 * SLOT
SLICE = U(3)
SCR = U(6) + 4096
CNT = KVB - 16
WS, SA, SB, DBG = 4, 8, 12, 16
P_X, P_WQKV, P_WO, P_BX, P_W1, P_W3, P_W2, P_OUT, P_DBG, P_WS = 20, 22, 24, 26, 28, 30, 32, 34, 36, 38
sG, sJ, sW, sXCC, sLAY, sSLOW, sTMO, sFB, sMYF, sCODE = range(40, 50)
sT0, sT1, sT2, sT3, sT4, sT5, sT6, sT7 = range(50, 58)
sFG, sQX, sQS, sKVH, sKVO, sKVF, sKVA, sOD = range(58, 66)
sKT, sKS, sOS, sHS, sOUT, sUX, sUS, sUC, sHD, sKH, sTL = range(66, 77)
sL, s13, s2_, sWOs, sQ, sPD, sPA, sPB, sPCS, sPSTR, sTCH = range(66, 77)
sTSI = 77
sEX = 78; sHI = 80; sN16 = 82; sRDY = 84; sBAD = 86
sTS = 88; sTR = 90; sE0 = 92; sE1 = 94; sPC = 96; sSTR = 98; sROLE = 3
C_P0, C_O, C_X1, C_H3, C_H6, C_X2 = 1, 2, 3, 4, 5, 6
LOG2E = 1.4426950408889634
def f2u(x): return struct.unpack("<I", struct.pack("<f", x))[0]
TBOUND2 = 48.0 * 48.0
cost = lambda t: 0 if callable(t) else (8 if t.split()[0] in TRANS else 4)
SRD = lambda r: f"s[{r}:{r+3}]"

class Gen:
    def __init__(self, stop=None, stamps=False, force_slow=False, force_fallback=False, remap=False, opt=None):
        self.a = Asm(); self.stop = stop; self.stamps = stamps
        self.force_slow = force_slow; self.force_fallback = force_fallback
        self.remap = remap; self.opt = opt or {}
        self.dst = []
        self.vq = []; self.dq = []
        self.wpol = ['sc1', '', 'sc0'][self.o('wp', 0)]
        self.ps = self.o('ps', 0); self.RAW = U(8) if self.ps else 0
    def o(self, k, d): return int(self.opt.get(k, d))

    def vm(self, text, tag=None):
        self.a(text); self.vq.append(tag)
    def ds(self, text, tag=None):
        self.a(text); self.dq.append(tag)
    def _wait(self, q, tag, name, mx):
        if tag not in q: return None
        i = len(q) - 1 - q[::-1].index(tag)
        n = min(len(q) - 1 - i, mx)
        del q[:len(q) - n]
        return f"{name}({n})"
    def wait(self, vm=None, ds=None):
        w = []
        if vm == "all": w.append("vmcnt(0)"); self.vq.clear()
        elif vm is not None: w.append(self._wait(self.vq, vm, "vmcnt", 63))
        if ds == "all": w.append("lgkmcnt(0)"); self.dq.clear()
        elif ds is not None: w.append(self._wait(self.dq, ds, "lgkmcnt", 15))
        w = [x for x in w if x]
        if w: self.a("s_waitcnt " + " ".join(w))
    def emit(self, L):
        for t in L:
            if callable(t): t()
            else: self.a(t)

    def stamp(self, name):
        if not self.stamps: return
        a = self.a
        a(f"s_memtime s[{sTS}:{sTS+1}]")
        a(f"s_memrealtime s[{sTR}:{sTR+1}]")
        a("s_waitcnt lgkmcnt(0)")
        a(f"v_mov_b32 v18, s{sTS}")
        a(f"v_mov_b32 v19, s{sTR}")
        a("s_mov_b64 exec, 1")
        a(f"buffer_store_dwordx2 v[18:19], off, {SRD(WS)}, s{sTSI}")
        a("s_mov_b64 exec, -1")
        a(f"s_add_u32 s{sTSI}, s{sTSI}, 8")
    def dstamp(self, name, base):
        if not self.stamps: return
        k = len(self.dst); self.dst.append((name, base + 2 * k))
        self.a(f"s_memtime s[{sTS}:{sTS+1}]")
        self.a(f"s_memrealtime s[{sTR}:{sTR+1}]")
        self.a("s_waitcnt lgkmcnt(0)")
        self.a(f"v_mov_b32 v{base+2*k}, s{sTS}")
        self.a(f"v_mov_b32 v{base+2*k+1}, s{sTR}")
    def dflush(self):
        if not self.stamps: return
        a = self.a
        a("s_mov_b64 exec, 1")
        for name, r in self.dst:
            a(f"buffer_store_dwordx2 v[{r}:{r+1}], off, {SRD(WS)}, s{sTSI}")
            a(f"s_add_u32 s{sTSI}, s{sTSI}, 8")
        a("s_mov_b64 exec, -1")
        self.dst = []

    def srd(self, d, p, size):
        a = self.a
        a(f"s_mov_b32 s{d}, s{p}")
        a(f"s_and_b32 s{d+1}, s{p+1}, 0xffff")
        a(f"s_mov_b32 s{d+2}, {size}")
        a(f"s_mov_b32 s{d+3}, 0x20000")

    def sx(self, dst, const, *terms):
        a = self.a
        first = True
        for tm in terms:
            r, mul = tm[0], tm[1]; shr = tm[2] if len(tm) > 2 else 0; mask = tm[3] if len(tm) > 3 else None
            t = dst if first else sT7
            assert r != dst or first
            cur = r
            if shr: a(f"s_lshr_b32 s{t}, s{cur}, {shr}"); cur = t
            if mask is not None: a(f"s_and_b32 s{t}, s{cur}, {mask}"); cur = t
            if mul != 1:
                if mul & (mul - 1) == 0: a(f"s_lshl_b32 s{t}, s{cur}, {mul.bit_length()-1}")
                else: a(f"s_mul_i32 s{t}, s{cur}, {mul}")
                cur = t
            if first:
                if cur != dst: a(f"s_mov_b32 s{dst}, s{cur}")
            else: a(f"s_add_u32 s{dst}, s{dst}, s{cur}")
            first = False
        if const: a(f"s_add_u32 s{dst}, s{dst}, {const}")

    def fload(self, dst, base, off, tag, tmp=sT7, flags="sc1"):
        def f():
            key = (base, off >> 12)
            if getattr(self, "_tmpkey", {}).get(tmp) != key:
                self.a(f"s_add_u32 s{tmp}, s{base}, {off & ~4095}")
                self._tmpkey = dict(getattr(self, "_tmpkey", {})); self._tmpkey[tmp] = key
            self.vm(f"buffer_load_dwordx4 {vr(dst,4)}, v1, {SRD(WS)}, s{tmp} offen offset:{off & 4095} {flags}", tag)
        return f
    def forget(self): self._tmpkey = {}

    def tile_src(self, src, unit):
        a = self.a
        a(f"s_mul_i32 s{sT7}, s{sSTR}, {unit >> 1}")
        a(f"s_add_u32 s{sT7}, s{sT7}, s{src}")
        if unit & 1: a(f"s_add_u32 s{sT7}, s{sT7}, 16384")
    def dma(self, ldsb, ldsc, src, srcc, idx, tag=None, pol=None):
        a = self.a
        if pol is None: pol = self.wpol
        a(f"s_add_u32 m0, s{ldsb}, {ldsc}")
        if src in (s13, s2_): self.tile_src(src, srcc >> 14)
        else: a(f"s_add_u32 s{sT7}, s{src}, {srcc}")
        for i in idx:
            self.vm(f"buffer_load_dwordx4 v1, {SRD(WS)}, s{sT7} offen offset:{i*1024} {pol} lds", tag)

    def spin(self, body):
        a = self.a
        L, D = a.newlabel("spin"), a.newlabel("spind")
        a.label(L)
        body()
        a(f"s_cbranch_vccz {D}")
        a(f"s_sub_u32 s{sTMO}, s{sTMO}, 1")
        a(f"s_cbranch_scc0 {L}")
        a(f"s_mov_b32 s{sTMO}, 0")
        a.label(D)

    def poll(self, vaddr, vtmp, code):
        a = self.a
        a(f"s_add_u32 s{sT6}, s{sCODE}, {code}")
        def body():
            a(f"buffer_load_dword v{vtmp}, v{vaddr}, {SRD(WS)}, s{sFB} offen sc1")
            a("s_waitcnt vmcnt(0)")
            a(f"v_cmp_gt_u32 vcc, s{sT6}, v{vtmp}")
        self.spin(body)
        self.vq.clear()
        self.acquire()
    def poll_issue(self, vaddr, vtmp):
        self.vm(f"buffer_load_dword v{vtmp}, v{vaddr}, {SRD(WS)}, s{sFB} offen sc1", "poll")
    def poll_check(self, vaddr, vtmp, code):
        a = self.a
        D = a.newlabel("pc")
        a(f"s_add_u32 s{sT6}, s{sCODE}, {code}")
        self.wait(vm="poll")
        a(f"v_cmp_gt_u32 vcc, s{sT6}, v{vtmp}")
        a(f"s_or_b32 vcc_lo, vcc_lo, s{sSLOW}")
        a(f"s_cbranch_scc0 {D}")
        q = list(self.vq)
        self.poll(vaddr, vtmp, code)
        self.vq = q
        a.label(D)

    def acquire(self):
        a = self.a
        F = a.newlabel("acq")
        a(f"s_cmp_eq_u32 s{sSLOW}, 0")
        a(f"s_cbranch_scc1 {F}")
        a("buffer_inv sc1")
        a("s_waitcnt vmcnt(0)")
        a.label(F)

    def publish(self, vtmp, code, tag="all"):
        a = self.a
        S, D = a.newlabel("pubs"), a.newlabel("pubd")
        a(f"s_add_u32 s{sT6}, s{sCODE}, {code}")
        a(f"v_mov_b32 v{vtmp}, s{sT6}")
        a("s_mov_b64 exec, 1")
        a(f"s_cmp_lg_u32 s{sSLOW}, 0")
        a(f"s_cbranch_scc1 {S}")
        self.wait(vm=tag)
        self.vm(f"buffer_store_dword v{vtmp}, off, {SRD(WS)}, s{sMYF}")
        self.tails.append((S, D, vtmp))
        a.label(D)
        a("s_mov_b64 exec, -1")
    def publish_tails(self):
        a = self.a
        for S, D, vtmp in self.tails:
            a.label(S)
            a("s_waitcnt vmcnt(0)")
            a("buffer_wbl2 sc1")
            a("s_waitcnt vmcnt(0)")
            a(f"buffer_store_dword v{vtmp}, off, {SRD(WS)}, s{sMYF} sc1")
            a(f"s_branch {D}")

    def split_pair(self, dst, c, tmp):
        return [f"v_cvt_pk_bf16_f32 v{dst}, v{c}, v{c}", f"v_and_b32 v{tmp}, 0xffff0000, v{dst}",
                f"v_sub_f32 v{tmp}, v{c}, v{tmp}", f"v_cvt_pk_bf16_f32 v{dst+1}, v{tmp}, v{tmp}"]

    def stats_ops(self, st, mu4, rstd, vare):
        L = []
        for k in (8, 4, 2, 1):
            for i in range(k):
                L.append(f"v_add_f32 v{st+i}, v{st+i}, v{st+i+k}")
        t0 = st + 3
        L.append(f"v_mov_b32 v{st+1}, v{st}")
        L.append(f"v_mov_b32 v{st+2}, {hex(f2u(1.0/512))}")
        L.append(f"v_permlane32_swap_b32 v{st}, v{st+1}")
        L.append(f"v_mul_f32 v{st}, {hex(f2u(-1.0/512))}, v{st}")
        L.append(f"v_mul_f32 v{t0}, v{st}, v{st}")
        L.append(f"v_fma_f32 v{vare}, v{st+1}, v{st+2}, -v{t0}")
        L.append(f"v_cvt_pk_bf16_f32 v{t0}, v{st}, v{st}")
        L.append(f"v_max_f32 v{vare}, 0, v{vare}")
        L.append(f"v_and_b32 v{t0}, 0xffff0000, v{t0}")
        L.append(f"v_add_f32 v{vare}, {hex(f2u(1e-5))}, v{vare}")
        L.append(f"v_sub_f32 v{t0}, v{st}, v{t0}")
        L.append(f"v_rsq_f32 v{rstd}, v{vare}")
        for i in range(4): L.append(f"v_cvt_pk_bf16_f32 v{mu4+i}, v{st}, v{t0}")
        return L

    def spread(self, items, lo, hi, fill):
        tot = sum(map(cost, fill)); n = hi - lo; k = 0; acc = 0
        for m in range(n):
            while k < len(fill) and (acc + cost(fill[k]) / 2 <= tot * (m + 1) / n or m == n - 1):
                items[lo + m].setdefault("post", []).append(fill[k]); acc += cost(fill[k]); k += 1

    def stream_begin(self, items, D, ring):
        self.S = dict(items=items, D=D, issued=0)
        rd = [i for i in range(len(items)) if items[i].get("read")]
        self.S.update(rd=rd, slot={i: ring + 4 * (k % D) for k, i in enumerate(rd)}, pos={i: k for k, i in enumerate(rd)})
        self._try(D, 0)
    def _try(self, limit, consumed):
        S = self.S; items, rd = S["items"], S["rd"]
        while S["issued"] < min(limit, len(rd)):
            i = rd[S["issued"]]
            if items[i].get("bar"):
                if S["issued"] - consumed > S["D"] // 2: return
                self.wait(ds="all")
                self.a("s_barrier")
                items[i]["bar"] = False
            va, off = items[i]["read"]
            self.ds(f"ds_read_b128 {vr(S['slot'][i],4)}, v{va} offset:{off}", ("rd", S["issued"]))
            S["issued"] += 1
    def stream_run(self, pair=2):
        S = self.S; items = S["items"]
        for i, it in enumerate(items):
            self.emit(it.get("pre", []))
            dtag = None
            if it.get("read"):
                k = S["pos"][i]
                if k >= S["issued"]: self._try(k + 1, k)
                if ("rd", k) in self.dq: dtag = ("rd", min(k + pair, S["issued"]) - 1)
            self.wait(vm=it.get("vm"), ds=dtag)
            self.a(it["mfma"](S["slot"].get(i)))
            if it.get("read"): self._try(k + 1 + S["D"], k + 1)
            self.emit(it.get("post", []))

    @staticmethod
    def ramp(seq, nsteps, n0, wd):
        init, per, k = [], {}, 0
        lead = lambda step: sum(1 for q, _ in seq[:k] if q > step)
        while k < min(n0, len(seq)): init.append(seq[k][1]); k += 1
        for st in range(nsteps):
            n = 0
            while k < len(seq) and (seq[k][0] <= st + 1 or (n < 2 and lead(st) < wd)):
                per.setdefault(st, []).append(seq[k][1]); k += 1; n += 1
        assert k == len(seq)
        return init, per

    def layer0(self, fn):
        a = self.a
        L = a.newlabel("l0")
        a(f"s_cmp_lg_u32 s{sLAY}, 0")
        a(f"s_cbranch_scc1 {L}")
        vq, dq = list(self.vq), list(self.dq)
        fn()
        self.vq, self.dq = vq, dq
        a.label(L)

    def prologue(self):
        a = self.a
        a(f"s_getpc_b64 s[{sPC}:{sPC+1}]")
        a.label("L_pc")
        a("s_load_dwordx16 s[20:35], s[0:1], 0")
        a("v_lshrrev_b32 v2, 5, v0")
        if self.remap: a(f"s_and_b32 s{sJ}, s2, 31")
        else: a(f"s_lshr_b32 s{sJ}, s2, 3")
        a(f"v_lshl_add_u32 v2, s{sJ}, 4, v2")
        a("v_lshlrev_b32 v2, 7, v2")
        a("v_min_u32 v2, L_end-L_pc-4, v2")
        a(f"global_load_dword v3, v2, s[{sPC}:{sPC+1}]")
        a("s_load_dwordx4 s[36:39], s[0:1], 64")
        a("s_cmp_ge_u32 s2, 256")
        a("s_cbranch_scc1 L_exit")
        if self.stamps:
            a(f"s_memtime s[{sE0}:{sE0+1}]")
            a(f"s_memrealtime s[{sE1}:{sE1+1}]")
        if self.remap: a(f"s_lshr_b32 s{sG}, s2, 5")
        else: a(f"s_and_b32 s{sG}, s2, 7")
        a("v_lshrrev_b32 v1, 6, v0")
        a("v_and_b32 v0, 63, v0")
        a(f"v_readfirstlane_b32 s{sW}, v1")
        a(f"s_getreg_b32 s{sXCC}, hwreg(HW_REG_XCC_ID, 0, 4)")
        if self.force_slow: a(f"s_and_b32 s{sXCC}, s{sJ}, 1")
        a("v_lshlrev_b32 v1, 4, v0")
        self.sx(sFG, FL, (sG, FL_STR))
        a(f"s_cmp_ge_u32 s{sW}, 4")
        a("s_cbranch_scc1 L_startL")
        a(f"s_mov_b32 s{sROLE}, 0")
        a("v_lshrrev_b32 v4, 3, v0")
        a("v_and_b32 v5, 0x70, v1")
        a("v_lshl_add_u32 v6, v4, 10, v5")
        self.sx(sT2, 0, (sG, 256 * 1024), (sJ, 8 * 1024), (sW, 256))
        a("s_waitcnt lgkmcnt(0)")
        self.dstamp("kernarg", 180)
        self.srd(WS, P_WS, WS_USED)
        self.srd(SA, P_X, 2 * MB)
        if "probe" in self.opt:
            kind, off = self.opt["probe"].split("@")
            self.srd(SB, {"ws": P_WS, "bx": P_BX, "out": P_OUT}[kind], 0x10000000 if kind == "ws" else 2 * MB)
            a(f"s_mov_b32 s{sT0}, {int(off) * MB}")
            a(f"s_add_u32 s{sT1}, s{sT0}, {200 * 8192}")
            a(f"s_or_b32 s{sT3}, s2, s{sW}")
            a("s_cbranch_scc1 L_probed")
            a.label("L_probe")
            a(f"buffer_load_dword v20, off, {SRD(SB)}, s{sT0} sc1")
            a("s_waitcnt vmcnt(0)")
            a(f"s_add_u32 s{sT0}, s{sT0}, 8192")
            a(f"s_cmp_lt_u32 s{sT0}, s{sT1}")
            a("s_cbranch_scc1 L_probe")
            a.label("L_probed")
        for r in range(20, 24): a(f"v_mov_b32 v{r}, 0")
        self.sx(sT6, 0, (sJ, 8), (sW, 1))
        a(f"s_cmp_lg_u32 s{sT6}, 0")
        a("s_cbranch_scc1 L_notlead0")
        a(f"buffer_store_dwordx4 v[20:23], v1, {SRD(WS)}, s{sFG} offen")
        a.label("L_notlead0")
        self.vm(f"buffer_load_dwordx4 v[8:11], v6, {SRD(SA)}, s{sT2} offen {'nt' if self.o('xnt', 1) else ''}", "x")
        self.vm(f"buffer_load_dwordx4 v[12:15], v6, {SRD(SA)}, s{sT2} offen offset:128 {'nt' if self.o('xnt', 1) else ''}", "x")
        self.srd(DBG, P_DBG, 256)
        a(f"s_lshl_b32 s{sT5}, s{sG}, 2")
        a(f"s_or_b32 s{sXCC}, s{sXCC}, 16")
        a(f"s_cmp_lg_u32 s{sT6}, 0")
        a("s_cbranch_scc1 L_notlead")
        a(f"v_mov_b32 v24, s{sXCC}")
        a("s_mov_b64 exec, 1")
        a("s_waitcnt vmcnt(2)")
        a(f"buffer_store_dword v24, off, {SRD(DBG)}, s{sT5} offset:{D_LRDY}")
        a("s_mov_b64 exec, -1")
        a.label("L_notlead")
        self.sx(sT3, XF, (sG, 8 * 32768), (sJ, 32768, 2), (sW, 8192), (sJ, 128, 0, 3))
        self.sx(sT4, ST, (sG, 8 * 4096), (sJ, 4096, 2), (sW, 1024), (sJ, 128, 0, 3))
        a("v_lshrrev_b32 v7, 2, v0")
        a("v_lshlrev_b32 v7, 9, v7")
        self.vm(f"buffer_load_dword v16, v7, {SRD(WS)}, s{sT3} offen sc1 {'nt' if self.o('t0nt', 0) else ''}")
        a("v_and_b32 v7, 0x200, v1")
        self.vm(f"buffer_load_dword v16, v7, {SRD(WS)}, s{sT4} offen sc1")
        a("v_lshlrev_b32 v7, 7, v4")
        self.vm(f"buffer_load_dword v16, v7, {SRD(WS)}, s{sFG} offen sc1")
        a(f"s_cmp_lg_u32 s{sT6}, 1")
        a("s_cbranch_scc1 L_notlead1")
        a("v_lshrrev_b32 v7, 1, v0")
        a("v_lshlrev_b32 v7, 7, v7")
        a("v_and_b32 v24, 16, v1")
        a("v_add_u32 v7, v7, v24")
        a(f"s_add_u32 s{sT0}, s{sFG}, {F_KV}")
        a(f"s_add_u32 s{sT1}, s{sFG}, {F_KV+4096}")
        for o in (1024,):
            a(f"buffer_store_dwordx4 v[20:23], v1, {SRD(WS)}, s{sFG} offen offset:{o} sc1")
        a(f"buffer_store_dwordx4 v[20:23], v7, {SRD(WS)}, s{sT0} offen sc1")
        a(f"buffer_store_dwordx4 v[20:23], v7, {SRD(WS)}, s{sT1} offen sc1")
        a.label("L_notlead1")
        self.consts()
        a(f"s_lshr_b32 s{sKH}, s{sW}, 1")
        self.sx(sTL, 0, (sJ, 2, 3), (sW, 1, 0, 1))
        self.sx(sT0, 0, (sJ, 2, 0, 7), (sKH, 1))
        self.sx(sT1, 0, (sG, 8), (sTL, 1))
        self.sx(sKT, XF, (sT1, 32768), (sT0, 2048))
        self.sx(sKS, ST, (sT1, 4096), (sT0, 1024, 2), (sT0, 4, 0, 3))
        self.sx(sOS, HF, (sT1, HT), (sKH, 16384))
        self.sx(sHS, HF, (sT1, 112 * 1024), (sKH, 8192))
        self.sx(sOUT, 0, (sT1, 32768), (sT0, 64))
        self.sx(sT1, 0, (sG, 8), (sJ, 4, 4), (sW, 1))
        self.sx(sUX, XF, (sT1, 32768))
        self.sx(sUS, ST, (sT1, 4096))
        self.sx(sUC, CS13, (sJ, 7 * 1024, 0, 15))
        self.sx(sHD, HF, (sT1, 112 * 1024), (sJ, 1024, 0, 15))
        self.order(0, False)
        self.sx(sT2, U(7), (sW, 2048))
        a(f"v_add_u32 v7, s{sT2}, v1")
        a("v_lshlrev_b32 v24, 3, v5")
        a("v_lshrrev_b32 v25, 4, v0")
        a("v_lshl_add_u32 v24, v25, 5, v24")
        a("v_and_b32 v25, 8, v0")
        a(f"v_add3_u32 v24, v24, v25, s{sT2}")
        a("v_lshl_add_u32 v25, v4, 9, v5")
        a("v_and_b32 v26, 1, v0")
        a("v_lshlrev_b32 v27, 9, v26")
        a("v_lshl_add_u32 v27, v4, 4, v27")
        a("v_and_b32 v28, 2, v0")
        a("v_lshl_add_u32 v27, v28, 2, v27")
        a("v_and_b32 v29, 4, v0")
        a("v_add_u32 v27, v27, v29")
        a(f"s_add_u32 s{sT2}, s{sT3}, 4096")
        self.dstamp("issued", 180)
        a("s_waitcnt vmcnt(6)")
        a(f"s_cmp_eq_u32 s{sT6}, 1")
        a("s_cbranch_scc1 L_xw")
        self.wait(vm="x")
        a.label("L_xw")
        self.dstamp("x landed", 180)
        a("ds_write_b128 v7, v[8:11]")
        a("ds_write_b128 v7, v[12:15] offset:1024")
        a("ds_read2_b64 v[32:35], v24 offset0:0 offset1:2")
        a("ds_read2_b64 v[36:39], v24 offset0:128 offset1:130")
        for u in range(2):
            for i in range(4):
                a(f"v_lshlrev_b32 v{40+8*u+2*i}, 16, v{8+4*u+i}")
                a(f"v_and_b32 v{41+8*u+2*i}, 0xffff0000, v{8+4*u+i}")
        a("s_waitcnt lgkmcnt(1)")
        self.vm(f"buffer_store_dwordx4 v[32:35], v25, {SRD(WS)}, s{sT3} offen")
        a("s_waitcnt lgkmcnt(0)")
        self.vm(f"buffer_store_dwordx4 v[36:39], v25, {SRD(WS)}, s{sT2} offen")
        for u in range(2):
            b = 40 + 8 * u
            a(f"v_pk_mul_f32 v[{56+4*u}:{57+4*u}], v[{b}:{b+1}], v[{b}:{b+1}]")
            a(f"v_pk_add_f32 v[{58+4*u}:{59+4*u}], v[{b}:{b+1}], v[{b+2}:{b+3}]")
            for i in (2, 4, 6):
                a(f"v_pk_fma_f32 v[{56+4*u}:{57+4*u}], v[{b+i}:{b+i+1}], v[{b+i}:{b+i+1}], v[{56+4*u}:{57+4*u}]")
                if i > 2: a(f"v_pk_add_f32 v[{58+4*u}:{59+4*u}], v[{58+4*u}:{59+4*u}], v[{b+i}:{b+i+1}]")
        for r in (56, 58, 60, 62): a(f"v_add_f32 v{r}, v{r}, v{r+1}")
        for qp in ("[1,0,3,2]", "[2,3,0,1]"):
            for r in (56, 58, 60, 62): a(f"v_add_f32_dpp v{r}, v{r}, v{r} quad_perm:{qp} row_mask:0xf bank_mask:0xf")
        a("v_cmp_eq_u32 vcc, 1, v26")
        a(f"v_cmp_eq_u32 s[{sEX}:{sEX+1}], 2, v28")
        a("v_cndmask_b32 v56, v58, v56, vcc")
        a("v_cndmask_b32 v60, v62, v60, vcc")
        a(f"v_cndmask_b32 v56, v56, v60, s[{sEX}:{sEX+1}]")
        self.vm(f"buffer_store_dword v56, v27, {SRD(WS)}, s{sT4} offen")
        a("v_lshlrev_b32 v7, 7, v26")
        a("s_mov_b64 exec, 3")
        def body():
            a(f"buffer_load_dword v16, v7, {SRD(DBG)}, s{sT5} offen sc1")
            a("s_waitcnt vmcnt(0)")
            a(f"v_readlane_b32 s{sT0}, v16, 0")
            a(f"v_readlane_b32 s{sT1}, v16, 1")
            a(f"s_or_b32 s{sT0}, s{sT0}, s{sT1}")
            a(f"v_cmp_eq_u32 vcc, s{sT0}, 0")
        self.spin(body)
        a("s_mov_b64 exec, -1")
        a(f"s_cmp_lg_u32 s{sT0}, s{sXCC}")
        a("s_cbranch_scc1 L_shout")
        a(f"v_mov_b32 v16, {C_P0}")
        a(f"v_mov_b32 v24, s{sXCC}")
        a("s_mov_b64 exec, 1")
        a(f"buffer_store_dword v16, off, {SRD(WS)}, s{sMYF}")
        a(f"s_cmp_lg_u32 s{sT6}, 1")
        a("s_cbranch_scc1 L_notlead2")
        a(f"buffer_store_dword v24, off, {SRD(DBG)}, s{sT5} offset:{D_GRDY} sc1")
        a.label("L_notlead2")
        a("s_mov_b64 exec, -1")
        self.dstamp("p0 published", 180)
        if self.ps: a("s_barrier")
        a("v_and_b32 v7, 31, v0")
        a("v_lshlrev_b32 v7, 5, v7")
        a.label("L_s0")
        a(f"buffer_load_dwordx4 v[12:15], v7, {SRD(WS)}, s{sFG} offen sc1")
        a("s_waitcnt vmcnt(0)")
        a("v_min_u32 v12, v12, v13")
        a("v_min3_u32 v12, v14, v15, v12")
        a("v_cmp_eq_u32 vcc, 0, v12")
        a("s_cbranch_vccz L_s0d")
        a(f"s_sub_u32 s{sTMO}, s{sTMO}, 1")
        a("s_cbranch_scc1 L_s0t")
        a(f"s_and_b32 s{sT0}, s{sTMO}, 7")
        a("s_cbranch_scc1 L_s0")
        a(f"buffer_load_dword v16, off, {SRD(DBG)}, s{sT5} offset:{D_SHOUT} sc1")
        a("s_waitcnt vmcnt(0)")
        a("v_cmp_eq_u32 vcc, 0, v16")
        a("s_cbranch_vccnz L_s0")
        a("s_branch L_slow")
        a.label("L_shout")
        a("v_mov_b32 v16, 1")
        a("s_mov_b64 exec, 1")
        a(f"buffer_store_dword v16, off, {SRD(DBG)}, s{sT5} offset:{D_SHOUT} sc1")
        a("s_mov_b64 exec, -1")
        if self.ps: a("s_barrier")
        a.label("L_slow")
        def body():
            a(f"buffer_load_dword v16, off, {SRD(DBG)}, s{sT5} offset:{D_GRDY} sc1")
            a("s_waitcnt vmcnt(0)")
            a("v_cmp_eq_u32 vcc, 0, v16")
        self.spin(body)
        a(f"s_mov_b32 s{sSLOW}, 1")
        a(f"s_add_u32 s{sFB}, s{sFB}, {F_SF}")
        a(f"s_add_u32 s{sMYF}, s{sMYF}, {F_SF}")
        self.publish(16, C_P0)
        a("v_and_b32 v7, 31, v0")
        a("v_lshlrev_b32 v7, 5, v7")
        for q in range(4):
            a(f"v_add_u32 v11, {4*q}, v7")
            self.poll(11, 16, C_P0)
        a("s_branch L_s0d")
        a.label("L_s0t")
        a(f"s_mov_b32 s{sTMO}, 0")
        a.label("L_s0d")
        a(f"v_mov_b32 v16, s{sSLOW}")
        a(f"v_mov_b32 v17, {SCR+1024}")
        a("ds_write_b32 v17, v16")
        self.dstamp("sync0", 180)
        a("s_waitcnt lgkmcnt(0)")
        a("s_barrier")
        self.entry_flush()
        a("s_branch L_layer")
        a.label("L_startL")
        self.vq.clear()
        a(f"s_mov_b32 s{sROLE}, 1")
        a("v_lshrrev_b32 v4, 1, v0")
        a("v_mul_u32_u24 v4, 3072, v4")
        a("v_and_b32 v5, 16, v1")
        a("v_add_u32 v4, v4, v5")
        a(f"s_sub_u32 s{sL}, s{sW}, 4")
        self.sx(sQ, 0, (sL, 128 * 3072), (sJ, 32))
        a("s_waitcnt lgkmcnt(0)")
        self.dstamp("kernarg", 180)
        self.srd(DBG, P_WQKV, 512 * 3072)
        a(f"s_lshl_b32 s{sL}, s{sL}, 12")
        for pc in range(4):
            a(f"s_add_u32 s{sT5}, s{sJ}, {pc}")
            self.sx(sT5, 0, (sT5, 32 * 3072, 0, 3), (sQ, 1))
            a(f"s_mul_i32 s{sT4}, s{sL}, 3")
            a(f"s_add_u32 m0, s{sT4}, {pc*3072}")
            for part in range(3):
                self.vm(f"buffer_load_dwordx4 v4, {SRD(DBG)}, s{sT5} offen offset:{part*1024} {'nt ' if self.o('wnt', 0) else ''}lds", ("w", pc))
            if pc == self.o("pq", 3):
                self.prep_setup()
                if self.ps:
                    for k in range(4): self.prep_gather(k)
        self.dstamp("issued", 180)
        self.srd(WS, P_WS, WS_USED)
        self.srd(DBG, P_DBG, 256)
        self.consts()
        self.tr_addr(10, 11)
        a(f"s_mul_i32 s{sT4}, s{sL}, 3")
        a(f"v_add_u32 v10, s{sT4}, v10")
        a("v_lshl_add_u32 v12, v11, 10, v10")
        a("v_lshl_add_u32 v13, v11, 9, v10")
        for r in range(28, 32): a(f"v_mov_b32 v{r}, 0x3f803f80")
        self.sx(s13, PW13, (sJ, 7 * 32768, 0, 15), (sL, 1))
        self.sx(s2_, PW2, (sJ, 7 * 32768, 0, 7), (sL, 1))
        self.sx(sWOs, PWO, (sJ, 65536, 0, 7), (sL, 1))
        self.order(0, True)
        self.slice_addr()
        for pc in range(4):
            F = self.HOLD + 12 * pc
            self.wait(vm=("w", pc))
            for i in range(2):
                for h2 in range(2):
                    a(f"ds_read_b64_tr_b16 {vr(F+4*i+2*h2,2)}, v12 offset:{pc*3072+i*512+h2*256}")
            for h2 in range(2):
                a(f"ds_read_b64_tr_b16 {vr(F+8+2*h2,2)}, v13 offset:{pc*3072+2048+h2*256}")
            a("s_waitcnt lgkmcnt(0)")
            for k in range(3):
                acc = 80 if k == 2 else 64
                a(f"v_mfma_f32_32x32x16_bf16 {vr(acc,16)}, v[28:31], {vr(F+4*k,4)}, {'0' if pc == 0 and k != 1 else vr(acc,16)}")
                a(f"ds_write_b128 v{20+pc}, {vr(F+4*k,4)} offset:{SLICE+1024*k}")
        self.dstamp("x landed", 180)
        a("v_mov_b32 v81, v80")
        a("v_permlane16_swap_b32 v80, v81")
        a("v_add_f32 v80, v80, v81")
        a(f"v_cndmask_b32 v64, v64, v80, s[{sHI}:{sHI+1}]")
        self.emit(self.split_pair(self.HOLD + 48, 64, 65))
        a(f"ds_write_b64 v15, {vr(self.HOLD+48,2)}")
        if self.ps:
            self.wait(vm="all")
            a("s_barrier")
            for f in self.prep_store(): f()
        self.dstamp("p0 published", 180)
        a("s_waitcnt lgkmcnt(0)")
        a("s_barrier")
        a(f"v_mov_b32 v17, {SCR+1024}")
        a("ds_read_b32 v16, v17")
        a("s_waitcnt lgkmcnt(0)")
        a(f"v_readfirstlane_b32 s{sSLOW}, v16")
        a(f"s_lshl_b32 s{sT0}, s{sSLOW}, 10")
        a(f"s_add_u32 s{sFB}, s{sFB}, s{sT0}")
        a(f"s_add_u32 s{sMYF}, s{sMYF}, s{sT0}")
        self.dstamp("sync0", 180)
        self.entry_flush(names=False)

    def order(self, layer, loader):
        a = self.a
        rev = self.o("rev", 0)
        unit = 32768 if loader else 1024
        if layer == 0: a(f"s_mov_b32 s{sSTR}, {unit}")
        if (rev >> layer) & 1 and not (layer and rev & 1):
            a(f"s_cmp_ge_u32 s{sJ}, 16")
            a(f"s_cselect_b32 s{sSTR}, {-unit}, s{sSTR}")
            a(f"s_cselect_b32 s{sT0}, {6*unit}, 0")
            for r in ((s13, s2_) if loader else (sUC,)): a(f"s_add_u32 s{r}, s{r}, s{sT0}")

    HOLD = 204
    def slice_addr(self):
        a = self.a
        for pc in range(4):
            a(f"s_add_u32 s{sT5}, s{sJ}, {pc}")
            self.sx(sT5, 0, (sT5, 3072, 0, 3), (sL, 3))
            a(f"v_add_u32 v{20+pc}, s{sT5}, v1")
        self.sx(sT2, SLICE + 49152, (sL, 512, 13), (sL, 8, 12, 1))
        a("v_and_b32 v15, 0x1f0, v1")
        a("v_and_b32 v16, 0x200, v1")
        a("v_lshl_add_u32 v15, v16, 1, v15")
        a(f"v_add_u32 v15, s{sT2}, v15")

    def entry_flush(self, names=True):
        if not self.stamps: return
        a = self.a
        a(f"v_mov_b32 v178, s{sE0}")
        a(f"v_mov_b32 v179, s{sE1}")
        self.dst.insert(0, ("entry", 178))
        if not names: self.dst = [("~" + n, r) for n, r in self.dst]
        self.dflush()

    def tr_addr(self, r, t):
        a = self.a
        a(f"v_and_b32 v{r}, 15, v0")
        a(f"v_lshlrev_b32 v{r}, 3, v{r}")
        a(f"v_lshrrev_b32 v{t}, 5, v0")
        a(f"v_lshl_add_u32 v{r}, v{t}, 7, v{r}")
        a(f"v_bfe_u32 v{t}, v0, 4, 1")

    def consts(self):
        a = self.a
        a(f"s_mov_b32 s{sLAY}, 0")
        a(f"s_mov_b32 s{sSLOW}, 0")
        a(f"s_mov_b32 s{sCODE}, 0")
        a(f"s_mov_b32 s{sTMO}, 100000")
        a(f"s_mov_b32 s{sHI}, 0")
        a(f"s_mov_b32 s{sHI+1}, -1")
        a(f"s_mov_b32 s{sN16}, 0xffff0000")
        a(f"s_mov_b32 s{sN16+1}, 0xffff0000")
        a(f"s_mov_b32 s{sFB}, s{sFG}")
        self.sx(sMYF, 0, (sJ, 32), (sW, 4), (sFG, 1))
        self.sx(sT0, 0, (sG, 8), (sW, 1))
        self.sx(sQX, XF, (sT0, 32768))
        self.sx(sQS, ST, (sT0, 4096))
        self.sx(sOD, HF, (sT0, HT), (sJ, 1024))
        self.sx(sKVH, KVG, (sJ, 131072))
        self.sx(sKVO, 0, (sT0, 2048), (sKVH, 1))
        self.sx(sKVA, FL + F_KV, (sJ, 128))
        self.sx(sKVF, 0, (sG, FL_STR), (sKVA, 1))
        if self.stamps:
            a(f"s_lshl_b32 s{sTSI}, s2, 3")
            self.sx(sTSI, TSB, (sTSI, 1024), (sW, 1024))

    QF, KA, VA0, VA1, IDX, Q2, KM = 8, 12, 13, 14, 15, 16, 17
    S0, S1, CC, OO, KF, VF = 32, 48, 64, 80, 96, 104

    def qkv(self):
        a = self.a
        X, NX, WD = 128, 8, self.o("qw", 5)
        assert WD < NX
        AQ, AV, RING, STT, RR, ON, MU, RS, RQ, T = 32, 48, 160, 64, 96, 104, 24, 6, 7, 120
        a.label("L_layer")
        self.vq.clear(); self.dq.clear(); self.forget()
        xl = lambda ks: self.fload(X + 4 * (ks % NX), sQX, ks * 1024, ("x", ks), tmp=sT5)
        seq = [(ks, xl(ks)) for ks in range(32)]
        for q in range(4): seq.insert(4 + q, (4, self.fload(STT + 4 * q, sQS, q * 1024, "st", tmp=sT4)))
        init, per = self.ramp(seq, 32, self.o("q0", 2), WD)
        self.emit(init)
        a(f"v_add_u32 v20, {SLICE}, v1")
        a("v_and_b32 v21, 0x2f0, v1")
        a(f"v_add_u32 v21, {SLICE+2048}, v21")
        items = []
        for ks in range(32):
            xr = vr(X + 4 * (ks % NX), 4)
            items.append(dict(read=(20, (ks >> 1) * 3072 + (ks & 1) * 1024), vm=("x", ks),
                              mfma=lambda r, ks=ks, xr=xr: f"v_mfma_f32_32x32x16_bf16 {vr(AQ,16)}, {vr(r,4)}, {xr}, {vr(AQ,16) if ks else '0'}"))
            items.append(dict(read=(21, (ks >> 1) * 3072 + (ks & 1) * 256),
                              mfma=lambda r, ks=ks, xr=xr: f"v_mfma_f32_32x32x16_bf16 {vr(AV,16)}, {xr}, {vr(r,4)}, {vr(AV,16) if ks else '0'}"))
            items[-1]["post"] = list(per.get(ks, []))
            qb = self.o("qbar", 4)
            if qb and ks % qb == qb - 1 and ks < 31: items[-1].setdefault("post", []).append("s_barrier")
            if ks == 15:
                items.append(dict(read=(20, 49152), mfma=lambda r: f"v_mfma_f32_32x32x16_bf16 {vr(AQ,16)}, {vr(r,4)}, {vr(MU,4)}, {vr(AQ,16)}"))
                items.append(dict(read=(20, 50176), mfma=lambda r: f"v_mfma_f32_32x32x16_bf16 {vr(AV,16)}, {vr(MU,4)}, {vr(r,4)}, {vr(AV,16)}"))
        self.spread(items, 8, 30, self.stats_ops(STT, MU, RS, RQ))
        f = [f"s_lshl_b32 s{sT0}, s{sW}, 7", f"s_add_u32 s{sT0}, s{sT0}, {SCR}",
             "v_and_b32 v22, 31, v0", f"v_lshl_add_u32 v22, v22, 2, s{sT0}",
             lambda: self.ds(f"ds_write_b32 v22, v{RS}", "rsw"),
             "v_bfe_u32 v28, v0, 4, 1", "v_lshrrev_b32 v29, 5, v0", "v_lshlrev_b32 v23, 6, v28",
             "v_lshl_add_u32 v23, v29, 4, v23", f"v_add_u32 v23, s{sT0}, v23",
             lambda: self.ds(f"ds_read_b128 {vr(RR,4)}, v23", "rr"), lambda: self.ds(f"ds_read_b128 {vr(RR+4,4)}, v23 offset:32", "rr"),
             f"v_mul_f32 v{RQ}, {hex(f2u(0.25*LOG2E))}, v{RS}",
             "v_and_b32 v2, 0x330, v1", "v_bfe_u32 v30, v0, 2, 1", "v_lshl_add_u32 v2, v30, 7, v2",
             "v_bfe_u32 v30, v0, 3, 1", "v_lshl_add_u32 v2, v30, 6, v2",
             "v_and_b32 v30, 0xf0, v1", "v_lshl_add_u32 v30, v29, 8, v30", "v_lshl_add_u32 v3, v28, 9, v30",
             f"s_mul_i32 s{sT2}, s{sW}, {TSTR}", f"s_add_u32 s{sT2}, s{sT2}, {KVB}",
             f"v_add_u32 v4, s{sT2}, v2", f"v_add_u32 v5, s{sT2}, v3"]
        f += [f"v_mov_b32 v{ON+r}, 0x3f803f80" for r in range(4)]
        f += [f"v_mul_u32_u24 v22, {SLOT}, v29", f"v_add_u32 v22, s{sT2}, v22",
              lambda: self.ds(f"ds_write_b128 v22, {vr(ON,4)} offset:2048")]
        f += [f"v_add_u32 v{self.KA}, {KVB}, v1", f"v_mov_b32 v23, {KVB+2048}", "v_mov_b32 v31, 0x30000",
              f"v_cmp_eq_u32 vcc, 0, v30", f"v_cmp_eq_u32 s[{sEX}:{sEX+1}], 1, v29", ] if False else []
        f += [f"v_add_u32 v{self.KA}, {KVB}, v1",
              "v_and_b32 v31, 15, v0", "v_min_u32 v31, 1, v31", f"v_mov_b32 v23, {KVB+2048}",
              "v_lshl_add_u32 v23, v31, 16, v23",
              f"v_add_u32 v30, {KVB+1024}, v30", f"v_cndmask_b32 v{self.VA0}, v30, v23, s[{sN16}:{sN16+1}]",
              "v_add_u32 v30, 512, v30", f"v_cndmask_b32 v{self.VA1}, v30, v23, s[{sN16}:{sN16+1}]",
              f"v_mov_b32 v{self.IDX}, 0xdddddddd"]
        f += [f"v_mov_b32 v{self.OO+i}, 0" for i in range(16)]
        f += [f"v_mov_b32 v22, {CNT}", "v_mov_b32 v28, 1", "v_mov_b32 v29, 0", lambda: self.ds("ds_write_b64 v22, v[28:29]")]
        self.spread(items, 30, 62, f)
        self.stream_begin(items, 8, RING)
        self.stream_run()
        self.stamp("qkv main")
        QF, Q2, KM = self.QF, self.Q2, self.KM
        for i in range(8): a(f"v_mul_f32 v{AQ+8+i}, v{RS}, v{AQ+8+i}")
        for i in range(4): a(f"v_cvt_pk_bf16_f32 v{T+i}, v{AQ+8+2*i}, v{AQ+9+2*i}")
        self.vm(f"buffer_store_dwordx4 {vr(T,4)}, v2, {SRD(WS)}, s{sKVO} offen sc1")
        self.ds(f"ds_write_b128 v4, {vr(T,4)}")
        for i in range(8): a(f"v_cndmask_b32 v{AV+i}, v{AV+i}, v{AV+8+i}, s[{sN16}:{sN16+1}]")
        for i in range(8): a(f"v_mul_f32 v{AV+i}, v{RR+i}, v{AV+i}")
        for i in range(4): a(f"v_cvt_pk_bf16_f32 v{T+4+i}, v{AV+2*i}, v{AV+1+2*i}")
        self.vm(f"buffer_store_dwordx4 {vr(T+4,4)}, v3, {SRD(WS)}, s{sKVO} offen offset:1024 sc1")
        self.ds(f"ds_write_b128 v5, {vr(T+4,4)} offset:1024")
        for i in range(8): a(f"v_mul_f32 v{AQ+i}, v{RQ}, v{AQ+i}")
        for i in range(4): a(f"v_cvt_pk_bf16_f32 v{QF+i}, v{AQ+2*i}, v{AQ+1+2*i}")
        a(f"v_pk_mul_f32 v[28:29], {vr(AQ,2)}, {vr(AQ,2)}")
        a(f"v_pk_mul_f32 v[30:31], {vr(AQ+8,2)}, {vr(AQ+8,2)}")
        for i in (2, 4, 6):
            a(f"v_pk_fma_f32 v[28:29], {vr(AQ+i,2)}, {vr(AQ+i,2)}, v[28:29]")
            a(f"v_pk_fma_f32 v[30:31], {vr(AQ+8+i,2)}, {vr(AQ+8+i,2)}, v[30:31]")
        a(f"v_add_f32 v{Q2}, v28, v29")
        a(f"v_add_f32 v{KM}, v30, v31")
        a(f"v_permlane32_swap_b32 v{Q2}, v{KM}")
        a(f"v_add_f32 v{Q2}, v{Q2}, v{KM}")
        a(f"v_mov_b32 v{KM}, v{Q2}")
        a(f"v_permlane32_swap_b32 v{Q2}, v{KM}")
        a(f"v_mul_f32 v22, v{Q2}, v{KM}")
        a("v_sqrt_f32 v22, v22")
        a(f"v_sub_f32 v{self.CC}, 0, v22")
        a(f"v_sub_f32 v{self.CC+1}, 0, v22")
        for i in range(2, 16, 2): a(f"v_pk_mov_b32 {vr(self.CC+i,2)}, {vr(self.CC,2)}, {vr(self.CC,2)}")
        self.wait(ds="all")
        a("s_barrier")
        self.stamp("qkv done")

    def code_touch(self, setup):
        a = self.a
        if not self.o("ct", 1): return
        if setup:
            self.sx(sT0, 0, (sJ, 16), (sL, 4, 12))
            a("v_lshrrev_b32 v5, 4, v0")
            a(f"v_add_lshl_u32 v5, v5, s{sT0}, 7")
            a("v_min_u32 v5, L_end-L_pc-4, v5")
        self.vm(f"global_load_dword v21, v5, s[{sPC}:{sPC+1}]")

    def wave_umax(self, r, t, rows32=False):
        L = [f"v_max_u32_dpp v{r}, v{r}, v{r} {m} row_mask:0xf bank_mask:0xf"
             for m in ("quad_perm:[1,0,3,2]", "quad_perm:[2,3,0,1]", "row_half_mirror", "row_mirror")]
        L += [f"v_mov_b32 v{t}, v{r}", f"v_permlane16_swap_b32 v{r}, v{t}", f"v_max_u32 v{r}, v{r}, v{t}"]
        if not rows32: L += [f"v_mov_b32 v{t}, v{r}", f"v_permlane32_swap_b32 v{r}, v{t}", f"v_max_u32 v{r}, v{r}, v{t}"]
        return L

    def kv_publish(self):
        a = self.a
        L = a.newlabel("kvp")
        self.emit(self.wave_umax(self.KM, 22, rows32=True))
        a(f"v_mov_b32 v22, {CNT}")
        a("v_mov_b32 v27, 1")
        a("s_mov_b64 exec, 1")
        a(f"ds_max_u32 v22, v{self.KM}")
        self.wait(vm="kvst")
        a("ds_add_rtn_u32 v27, v22, v27 offset:4")
        a(f"ds_read_b32 v{self.KM}, v22")
        a("s_waitcnt lgkmcnt(0)")
        a("v_cmp_eq_u32 vcc, 7, v27")
        a(f"s_cbranch_vccz {L}")
        a(f"buffer_store_dword v{self.KM}, off, {SRD(WS)}, s{sKVF} sc1")
        a.label(L)
        a("s_mov_b64 exec, -1")

    def kv_fetch(self, s, layer):
        a = self.a
        L, D, N = a.newlabel("kvn"), a.newlabel("kvd"), a.newlabel("kvr")
        a(f"s_add_u32 s{sT0}, s{sG}, {s}")
        a(f"s_and_b32 s{sT0}, s{sT0}, 7")
        a.label(L)
        a(f"s_bitcmp1_b32 s{sRDY}, s{sT0}")
        a(f"s_cbranch_scc1 {D}")
        if layer == 0:
            a(f"s_cmp_eq_u64 s[{sEX}:{sEX+1}], -1")
            a(f"s_cbranch_scc1 {N}")
            a(f"buffer_load_dword v22, v23, {SRD(DBG)}, 0 offen offset:{D_GRDY} sc1")
            a("s_waitcnt vmcnt(0)")
            a(f"v_cmp_ne_u32 s[{sEX}:{sEX+1}], 0, v22")
            a.label(N)
        a("s_mov_b64 exec, 0xff")
        a(f"buffer_load_dword v22, v24, {SRD(WS)}, s{sKVA} offen sc1")
        a("s_mov_b64 exec, -1")
        a("s_waitcnt vmcnt(0)")
        if layer == 0:
            a("v_cmp_ne_u32 vcc, 0, v22")
            a(f"s_and_b64 s[{sRDY}:{sRDY+1}], vcc, s[{sEX}:{sEX+1}]")
        else:
            a(f"v_cmp_ne_u32 s[{sRDY}:{sRDY+1}], 0, v22")
        a(f"s_sub_u32 s{sTMO}, s{sTMO}, 1")
        a(f"s_cbranch_scc0 {L}")
        a(f"s_mov_b32 s{sTMO}, 0")
        a.label(D)
        a(f"s_lshl_b32 s{sT0}, s{sT0}, 14")
        a(f"s_add_u32 s{sT0}, s{sT0}, s{sKVH}")
        a(f"s_add_u32 s{sT0}, s{sT0}, s{sL}")
        a(f"s_lshr_b32 s{sT1}, s{sL}, 7")
        a(f"s_add_u32 s{sT1}, s{sT1}, s{sL}")
        pol = "sc1 nt" if self.o("kvnt", 1) else "sc1"
        self.dma(sT1, KVB + (s & 1) * SLOT, sT0, 0, (0, 1), ("kv", s), pol)
        a(f"s_add_u32 m0, m0, 16")
        for i in (2, 3):
            self.vm(f"buffer_load_dwordx4 v1, {SRD(WS)}, s{sT7} offen offset:{i*1024} {pol} lds", ("kv", s))

    def prep_setup(self):
        a = self.a
        a(f"s_lshr_b32 s{sT4}, s{sL}, 12")
        self.sx(sT0, 0, (sJ, 8), (sG, 1))
        a(f"s_mov_b32 s{sPCS}, {OOB}")
        a(f"s_cmp_ge_u32 s{sJ}, 23")
        a("s_cbranch_scc1 L_pr_none")
        a(f"s_cmp_ge_u32 s{sT0}, 112")
        a("s_cbranch_scc1 L_pr_o")
        self.srd(SA, P_W1, 512 * 3584)
        self.srd(SB, P_W3, 512 * 3584)
        a(f"s_mov_b32 s{sPSTR}, 3584")
        self.sx(sPA, 0, (sT0, 128, 2), (sT0, 128 * 3584, 0, 3))
        a(f"s_mov_b32 s{sPB}, s{sPA}")
        self.sx(sT2, 0, (sT0, 4, 2), (sT4, 1))
        self.sx(sT1, 0, (sT2, 7, 0, 15), (sT2, 1, 4))
        self.sx(sPCS, CS13, (sT1, 1024), (sT0, 512, 1, 1), (sT0, 8, 0, 1))
        self.sx(sPD, PW13, (sT1, 32768), (sT0, 8192, 0, 3))
        a(f"s_mov_b32 s{sTCH}, 4096")
        a(f"s_lshl_b32 s{sT2}, s{sT4}, 5")
        a(f"s_mov_b32 s{sT3}, 16384")
        a("s_branch L_pr_go")
        a.label("L_pr_o")
        self.sx(sT2, 0, (sT0, 2, 0, 3), (sT4, 1, 1))
        a(f"s_cmp_ge_u32 s{sT0}, 128")
        a("s_cbranch_scc1 L_pr_2")
        self.srd(SA, P_WO, 512 * 1024)
        self.srd(SB, P_WO, 512 * 1024)
        a(f"s_sub_u32 s{sT0}, s{sT0}, 112")
        self.sx(sPD, PWO, (sT2, 65536), (sT0, 32768, 2, 1), (sT0, 8192, 3), (sT4, 4096, 0, 1))
        a("s_branch L_pr_o2")
        a.label("L_pr_2")
        self.srd(SA, P_W2, 1792 * 1024)
        self.srd(SB, P_W2, 1792 * 1024)
        a(f"s_sub_u32 s{sT0}, s{sT0}, 128")
        self.sx(sPD, PW2, (sT2, 7 * 32768), (sT0, 32768, 3), (sT0, 8192, 2, 1), (sT4, 4096, 0, 1))
        a("s_branch L_pr_o2")
        a.label("L_pr_none")
        self.srd(SA, P_WO, 0)
        self.srd(SB, P_WO, 0)
        a(f"s_mov_b32 s{sT0}, 0")
        a(f"s_mov_b32 s{sPD}, {OOB}")
        a.label("L_pr_o2")
        a(f"s_mov_b32 s{sPSTR}, 1024")
        a(f"s_mov_b32 s{sTCH}, 16384")
        self.sx(sPA, 0, (sT0, 256, 0, 3), (sT0, 128 * 1024, 2))
        a(f"s_add_u32 s{sPB}, s{sPA}, 128")
        self.sx(sT2, 0, (sT4, 16384, 1), (sT4, 64, 0, 1))
        a(f"s_mov_b32 s{sT3}, 32")
        a.label("L_pr_go")
        a("v_lshrrev_b32 v254, 3, v0")
        a(f"v_mul_lo_u32 v254, v254, s{sPSTR}")
        a("v_and_b32 v22, 0x70, v1")
        a("v_add_u32 v254, v254, v22")
        a(f"s_lshl_b32 s{sPSTR}, s{sPSTR}, 3")
        a(f"s_mul_i32 s{sT1}, s{sPSTR}, s{sT4}")
        a(f"s_lshl_b32 s{sT1}, s{sT1}, 2")
        a(f"s_add_u32 s{sPA}, s{sPA}, s{sT1}")
        a(f"s_add_u32 s{sPB}, s{sPB}, s{sT1}")
        a("v_bfe_u32 v255, v0, 4, 1")
        a(f"v_mul_lo_u32 v255, v255, s{sT3}")
        a("v_and_b32 v22, 3, v0")
        a("v_lshl_add_u32 v255, v22, 3, v255")
        a("v_bfe_u32 v22, v0, 2, 2")
        a("v_lshl_add_u32 v255, v22, 7, v255")
        a("v_and_b32 v22, 0x200, v1")
        a(f"s_add_u32 s{sT2}, s{sT2}, {self.RAW}")
        a(f"v_add3_u32 v255, v255, v22, s{sT2}")

    def prep_gather(self, pc):
        a = self.a
        for part in range(2):
            r = sPB if part else sPA
            a(f"s_add_u32 m0, s{sL}, {self.RAW+pc*1024+part*16384}")
            self.vm(f"buffer_load_dwordx4 v254, {SRD(SB if part else SA)}, s{r} offen {'nt ' if self.o('gnt', 1) else ''}lds", "pg")
            a(f"s_add_u32 s{r}, s{r}, s{sPSTR}")

    def prep_store(self):
        a = self.a
        F = 128
        def rd():
            for i in range(8):
                for h2 in range(2):
                    a(f"ds_read_b64_tr_b16 {vr(F+4*i+2*h2,2)}, v255 offset:{i*2048+h2*1024}")
            for r in range(176, 180): a(f"v_mov_b32 v{r}, 0x3f803f80")
            a(f"s_add_u32 s{sTCH}, s{sPD}, s{sTCH}")
            a("s_waitcnt lgkmcnt(0)")
        def st(i):
            a(f"v_mfma_f32_32x32x16_bf16 v[160:175], v[176:179], {vr(F+4*i,4)}, {'v[160:175]' if i else '0'}")
            self.vm(f"buffer_store_dwordx4 {vr(F+4*i,4)}, v1, {SRD(WS)}, s{sPD if i < 4 else sTCH} offen offset:{(i&3)*1024} sc1")
        def cs():
            a("v_and_b32 v22, 0x1f0, v1")
            self.emit(self.split_pair(162, 160, 161))
            self.vm(f"buffer_store_dwordx2 v[162:163], v22, {SRD(WS)}, s{sPCS} offen sc1", "pst")
        return [rd] + [lambda i=i: st(i) for i in range(8)] + [cs]

    def prep_flag(self):
        a = self.a
        L = a.newlabel("pf")
        a(f"s_cmp_lg_u32 s{sW}, 4")
        a(f"s_cbranch_scc1 {L}")
        a("s_mov_b64 exec, 1")
        a(f"buffer_store_dword v{self.IDX}, off, {SRD(WS)}, s{sPB} sc1")
        a("s_mov_b64 exec, -1")
        a.label(L)

    def prep_addr(self):
        a = self.a
        a(f"s_add_u32 s{sPB}, s{sKVF}, 4100")
        a("v_min_u32 v25, 45, v0")
        a("v_lshlrev_b32 v22, 2, v25")
        a(f"s_bfe_u32 s{sT0}, s{sJ}, 0x20001")
        a(f"v_add_u32 v27, s{sT0}, v22")
        a("v_and_b32 v22, 0x70, v22")
        a("v_and_b32 v26, 3, v25")
        a(f"s_and_b32 s{sT0}, s{sJ}, 12")
        a(f"v_add3_u32 v22, v22, v26, s{sT0}")
        a("v_cmp_gt_u32 vcc, 28, v25")
        a("v_cndmask_b32 v22, v27, v22, vcc")
        a("v_and_b32 v25, 7, v22")
        a("v_lshlrev_b32 v25, 14, v25")
        a("v_lshrrev_b32 v22, 3, v22")
        a("v_lshl_add_u32 v25, v22, 7, v25")

    def prep_look(self):
        a = self.a
        a(f"s_mov_b32 s{sT2}, {FL + F_KV + 4100}")
        a(f"s_mov_b32 s{sPA}, s{sEX}")
        self.vm(f"buffer_load_dword v26, v25, {SRD(WS)}, s{sT2} offen sc1", "pl")

    def prep_wait(self):
        a = self.a
        D = a.newlabel("pwd")
        self.wait(vm="pl")
        a("v_cmp_eq_u32 vcc, 0, v26")
        a(f"s_orn2_b32 s{sT2}, vcc_lo, s{sPA}")
        a(f"s_or_b32 s{sT2}, s{sT2}, vcc_hi")
        a(f"s_cbranch_scc0 {D}")
        def rdy():
            a(f"buffer_load_dword v22, v23, {SRD(DBG)}, 0 offen offset:{D_GRDY} sc1")
            a("s_waitcnt vmcnt(0)")
            a("v_cmp_eq_u32 vcc, 0, v22")
        self.spin(rdy)
        a(f"s_mov_b32 s{sT2}, {FL + F_KV + 4100}")
        def body():
            a(f"buffer_load_dword v22, v25, {SRD(WS)}, s{sT2} offen sc1")
            a("s_waitcnt vmcnt(0)")
            a("v_cmp_eq_u32 vcc, 0, v22")
        self.spin(body)
        a.label(D)

    RW = 124
    def rload(self, slot, src, off, base=None, n=4):
        b = self.RW + 16 * slot if base is None else base
        self.tile_src(src, off >> 14)
        for i in range(n): self.vm(f"buffer_load_dwordx4 {vr(b+4*i,4)}, v1, {SRD(WS)}, s{sT7} offen offset:{i*1024} {self.wpol}", ("r", b))
    def attention(self, role, layer=None):
        a = self.a
        S = [self.S0, self.S1]; K = [self.KF, self.KF + 4]; V = [self.VF, self.VF + 8]
        Q, C, O, IDX = self.QF, self.CC, self.OO, self.IDX
        off = lambda t: ((t >> 3) & 1) * SLOT + (t & 7) * TSTR
        kread = lambda t: f"ds_read_b128 {vr(K[t&1],4)}, v{self.KA} offset:{off(t)}"
        vread = lambda t, u: f"ds_read_b128 {vr(V[t&1]+4*u,4)}, v{self.VA1 if u else self.VA0} offset:{off(t)}"
        qk = lambda t: f"v_mfma_f32_32x32x16_bf16 {vr(S[t&1],16)}, {vr(K[t&1],4)}, {vr(Q,4)}, {vr(C,16)}"
        pv = lambda t, u: f"v_smfmac_f32_32x32x32_bf16 {vr(O,16)}, {vr(V[t&1]+4*u,4)}, {vr(S[t&1]+8*u,8)}, v{IDX}"
        Lr = role == "L"
        ast = self.o("ast", 0) and not Lr
        self.vq = ["kvst"]; self.forget()
        if Lr and self.o("prio", 1): a("s_setprio 1")
        a(kread(0)); a(vread(0, 0)); a(vread(0, 1)); a(kread(1))
        a("v_and_b32 v23, 7, v0")
        a("v_lshlrev_b32 v24, 14, v23")
        a("v_lshlrev_b32 v23, 2, v23")
        if Lr:
            a(f"s_mov_b64 s[{sRDY}:{sRDY+1}], 0")
            if layer == 0:
                self.vm(f"buffer_load_dword v26, v23, {SRD(DBG)}, 0 offen offset:{D_GRDY} sc1", "grdy")
        else: self.kv_publish()
        a("s_waitcnt lgkmcnt(3)")
        a(qk(0))
        jobs = {}
        def job(t, f): jobs.setdefault(t, []).append(f)
        if Lr:
            job(self.o("pubt", 3), self.kv_publish)
            if layer == 0:
                def grdy():
                    self.wait(vm="grdy")
                    a(f"v_cmp_ne_u32 s[{sEX}:{sEX+1}], 0, v26")
                job(self.o("pubt", 3), grdy)
            job(self.o("fet", 4), lambda: self.kv_fetch(1, layer))
            pf = [lambda u=u: self.dma(sL, U(u), sWOs, u * 16384, range(4), "wp") for u in range(4)]
            pf += [lambda u=u: self.dma(sL, U(4 + u), s13, u * 16384, range(4), "wp") for u in range(3)]
            def last():
                self.dma(sL, U(7), s13, 3 * 16384, range(3), "wp")
                self.vm(f"buffer_load_dwordx4 v[120:123], v1, {SRD(WS)}, s{sT7} offen offset:3072 sc1")
            pf.append(last)
            st = [lambda u=u: self.rload(u, s13, (4 + u) * 16384) for u in range(6 if layer else 5)]
            pf = st + pf if self.o("pford", 0) else pf + st
            if layer: pf += [lambda u=u: self.rload(6 + u, s2_, (12 + u) * 16384) for u in range(2)]
            def th(parts):
                def f():
                    self.sx(sT0, HF, (sG, 8 * HT), (sJ, 4 * 7168), (sL, 7168, 12))
                    if parts is None:
                        a("v_min_u32 v22, 55, v0")
                        a("v_lshlrev_b32 v22, 7, v22")
                        self.vm(f"buffer_load_dword v21, v22, {SRD(WS)}, s{sT0} offen sc1")
                    else:
                        a(f"s_add_u32 s{sT0}, s{sT0}, {parts*1024}")
                        self.vm(f"buffer_load_dword v21, v1, {SRD(WS)}, s{sT0} offen sc1 {'nt' if self.o('tnt', 0) else ''}")
                return f
            for k in range(8 if layer == 0 else 7): job(8 * k + (1 if k else 0), lambda k=k: self.code_touch(k == 0))
            def place(fs, lo, hi):
                for k, f in enumerate(fs): job(lo + (hi - lo) * k // len(fs), f)
            if layer == 0:
                place([th(k) for k in range(7)], self.o("tl", 23), self.o("te", 37))
                if not self.ps:
                    place([lambda k=k: self.prep_gather(k) for k in range(4)], self.o("g0", 5), self.o("g1", 9))
                    place(self.prep_store(), 14, self.o("s1", 19))
                job(0 if self.ps else 12, self.prep_addr)
                if self.ps: job(0, self.prep_flag)
                t0 = self.o("pw", 15 if self.ps else 38)
                job(t0 - self.o("pl", 1), self.prep_look)
                job(t0, self.prep_wait)
                place(pf, t0 + 1, self.o("pe0", 54 if self.ps else 60))
                if self.o("retouch", 1): job(56, th(None))
            else:
                place(pf, 7, self.o("pe1", 54))
                job(55, th(None))
        job(55, lambda: self.vm(f"buffer_load_dword v{self.KM}, v24, {SRD(WS)}, s{sKVA} offen sc1", "km"))
        def check():
            self.wait(vm="km")
            self.emit(self.wave_umax(self.KM, 22)[:3])
            a(f"v_mul_f32 v22, v{self.Q2}, v{self.KM}")
            a(f"v_cmp_nge_f32 vcc, {hex(f2u(-1.0 if self.force_fallback else TBOUND2))}, v22")
            a(f"s_mov_b64 s[{sBAD}:{sBAD+1}], vcc")
        job(61, check)
        if not Lr: job(54, lambda: self.res_load(192))
        def point(s):
            if ast: self.dstamp(f"a{s} arr", 204)
            if Lr:
                self.wait(vm=("kv", s))
                if layer == 0 and s == 2: self.wait(vm="pg")
                if layer == 0 and s == self.o("pfp", 3): self.wait(vm="pst")
            a("s_waitcnt lgkmcnt(0)")
            a("s_barrier")
            if Lr and layer == 0 and not self.ps and s == self.o("pfp", 3): self.prep_flag()
            if ast: self.dstamp(f"a{s} bar", 204)
            if Lr and s < 7: jobs.setdefault(8 * s - 2, []).insert(0, lambda: self.kv_fetch(s + 1, layer))
        for t in range(64):
            c = S[t & 1]
            for i in range(16):
                if i == 2:
                    if t > 0: a(pv(t - 1, 1))
                    if t < 63:
                        a(vread(t + 1, 0))
                        a("s_waitcnt lgkmcnt(1)")
                    else: a("s_waitcnt lgkmcnt(0)")
                if i == 6 and t < 63:
                    a(qk(t + 1)); a(vread(t + 1, 1))
                if i == 11:
                    a(pv(t, 0))
                    if t < 62:
                        if (t & 7) == 6: point((t + 2) >> 3)
                        a(kread(t + 2))
                    lst = self.o("lst", 0) and Lr and layer == 0 and self.o("lst", 0) <= t < self.o("lst", 0) + 18
                    if lst: self.dstamp(f"A:t{t}", 128 if t > 8 else 182)
                    for f in jobs.get(t, []): f()
                    if lst and jobs.get(t): self.dstamp(f"A:t{t}j", 128 if t > 8 else 182)
                    if lst and t == self.o("lst", 0) + 17: self.dflush()
                a(f"v_exp_f32 v{c+i}, v{c+i}")
        a(pv(63, 1))
        a(f"s_cmp_lg_u64 s[{sBAD}:{sBAD+1}], 0")
        a("s_cbranch_scc1 L_fallback")
        a.label("L_attn_fin" + role + (str(layer) if Lr else ""))
        if ast: self.dflush()
        self.stamp(("~" if Lr else "") + "attn loop")
        a(f"v_mov_b32 v22, v{O+8}")
        a(f"v_mov_b32 v26, v{O+8}")
        a("v_permlane32_swap_b32 v22, v26")
        a("v_rcp_f32 v22, v22")
        for i in range(0, 8, 2): a(f"v_pk_mul_f32 {vr(O+i,2)}, {vr(O+i,2)}, v[22:23] op_sel_hi:[1,0]")
        for i in range(4): a(f"v_cvt_pk_bf16_f32 v{28+i}, v{O+2*i}, v{O+1+2*i}")
        self.vm(f"buffer_store_dwordx4 v[28:31], v1, {SRD(WS)}, s{sOD} offen", "o")
        if Lr:
            a("s_setprio 0")
            self.publish(26, C_O)
            a("s_barrier")
            self.stamp("~attn done")

    def fallback(self):
        a = self.a
        S, K, V, Q, C, O, IDX = self.S0, self.KF, self.VF, self.QF, self.CC, self.OO, self.IDX
        a.label("L_fallback")
        a(f"s_mov_b32 s{sT0}, s{sKVH}")
        a(f"s_add_u32 s{sT3}, s{sKVH}, 131072")
        a("v_mov_b32 v26, 0xff800000")
        a("s_waitcnt vmcnt(0)")
        a("v_mov_b32 v26, 0xff800000")
        a.label("L_fb1")
        a(f"buffer_load_dwordx4 {vr(K,4)}, v1, {SRD(WS)}, s{sT0} offen sc1")
        a("s_waitcnt vmcnt(0)")
        a(f"v_mfma_f32_32x32x16_bf16 {vr(S,16)}, {vr(K,4)}, {vr(Q,4)}, 0")
        for i in range(8): a(f"v_max3_f32 v26, v{S+2*i}, v{S+2*i+1}, v26")
        a(f"s_add_u32 s{sT0}, s{sT0}, 2048")
        a(f"s_cmp_lt_u32 s{sT0}, s{sT3}")
        a("s_cbranch_scc1 L_fb1")
        a("v_mov_b32 v27, v26")
        a("v_permlane32_swap_b32 v26, v27")
        a("v_max_f32 v26, v26, v27")
        for i in range(16): a(f"v_sub_f32 v{C+i}, 0, v26")
        for i in range(16): a(f"v_mov_b32 v{O+i}, 0")
        for i in range(8): a(f"v_mov_b32 v{V+i}, 0x3f803f80")
        a(f"v_subrev_u32 v27, {KVB}, v{self.VA0}")
        a(f"s_mov_b32 s{sT0}, s{sKVH}")
        a.label("L_fb2")
        a(f"buffer_load_dwordx4 {vr(K,4)}, v1, {SRD(WS)}, s{sT0} offen sc1")
        a(f"s_not_b64 exec, s[{sN16}:{sN16+1}]")
        a(f"buffer_load_dwordx4 {vr(V,4)}, v27, {SRD(WS)}, s{sT0} offen sc1")
        a(f"buffer_load_dwordx4 {vr(V+4,4)}, v27, {SRD(WS)}, s{sT0} offen offset:512 sc1")
        a("s_mov_b64 exec, -1")
        a("s_waitcnt vmcnt(0)")
        a(f"v_mfma_f32_32x32x16_bf16 {vr(S,16)}, {vr(K,4)}, {vr(Q,4)}, {vr(C,16)}")
        for i in range(16): a(f"v_exp_f32 v{S+i}, v{S+i}")
        for u in range(2):
            a(f"v_smfmac_f32_32x32x32_bf16 {vr(O,16)}, {vr(V+4*u,4)}, {vr(S+8*u,8)}, v{IDX}")
        a("s_nop 11")
        a(f"s_add_u32 s{sT0}, s{sT0}, 2048")
        a(f"s_cmp_lt_u32 s{sT0}, s{sT3}")
        a("s_cbranch_scc1 L_fb2")
        a(f"s_cmp_eq_u32 s{sROLE}, 0")
        a("s_cbranch_scc1 L_attn_finC")
        a(f"s_cmp_eq_u32 s{sROLE}, 1")
        a("s_cbranch_scc1 L_attn_finL0")
        a("s_branch L_attn_finL1")

    def loader(self, layer):
        a = self.a
        self.vq.clear()
        pre = "L:" if layer == 0 else "~L:"
        t = lambda c, h, u: self.dma(sL, U(u), s13, c * 32768 + h * 16384, range(4), ("t", c))
        c2 = lambda c, h, u: self.dma(sL, U(u), s2_, c * 32768 + h * 16384, range(4), ("c", c))
        def wr(b, u):
            self.wait(vm=("r", b))
            for i in range(4):
                a(f"ds_write_b128 v{2 + (U(u) >> 16)}, {vr(b + 4*i, 4)} offset:{(U(u) & 0xffff) + i*1024}")
        def bar(nm, tag=None, ds=None):
            self.wait(vm=tag)
            if ds is not None: a(f"s_waitcnt lgkmcnt({ds})")
            self.dstamp(pre + nm + " arr", 64)
            a("s_barrier")
            self.dstamp(pre + nm, 64)
        def touch(const, terms):
            self.sx(sT0, const, *terms)
            self.vm(f"buffer_load_dword v21, v22, {SRD(WS)}, s{sT0} offen sc1")
        sl = lambda k: self.RW + 16 * k
        c6 = (sl(6), sl(7)) if layer else (32, 48)
        a(f"v_add_u32 v2, s{sL}, v1")
        a("v_add_u32 v3, 0x10000, v2")
        a("v_add_u32 v4, 0x20000, v2")
        a(f"ds_write_b128 v3, v[120:123] offset:{U(7) - 65536 + 3072}")
        wr(sl(0), 8)
        bar("W1")
        wr(sl(1), 0); wr(sl(2), 1); wr(sl(3), 2); wr(sl(4), 3)
        bar("B0", ds=12)
        if layer: wr(sl(5), 9)
        a("s_waitcnt lgkmcnt(0)")
        a("s_barrier")
        rc = lambda u: self.rload(u, s2_, (8 + u) * 16384)
        if not layer: t(4, 1, 9)
        rc(0); rc(1)
        if layer: rc(2)
        if not layer: self.code_touch(False)
        bar("B1", ("t", 4))
        t(5, 0, 4); t(5, 1, 5); t(6, 0, 6); t(6, 1, 7); c2(0, 0, 8); c2(0, 1, 0)
        if not layer: rc(2)
        bar("B2", ("t", 5))
        c2(1, 0, 1); c2(1, 1, 2); c2(2, 0, 3)
        bar("B3", ("t", 6))
        c2(2, 1, 9); c2(3, 0, 4); c2(3, 1, 5); rc(3)
        if not layer: self.code_touch(False)
        bar("B4", ("c", 1))
        wr(sl(0), 6); wr(sl(1), 7)
        if not layer:
            for u in range(2): self.rload(None, s2_, (12 + u) * 16384, base=c6[u])
        bar("D1", ("c", 3))
        if layer and self.o("wb", 0):
            L = a.newlabel("wb")
            self.sx(sT0, 0, (sJ, 1, 0, self.o("wb", 0) - 1), (sL, 1))
            a(f"s_cmp_lg_u32 s{sT0}, 0")
            a(f"s_cbranch_scc1 {L}")
            a("buffer_wbl2 sc1")
            a.label(L)
        wr(sl(2), 8); wr(sl(3), 0); wr(c6[0], 1); wr(c6[1], 2)
        if not layer:
            self.wait(vm="all")
            self.slice_addr()
        bar("D3", ds=0)
        if not layer:
            for pc in range(4):
                for k in range(3): a(f"ds_write_b128 v{20+pc}, {vr(self.HOLD+12*pc+4*k,4)} offset:{SLICE+1024*k}")
        bar("D6")
        if not layer: a(f"ds_write_b64 v15, {vr(self.HOLD+48,2)}")
        self.dflush()
        if layer: a("s_endpgm")
        else:
            a(f"s_mov_b32 s{sROLE}, 2")
            self.order(1, True)
            a("s_waitcnt lgkmcnt(0)")
            a("s_branch L_next")

    T13U = {0: (4, 5), 1: (6, 7), 2: (8, 0), 3: (1, 2), 4: (3, 9), 5: (4, 5), 6: (6, 7)}
    C2U = {0: (8, 0), 1: (1, 2), 2: (3, 9), 3: (4, 5), 4: (6, 7), 5: (8, 0), 6: (1, 2)}

    def ks_bases(self, b):
        L = [f"s_mul_i32 s{sT0}, s{sKH}, 12288", f"s_lshl_b32 s{sT1}, s{sKH}, 12", f"s_add_u32 s{sT1}, s{sT1}, 4096",
             f"v_add_u32 v{b}, s{sT0}, v1", f"v_add_u32 v{b+3}, s{sT1}, v1"]
        for k in (1, 2): L += [f"v_add_u32 v{b+k}, {65536*k}, v{b}", f"v_add_u32 v{b+3+k}, {65536*k}, v{b+3}"]
        return L
    def res_load(self, R):
        self.vm(f"buffer_load_dwordx4 {vr(R,4)}, v1, {SRD(WS)}, s{sKT} offen sc1", "res")
        self.vm(f"buffer_load_dwordx4 {vr(R+4,4)}, v1, {SRD(WS)}, s{sKT} offen offset:1024 sc1", "res")
        self.vm(f"buffer_load_dword v{R+8}, v1, {SRD(WS)}, s{sKS} offen sc1")
    def res_unpack(self, R, AA):
        L = []
        for i in range(8): L += [f"v_lshlrev_b32 v{AA+2*i}, 16, v{R+i}", f"v_and_b32 v{AA+2*i+1}, 0xffff0000, v{R+i}"]
        return L

    def ks_finish(self, AA, AB, P, final_branch):
        a = self.a
        for q in range(4): a(f"ds_write_b128 v14, {vr(AB+4*q,4)} offset:{q*1024}")
        a("s_waitcnt lgkmcnt(0)")
        a("s_barrier")
        for q in range(4): a(f"ds_read_b128 {vr(AB+4*q,4)}, v15 offset:{q*1024}")
        for q in range(4):
            a(f"s_waitcnt lgkmcnt({3-q})")
            for i in (0, 2): a(f"v_pk_add_f32 {vr(AA+4*q+i,2)}, {vr(AA+4*q+i,2)}, {vr(AB+4*q+i,2)}")
            for i in range(2): a(f"v_cvt_pk_bf16_f32 v{P+2*q+i}, v{AA+4*q+2*i}, v{AA+4*q+2*i+1}")
            if q == 1 and not final_branch: self.vm(f"buffer_store_dwordx4 {vr(P,4)}, v1, {SRD(WS)}, s{sKT} offen")
        if final_branch:
            a(f"s_cmp_lg_u32 s{sLAY}, 0")
            a("s_cbranch_scc1 L_final")
            self.vm(f"buffer_store_dwordx4 {vr(P,4)}, v1, {SRD(WS)}, s{sKT} offen")
        self.vm(f"buffer_store_dwordx4 {vr(P+4,4)}, v1, {SRD(WS)}, s{sKT} offen offset:1024")
        a(f"v_pk_add_f32 {vr(AB,2)}, {vr(AA,2)}, {vr(AA+2,2)}")
        a(f"v_pk_mul_f32 {vr(AB+2,2)}, {vr(AA,2)}, {vr(AA,2)}")
        a(f"v_pk_fma_f32 {vr(AB+2,2)}, {vr(AA+2,2)}, {vr(AA+2,2)}, {vr(AB+2,2)}")
        for i in range(4, 16, 2):
            a(f"v_pk_add_f32 {vr(AB,2)}, {vr(AB,2)}, {vr(AA+i,2)}")
            a(f"v_pk_fma_f32 {vr(AB+2,2)}, {vr(AA+i,2)}, {vr(AA+i,2)}, {vr(AB+2,2)}")
        a(f"v_add_f32 v{AB}, v{AB}, v{AB+1}")
        a(f"v_add_f32 v{AB+2}, v{AB+2}, v{AB+3}")
        a(f"v_permlane32_swap_b32 v{AB}, v{AB+2}")
        a(f"v_add_f32 v{AB}, v{AB}, v{AB+2}")
        self.vm(f"buffer_store_dword v{AB}, v1, {SRD(WS)}, s{sKS} offen")
    def scr_addr(self):
        return [f"s_lshl_b32 s{sT0}, s{sW}, 12", f"s_add_u32 s{sT0}, s{sT0}, {U(9)}", f"v_add_u32 v14, s{sT0}, v1", "v_xor_b32 v15, 8192, v14"]
    def x_flag_addr(self, r, t, sreg, extra=None):
        return [f"v_and_b32 v{r}, 7, v0", f"v_lshlrev_b32 v{r}, 5, v{r}", f"v_and_b32 v{t}, 8, v0",
                lambda: self.sx(sT0, 0, (sreg, 256, 1), (sreg, 4, 0, 1)), f"v_add3_u32 v{r}, v{r}, v{t}, s{sT0}"]

    def wo(self):
        a = self.a
        AA, AB, RING, X, R, B = 32, 48, 64, 128, 192, 2
        WD = self.o("ww", 8)
        self.emit(self.ks_bases(B))
        self.emit(self.scr_addr())
        a("v_and_b32 v10, 15, v0")
        self.sx(sT0, 0, (sKH, 512), (sTL, 4))
        a(f"v_lshl_add_u32 v10, v10, 5, s{sT0}")
        self.publish(26, C_O, tag="o")
        a("s_barrier")
        self.stamp("attn done")
        self.dq.clear(); self.forget()
        xl = lambda i: self.fload(X + 4 * i, sOS, i * 1024, ("x", i), tmp=sT5)
        init, per = self.ramp([(i, xl(i)) for i in range(16)], 16, self.o("w0", 5), WD)
        items = []
        for i in range(16):
            addr = U(i >> 2) + (i & 3) * 1024
            items.append(dict(read=(B + 3, addr), vm=("x", i),
                              mfma=lambda r, i=i: f"v_mfma_f32_32x32x16_bf16 {vr(AB,16)}, {vr(r,4)}, {vr(X+4*i,4)}, {vr(AB,16) if i else '0'}"))
            items.append(dict(read=(B, addr), mfma=lambda r, i=i: f"v_mfma_f32_32x32x16_bf16 {vr(AA,16)}, {vr(r,4)}, {vr(X+4*i,4)}, {vr(AA,16)}"))
            items[-1]["post"] = list(per.get(i, []))
        self.stream_begin(items, 8, RING)
        self.wait(vm="res")
        self.emit(self.res_unpack(R, AA))
        self.poll(10, 11, C_O)
        self.stamp("wo polled")
        self.emit(init)
        self.stream_run()
        self.ks_finish(AA, AB, 20, False)

    def up(self):
        a = self.a
        X = 128; ACC = [16, 32, 48, 64, 80]; RING = 96; D = 6; TM = 120
        MU, CS, EA, EC, PA, PT = 4, 8, 12, 13, 14, 15
        W = (1, 2, 3)
        WD = self.o("uw", 12)
        self.sx(sT1, 0, (sJ, 4, 4), (sW, 1))
        self.emit(self.x_flag_addr(PA, PT, sT1))
        a("v_add_u32 v2, 0x10000, v1")
        a("v_add_u32 v3, 0x20000, v1")
        self.publish(PT, C_X1)
        self.stamp("wo done")
        self.forget()
        CSR = [ACC[4], ACC[4] + 4, ACC[4] + 8, CS, TM, CS, CS]
        def csl(c):
            def f():
                a(f"s_mul_i32 s{sT4}, s{sSTR}, {c}")
                a(f"s_add_u32 s{sT4}, s{sT4}, s{sUC}")
                self.vm(f"buffer_load_dwordx4 {vr(CSR[c],4)}, v1, {SRD(WS)}, s{sT4} offen sc1", ("cs", c))
            return f
        for c in range(5): csl(c)()
        xl = lambda i: self.fload(X + 4 * i, sUX, i * 1024, ("x", i), tmp=sT5)
        STT = ACC[3]
        seq = [(i, xl(i)) for i in range(32)]
        for q in range(4): seq.insert(10 + 2 * q, (10 + q, self.fload(STT + 4 * q, sUS, q * 1024, "st", tmp=sT2)))
        init, per = self.ramp(seq, 32, self.o("u0", 4), WD)
        def epi(c, acc):
            L = []
            for i in range(8): L += [f"v_mul_f32 v{TM+i}, v{EA}, v{acc+i}", f"v_exp_f32 v{TM+i}, v{TM+i}", f"v_mul_f32 v{acc+8+i}, v{acc+i}, v{acc+8+i}"]
            for i in range(8):
                L += [f"v_fma_f32 v{TM+i}, v{TM+i}, v{EC}, v{EC}", f"v_rcp_f32 v{TM+i}, v{TM+i}"]
                if i: L.append(f"v_mul_f32 v{acc+7+i}, v{TM+i-1}, v{acc+7+i}")
            L.append(f"s_add_u32 s{sT3}, s{sHD}, {c*16384}")
            L.append(f"v_mul_f32 v{acc+15}, v{TM+7}, v{acc+15}")
            for i in range(4): L.append(f"v_cvt_pk_bf16_f32 v{acc+i}, v{acc+8+2*i}, v{acc+9+2*i}")
            L.append(lambda: self.vm(f"buffer_store_dwordx4 {vr(acc,4)}, v1, {SRD(WS)}, s{sT3} offen", ("h", c)))
            return L
        items = []; c0 = 0; start = []
        acc = lambda c: vr(ACC[c % 5], 16)
        corr = lambda c, first: dict(vm=("cs", c), mfma=lambda r: f"v_mfma_f32_32x32x16_bf16 {acc(c)}, {vr(CSR[c],4)}, {vr(MU,4)}, {'0' if first else acc(c)}")
        for pi, n in enumerate((3, 2, 1, 1)):
            tiles = list(range(c0, c0 + n)); c0 += n
            start.append(len(items))
            if pi:
                for c in tiles: items.append(corr(c, True))
                if pi < 3: items[-1]["post"] = [csl(c0)]
            for ks in range(32):
                for c in tiles:
                    addr = U(self.T13U[c][ks >> 4]) + (ks & 15) * 1024
                    it = dict(read=(W[addr >> 16], addr & 0xffff),
                              mfma=lambda r, ks=ks, c=c, z=(ks == 0 and pi == 0): f"v_mfma_f32_32x32x16_bf16 {acc(c)}, {vr(r,4)}, {vr(X+4*ks,4)}, {'0' if z else acc(c)}")
                    if ks == 0 and c == tiles[0]: it["bar"] = True
                    if pi == 0 and c == 0: it["vm"] = ("x", ks)
                    if pi == 0 and c < 2: it["post"] = list(per.get(ks, [])[c::2])
                    items.append(it)
                if pi == 0 and ks == self.o("ub", 16): items[-1].setdefault("post", []).append("s_barrier")
                if pi == 0 and ks == 27:
                    for c in tiles: items.append(corr(c, False))
        start.append(len(items))
        st = [lambda: self.wait(vm="st")] + self.stats_ops(STT, MU, EA, EC) + [f"v_mul_f32 v{EA}, {hex(f2u(-LOG2E))}, v{EA}"]
        self.spread(items, 45, 80, st)
        lo = 5
        self.spread(items, start[1] + lo, start[2], epi(0, ACC[0]) + epi(1, ACC[1]) + epi(2, ACC[2]))
        e34 = epi(3, ACC[3]) + epi(4, ACC[4]); nsplit = start[3] + 13
        self.spread(items, start[2] + lo, nsplit, e34)
        self.spread(items, nsplit, start[4], epi(5, ACC[0]))
        items[start[3] + 4].setdefault("post", []).insert(0, lambda: self.publish(PT, C_H3, tag=("h", 3)))
        hf = ["v_and_b32 v14, 7, v0", lambda: self.sx(sT0, 0, (sJ, 512, 4), (sKH, 256), (sTL, 4, 0, 3)), f"v_lshl_add_u32 v14, v14, 5, s{sT0}"]
        items[start[1] + 2].setdefault("post", []).extend(hf)
        items[start[4] - self.o("hp", 8)].setdefault("post", []).insert(0, lambda: self.poll_issue(PA, PT))
        self.stream_begin(items, D, RING)
        self.poll(PA, PT, C_X1)
        self.stamp("up polled")
        self.emit(init)
        self.stream_run()
        a("s_barrier")
        self.epi6 = epi(6, ACC[1])

    def down(self):
        a = self.a
        AA, AB, RING, X, R, B = 48, 64, 80, 128, 20, 2
        PA, PT = 14, 15
        NX = 32; WD = self.o("dw", 8)
        self.forget()
        self.poll_check(PA, PT, C_H3)
        self.stamp("down polled")
        hl = lambda i: self.fload(X + 4 * (i % NX), sHS, (i >> 3) * 16384 + (i & 7) * 1024, ("x", i), tmp=sT5)
        self.res_load(R)
        for i in range(WD): hl(i)()
        self.emit(self.ks_bases(B))
        items = []
        for i in range(56):
            addr = U(self.C2U[i >> 3][(i >> 2) & 1]) + (i & 3) * 1024
            xr = vr(X + 4 * (i % NX), 4)
            it = dict(read=(B + 3 + (addr >> 16), addr & 0xffff), vm=("x", i),
                      mfma=lambda r, i=i, xr=xr: f"v_mfma_f32_32x32x16_bf16 {vr(AB,16)}, {vr(r,4)}, {xr}, {vr(AB,16) if i else '0'}")
            if i in (16, 32): it["bar"] = True
            items.append(it)
            it = dict(read=(B + (addr >> 16), addr & 0xffff), mfma=lambda r, xr=xr: f"v_mfma_f32_32x32x16_bf16 {vr(AA,16)}, {vr(r,4)}, {xr}, {vr(AA,16)}")
            it["post"] = []
            if i == self.o("dpub", 3): it["post"].append(lambda: self.publish(11, C_H6, tag=("h", 6)))
            if i == 32 - 2 * WD: it["post"].append(lambda: self.poll_issue(PA, PT))
            if i == 32 - WD: it["post"].append(lambda: self.poll_check(PA, PT, C_H6))
            if i + WD < 56: it["post"].append(hl(i + WD))
            if i == 40: it["post"] += self.scr_addr()
            items.append(it)
        self.stream_begin(items, 8, RING)
        self.emit(self.epi6)
        self.wait(vm="res")
        self.emit(self.res_unpack(R, AA))
        self.stream_run()
        self.stamp("down main")
        self.P = 20
        self.ks_finish(AA, AB, 20, True)
        self.publish(11, C_X2)
        self.order(1, False)
        self.stamp("down done")

    def nextlayer(self):
        a = self.a
        a.label("L_next")
        self.emit(self.x_flag_addr(14, 15, sW))
        a(f"s_add_u32 s{sKVH}, s{sKVH}, {KV_STR}")
        a(f"s_add_u32 s{sKVO}, s{sKVO}, {KV_STR}")
        a(f"s_add_u32 s{sKVA}, s{sKVA}, 4096")
        a(f"s_add_u32 s{sKVF}, s{sKVF}, 4096")
        a(f"s_mov_b32 s{sLAY}, 1")
        self.poll(14, 15, C_X2)
        a("s_barrier")
        a(f"s_mov_b32 s{sCODE}, 16")
        self.stamp("x2 polled")
        a("s_branch L_layer")

    def final(self):
        a = self.a
        a.label("L_final")
        self.srd(SB, P_OUT, 2 * MB)
        a("v_and_b32 v14, 31, v0")
        a("v_lshlrev_b32 v14, 10, v14")
        a("v_lshrrev_b32 v15, 5, v0")
        a("v_lshl_add_u32 v14, v15, 4, v14")
        for b in (20, 24):
            a(f"v_permlane32_swap_b32 v{b}, v{b+2}")
            a(f"v_permlane32_swap_b32 v{b+1}, v{b+3}")
        a(f"buffer_store_dwordx4 v[20:23], v14, {SRD(SB)}, s{sOUT} offen {['', 'sc1', 'nt', 'sc1 nt'][self.o('op', 0)]}")
        a(f"buffer_store_dwordx4 v[24:27], v14, {SRD(SB)}, s{sOUT} offen offset:32 {['', 'sc1', 'nt', 'sc1 nt'][self.o('op', 0)]}")
        self.stamp("end")
        a.label("L_exit")
        a("s_endpgm")

    def build(self):
        a = self.a
        self.tails = []
        self.prologue()
        self.qkv()
        a(f"s_cmp_eq_u32 s{sROLE}, 1")
        a("s_cbranch_scc1 L_attnL0")
        a(f"s_cmp_eq_u32 s{sROLE}, 2")
        a("s_cbranch_scc1 L_attnL1")
        self.attention("C")
        self.wo(); self.up(); self.down()
        self.nextlayer()
        a.label("L_attnL0")
        self.attention("L", 0)
        self.loader(0)
        a.label("L_attnL1")
        self.attention("L", 1)
        self.loader(1)
        self.fallback()
        self.publish_tails()
        self.final()
        a.label("L_end")
        body = a.finish()
        refp = "cdna_kernels/" + NAME + ".s.ref"
        hdr = open(refp).read().split("; Override launch")[0] if os.path.exists(refp) else ""
        txt = hdr + f"; @launch grid=(256,1,1) block=(512,1,1) lds={LDS_TOTAL}\n"
        txt += f""".amdgcn_target "amdgcn-amd-amdhsa--gfx950"
.text
.globl {NAME}_kernel
.p2align 8
.type {NAME}_kernel,@function
{NAME}_kernel:
{body}.section .rodata,"a"
.p2align 6
.amdhsa_kernel {NAME}_kernel
  .amdhsa_next_free_vgpr 256
  .amdhsa_next_free_sgpr 100
  .amdhsa_accum_offset 256
  .amdhsa_group_segment_fixed_size 0
  .amdhsa_kernarg_size 80
  .amdhsa_user_sgpr_count 2
  .amdhsa_user_sgpr_kernarg_segment_ptr 1
  .amdhsa_system_sgpr_workgroup_id_x 1
.end_amdhsa_kernel
"""
        return txt

def stamp_order(names):
    cn = [n for n in names if not n.startswith(("~", "L:", "A:"))]
    i0 = cn.index("sync0") + 1
    pre, rest = cn[:i0], cn[i0:]
    body = rest[:rest.index("x2 polled")]
    c = pre + body + ["x2 polled"] + body[:-1] + ["end"]
    ld = ["qkv main", "qkv done", "attn loop", "attn done"] + [n for n in names if n.startswith("L:")]
    l = pre + ld[:2] + [n for n in names if n.startswith("A:")] + ld[2:] + ["x2 polled"] + ld
    return c, l

def from_spec(spec):
    opt = dict((kv.split('=') + ['1'])[:2] for kv in spec.split(',') if kv)
    return Gen(stop=opt.pop("stop", None), stamps=bool(opt.pop("stamps", 0)), force_slow=bool(opt.pop("slow", 0)),
               force_fallback=bool(opt.pop("fallback", 0)), remap=bool(opt.pop("remap", 0)), opt=opt).build()

if __name__ == "__main__":
    out = sys.argv[2] if len(sys.argv) > 2 else "cdna_kernels/" + NAME + ".s"
    open(out, "w").write(from_spec(sys.argv[1].lstrip(":") if len(sys.argv) > 1 else ""))
```

```python
import re

def vr(a, n=1):
    return f"v{a}" if n == 1 else f"v[{a}:{a+n-1}]"
def sr(a, n=1):
    return f"s{a}" if n == 1 else f"s[{a}:{a+n-1}]"

_REG = re.compile(r"^(-|abs\(|\|)?([vsa])(\d+|\[(\d+):(\d+)\])")
def regs_of(op):
    op = op.strip()
    if op in ("vcc", "vcc_lo", "vcc_hi"): return [("s", "vcc")]
    if op in ("exec", "exec_lo", "exec_hi"): return [("s", "exec")]
    if op == "m0": return [("s", "m0")]
    m = _REG.match(op)
    if not m: return []
    k = m.group(2)
    if m.group(4) is not None:
        return [(k, i) for i in range(int(m.group(4)), int(m.group(5)) + 1)]
    return [(k, int(m.group(3)))]

TRANS = ("v_exp_f32", "v_log_f32", "v_rcp_f32", "v_rsq_f32", "v_sqrt_f32", "v_sin_f32", "v_cos_f32")
def split_ops(s):
    out, depth, cur = [], 0, ""
    for ch in s:
        if ch in "[(": depth += 1
        if ch in "])": depth -= 1
        if ch == "," and depth == 0:
            out.append(cur.strip()); cur = ""
        else: cur += ch
    if cur.strip(): out.append(cur.strip())
    return out

class Ins:
    def __init__(self, text):
        self.text = text
        t = text.split(";")[0].strip()
        self.label = t.endswith(":")
        self.directive = t.startswith(".")
        self.empty = (t == "")
        self.op = ""; self.w = []; self.r = []; self.kind = "none"; self.cread = []; self.abread = []; self.passes = 0
        self.states = 0; self.dpp = False; self.store_data = []
        if self.label or self.directive or self.empty: return
        parts = t.split(None, 1)
        op = parts[0]; self.op = op
        rest = parts[1] if len(parts) > 1 else ""
        ops = split_ops(rest)
        ops = [o.split()[0] if o else o for o in ops]
        self.states = 1
        R = lambda i: regs_of(ops[i]) if i < len(ops) else []
        if op == "s_nop":
            self.kind = "salu"; self.states = int(ops[0], 0) + 1
        elif op.startswith("v_mfma") or op.startswith("v_smfmac"):
            self.kind = "mfma"
            self.passes = 8 if "32x32" in op else (4 if "16x16" in op else 2)
            self.w = R(0)
            if op.startswith("v_smfmac"):
                self.abread = R(1) + R(2) + R(3); self.cread = R(0)
            else:
                self.abread = R(1) + R(2); self.cread = R(3)
            self.r = self.abread + self.cread
        elif op.startswith("v_"):
            self.kind = "trans" if op.replace("_e32", "").replace("_e64", "") in TRANS else "valu"
            self.dpp = "_dpp" in op
            if op.startswith("v_permlane"):
                self.w = R(0) + R(1); self.r = R(0) + R(1)
            elif op.startswith("v_cmp"):
                self.w = R(0); self.r = sum((R(i) for i in range(1, len(ops))), [])
            elif op.startswith(("v_add_co", "v_sub_co", "v_addc_co")):
                self.w = R(0) + R(1); self.r = sum((R(i) for i in range(2, len(ops))), [])
            else:
                self.w = R(0); self.r = sum((R(i) for i in range(1, len(ops))), [])
                if op.startswith(("v_fmac", "v_dot2c")) or self.dpp: self.r += R(0)
        elif op.startswith("ds_"):
            self.kind = "ds"
            if op.startswith(("ds_read", "ds_bpermute", "ds_permute", "ds_swizzle")) or "_rtn" in op:
                self.w = R(0); self.r = sum((R(i) for i in range(1, len(ops))), [])
            else:
                self.r = sum((R(i) for i in range(len(ops))), [])
        elif op.startswith(("buffer_", "global_")):
            self.kind = "vmem"
            lds = bool(re.search(r"\blds\b", rest))
            self.lds = lds
            if op in ("buffer_wbl2", "buffer_inv"):
                pass
            elif "load" in op and not lds:
                self.w = R(0); self.r = sum((R(i) for i in range(1, len(ops))), [])
            else:
                self.r = sum((R(i) for i in range(len(ops))), [])
                if lds: self.r.append(("s", "m0"))
                if "store" in op and ("x4" in op or "x3" in op):
                    self.store_data = R(0) if op.startswith("buffer_") else R(1)
        elif op.startswith("s_"):
            self.kind = "salu"
            if op.startswith(("s_cmp", "s_bitcmp", "s_cbranch", "s_branch", "s_waitcnt", "s_barrier", "s_setprio", "s_endpgm", "s_sleep", "s_setpc")):
                self.r = sum((R(i) for i in range(len(ops))), [])
            else:
                self.w = R(0); self.r = sum((R(i) for i in range(1, len(ops))), [])
        else:
            raise ValueError("unknown instr " + text)

def need(p, c):
    n = 0
    pw, cr, cw = set(p.w), set(c.r), set(c.w)
    isvalu = lambda x: x.kind in ("valu", "trans")
    if isvalu(p):
        vw = {x for x in pw if x[0] in "va"}; sw = {x for x in pw if x[0] == "s"}
        if c.kind == "mfma" and vw & cr: n = max(n, 2)
        if isvalu(c):
            if vw & cr:
                if c.op.startswith("v_permlane") or c.dpp: n = max(n, 2)
                if c.op.startswith(("v_readlane", "v_readfirstlane")): n = max(n, 1)
                if p.kind == "trans" and c.kind != "trans": n = max(n, 1)
            if sw & cr:
                n = max(n, 4 if c.op.startswith(("v_readlane", "v_writelane")) else 2)
        if p.kind == "trans" and c.kind in ("ds", "vmem") and vw & cr: n = max(n, 1)
        if c.kind == "vmem" and sw & cr: n = max(n, 5)
        if c.kind == "salu" and sw & cr and not c.op.startswith("s_cbranch"): n = max(n, 1)
    if p.op.startswith("v_pk_") and c.kind == "mfma": n = max(n, 1)
    if p.kind == "mfma":
        big = {2: 5, 4: 8, 8: 12}[p.passes]
        if c.kind == "mfma":
            if pw & set(c.abread): n = max(n, big)
            if pw & set(c.cread):
                if not (p.w == c.cread and p.passes == c.passes): n = max(n, {2: 4, 4: 6, 8: 10}[p.passes])
                elif p.passes == 2: n = max(n, 2)
        elif c.kind in ("valu", "trans", "ds", "vmem"):
            if pw & (cr | cw): n = max(n, big)
            if isvalu(c) and set(p.cread) & cw: n = max(n, {2: 1, 4: 3, 8: 7}[p.passes])
    if p.kind == "salu" and ("s", "m0") in pw and c.kind == "vmem" and getattr(c, "lds", False): n = max(n, 1)
    if p.store_data and set(p.store_data) & cw:
        n = max(n, 2 if isvalu(c) else 1)
    return n

class Asm:
    def __init__(self):
        self.lines = []
        self.uid = 0
    def __call__(self, text):
        for l in text.split("\n"):
            self.lines.append(l.strip())
    def label(self, name): self.lines.append(name + ":")
    def newlabel(self, base="L"):
        self.uid += 1
        return f"{base}_{self.uid}"
    @staticmethod
    def size(l):
        t = l.split(";")[0].strip()
        if not t or t.endswith(":"): return 0
        op = t.split()[0]
        if op.startswith(("v_mfma", "v_smfmac", "ds_", "buffer_", "global_", "v_pk_", "s_load", "s_memtime", "s_memrealtime")) or op.endswith(("_e64", "_dpp")): return 8
        if op in ("s_waitcnt", "s_barrier", "s_nop", "s_setprio", "v_exp_f32") or op.startswith(("s_cbranch", "s_branch")): return 4
        return None
    def align(self, lines):
        out = []; on = False; par = 0; last = None
        for l in lines:
            if l == "@align":
                on = True; out.append(".p2align 3"); par = 0; last = None; continue
            if l == "@noalign":
                on = False; continue
            if not on:
                out.append(l); continue
            sz = self.size(l)
            if sz is None:
                out.append(l); par = None; last = None; continue
            if par is None and sz:
                if l.split()[0] != "v_exp_f32":
                    out.append(l); continue
                out.append(".p2align 3"); par = 0
            if (sz == 8 or (sz == 0 and l.endswith(":"))) and par == 4:
                if last is not None:
                    out[last] = out[last].replace("v_exp_f32", "v_exp_f32_e64"); par = 0
                else:
                    out.append("s_nop 0"); par = 0
            out.append(l)
            if sz == 4:
                par ^= 4
                if l.split()[0] == "v_exp_f32": last = len(out) - 1
            elif sz == 8: last = None
        return out

    def finish(self, verbose=False):
        self.lines = [l for l in self.lines]
        out = []; hist = []
        nins = 0
        for l in self.lines:
            if l.startswith("@"):
                out.append(l); continue
            ins = Ins(l)
            if ins.kind == "none":
                out.append(l); continue
            dist = 0; req = 0
            for p in reversed(hist):
                k = need(p, ins)
                if k - dist > req: req = k - dist
                dist += p.states
                if dist >= 20: break
            while req > 0:
                k = min(req, 16)
                nop = Ins(f"s_nop {k-1}")
                out.append(f"s_nop {k-1}"); hist.append(nop); req -= k; nins += 1
            out.append(l); hist.append(ins)
            if len(hist) > 40: hist = hist[-24:]
        out = self.align(out)
        if verbose: print("inserted nops:", nins)
        return "\n".join(("" if (x.endswith(":") or x.startswith(".") or x.startswith(";")) else "    ") + x for x in out) + "\n"
```

```python
import sys, math, struct, os
from asmlib import *

NAME = "interleave_layers__softmax_full_mha__glu_gated_swiglu__prompt"
MB = 1 << 20; KB = 1 << 10
XF = 0
HF = 2 * MB
ST = 9 * MB
PWO = 9 * MB + 512 * KB
PW13 = 10 * MB
CS13 = 13 * MB + 512 * KB
PW2 = 14 * MB
KVG = 16 * MB; KV_STR = 4 * MB
FL = 24 * MB; FL_STR = 16 * KB
HT = 112 * 1024
F_LF, F_SF, F_KV = 0, 1024, 4096
TSB = 25 * MB
WS_USED = 27 * MB
OOB = 0x7ff00000
D_GRDY, D_SHOUT = 0, 128
U = lambda i: i * 16384
LDS_TOTAL = 163840
TSTR = 2064; SLOT = 8 * TSTR; KVB = LDS_TOTAL - 2 * SLOT
SLICE = U(3)
WRING = 65536; WSTG = 24576
QA = U(2)
KSL = KVB - 64; LSY = KVB - 32; MODE = KVB - 28
WS, SA, SB, DBG = 4, 8, 12, 16
P_X, P_WQKV, P_WO, P_BX, P_W1, P_W3, P_W2, P_OUT, P_DBG, P_WS = 20, 22, 24, 26, 28, 30, 32, 34, 36, 38
sG, sJ, sW, sXCC, sLAY, sSLOW, sTMO, sFB, sMYF, sCODE = range(40, 50)
sT0, sT1, sT2, sT3, sT4, sT5, sT6, sT7 = range(50, 58)
sFG, sKVH, sKVA = 58, 59, 60
sQX, sQS, sOD, sKG, sQL, sKT, sKS, sOS, sHS, sOUT, sUX, sUS, sUC, sHD, sKH, sTL = range(61, 77)
sKVF, sL, s13, s2_, sWOs, sQ, sPD, sPA, sPB, sPCS, sPSTR, sTCH = range(61, 73)
sTSI = 77
sEX = 78; sHI = 80; sN16 = 82; sRDY = 84; sBAD = 86; sLO = 86
sTS = 88; sTR = 90; sE0 = 92; sE1 = 94; sPC = 96; sROLE = 3
C_Q, C_O, C_X1, C_H2, C_H4, C_H6, C_X2 = 1, 2, 3, 4, 5, 6, 7
sKL = sXCC
LOG2E = 1.4426950408889634
def f2u(x): return struct.unpack("<I", struct.pack("<f", x))[0]
TBOUND = 48.0
SIG = 0.25 * LOG2E
cost = lambda t: 0 if callable(t) else (8 if t.split()[0] in TRANS else 4)
SRD = lambda r: f"s[{r}:{r+3}]"

class Gen:
    def __init__(self, stop=None, stamps=False, force_slow=False, force_fallback=False, remap=False, opt=None):
        self.a = Asm(); self.stop = stop; self.stamps = stamps
        self.force_slow = force_slow; self.force_fallback = force_fallback
        self.remap = remap; self.opt = opt or {}
        self.dst = []
        self.vq = []; self.dq = []
        self.wpol = ['sc1', '', 'sc0'][self.o('wp', 0)]
        self.thr = 0
        self.RAW = 0; self.dg = self.o('dg', 1)
        self.seq = []
    def o(self, k, d): return int(self.opt.get(k, d))

    def vm(self, text, tag=None):
        self.a(text); self.vq.append(tag)
    def ds(self, text, tag=None):
        self.a(text); self.dq.append(tag)
    def _wait(self, q, tag, name, mx):
        if tag not in q: return None
        i = len(q) - 1 - q[::-1].index(tag)
        n = min(len(q) - 1 - i, mx)
        del q[:len(q) - n]
        return f"{name}({n})"
    def wait(self, vm=None, ds=None):
        w = []
        if vm == "all": w.append("vmcnt(0)"); self.vq.clear()
        elif vm is not None: w.append(self._wait(self.vq, vm, "vmcnt", 63))
        if ds == "all": w.append("lgkmcnt(0)"); self.dq.clear()
        elif ds is not None: w.append(self._wait(self.dq, ds, "lgkmcnt", 15))
        w = [x for x in w if x]
        if w: self.a("s_waitcnt " + " ".join(w))
    def emit(self, L):
        for t in L:
            if callable(t): t()
            else: self.a(t)

    def stamp(self, name):
        if not self.stamps: return
        a = self.a
        self.seq.append(name)
        a(f"s_memtime s[{sTS}:{sTS+1}]")
        a(f"s_memrealtime s[{sTR}:{sTR+1}]")
        a("s_waitcnt lgkmcnt(0)")
        a(f"v_mov_b32 v18, s{sTS}")
        a(f"v_mov_b32 v19, s{sTR}")
        a("s_mov_b64 exec, 1")
        self.vm(f"buffer_store_dwordx2 v[18:19], off, {SRD(WS)}, s{sTSI}")
        a("s_mov_b64 exec, -1")
        a(f"s_add_u32 s{sTSI}, s{sTSI}, 8")
        self.dq.clear()
    def dstamp(self, name, base):
        if not self.stamps: return
        k = len(self.dst); self.dst.append((name, base + 2 * k))
        self.a(f"s_memtime s[{sTS}:{sTS+1}]")
        self.a(f"s_memrealtime s[{sTR}:{sTR+1}]")
        self.a("s_waitcnt lgkmcnt(0)")
        self.a(f"v_mov_b32 v{base+2*k}, s{sTS}")
        self.a(f"v_mov_b32 v{base+2*k+1}, s{sTR}")
    def dflush(self):
        if not self.stamps: return
        a = self.a
        a("s_mov_b64 exec, 1")
        for name, r in self.dst:
            a(f"buffer_store_dwordx2 v[{r}:{r+1}], off, {SRD(WS)}, s{sTSI}")
            self.seq.append(name)
            a(f"s_add_u32 s{sTSI}, s{sTSI}, 8")
        a("s_mov_b64 exec, -1")
        self.dst = []

    def srd(self, d, p, size):
        a = self.a
        a(f"s_mov_b32 s{d}, s{p}")
        a(f"s_and_b32 s{d+1}, s{p+1}, 0xffff")
        a(f"s_mov_b32 s{d+2}, {size}")
        a(f"s_mov_b32 s{d+3}, 0x20000")

    def sx(self, dst, const, *terms):
        a = self.a
        first = True
        for tm in terms:
            r, mul = tm[0], tm[1]; shr = tm[2] if len(tm) > 2 else 0; mask = tm[3] if len(tm) > 3 else None
            t = dst if first else sT7
            assert r != dst or first
            cur = r
            if shr: a(f"s_lshr_b32 s{t}, s{cur}, {shr}"); cur = t
            if mask is not None: a(f"s_and_b32 s{t}, s{cur}, {mask}"); cur = t
            if mul != 1:
                if mul & (mul - 1) == 0: a(f"s_lshl_b32 s{t}, s{cur}, {mul.bit_length()-1}")
                else: a(f"s_mul_i32 s{t}, s{cur}, {mul}")
                cur = t
            if first:
                if cur != dst: a(f"s_mov_b32 s{dst}, s{cur}")
            else: a(f"s_add_u32 s{dst}, s{dst}, s{cur}")
            first = False
        if const: a(f"s_add_u32 s{dst}, s{dst}, {const}")

    def fload(self, dst, base, off, tag, tmp=sT7, flags="sc1"):
        def f():
            key = (base, off >> 12)
            if getattr(self, "_tmpkey", {}).get(tmp) != key:
                self.a(f"s_add_u32 s{tmp}, s{base}, {off & ~4095}")
                self._tmpkey = dict(getattr(self, "_tmpkey", {})); self._tmpkey[tmp] = key
            self.vm(f"buffer_load_dwordx4 {vr(dst,4)}, v1, {SRD(WS)}, s{tmp} offen offset:{off & 4095} {flags}", tag)
        return f
    def forget(self): self._tmpkey = {}

    def dma(self, ldsb, ldsc, src, srcc, idx, tag=None, pol=None):
        a = self.a
        if pol is None: pol = self.wpol
        a(f"s_add_u32 m0, s{ldsb}, {ldsc}")
        a(f"s_add_u32 s{sT7}, s{src}, {srcc}")
        for i in idx:
            if self.thr and len(self.vq) >= self.thr:
                a(f"s_waitcnt vmcnt({self.thr - 1})"); del self.vq[:len(self.vq) - self.thr + 1]
            self.vm(f"buffer_load_dwordx4 v1, {SRD(WS)}, s{sT7} offen offset:{i*1024} {pol} lds", tag)

    def spin(self, body):
        a = self.a
        L, D = a.newlabel("spin"), a.newlabel("spind")
        a.label(L)
        body()
        a(f"s_cbranch_vccz {D}")
        a(f"s_sub_u32 s{sTMO}, s{sTMO}, 1")
        a(f"s_cbranch_scc0 {L}")
        a(f"s_mov_b32 s{sTMO}, 0")
        a.label(D)

    def poll(self, vaddr, vtmp, code):
        a = self.a
        a(f"s_add_u32 s{sT6}, s{sCODE}, {code}")
        def body():
            a(f"buffer_load_dword v{vtmp}, v{vaddr}, {SRD(WS)}, s{sFB} offen sc1")
            a("s_waitcnt vmcnt(0)")
            a(f"v_cmp_gt_u32 vcc, s{sT6}, v{vtmp}")
        self.spin(body)
        self.vq.clear()
        self.acquire()
    def poll_issue(self, vaddr, vtmp):
        self.vm(f"buffer_load_dword v{vtmp}, v{vaddr}, {SRD(WS)}, s{sFB} offen sc1", "poll")
    def poll_check(self, vaddr, vtmp, code):
        a = self.a
        D = a.newlabel("pc")
        a(f"s_add_u32 s{sT6}, s{sCODE}, {code}")
        self.wait(vm="poll")
        a(f"v_cmp_gt_u32 vcc, s{sT6}, v{vtmp}")
        a(f"s_or_b32 vcc_lo, vcc_lo, s{sSLOW}")
        a(f"s_cbranch_scc0 {D}")
        q = list(self.vq)
        self.poll(vaddr, vtmp, code)
        self.vq = q
        a.label(D)

    def acquire(self):
        a = self.a
        F = a.newlabel("acq")
        a(f"s_cmp_eq_u32 s{sSLOW}, 0")
        a(f"s_cbranch_scc1 {F}")
        a("buffer_inv sc1")
        a("s_waitcnt vmcnt(0)")
        a.label(F)

    def publish(self, vtmp, code, tag="all"):
        a = self.a
        S, D = a.newlabel("pubs"), a.newlabel("pubd")
        a(f"s_add_u32 s{sT6}, s{sCODE}, {code}")
        a(f"v_mov_b32 v{vtmp}, s{sT6}")
        a("s_mov_b64 exec, 1")
        a(f"s_cmp_lg_u32 s{sSLOW}, 0")
        a(f"s_cbranch_scc1 {S}")
        self.wait(vm=tag)
        self.vm(f"buffer_store_dword v{vtmp}, off, {SRD(WS)}, s{sMYF}")
        self.tails.append((S, D, vtmp))
        a.label(D)
        a("s_mov_b64 exec, -1")
    def publish_tails(self):
        a = self.a
        for S, D, vtmp in self.tails:
            a.label(S)
            a("s_waitcnt vmcnt(0)")
            a("buffer_wbl2 sc1")
            a("s_waitcnt vmcnt(0)")
            a(f"buffer_store_dword v{vtmp}, off, {SRD(WS)}, s{sMYF} sc1")
            a(f"s_branch {D}")

    def split_pair(self, dst, c, tmp):
        return [f"v_cvt_pk_bf16_f32 v{dst}, v{c}, v{c}", f"v_and_b32 v{tmp}, 0xffff0000, v{dst}",
                f"v_sub_f32 v{tmp}, v{c}, v{tmp}", f"v_cvt_pk_bf16_f32 v{dst+1}, v{tmp}, v{tmp}"]

    def stats_ops(self, st, mu4, rstd, vare):
        L = []
        for k in (8, 4, 2, 1):
            for i in range(k):
                L.append(f"v_add_f32 v{st+i}, v{st+i}, v{st+i+k}")
        t0 = st + 3
        L.append(f"v_mov_b32 v{st+1}, v{st}")
        L.append(f"v_mov_b32 v{st+2}, {hex(f2u(1.0/512))}")
        L.append(f"v_permlane32_swap_b32 v{st}, v{st+1}")
        L.append(f"v_mul_f32 v{st}, {hex(f2u(-1.0/512))}, v{st}")
        L.append(f"v_mul_f32 v{t0}, v{st}, v{st}")
        L.append(f"v_fma_f32 v{vare}, v{st+1}, v{st+2}, -v{t0}")
        L.append(f"v_cvt_pk_bf16_f32 v{t0}, v{st}, v{st}")
        L.append(f"v_max_f32 v{vare}, 0, v{vare}")
        L.append(f"v_and_b32 v{t0}, 0xffff0000, v{t0}")
        L.append(f"v_add_f32 v{vare}, {hex(f2u(1e-5))}, v{vare}")
        L.append(f"v_sub_f32 v{t0}, v{st}, v{t0}")
        L.append(f"v_rsq_f32 v{rstd}, v{vare}")
        for i in range(4): L.append(f"v_cvt_pk_bf16_f32 v{mu4+i}, v{st}, v{t0}")
        return L

    def spread(self, items, lo, hi, fill):
        tot = sum(map(cost, fill)); n = hi - lo; k = 0; acc = 0
        for m in range(n):
            while k < len(fill) and (acc + cost(fill[k]) / 2 <= tot * (m + 1) / n or m == n - 1):
                items[lo + m].setdefault("post", []).append(fill[k]); acc += cost(fill[k]); k += 1

    def stream_begin(self, items, D, ring):
        self.S = dict(items=items, D=D, issued=0)
        rd = [i for i in range(len(items)) if items[i].get("read")]
        self.S.update(rd=rd, slot={i: ring + 4 * (k % D) for k, i in enumerate(rd)}, pos={i: k for k, i in enumerate(rd)})
        self._try(D, 0)
    def _try(self, limit, consumed):
        S = self.S; items, rd = S["items"], S["rd"]
        while S["issued"] < min(limit, len(rd)):
            i = rd[S["issued"]]
            if items[i].get("bar"):
                if S["issued"] - consumed > S["D"] // 2: return
                self.wait(ds="all")
                self.a("s_barrier")
                items[i]["bar"] = False
            va, off = items[i]["read"]
            self.ds(f"ds_read_b128 {vr(S['slot'][i],4)}, v{va} offset:{off}", ("rd", S["issued"]))
            S["issued"] += 1
    def stream_run(self, pair=2):
        S = self.S; items = S["items"]
        for i, it in enumerate(items):
            self.emit(it.get("pre", []))
            dtag = None
            if it.get("read"):
                k = S["pos"][i]
                if k >= S["issued"]: self._try(k + 1, k)
                if ("rd", k) in self.dq: dtag = ("rd", min(k + pair, S["issued"]) - 1)
            self.wait(vm=it.get("vm"), ds=dtag)
            self.a(it["mfma"](S["slot"].get(i)))
            if it.get("read"): self._try(k + 1 + S["D"], k + 1)
            self.emit(it.get("post", []))

    @staticmethod
    def ramp(seq, nsteps, n0, wd):
        init, per, k = [], {}, 0
        lead = lambda step: sum(1 for q, _ in seq[:k] if q > step)
        while k < min(n0, len(seq)): init.append(seq[k][1]); k += 1
        for st in range(nsteps):
            n = 0
            while k < len(seq) and (seq[k][0] <= st + 1 or (n < 2 and lead(st) < wd)):
                per.setdefault(st, []).append(seq[k][1]); k += 1; n += 1
        assert k == len(seq)
        return init, per

    def layer0(self, fn):
        a = self.a
        L = a.newlabel("l0")
        a(f"s_cmp_lg_u32 s{sLAY}, 0")
        a(f"s_cbranch_scc1 {L}")
        vq, dq = list(self.vq), list(self.dq)
        fn()
        self.vq, self.dq = vq, dq
        a.label(L)

    def entry(self):
        a = self.a
        a(f"s_getpc_b64 s[{sPC}:{sPC+1}]")
        a.label("L_pc")
        a("s_load_dwordx16 s[20:35], s[0:1], 0")
        a("v_lshrrev_b32 v2, 5, v0")
        if self.remap: a(f"s_and_b32 s{sJ}, s2, 31")
        else: a(f"s_lshr_b32 s{sJ}, s2, 3")
        a(f"v_lshl_add_u32 v2, s{sJ}, 4, v2")
        a("v_lshlrev_b32 v2, 7, v2")
        a("v_min_u32 v2, L_end-L_pc-4, v2")
        a(f"global_load_dword v14, v2, s[{sPC}:{sPC+1}]")
        a("s_load_dwordx4 s[36:39], s[0:1], 64")
        a("s_cmp_ge_u32 s2, 256")
        a("s_cbranch_scc1 L_exit")
        if self.stamps or "hold" in self.opt:
            a(f"s_memtime s[{sE0}:{sE0+1}]")
            a(f"s_memrealtime s[{sE1}:{sE1+1}]")
        if self.remap: a(f"s_lshr_b32 s{sG}, s2, 5")
        else: a(f"s_and_b32 s{sG}, s2, 7")
        a("v_lshrrev_b32 v1, 6, v0")
        a("v_and_b32 v0, 63, v0")
        a(f"v_readfirstlane_b32 s{sW}, v1")
        a("v_lshlrev_b32 v1, 4, v0")
        a("v_lshrrev_b32 v4, 3, v0")
        a("v_and_b32 v5, 0x70, v1")
        a("v_lshl_add_u32 v6, v4, 10, v5")
        self.sx(sT2, 0, (sG, 256 * 1024), (sJ, 64 * 1024, 0, 3), (sW, 8 * 1024))
        a(f"s_lshr_b32 s{sT3}, s{sJ}, 2")
        a("s_waitcnt lgkmcnt(0)")
        self.srd(SA, P_X, 2 * MB)
        for i in range(8):
            if i: a(f"s_add_u32 s{sT3}, s{sT3}, 1")
            self.sx(sT4, 0, (sT3, 128, 0, 7), (sT2, 1))
            a(f"buffer_load_dwordx4 {vr(self.XR+4*i,4)}, v6, {SRD(SA)}, s{sT4} offen")
        self.srd(WS, P_WS, WS_USED)
        a(f"s_cmp_ge_u32 s{sW}, 4")
        a("s_cbranch_scc1 L_startL")

    XR = 128
    def layernorm(self):
        a = self.a
        X, F = self.XR, 160
        a.label("L_ln")
        for i in range(32):
            a(f"v_lshlrev_b32 v{F+2*i}, 16, v{X+i}")
            a(f"v_and_b32 v{F+2*i+1}, 0xffff0000, v{X+i}")
            if i == 0: a(f"v_pk_mul_f32 v[28:29], {vr(F,2)}, {vr(F,2)}")
            else:
                a(f"v_pk_add_f32 v[26:27], {vr(F+2*i,2)}, {vr(F,2) if i == 1 else 'v[26:27]'}")
                a(f"v_pk_fma_f32 v[28:29], {vr(F+2*i,2)}, {vr(F+2*i,2)}, v[28:29]")
        a("v_add_f32 v26, v26, v27")
        a("v_add_f32 v28, v28, v29")
        for m in ("quad_perm:[1,0,3,2]", "quad_perm:[2,3,0,1]", "row_half_mirror"):
            a(f"v_add_f32_dpp v26, v26, v26 {m} row_mask:0xf bank_mask:0xf")
            a(f"v_add_f32_dpp v28, v28, v28 {m} row_mask:0xf bank_mask:0xf")
        a(f"v_mul_f32 v26, {hex(f2u(-1.0/512))}, v26")
        a(f"v_mul_f32 v28, {hex(f2u(1.0/512))}, v28")
        a("v_fma_f32 v28, -v26, v26, v28")
        a("v_max_f32 v28, 0, v28")
        a(f"v_add_f32 v28, {hex(f2u(1e-5))}, v28")
        a("v_rsq_f32 v28, v28")
        a("v_mul_f32 v26, v26, v28")
        for i in range(32):
            a(f"v_pk_fma_f32 {vr(F+2*i,2)}, {vr(F+2*i,2)}, v[28:29], v[26:27] op_sel_hi:[1,0,0]")
            a(f"v_cvt_pk_bf16_f32 v{X+i}, v{F+2*i}, v{F+2*i+1}")
            if i % 4 == 3: a(f"ds_write_b128 v{224+i//4}, {vr(X+i-3,4)}")
        a(f"s_cmp_lg_u32 s{sROLE}, 0")
        a("s_cbranch_scc1 L_lnL")
    def ln_addr(self):
        a = self.a
        a("v_lshlrev_b32 v6, 4, v4")
        a("v_xor_b32 v6, v6, v5")
        a("v_lshl_add_u32 v6, v5, 5, v6")
        self.sx(sT0, 0, (sW, 32768, 2), (sW, 128, 0, 3))
        a(f"v_add_u32 v6, s{sT0}, v6")
        self.sx(sT3, 0, (sJ, 1, 2), (sJ, 6, 0, 3))
        for i in range(8):
            if i: a(f"s_add_u32 s{sT3}, s{sT3}, 1")
            self.sx(sT0, 0, (sT3, 4096, 0, 7))
            a(f"v_add_u32 v{224+i}, s{sT0}, v6")

    def entry_stamp(self):
        if not self.stamps: return
        a = self.a
        a(f"s_lshl_b32 s{sTSI}, s2, 3")
        self.sx(sTSI, TSB, (sTSI, 1024), (sW, 1024))
        a(f"v_mov_b32 v18, s{sE0}")
        a(f"v_mov_b32 v19, s{sE1}")
        a("s_mov_b64 exec, 1")
        self.vm(f"buffer_store_dwordx2 v[18:19], off, {SRD(WS)}, s{sTSI}")
        a("s_mov_b64 exec, -1")
        a(f"s_add_u32 s{sTSI}, s{sTSI}, 8")
        self.seq.append("entry")

    def consts(self):
        a = self.a
        a(f"s_mov_b32 s{sLAY}, 0")
        a(f"s_mov_b32 s{sSLOW}, 0")
        a(f"s_mov_b32 s{sCODE}, 0")
        a(f"s_mov_b32 s{sTMO}, 100000")
        a(f"s_mov_b32 s{sHI}, 0")
        a(f"s_mov_b32 s{sHI+1}, -1")
        a(f"s_mov_b32 s{sN16}, 0xffff0000")
        a(f"s_mov_b32 s{sN16+1}, 0xffff0000")
        self.sx(sFG, FL, (sG, FL_STR))
        a(f"s_mov_b32 s{sFB}, s{sFG}")
        self.sx(sMYF, 0, (sJ, 32), (sW, 4), (sFG, 1))
        self.sx(sKVH, KVG, (sJ, 131072))

    def flag_watch(self, r, t, layer):
        m = 1 if layer else 3
        return [f"v_bfe_u32 v{r}, v0, 2, 3", f"v_lshlrev_b32 v{r}, 14, v{r}", f"v_and_b32 v{t}, {m}, v0", f"v_lshl_add_u32 v{r}, v{t}, 7, v{r}",
                lambda: self.sx(sKVA, FL + F_KV + 4096 * layer, (sJ, 128, 0, 31 - m), (sJ, 4, 0, m))]

    def wtr_addr(self, r, t, hp_terms, perm):
        a = self.a
        self.sx(sT0, 0, *hp_terms)
        a(f"v_bfe_u32 v{r}, v0, 3, 1")
        a(f"v_lshlrev_b32 v{r}, 6, v{r}")
        a(f"v_xor_b32 v{r}, s{sT0}, v{r}")
        a(f"v_and_b32 v{t}, 3, v0")
        a(f"v_lshl_add_u32 v{r}, v{t}, 3, v{r}")
        a(f"v_bfe_u32 v{t}, v0, 4, 1")
        a(f"v_lshl_add_u32 v{r}, v{t}, 5, v{r}")
        a(f"v_bfe_u32 v{t}, v0, 2, 2")
        a(f"v_lshl_add_u32 v{r}, v{t}, 7, v{r}")
        a(f"v_lshrrev_b32 v{t}, 5, v0")
        a(f"v_mul_u32_u24 v{t}, {512 if perm else 3072}, v{t}")
        a(f"v_add_u32 v{r}, v{r}, v{t}")

    QF, KA, VA0, VA1, IDX, Q2, KM, FA = 8, 16, 17, 20, 21, 22, 24, 25
    S0, S1, CC, OO, KF, VF = 32, 48, (64, 80), (96, 112), 128, 136
    AQ, AK, AV = 32, 48, 64

    def attn_setup(self, layer):
        f = ["v_and_b32 v2, 0x330, v1", "v_bfe_u32 v30, v0, 2, 1", "v_lshl_add_u32 v2, v30, 7, v2",
             "v_bfe_u32 v30, v0, 3, 1", "v_lshl_add_u32 v2, v30, 6, v2",
             "v_lshrrev_b32 v29, 5, v0", "v_and_b32 v30, 0xf0, v1", "v_lshl_add_u32 v30, v29, 8, v30",
             "v_bfe_u32 v28, v0, 4, 1", "v_lshl_add_u32 v3, v28, 17, v30", "v_lshl_add_u32 v4, v28, 11, v30",
             f"s_lshl_b32 s{sT0}, s{sW}, 3", f"s_add_u32 s{sT0}, s{sT0}, {KSL}", f"v_lshl_add_u32 v5, v29, 2, s{sT0}",
             f"v_add_u32 v{self.KA}, {KVB}, v1",
             "v_and_b32 v31, 15, v0", "v_min_u32 v31, 1, v31", f"v_mov_b32 v28, {KVB+2048}",
             "v_lshl_add_u32 v28, v31, 16, v28",
             f"v_add_u32 v30, {KVB+1024}, v30", f"v_cndmask_b32 v{self.VA0}, v30, v28, s[{sN16}:{sN16+1}]",
             "v_add_u32 v30, 512, v30", f"v_cndmask_b32 v{self.VA1}, v30, v28, s[{sN16}:{sN16+1}]",
             f"v_mov_b32 v{self.IDX}, 0xdddddddd"]
        f += self.flag_watch(self.FA, 31, layer)
        f += [f"v_mov_b32 v{self.OO[0]+i}, 0" for i in range(32)]
        return f

    def qkv1(self):
        a = self.a
        a(f"s_mov_b32 s{sROLE}, 0")
        self.vq = ["x"]
        self.entry_stamp()
        self.stamp("issued")
        self.consts()
        a(f"s_lshr_b32 s{sKH}, s{sW}, 1")
        self.sx(sTL, 0, (sJ, 2, 3), (sW, 1, 0, 1))
        self.sx(sT0, 0, (sJ, 2, 0, 7), (sKH, 1))
        self.sx(sT1, 0, (sG, 8), (sTL, 1))
        self.sx(sKT, XF, (sT1, 32768), (sT0, 2048))
        self.sx(sKS, ST, (sT1, 4096), (sT0, 1024, 2), (sT0, 4, 0, 3))
        self.sx(sOS, HF, (sT1, HT), (sKH, 16384))
        self.sx(sHS, HF, (sT1, HT), (sKH, 8192))
        self.sx(sOUT, 0, (sT1, 32768), (sT0, 64))
        self.sx(sT1, 0, (sG, 8), (sJ, 4, 4), (sW, 1))
        self.sx(sUX, XF, (sT1, 32768))
        self.sx(sUS, ST, (sT1, 4096))
        self.sx(sUC, CS13, (sJ, 7 * 1024, 0, 15))
        self.sx(sHD, HF, (sT1, HT), (sJ, 1024, 0, 15))
        self.sx(sT1, 0, (sG, 8), (sJ, 4, 0, 1), (sW, 1))
        self.sx(sQX, XF, (sT1, 32768))
        self.sx(sQS, ST, (sT1, 4096))
        self.sx(sOD, HF, (sG, 8 * HT), (sW, 2 * HT), (sJ, 1024))
        self.sx(sT1, 0, (sG, 8), (sJ, 2, 0, 3), (sW, 1, 0, 1))
        self.sx(sT0, 0, (sJ, 1, 0, 28), (sW, 1, 0, 2))
        self.sx(sKG, KVG, (sT0, 131072), (sT1, 2048))
        self.sx(sQL, HF, (sT1, HT), (sT0, 1024))
        self.sx(sKL, 32768, (sT0, 1024), (sQL, 1))
        self.ln_addr()
        self.sx(sT1, 0, (sW, 32768, 0, 1))
        a("v_lshrrev_b32 v6, 5, v0")
        for k in range(4):
            a(f"v_lshl_add_u32 v7, v6, 4, {32*k}" if k < 3 else "v_lshlrev_b32 v7, 4, v6")
            if k == 3: a("v_add_u32 v7, 96, v7")
            a("v_xor_b32 v7, v7, v1")
            a(f"v_add_u32 v{8+k}, s{sT1}, v7")
        self.wtr_addr(12, 13, [(sW, 64, 1)], False)
        a(f"v_add_u32 v12, {WRING}, v12")
        a(f"v_add_u32 v13, {2*WSTG}, v12")
        self.emit(self.attn_setup(0))
        self.wait(vm="x")
        self.stamp("x landed")
        self.layernorm()
        self.stamp("ln done")
        R = 128
        def reads(k):
            b = R + 16 * (k % 3); st = (k >> 2) & 3
            L = [f"ds_read_b128 {vr(b,4)}, v{8+(k&3)} offset:{k*1024}"]
            for part in range(3):
                for h2 in range(2):
                    L.append(f"ds_read_b64_tr_b16 {vr(b+4+4*part+2*h2,2)}, v{12+(st>>1)} offset:{(st&1)*WSTG+(k&3)*6144+part*1024+h2*512}")
            return L
        a("s_waitcnt lgkmcnt(0)")
        a("s_barrier")
        self.emit(reads(0) + reads(1))
        for k in range(32):
            b = R + 16 * (k % 3)
            nx = reads(k + 2) if k + 2 < 32 else []
            bar = (k & 3) == 2 and nx
            a(f"s_waitcnt lgkmcnt({7 if k < 31 else 0})")
            a(f"v_mfma_f32_32x32x16_bf16 {vr(self.AK,16)}, {vr(b+8,4)}, {vr(b,4)}, {vr(self.AK,16) if k else '0'}")
            if bar:
                a("s_waitcnt lgkmcnt(0)")
                a("s_barrier")
            self.emit(nx[:3])
            a(f"v_mfma_f32_32x32x16_bf16 {vr(self.AV,16)}, {vr(b,4)}, {vr(b+12,4)}, {vr(self.AV,16) if k else '0'}")
            self.emit(nx[3:5])
            a(f"v_mfma_f32_32x32x16_bf16 {vr(self.AQ,16)}, {vr(b+4,4)}, {vr(b,4)}, {vr(self.AQ,16) if k else '0'}")
            self.emit(nx[5:])
        a("s_barrier")
        self.stamp("qkv main")
        a(f"v_mov_b32 v6, {hex(f2u(SIG))}")
        a(f"v_mov_b32 v30, {MODE}")
        a("ds_read_b32 v30, v30")
        self.qkv_epilogue(0, None, 6, None)
        if self.dg:
            self.wait(vm="all", ds="all")
            a("s_barrier")
        self.stamp("qkv done")

    def qkv_epilogue(self, layer, RS, RQ, RR):
        a = self.a
        AQ, AK, AV, T = self.AQ, self.AK, self.AV, 152
        sc = lambda b, r: [a(f"v_pk_mul_f32 {vr(b+i,2)}, {vr(b+i,2)}, {vr(r,2)} op_sel_hi:[1,0]") for i in range(0, 16, 2)]
        cv = lambda b, d: [a(f"v_cvt_pk_bf16_f32 v{d+i}, v{b+2*i}, v{b+2*i+1}") for i in range(8)]
        loc = layer or not self.dg
        if layer: sc(AK, RS)
        cv(AK, T)
        if loc:
            for u in range(2): self.vm(f"buffer_store_dwordx4 {vr(T+4*u,4)}, v2, {SRD(WS)}, s{sKL} offen offset:{2048*u}")
        else: self.kv_global((0, 1))
        if layer:
            for i in range(0, 16, 2): a(f"v_pk_mul_f32 {vr(AV+i,2)}, {vr(AV+i,2)}, {vr(RR+i,2)}")
        cv(AV, T + 8)
        if loc:
            for u in range(2): self.vm(f"buffer_store_dwordx4 {vr(T+8+4*u,4)}, v4, {SRD(WS)}, s{sKL} offen offset:{1024+512*u}")
        else: self.kv_global((2, 3))
        sc(AQ, RQ)
        cv(AQ, T + 16)
        for u in range(2): self.vm(f"buffer_store_dwordx4 {vr(T+16+4*u,4)}, v1, {SRD(WS)}, s{sQL} offen offset:{1024*u} {'' if loc else 'sc1'}", "loc")
        if loc and self.o("gl", 1) == 0: self.kv_global()
        if layer == 0:
            a("s_waitcnt lgkmcnt(0)")
            a(f"v_readfirstlane_b32 s{sSLOW}, v30")
            a(f"s_lshl_b32 s{sT0}, s{sSLOW}, 10")
            a(f"s_add_u32 s{sFB}, s{sFB}, s{sT0}")
            a(f"s_add_u32 s{sMYF}, s{sMYF}, s{sT0}")
        for h in range(2):
            a(f"v_pk_mul_f32 {vr(26+2*h,2)}, {vr(AK+8*h,2)}, {vr(AK+8*h,2)}")
        for i in (2, 4, 6):
            for h in range(2): a(f"v_pk_fma_f32 {vr(26+2*h,2)}, {vr(AK+8*h+i,2)}, {vr(AK+8*h+i,2)}, {vr(26+2*h,2)}")
        a("v_add_f32 v26, v26, v27")
        a("v_add_f32 v28, v28, v29")
        a("v_permlane32_swap_b32 v26, v28")
        a("v_add_f32 v26, v26, v28")
        if loc:
            self.publish(27, C_Q, tag="loc")
            if self.o("gl", 1) == 1: self.kv_global()
        self.emit(self.wave_umax(26, 28))
        a("v_or_b32 v26, 1, v26")
        self.ds("ds_write_b32 v5, v26")

    def kv_global(self, which=(0, 1, 2, 3)):
        T = 152
        for k in which:
            if k == 1: self.a(f"s_add_u32 s{sT1}, s{sKG}, 131072")
            if k < 2: self.vm(f"buffer_store_dwordx4 {vr(T+4*k,4)}, v2, {SRD(WS)}, s{sT1 if k else sKG} offen sc1")
            else: self.vm(f"buffer_store_dwordx4 {vr(T+4*k,4)}, v3, {SRD(WS)}, s{sKG} offen offset:{512*k} sc1")

    def wave_umax(self, r, t):
        L = [f"v_max_u32_dpp v{r}, v{r}, v{r} {m} row_mask:0xf bank_mask:0xf"
             for m in ("quad_perm:[1,0,3,2]", "quad_perm:[2,3,0,1]", "row_half_mirror", "row_mirror")]
        return L + [f"v_mov_b32 v{t}, v{r}", f"v_permlane16_swap_b32 v{r}, v{t}", f"v_max_u32 v{r}, v{r}, v{t}"]

    def qkv2(self):
        a = self.a
        X, NX, WD = 128, 12, self.o("qw", 10)
        AQ, AK, AV = self.AQ, self.AK, self.AV
        RING, STT, RR, MU, RS, RQ = 176, 208, 224, 240, 6, 244
        self.sx(sT1, 0, (sJ, 4, 0, 1), (sW, 1))
        self.emit(self.x_flag_addr(14, 15, sT1))
        a(f"v_add_u32 v12, {SLICE-3072}, v1")
        a(f"v_add_u32 v13, {SLICE+49152}, v1")
        self.publish(11, C_X2)
        self.stamp("down done")
        self.sx(sT1, 0, (sT1, 1), (sG, 8))
        self.sx(sKG, KVG + KV_STR, (sJ, 131072, 0, 30), (sT1, 2048))
        self.sx(sQL, HF, (sT1, HT), (sJ, 1024, 0, 30))
        self.sx(sKL, 32768, (sJ, 1024, 0, 30), (sQL, 1))
        a(f"s_add_u32 s{sKVH}, s{sKVH}, {KV_STR}")
        self.dq.clear(); self.forget()
        def xl(k):
            def f():
                if k % 4 == 0:
                    a(f"s_lshl_b32 s{sT5}, s{sJ}, 1")
                    a(f"s_add_u32 s{sT5}, s{sT5}, {k >> 2}")
                    self.sx(sT5, 0, (sT5, 4096, 0, 7), (sQX, 1))
                self.vm(f"buffer_load_dwordx4 {vr(X+4*(k%NX),4)}, v1, {SRD(WS)}, s{sT5} offen offset:{(k&3)*1024} sc1", ("x", k))
            return f
        seq = [(k, xl(k)) for k in range(32)]
        for q in range(4): seq.insert(8 + 2 * q, (8 + q, self.fload(STT + 4 * q, sQS, q * 1024, "st", tmp=sT4)))
        init, per = self.ramp(seq, 32, self.o("q0", 4), WD)
        items = []
        def trio(rd, xr, z):
            w = lambda acc: (lambda r: f"v_mfma_f32_32x32x16_bf16 {vr(acc,16)}, {vr(r,4)}, {xr}, {'0' if z else vr(acc,16)}")
            return [dict(read=rd(1), mfma=w(AK)),
                    dict(read=rd(2), mfma=lambda r: f"v_mfma_f32_32x32x16_bf16 {vr(AV,16)}, {xr}, {vr(r,4)}, {'0' if z else vr(AV,16)}"),
                    dict(read=rd(0), mfma=w(AQ))]
        for k in range(32):
            t3 = trio(lambda p, k=k: (12, 3072 + k * 3072 + p * 1024) if k < 16 else (13, (k - 16) * 3072 + p * 1024), vr(X + 4 * (k % NX), 4), k == 0)
            t3[0]["vm"] = ("x", k)
            for c in range(2): t3[c]["post"] = list(per.get(k, [])[c::2])
            items += t3
            if k == 24: items += trio(lambda p: (12, p * 1024), vr(MU, 4), False)
        items[0]["bar"] = True
        st = [lambda: self.wait(vm="st")] + self.stats_ops(STT, MU, RS, RQ)
        st += [f"s_lshl_b32 s{sT0}, s{sW}, 7", "v_and_b32 v26, 31, v0", f"v_lshl_add_u32 v26, v26, 2, s{sT0}",
               lambda: self.ds(f"ds_write_b32 v26, v{RS}"),
               "v_lshrrev_b32 v27, 5, v0", f"v_lshl_add_u32 v27, v27, 4, s{sT0}", f"v_mul_f32 v{RQ}, {hex(f2u(SIG))}, v{RS}"]
        st += [lambda i=i: self.ds(f"ds_read_b128 {vr(RR+4*i,4)}, v27 offset:{32*i}") for i in range(4)]
        self.spread(items, 40, 72, st)
        self.spread(items, 4, 40, self.attn_setup(1))
        self.stream_begin(items, 8, RING)
        self.poll(14, 15, C_X2)
        self.stamp("x2 polled")
        self.emit(init)
        self.stream_run()
        a("s_barrier")
        self.stamp("qkv main")
        a(f"s_mov_b32 s{sLAY}, 1")
        a(f"s_mov_b32 s{sCODE}, 16")
        self.qkv_epilogue(1, RS, RQ, RR)
        self.stamp("qkv done")
        a("s_branch L_attn")

    def attention(self):
        a = self.a
        S = [self.S0, self.S1]; K = [self.KF, self.KF + 4]; V = [self.VF, self.VF + 8]
        Q = [self.QF, self.QF + 4]; C, O, IDX, Q2 = self.CC, self.OO, self.IDX, self.Q2
        off = lambda t: ((t >> 3) & 1) * SLOT + (t & 7) * TSTR
        kread = lambda t: f"ds_read_b128 {vr(K[t&1],4)}, v{self.KA} offset:{off(t)}"
        vread = lambda t, u: f"ds_read_b128 {vr(V[t&1]+4*u,4)}, v{self.VA1 if u else self.VA0} offset:{off(t)}"
        qk = lambda t, q: f"v_mfma_f32_32x32x16_bf16 {vr(S[q],16)}, {vr(K[t&1],4)}, {vr(Q[q],4)}, {vr(C[q],16)}"
        pv = lambda t, q, u: f"v_smfmac_f32_32x32x32_bf16 {vr(O[q],16)}, {vr(V[t&1]+4*u,4)}, {vr(S[q]+8*u,8)}, v{IDX}"
        ast = self.o("ast", 0)
        a.label("L_attn")
        self.vq.clear(); self.dq.clear(); self.forget()
        a(f"s_lshl_b32 s{sT0}, s{sW}, 11")
        a(f"v_add_u32 v26, s{sT0}, v1")
        a("s_waitcnt lgkmcnt(0)")
        a("s_barrier")
        self.stamp("A0")
        for q in range(2): a(f"ds_read_b128 {vr(Q[q],4)}, v26 offset:{QA+1024*q}")
        a(kread(0)); a(vread(0, 0)); a(vread(0, 1))
        assert self.o("gl", 1) < 2 or not self.dg
        if self.o("gl", 1) == 2: self.kv_global()
        a("s_waitcnt lgkmcnt(3)")
        for i in range(4):
            for q in range(2): a(f"v_dot2_f32_bf16 v{Q2+q}, v{Q[q]+i}, v{Q[q]+i}, {'v%d' % (Q2+q) if i else '0'}")
        a("s_nop 2")
        a(f"v_permlane32_swap_b32 v{Q2}, v{Q2+1}")
        a(f"v_add_f32 v{Q2}, v{Q2}, v{Q2+1}")
        a(f"v_mul_f32 v26, {hex(f2u(-1.0/SIG))}, v{Q2}")
        a(f"v_max_f32 v26, {hex(f2u(-TBOUND))}, v26")
        a("v_mov_b32 v28, v26")
        a("v_permlane32_swap_b32 v26, v28")
        for i in range(0, 16, 2): a(f"v_pk_mov_b32 {vr(C[0]+i,2)}, v[26:27], v[26:27] op_sel:[0,0]")
        a("s_waitcnt lgkmcnt(0)")
        a(qk(0, 0))
        for i in range(0, 16, 2): a(f"v_pk_mov_b32 {vr(C[1]+i,2)}, v[28:29], v[28:29] op_sel:[0,0]")
        jobs = {}
        def job(t, f): jobs.setdefault(t, []).append(f)
        def e1():
            a("s_waitcnt vmcnt(0)")
            a("s_barrier")
        job(self.o("e1t", 0), e1)
        def res():
            L, D = a.newlabel("rs"), a.newlabel("rd")
            a(f"s_cmp_eq_u32 s{sLAY}, 0")
            a(f"s_cbranch_scc1 {L}")
            for u in range(2): a(f"buffer_load_dwordx4 {vr(192+4*u,4)}, v1, {SRD(WS)}, s{sKT} offen offset:{1024*u} sc1")
            self.tails2.append((L, D))
            a.label(D)
        job(7, res)
        job(56, lambda: a(f"buffer_load_dword v{self.KM}, v{self.FA}, {SRD(WS)}, s{sKVA} offen sc1"))
        def check():
            a("s_waitcnt vmcnt(0)"); self.vq.clear()
            self.emit(self.wave_umax(self.KM, 26))
            a(f"v_mul_f32 v26, v{Q2}, v{self.KM}")
            a(f"v_cmp_nge_f32 s[{sBAD}:{sBAD+1}], s{sT0}, v26")
        job(62, lambda: a(f"s_mov_b32 s{sT0}, {hex(f2u(-1.0 if self.force_fallback else TBOUND*TBOUND))}"))
        job(62, check)
        p1, pq, p0 = self.o("p1", 2), self.o("pqk", 5), self.o("p0", 11)
        def unit(t, q):
            c = S[q]
            tp, qp = (t, 0) if q else (t - 1, 1)
            tn, qn = (t + 1, 0) if q else (t, 1)
            nxt = t < 63 and q == 0
            for i in range(16):
                if i == p1:
                    if tp >= 0: a(pv(tp, qp, 1))
                    if nxt:
                        if (t & 7) == 7:
                            if ast: self.dstamp(f"a{(t+1)>>3} arr", 204)
                            a("s_barrier")
                            if ast: self.dstamp(f"a{(t+1)>>3} bar", 204)
                        a(kread(t + 1))
                    if q: a("s_waitcnt lgkmcnt(0)")
                if i == pq:
                    if tn < 64: a(qk(tn, qn))
                    if nxt: a(vread(t + 1, 0))
                if i == p0:
                    a(pv(t, q, 0))
                    if nxt: a(vread(t + 1, 1))
                    if q:
                        for f in jobs.get(t, []): f()
                a(f"v_exp_f32 v{c+i}, v{c+i}")
        roll = self.o("roll", 1) and not ast
        a("@align")
        for t in range(64):
            if roll and t == 8:
                a(f"s_mov_b32 s{sT5}, 3")
                a.label("L_aloop")
            if roll and 24 <= t < 56: continue
            for q in range(2): unit(t, q)
            if roll and t == 23:
                a(f"s_sub_u32 s{sT5}, s{sT5}, 1")
                a(f"s_cmp_lg_u32 s{sT5}, 0")
                a("s_cbranch_scc1 L_aloop")
        a("@noalign")
        a(pv(63, 1, 1))
        a(f"s_cmp_lg_u64 s[{sBAD}:{sBAD+1}], 0")
        a("s_cbranch_scc1 L_fallback")
        a.label("L_attn_fin")
        if ast: self.dflush()
        self.stamp("attn loop")
        a(f"s_add_u32 s{sT0}, s{sOD}, {HT}")
        for q in range(2):
            a(f"v_mov_b32 v26, v{O[q]+8}")
            a(f"v_permlane32_swap_b32 v26, v{O[q]+8}")
            a("v_rcp_f32 v26, v26")
            for i in range(0, 8, 2): a(f"v_pk_mul_f32 {vr(O[q]+i,2)}, {vr(O[q]+i,2)}, v[26:27] op_sel_hi:[1,0]")
            for i in range(4): a(f"v_cvt_pk_bf16_f32 v{244+4*q+i}, v{O[q]+2*i}, v{O[q]+1+2*i}")
            self.vm(f"buffer_store_dwordx4 {vr(244+4*q,4)}, v1, {SRD(WS)}, s{sT0 if q else sOD} offen", "o")

    def res_tails(self):
        a = self.a
        for L, D in self.tails2:
            a.label(L)
            a("v_and_b32 v26, 31, v0")
            a("v_lshlrev_b32 v26, 10, v26")
            a("v_lshrrev_b32 v28, 5, v0")
            a("v_lshl_add_u32 v26, v28, 3, v26")
            for i in range(4): a(f"buffer_load_dwordx2 {vr(192+2*i,2)}, v26, {SRD(SA)}, s{sOUT} offen offset:{16*i}")
            a(f"s_branch {D}")

    def fallback(self):
        a = self.a
        S, K, V, IDX = self.S0, self.KF, self.VF, self.IDX
        a.label("L_fallback")
        a(f"s_add_u32 s{sT3}, s{sKVH}, 131072")
        a(f"v_subrev_u32 v28, {KVB}, v{self.VA0}")
        a("s_nop 7")
        for i in range(8): a(f"v_mov_b32 v{V+i}, 0x3f803f80")
        for q in range(2):
            Q, C, O = self.QF + 4 * q, self.CC[q], self.OO[q]
            a(f"s_mov_b32 s{sT0}, s{sKVH}")
            a("v_mov_b32 v26, 0xff800000")
            a.label(f"L_fb1_{q}")
            a(f"buffer_load_dwordx4 {vr(K,4)}, v1, {SRD(WS)}, s{sT0} offen sc1")
            a("s_waitcnt vmcnt(0)")
            a(f"v_mfma_f32_32x32x16_bf16 {vr(S,16)}, {vr(K,4)}, {vr(Q,4)}, 0")
            for i in range(8): a(f"v_max3_f32 v26, v{S+2*i}, v{S+2*i+1}, v26")
            a(f"s_add_u32 s{sT0}, s{sT0}, 2048")
            a(f"s_cmp_lt_u32 s{sT0}, s{sT3}")
            a(f"s_cbranch_scc1 L_fb1_{q}")
            a("v_mov_b32 v27, v26")
            a("v_permlane32_swap_b32 v26, v27")
            a("v_max_f32 v26, v26, v27")
            for i in range(16): a(f"v_sub_f32 v{C+i}, 0, v26")
            for i in range(16): a(f"v_mov_b32 v{O+i}, 0")
            a(f"s_mov_b32 s{sT0}, s{sKVH}")
            a.label(f"L_fb2_{q}")
            a(f"buffer_load_dwordx4 {vr(K,4)}, v1, {SRD(WS)}, s{sT0} offen sc1")
            a(f"s_not_b64 exec, s[{sN16}:{sN16+1}]")
            a(f"buffer_load_dwordx4 {vr(V,4)}, v28, {SRD(WS)}, s{sT0} offen sc1")
            a(f"buffer_load_dwordx4 {vr(V+4,4)}, v28, {SRD(WS)}, s{sT0} offen offset:512 sc1")
            a("s_mov_b64 exec, -1")
            a("s_waitcnt vmcnt(0)")
            a(f"v_mfma_f32_32x32x16_bf16 {vr(S,16)}, {vr(K,4)}, {vr(Q,4)}, {vr(C,16)}")
            for i in range(16): a(f"v_exp_f32 v{S+i}, v{S+i}")
            for u in range(2):
                a(f"v_smfmac_f32_32x32x32_bf16 {vr(O,16)}, {vr(V+4*u,4)}, {vr(S+8*u,8)}, v{IDX}")
            a("s_nop 11")
            a(f"s_add_u32 s{sT0}, s{sT0}, 2048")
            a(f"s_cmp_lt_u32 s{sT0}, s{sT3}")
            a(f"s_cbranch_scc1 L_fb2_{q}")
        a("s_branch L_attn_fin")

    RW, HOLD = 24, 152
    def lbar(self, nm, tag=None, ds=None):
        self.wait(vm=tag)
        if ds is not None: self.a(f"s_waitcnt lgkmcnt({ds})")
        on = nm[0] in self.opt.get("ls", "")
        if on: self.stamp(nm + " arr")
        self.a("s_barrier")
        if on: self.stamp(nm)
    def only_w4(self, fn, extra=None):
        a = self.a
        L = a.newlabel("w4")
        q = list(self.vq)
        if extra is None: a(f"s_cmp_lg_u32 s{sL}, 0")
        else: a(f"s_or_b32 s{sT0}, s{sL}, s{extra}")
        a(f"s_cbranch_scc1 {L}")
        fn()
        a.label(L)
        self.vq = q
    def code_touch(self):
        self.vm(f"global_load_dword v14, v5, s[{sPC}:{sPC+1}]")
    def rload(self, slot, src, unit):
        b = self.RW + 16 * slot
        self.a(f"s_add_u32 s{sT7}, s{src}, {unit*16384}")
        for i in range(4): self.vm(f"buffer_load_dwordx4 {vr(b+4*i,4)}, v1, {SRD(WS)}, s{sT7} offen offset:{i*1024} {self.wpol}", ("r", slot))
    def lsync(self, n):
        a = self.a
        a(f"v_mov_b32 v8, {LSY}")
        a("v_mov_b32 v9, 1")
        a("s_mov_b64 exec, 1")
        a("ds_add_u32 v8, v9")
        def body():
            a("ds_read_b32 v9, v8")
            a("s_waitcnt lgkmcnt(0)")
            a(f"v_cmp_gt_u32 vcc, {4*n}, v9")
        self.spin(body)
        a("s_mov_b64 exec, -1")

    def start_loader(self):
        a = self.a
        a.label("L_startL")
        self.vq = ["x"]; self.dq.clear()
        a(f"s_mov_b32 s{sROLE}, 1")
        a("v_mul_u32_u24 v16, 3072, v4")
        a("v_lshlrev_b32 v8, 2, v0")
        a("v_and_b32 v8, 64, v8")
        a("v_xor_b32 v8, v8, v5")
        a("v_add_u32 v16, v16, v8")
        a(f"s_sub_u32 s{sL}, s{sW}, 4")
        self.sx(sQ, 0, (sL, 16 * 3072), (sJ, 128, 2))
        self.sx(sT4, WRING, (sL, 6144))
        a(f"s_lshl_b32 s{sL}, s{sL}, 12")
        self.srd(SB, P_WQKV, 512 * 3072)
        self.srd(DBG, P_DBG, 256)
        self.sx(sFG, FL, (sG, FL_STR))
        a(f"s_getreg_b32 s{sXCC}, hwreg(HW_REG_XCC_ID, 0, 4)")
        if self.force_slow: a(f"s_and_b32 s{sXCC}, s{sJ}, 1")
        a(f"s_or_b32 s{sXCC}, s{sXCC}, 16")
        def clear():
            for r in range(20, 24): a(f"v_mov_b32 v{r}, 0")
            a("v_lshrrev_b32 v8, 1, v0")
            a("v_lshlrev_b32 v8, 7, v8")
            a("v_and_b32 v9, 16, v1")
            a("v_add_u32 v8, v8, v9")
            a(f"s_add_u32 s{sT0}, s{sFG}, {F_KV}")
            a(f"s_add_u32 s{sT1}, s{sFG}, {F_KV+4096}")
            for o in (0, 1024): a(f"buffer_store_dwordx4 v[20:23], v1, {SRD(WS)}, s{sFG} offen offset:{o} sc1")
            for r in (sT0, sT1): a(f"buffer_store_dwordx4 v[20:23], v8, {SRD(WS)}, s{r} offen sc1")
        self.only_w4(clear, sJ)
        def stage(s):
            a(f"s_lshl_b32 s{sT5}, s{sJ}, 1")
            a(f"s_add_u32 s{sT5}, s{sT5}, {s}")
            self.sx(sT5, 0, (sT5, 64 * 3072, 0, 7), (sQ, 1))
            for pc in range(2):
                a(f"s_add_u32 m0, s{sT4}, {(s&3)*WSTG + pc*3072}")
                if pc: a(f"s_add_u32 s{sT5}, s{sT5}, {8*3072}")
                for part in range(3):
                    self.vm(f"buffer_load_dwordx4 v16, {SRD(SB)}, s{sT5} offen offset:{part*1024} lds", ("w", s))
        pre = self.o("wpre", 1); LA = self.o("la", 2)
        for s in range(pre): stage(s)
        self.entry_stamp()
        self.stamp("issued")
        self.consts()
        self.ln_addr()
        self.wtr_addr(17, 8, [(sJ, 64, 1, 1)], True)
        a(f"v_add_u32 v17, s{sT4}, v17")
        a(f"v_add_u32 v15, {2*WSTG}, v17")
        a("v_and_b32 v11, 28, v0")
        self.wait(vm="x")
        def ready():
            a(f"s_lshl_b32 s{sT0}, s{sG}, 2")
            a(f"v_mov_b32 v8, s{sXCC}")
            a("s_mov_b64 exec, 1")
            a(f"buffer_store_dword v8, off, {SRD(DBG)}, s{sT0} offset:{D_GRDY} sc1")
            a("s_mov_b64 exec, -1")
        self.only_w4(ready, sJ)
        mid = self.o("wmid", 2)
        for s in range(pre, mid): stage(s)
        a("s_branch L_ln")
        a.label("L_lnL")
        for s in range(mid, LA): stage(s)
        for s in range(8):
            self.wait(vm=("w", s))
            if s == 0: a("s_waitcnt lgkmcnt(0)")
            for part in range(3):
                for h2 in range(2):
                    a(f"ds_read_b64_tr_b16 {vr(self.HOLD+12*s+4*part+2*h2,2)}, v{15 if s & 2 else 17} offset:{(s&1)*WSTG+part*1024+h2*3072}")
            self.lbar(f"G{s}")
            if s == 1: self.vm(f"buffer_load_dword v13, v11, {SRD(DBG)}, 0 offen offset:{D_GRDY} sc1", "grdy")
            if s == 3: self.hello()
            if s + LA < 8:
                a("s_waitcnt lgkmcnt(6)")
                stage(s + LA)
            if s == 6:
                self.mode_look()
                if not self.dg: self.th(None)
        self.mode()
        self.sx(s13, PW13, (sJ, 7 * 32768, 0, 15), (sL, 1))
        self.sx(s2_, PW2, (sJ, 7 * 32768, 0, 7), (sL, 1))
        self.sx(sWOs, PWO, (sJ, 65536, 0, 7), (sL, 1))
        self.sx(sKVF, F_KV, (sJ, 128), (sFG, 1))

    def th(self, parts):
        a = self.a
        self.sx(sT0, HF, (sG, 8 * HT), (sJ, 4 * 7168), (sL, 7168, 12))
        if parts is None:
            a("v_min_u32 v8, 55, v0")
            a("v_lshlrev_b32 v8, 7, v8")
            self.vm(f"buffer_load_dword v14, v8, {SRD(WS)}, s{sT0} offen sc1")
        else:
            for p in parts:
                a(f"s_add_u32 s{sT1}, s{sT0}, {p*1024}")
                self.vm(f"buffer_load_dword v14, v1, {SRD(WS)}, s{sT1} offen sc1")
    def tx(self):
        a = self.a
        for x in ["v_lshrrev_b32 v8, 5, v0", "v_lshlrev_b32 v8, 15, v8", "v_bfe_u32 v9, v0, 2, 3", "v_lshl_add_u32 v8, v9, 7, v8"]: a(x)
        self.sx(sT0, XF, (sG, 8 * 32768), (sJ, 65536, 3), (sJ, 4096, 0, 7), (sL, 1, 2))
        self.vm(f"buffer_load_dword v14, v8, {SRD(WS)}, s{sT0} offen sc1")
        for x in ["v_lshrrev_b32 v8, 5, v0", "v_lshlrev_b32 v8, 12, v8", "v_lshl_add_u32 v8, v9, 7, v8"]: a(x)
        self.sx(sT0, ST, (sG, 8 * 4096), (sJ, 8192, 3), (sJ, 1024, 1, 3))
        self.vm(f"buffer_load_dword v14, v8, {SRD(WS)}, s{sT0} offen sc1")

    def after_e0(self, layer):
        a = self.a
        self.emit(self.flag_watch(10, 8, layer))
        a(f"s_mov_b64 s[{sRDY}:{sRDY+1}], 0")
        a(f"s_not_b64 s[{sLO}:{sLO+1}], s[{sHI}:{sHI+1}]")
        for r in range(20, 24): a(f"v_mov_b32 v{r}, 0x3f803f80")
        a("v_bfe_u32 v8, v0, 4, 1")
        a(f"v_mul_u32_u24 v8, {TSTR}, v8")
        a("v_lshrrev_b32 v9, 5, v0")
        a(f"v_mul_u32_u24 v9, {SLOT}, v9")
        self.sx(sT1, KVB + 2048, (sL, 1), (sL, 1, 7))
        a(f"v_add3_u32 v8, v8, v9, s{sT1}")
        a("v_and_b32 v12, 1, v0")
        if layer: self.sx(sT0, 0, (sJ, 32, 0, 30), (sL, 32, 13), (sL, 8, 12, 1))
        else: self.sx(sT0, 0, (sJ, 32, 0, 28), (sL, 32, 12), (sJ, 4, 0, 2))
        a(f"v_lshl_add_u32 v12, v12, 2, s{sT0}")
        self.lbar("E0", ds=0)
        a("ds_write_b128 v8, v[20:23]")

    def kv_flag(self, layer):
        a = self.a
        def f():
            a(f"v_mov_b32 v8, {KSL}")
            a("ds_read_b128 v[24:27], v8")
            a("ds_read_b128 v[28:31], v8 offset:16")
            a("s_waitcnt lgkmcnt(0)")
            a("v_max_u32 v24, v24, v26")
            a("v_max_u32 v25, v25, v27")
            a("v_max_u32 v26, v28, v30")
            a("v_max_u32 v27, v29, v31")
            if layer:
                a("v_max_u32 v24, v24, v26")
                a("v_max_u32 v25, v25, v27")
            a("s_mov_b64 exec, 1")
            a(f"buffer_store_dwordx{2 if layer else 4} {vr(24, 2 if layer else 4)}, off, {SRD(WS)}, s{sKVF} sc1")
            a("s_mov_b64 exec, -1")
        self.only_w4(f)

    def kv_need(self, s, layer):
        a = self.a
        L, D, N = a.newlabel("kvn"), a.newlabel("kvd"), a.newlabel("kvr")
        a(f"s_add_u32 s{sT0}, s{sG}, {s}")
        a(f"s_and_b32 s{sT0}, s{sT0}, 7")
        a(f"s_lshl_b32 s{sT1}, s{sT0}, 2")
        a.label(L)
        a(f"s_lshr_b32 s{sT2}, s{sRDY}, s{sT1}")
        a(f"s_andn2_b32 s{sT2}, 15, s{sT2}")
        a(f"s_cbranch_scc0 {D}")
        if layer == 0:
            a(f"s_cmp_eq_u32 s{sEX}, -1")
            a(f"s_cbranch_scc1 {N}")
            a(f"buffer_load_dword v13, v11, {SRD(DBG)}, 0 offen offset:{D_GRDY} sc1")
            a("s_waitcnt vmcnt(0)")
            a(f"v_cmp_ne_u32 s[{sEX}:{sEX+1}], 0, v13")
            a.label(N)
        if s <= self.o("narrow", 1): a(f"s_lshl_b64 exec, 15, s{sT1}")
        else: a(f"s_andn2_b64 exec, s[{sLO}:{sLO+1}], s[{sRDY}:{sRDY+1}]")
        a(f"buffer_load_dword v9, v10, {SRD(WS)}, s{sKVA} offen sc1")
        a("s_waitcnt vmcnt(0)")
        a("v_cmp_ne_u32 vcc, 0, v9")
        a("s_mov_b64 exec, -1")
        a(f"s_and_b32 s{sT2}, vcc_lo, s{sEX}")
        a(f"s_or_b32 s{sRDY}, s{sRDY}, s{sT2}")
        a(f"s_sub_u32 s{sTMO}, s{sTMO}, 1")
        a(f"s_cbranch_scc0 {L}")
        a(f"s_mov_b32 s{sTMO}, 0")
        a.label(D)
    def kv_fetch(self, s, layer):
        a = self.a
        self.kv_need(s, layer)
        self.sx(sT0, 0, (sT0, 16384), (sKVH, 1), (sL, 1))
        self.sx(sT1, 0, (sL, 1), (sL, 1, 7))
        pol = "sc1 nt" if self.o("kvnt", 0) else "sc1"
        self.dma(sT1, KVB + (s & 1) * SLOT, sT0, 0, (0, 1), ("kv", s), pol)
        a("s_add_u32 m0, m0, 16")
        for i in (2, 3):
            self.vm(f"buffer_load_dwordx4 v1, {SRD(WS)}, s{sT7} offen offset:{i*1024} {pol} lds", ("kv", s))
    def q_fetch(self, local):
        a = self.a
        self.sx(sT0, HF, (sG, 8 * HT), (sL, 2 * HT // 4096), (sJ, 1024))
        a(f"s_lshr_b32 s{sT1}, s{sL}, 1")
        for q in range(2): self.dma(sT1, QA + 1024 * q, sT0, q * HT, (0,), ("kv", 0), "sc1")
        if local:
            self.sx(sT0, 32768, (sT0, 1), (sJ, 1024))
            self.sx(sT1, 0, (sL, 1), (sL, 1, 7))
            for q in range(2): self.dma(sT1, KVB + q * TSTR, sT0, q * HT, (0, 1), ("kv", 0), "sc1")

    def prep_flag(self):
        a = self.a
        def f():
            a(f"s_add_u32 s{sT0}, s{sKVF}, 4096")
            a("v_mov_b32 v8, 1")
            a("s_mov_b64 exec, 1")
            a(f"buffer_store_dword v8, off, {SRD(WS)}, s{sT0} offset:16 sc1")
            a("s_mov_b64 exec, -1")
        self.only_w4(f)
    def prep_look(self):
        a = self.a
        a("v_min_u32 v12, 45, v0")
        a("v_lshlrev_b32 v8, 2, v12")
        a(f"s_bfe_u32 s{sT0}, s{sJ}, 0x20001")
        a(f"v_add_u32 v9, s{sT0}, v8")
        a("v_and_b32 v8, 0x70, v8")
        a("v_and_b32 v13, 3, v12")
        a(f"s_and_b32 s{sT0}, s{sJ}, 12")
        a(f"v_add3_u32 v8, v8, v13, s{sT0}")
        a("v_cmp_gt_u32 vcc, 28, v12")
        a("v_cndmask_b32 v8, v9, v8, vcc")
        a("v_and_b32 v12, 7, v8")
        a("v_lshlrev_b32 v12, 14, v12")
        a("v_lshrrev_b32 v8, 3, v8")
        a("v_lshl_add_u32 v12, v8, 7, v12")
        a(f"s_mov_b32 s{sT2}, {FL + F_KV + 4096 + 16}")
        a(f"s_mov_b32 s{sPA}, s{sEX}")
        self.vm(f"buffer_load_dword v15, v12, {SRD(WS)}, s{sT2} offen sc1", "pl")
    def prep_wait(self):
        a = self.a
        D = a.newlabel("pwd")
        self.wait(vm="pl")
        a("v_cmp_eq_u32 vcc, 0, v15")
        a(f"s_orn2_b32 s{sT2}, vcc_lo, s{sPA}")
        a(f"s_or_b32 s{sT2}, s{sT2}, vcc_hi")
        a(f"s_cbranch_scc0 {D}")
        def rdy():
            a(f"buffer_load_dword v13, v11, {SRD(DBG)}, 0 offen offset:{D_GRDY} sc1")
            a("s_waitcnt vmcnt(0)")
            a("v_cmp_eq_u32 vcc, 0, v13")
        self.spin(rdy)
        a(f"s_mov_b32 s{sT2}, {FL + F_KV + 4096 + 16}")
        def body():
            a(f"buffer_load_dword v13, v12, {SRD(WS)}, s{sT2} offen sc1")
            a("s_waitcnt vmcnt(0)")
            a("v_cmp_eq_u32 vcc, 0, v13")
        self.spin(body)
        a.label(D)
        a(f"s_mov_b32 s{sEX}, -1")

    def hello(self):
        a = self.a
        self.wait(vm="grdy")
        a(f"v_cmp_ne_u32 s[{sEX}:{sEX+1}], 0, v13")
        a(f"s_lshl_b32 s{sT1}, s{sG}, 2")
        L = a.newlabel("og")
        a(f"s_bitcmp1_b32 s{sEX}, s{sT1}")
        a(f"s_cbranch_scc1 {L}")
        def rdy():
            a(f"buffer_load_dword v13, off, {SRD(DBG)}, s{sT1} offset:{D_GRDY} sc1")
            a("s_waitcnt vmcnt(0)")
            a("v_cmp_eq_u32 vcc, 0, v13")
        self.spin(rdy)
        a.label(L)
        a(f"v_readlane_b32 s{sT2}, v13, s{sT1}")
        a(f"s_cmp_lg_u32 s{sT2}, s{sXCC}")
        a(f"s_cselect_b32 s{sSLOW}, 1, 0")
        def f():
            S, D = a.newlabel("sh"), a.newlabel("hd")
            a("v_mov_b32 v8, 1")
            a("s_mov_b64 exec, 1")
            a(f"s_cmp_lg_u32 s{sSLOW}, 0")
            a(f"s_cbranch_scc1 {S}")
            a(f"buffer_store_dword v8, off, {SRD(WS)}, s{sMYF}")
            a(f"s_branch {D}")
            a.label(S)
            a(f"buffer_store_dword v8, off, {SRD(DBG)}, s{sT1} offset:{D_SHOUT} sc1")
            a.label(D)
            a("s_mov_b64 exec, -1")
        self.only_w4(f)
    def mode_look(self):
        a = self.a
        a("v_and_b32 v12, 31, v0")
        a("v_lshl_add_u32 v12, v12, 5, 16")
        self.vm(f"buffer_load_dword v13, v12, {SRD(WS)}, s{sFG} offen sc1", "ml")
    def mode(self):
        a = self.a
        L, D = a.newlabel("ml"), a.newlabel("md")
        self.wait(vm="ml")
        a(f"s_lshl_b32 s{sT0}, s{sG}, 2")
        a(f"s_cmp_lg_u32 s{sSLOW}, 0")
        a(f"s_cbranch_scc1 {D}")
        a.label(L)
        a("v_cmp_eq_u32 vcc, 0, v13")
        a(f"s_cbranch_vccz {D}")
        a(f"buffer_load_dword v9, off, {SRD(DBG)}, s{sT0} offset:{D_SHOUT} sc1")
        a(f"buffer_load_dword v13, v12, {SRD(WS)}, s{sFG} offen sc1")
        a("s_waitcnt vmcnt(0)")
        a(f"v_readfirstlane_b32 s{sSLOW}, v9")
        a(f"s_cmp_lg_u32 s{sSLOW}, 0")
        a(f"s_cbranch_scc1 {D}")
        a(f"s_sub_u32 s{sTMO}, s{sTMO}, 1")
        a(f"s_cbranch_scc0 {L}")
        a(f"s_mov_b32 s{sTMO}, 0")
        a.label(D)
        a(f"v_mov_b32 v8, {LSY}")
        a("v_mov_b32 v12, 0")
        a(f"v_mov_b32 v13, s{sSLOW}")
        a("ds_write_b64 v8, v[12:13]")
        a(f"s_lshl_b32 s{sT0}, s{sSLOW}, 10")
        a(f"s_add_u32 s{sFB}, s{sFB}, s{sT0}")
        a(f"s_add_u32 s{sMYF}, s{sMYF}, s{sT0}")

    def side(self, layer):
        a = self.a
        H = self.HOLD
        self.after_e0(layer)
        if layer == 0:
            for part in range(3):
                for s in range(8):
                    a(f"v_mfma_f32_32x32x16_bf16 {vr(24+16*part,16)}, v[20:23], {vr(H+12*s+4*part,4)}, {vr(24+16*part,16) if s else '0'}")
        dg = self.dg and not layer
        if dg:
            for part in range(3): self.emit(self.split_pair(H + 96 + 2 * part, 24 + 16 * part, 9))
            self.lbar("E1")
            self.kv_flag(0)
            self.kv_need(0, 0)
            self.q_fetch(False)
            self.kv_fetch(0, 0)
        else:
            self.poll(12, 13, C_Q + 16 * layer)
            self.q_fetch(True)
        if layer == 0:
            if not dg:
                for part in range(3): self.emit(self.split_pair(H + 96 + 2 * part, 24 + 16 * part, 9))
            self.prep_setup()
            self.sx(sT0, 0, (sJ, 16), (sL, 4, 12))
            a("v_lshrrev_b32 v5, 4, v0")
            a(f"v_add_lshl_u32 v5, v5, s{sT0}, 7")
            a("v_min_u32 v5, L_end-L_pc-4, v5")
            a(f"v_add_u32 v2, s{sL}, v1")
            a("v_add_u32 v3, 0x10000, v2")
            a("v_add_u32 v4, 0x20000, v2")
        self.lbar("A0", ("kv", 0), ds=0)
        self.lbar("E1")
        if not dg: self.kv_flag(layer)
        self.kv_fetch(1, layer)
        pf = [lambda u=u: self.dma(sL, U(u), sWOs, u * 16384, range(4)) for u in range(4)]
        pf += [lambda u=u: self.dma(sL, U(4 + u), s13, u * 16384, range(4)) for u in range(3)]
        def last():
            self.dma(sL, U(7), s13, 3 * 16384, range(3))
            self.vm(f"buffer_load_dwordx4 v[20:23], v1, {SRD(WS)}, s{sT7} offen offset:3072 {self.wpol}")
        pf.append(last)
        pf += [lambda u=u: self.rload(u, s13, 4 + u) for u in range(6)]
        w2 = [lambda u=u: self.rload(6 + u, s2_, 12 + u) for u in range(2)]
        if layer: w2 += [lambda u=u: self.rload(8 + u, s2_, 8 + u) for u in range(4)]
        pf = pf[:4] + w2 + pf[4:]
        steps = {s: [] for s in range(8)}; post = {s: [] for s in range(8)}
        if layer == 0:
            steps[0] += [lambda k=k: self.prep_gather(k) for k in range(4)]
            steps[1] += [lambda: self.wait(vm="pg"), lambda: self.lsync(1)] + self.prep_store()
            steps[2] += [lambda: self.wait(vm="pst"), lambda: self.lsync(2), self.prep_flag]
            first = self.o("pw", 4)
            if self.o("plk", 1): post[first - 1].append(self.prep_look)
            else: steps[first - 1].append(self.prep_look)
            steps[first].append(self.prep_wait)
            steps[2].append(self.tx)
            if dg:
                n = self.o("thn", 0)
                steps[2].append(lambda: self.th(range(0, n))); steps[3].append(lambda: self.th(range(n, 7)))
            cnt = [int(x) for x in self.opt.get("n0", "6541")]
        else:
            first = 1
            cnt = [int(x) for x in self.opt.get("n1", "4433330")]
        assert sum(cnt) == len(pf) and first + len(cnt) == 8
        k = 0
        for i, n in enumerate(cnt):
            steps[first + i] += pf[k:k + n]; k += n
        steps[7] = [lambda: self.th(None), self.tx] + steps[7]
        for s in range(8):
            if s:
                self.lbar(f"p{s}")
                if s < 7: self.kv_fetch(s + 1, layer)
            self.code_touch()
            self.emit(steps[s])
            self.wait(vm=("kv", s + 1))
            self.emit(post[s])
        self.lbar("A1", "all")

    def loader(self, layer):
        a = self.a
        bar = self.lbar
        t = lambda c, h, u: self.dma(sL, U(u), s13, c * 32768 + h * 16384, range(4), ("t", c))
        c2 = lambda c, h, u: self.dma(sL, U(u), s2_, c * 32768 + h * 16384, range(4), ("c", c))
        rc = lambda slot, unit: self.rload(slot, s2_, unit)
        self.pace = 0
        def wr(slot, u):
            self.wait(vm=("r", slot))
            for i in range(4):
                a(f"ds_write_b128 v{2 + (U(u) >> 16)}, {vr(self.RW + 16*slot + 4*i, 4)} offset:{(U(u) & 0xffff) + i*1024}")
                if self.pace: a("s_waitcnt lgkmcnt(0)")
        def sl(ss):
            for s in ss:
                for part in range(3):
                    a(f"ds_write_b128 v{8 + (s >> 2)}, {vr(self.HOLD+12*s+4*part,4)} offset:{(s&3)*12288+part*1024}")
                    if self.pace and s < 6: a("s_waitcnt lgkmcnt(0)")
        a(f"ds_write_b128 v3, v[20:23] offset:{U(7) - 65536 + 3072}")
        wr(0, 8)
        bar("W1")
        wr(1, 0); wr(2, 1); wr(3, 2); wr(4, 3)
        bar("B0", ds=12)
        wr(5, 9)
        a("s_waitcnt lgkmcnt(0)")
        a("s_barrier")
        if not layer: rc(0, 8); rc(1, 9); rc(2, 10); self.code_touch()
        bar("B1")
        self.pace = self.o("pace", 0); self.thr = self.o("thr", 0)
        t(5, 0, 4); t(5, 1, 5); t(6, 0, 6); t(6, 1, 7); c2(0, 0, 8); c2(0, 1, 0)
        bar("B2", ("t", 5))
        c2(1, 0, 1); c2(1, 1, 2); c2(2, 0, 3)
        if self.o("c2b", 1): c2(2, 1, 9)
        bar("B3", ("t", 6))
        if not self.o("c2b", 1): c2(2, 1, 9)
        c2(3, 0, 4); c2(3, 1, 5)
        bar("B4", ("c", 1))
        if not layer: rc(3, 11); self.code_touch()
        o = 8 if layer else 0
        wr(o, 6); wr(o + 1, 7)
        bar("D1", ("c", 3))
        if layer and self.o("wb", 0):
            self.only_w4(lambda: a("buffer_wbl2 sc1"), sJ)
        wr(o + 2, 8); wr(o + 3, 0); wr(6, 1)
        if not layer:
            self.sx(sT0, SLICE, (sL, 3072, 12))
            a(f"v_add_u32 v8, s{sT0}, v1")
            a("v_add_u32 v9, 49152, v8")
            self.sx(sT0, SLICE - 3072, (sL, 512, 13), (sL, 8, 12, 1))
            a("v_and_b32 v12, 0x1f0, v1")
            a(f"v_add_u32 v12, s{sT0}, v12")
        bar("D3", ds=8)
        wr(7, 2)
        if not layer: sl(range(0, self.o("sl1", 1)))
        bar("D4", ds=0)
        if not layer: sl(range(self.o("sl1", 1), 6))
        bar("D6")
        self.thr = 0
        if layer:
            a("s_endpgm")
            return
        sl((6, 7))
        for part in range(3): a(f"ds_write_b64 v12, {vr(self.HOLD+96+2*part,2)} offset:{part*1024}")
        a(f"s_add_u32 s{sKVH}, s{sKVH}, {KV_STR}")
        a(f"s_add_u32 s{sKVF}, s{sKVF}, 4096")
        bar("Q0", ds=0)

    def prep_setup(self):
        a = self.a
        a(f"s_lshr_b32 s{sT4}, s{sL}, 12")
        self.sx(sT0, 0, (sJ, 8), (sG, 1))
        a(f"s_mov_b32 s{sPCS}, {OOB}")
        a(f"s_cmp_ge_u32 s{sJ}, 23")
        a("s_cbranch_scc1 L_pr_none")
        a(f"s_cmp_ge_u32 s{sT0}, 112")
        a("s_cbranch_scc1 L_pr_o")
        self.srd(SA, P_W1, 512 * 3584)
        self.srd(SB, P_W3, 512 * 3584)
        a(f"s_mov_b32 s{sPSTR}, 3584")
        self.sx(sPA, 0, (sT0, 128, 2), (sT0, 128 * 3584, 0, 3))
        a(f"s_mov_b32 s{sPB}, s{sPA}")
        self.sx(sT2, 0, (sT0, 4, 2), (sT4, 1))
        self.sx(sT1, 0, (sT2, 7, 0, 15), (sT2, 1, 4))
        self.sx(sPCS, CS13, (sT1, 1024), (sT0, 512, 1, 1), (sT0, 8, 0, 1))
        self.sx(sPD, PW13, (sT1, 32768), (sT0, 8192, 0, 3))
        a(f"s_mov_b32 s{sTCH}, 4096")
        a(f"s_lshl_b32 s{sT2}, s{sT4}, 5")
        a(f"s_mov_b32 s{sT3}, 16384")
        a("s_branch L_pr_go")
        a.label("L_pr_o")
        self.sx(sT2, 0, (sT0, 2, 0, 3), (sT4, 1, 1))
        a(f"s_cmp_ge_u32 s{sT0}, 128")
        a("s_cbranch_scc1 L_pr_2")
        self.srd(SA, P_WO, 512 * 1024)
        self.srd(SB, P_WO, 512 * 1024)
        a(f"s_sub_u32 s{sT0}, s{sT0}, 112")
        self.sx(sPD, PWO, (sT2, 65536), (sT0, 32768, 2, 1), (sT0, 8192, 3), (sT4, 4096, 0, 1))
        a("s_branch L_pr_o2")
        a.label("L_pr_2")
        self.srd(SA, P_W2, 1792 * 1024)
        self.srd(SB, P_W2, 1792 * 1024)
        a(f"s_sub_u32 s{sT0}, s{sT0}, 128")
        self.sx(sPD, PW2, (sT2, 7 * 32768), (sT0, 32768, 3), (sT0, 8192, 2, 1), (sT4, 4096, 0, 1))
        a("s_branch L_pr_o2")
        a.label("L_pr_none")
        self.srd(SA, P_WO, 0)
        self.srd(SB, P_WO, 0)
        a(f"s_mov_b32 s{sT0}, 0")
        a(f"s_mov_b32 s{sPD}, {OOB}")
        a.label("L_pr_o2")
        a(f"s_mov_b32 s{sPSTR}, 1024")
        a(f"s_mov_b32 s{sTCH}, 16384")
        self.sx(sPA, 0, (sT0, 256, 0, 3), (sT0, 128 * 1024, 2))
        a(f"s_add_u32 s{sPB}, s{sPA}, 128")
        self.sx(sT2, 0, (sT4, 16384, 1), (sT4, 64, 0, 1))
        a(f"s_mov_b32 s{sT3}, 32")
        a.label("L_pr_go")
        a("v_lshrrev_b32 v6, 3, v0")
        a(f"v_mul_lo_u32 v6, v6, s{sPSTR}")
        a("v_and_b32 v8, 0x70, v1")
        a("v_add_u32 v6, v6, v8")
        a(f"s_lshl_b32 s{sPSTR}, s{sPSTR}, 3")
        a(f"s_mul_i32 s{sT1}, s{sPSTR}, s{sT4}")
        a(f"s_lshl_b32 s{sT1}, s{sT1}, 2")
        a(f"s_add_u32 s{sPA}, s{sPA}, s{sT1}")
        a(f"s_add_u32 s{sPB}, s{sPB}, s{sT1}")
        a("v_bfe_u32 v7, v0, 4, 1")
        a(f"v_mul_lo_u32 v7, v7, s{sT3}")
        a("v_and_b32 v8, 3, v0")
        a("v_lshl_add_u32 v7, v8, 3, v7")
        a("v_bfe_u32 v8, v0, 2, 2")
        a("v_lshl_add_u32 v7, v8, 7, v7")
        a("v_and_b32 v8, 0x200, v1")
        a(f"s_add_u32 s{sT2}, s{sT2}, {self.RAW}")
        a(f"v_add3_u32 v7, v7, v8, s{sT2}")

    def prep_gather(self, pc):
        a = self.a
        for part in range(2):
            r = sPB if part else sPA
            a(f"s_add_u32 m0, s{sL}, {self.RAW+pc*1024+part*16384}")
            self.vm(f"buffer_load_dwordx4 v6, {SRD(SB if part else SA)}, s{r} offen {'nt ' if self.o('gnt', 1) else ''}lds", "pg")
            a(f"s_add_u32 s{r}, s{r}, s{sPSTR}")

    def prep_store(self):
        a = self.a
        F = 24
        def rd():
            for i in range(8):
                for h2 in range(2):
                    a(f"ds_read_b64_tr_b16 {vr(F+4*i+2*h2,2)}, v7 offset:{i*2048+h2*1024}")
            for r in range(72, 76): a(f"v_mov_b32 v{r}, 0x3f803f80")
            a(f"s_add_u32 s{sTCH}, s{sPD}, s{sTCH}")
            a("s_waitcnt lgkmcnt(0)")
        def st(i):
            a(f"v_mfma_f32_32x32x16_bf16 v[56:71], v[72:75], {vr(F+4*i,4)}, {'v[56:71]' if i else '0'}")
            self.vm(f"buffer_store_dwordx4 {vr(F+4*i,4)}, v1, {SRD(WS)}, s{sPD if i < 4 else sTCH} offen offset:{(i&3)*1024} sc1")
        def cs():
            a("v_and_b32 v8, 0x1f0, v1")
            self.emit(self.split_pair(58, 56, 57))
            self.vm(f"buffer_store_dwordx2 v[58:59], v8, {SRD(WS)}, s{sPCS} offen sc1", "pst")
        return [rd] + [lambda i=i: st(i) for i in range(8)] + [cs]

    T13U = {0: (4, 5), 1: (6, 7), 2: (8, 0), 3: (1, 2), 4: (3, 9), 5: (4, 5), 6: (6, 7)}
    C2U = {0: (8, 0), 1: (1, 2), 2: (3, 9), 3: (4, 5), 4: (6, 7), 5: (8, 0), 6: (1, 2)}

    def ks_bases(self, b):
        L = [f"s_mul_i32 s{sT0}, s{sKH}, 12288", f"s_lshl_b32 s{sT1}, s{sKH}, 12", f"s_add_u32 s{sT1}, s{sT1}, 4096",
             f"v_add_u32 v{b}, s{sT0}, v1", f"v_add_u32 v{b+3}, s{sT1}, v1"]
        for k in (1, 2): L += [f"v_add_u32 v{b+k}, {65536*k}, v{b}", f"v_add_u32 v{b+3+k}, {65536*k}, v{b+3}"]
        return L
    def res_load(self, R):
        self.vm(f"buffer_load_dwordx4 {vr(R,4)}, v1, {SRD(WS)}, s{sKT} offen sc1", "res")
        self.vm(f"buffer_load_dwordx4 {vr(R+4,4)}, v1, {SRD(WS)}, s{sKT} offen offset:1024 sc1", "res")
        self.vm(f"buffer_load_dword v{R+8}, v1, {SRD(WS)}, s{sKS} offen sc1")
    def res_unpack(self, R, AA):
        L = []
        for i in range(8): L += [f"v_lshlrev_b32 v{AA+2*i}, 16, v{R+i}", f"v_and_b32 v{AA+2*i+1}, 0xffff0000, v{R+i}"]
        return L

    def ks_finish(self, AA, AB, P, final_branch, res=None):
        a = self.a
        for q in range(4): a(f"ds_write_b128 v14, {vr(AB+4*q,4)} offset:{q*1024}")
        if res is not None:
            for i in range(0, 16, 2): a(f"v_pk_add_f32 {vr(AA+i,2)}, {vr(AA+i,2)}, {vr(res+i,2)}")
        a("s_waitcnt lgkmcnt(0)")
        a("s_barrier")
        for q in range(4): a(f"ds_read_b128 {vr(AB+4*q,4)}, v15 offset:{q*1024}")
        for q in range(4):
            a(f"s_waitcnt lgkmcnt({3-q})")
            for i in (0, 2): a(f"v_pk_add_f32 {vr(AA+4*q+i,2)}, {vr(AA+4*q+i,2)}, {vr(AB+4*q+i,2)}")
            for i in range(2): a(f"v_cvt_pk_bf16_f32 v{P+2*q+i}, v{AA+4*q+2*i}, v{AA+4*q+2*i+1}")
            if q == 1 and not final_branch: self.vm(f"buffer_store_dwordx4 {vr(P,4)}, v1, {SRD(WS)}, s{sKT} offen")
        if final_branch:
            a(f"s_cmp_lg_u32 s{sLAY}, 0")
            a("s_cbranch_scc1 L_final")
            self.vm(f"buffer_store_dwordx4 {vr(P,4)}, v1, {SRD(WS)}, s{sKT} offen")
        self.vm(f"buffer_store_dwordx4 {vr(P+4,4)}, v1, {SRD(WS)}, s{sKT} offen offset:1024")
        a(f"v_pk_add_f32 {vr(AB,2)}, {vr(AA,2)}, {vr(AA+2,2)}")
        a(f"v_pk_mul_f32 {vr(AB+2,2)}, {vr(AA,2)}, {vr(AA,2)}")
        a(f"v_pk_fma_f32 {vr(AB+2,2)}, {vr(AA+2,2)}, {vr(AA+2,2)}, {vr(AB+2,2)}")
        for i in range(4, 16, 2):
            a(f"v_pk_add_f32 {vr(AB,2)}, {vr(AB,2)}, {vr(AA+i,2)}")
            a(f"v_pk_fma_f32 {vr(AB+2,2)}, {vr(AA+i,2)}, {vr(AA+i,2)}, {vr(AB+2,2)}")
        a(f"v_add_f32 v{AB}, v{AB}, v{AB+1}")
        a(f"v_add_f32 v{AB+2}, v{AB+2}, v{AB+3}")
        a(f"v_permlane32_swap_b32 v{AB}, v{AB+2}")
        a(f"v_add_f32 v{AB}, v{AB}, v{AB+2}")
        self.vm(f"buffer_store_dword v{AB}, v1, {SRD(WS)}, s{sKS} offen")
    def scr_addr(self):
        return [f"s_lshl_b32 s{sT0}, s{sW}, 12", f"s_add_u32 s{sT0}, s{sT0}, {U(9)}", f"v_add_u32 v14, s{sT0}, v1", "v_xor_b32 v15, 8192, v14"]
    def x_flag_addr(self, r, t, sreg, extra=None):
        return [f"v_and_b32 v{r}, 7, v0", f"v_lshlrev_b32 v{r}, 5, v{r}", f"v_and_b32 v{t}, 8, v0",
                lambda: self.sx(sT0, 0, (sreg, 256, 1), (sreg, 4, 0, 1)), f"v_add3_u32 v{r}, v{r}, v{t}, s{sT0}"]

    CSR = [80, 84, 88, 8, 120, 8, 8]
    def cs_load(self, c): return self.fload(self.CSR[c], sUC, c * 1024, ("cs", c), tmp=sT4)

    def wo(self):
        a = self.a
        AA, AB, RING, X, R, B = 32, 48, 208, 128, 192, 2
        WD = self.o("ww", 8)
        self.emit(self.ks_bases(B))
        self.emit(self.scr_addr())
        a("v_and_b32 v12, 15, v0")
        self.sx(sT0, 0, (sKH, 512), (sTL, 4, 1))
        a(f"v_lshl_add_u32 v12, v12, 5, s{sT0}")
        if self.o("cprio", 0): a(f"s_setprio {self.o('cprio', 0)}")
        self.publish(26, C_O, tag="o")
        a("s_barrier")
        self.stamp("attn done")
        self.dq.clear(); self.forget()
        xl = lambda i: self.fload(X + 4 * i, sOS, i * 1024, ("x", i), tmp=sT5)
        init, per = self.ramp([(i, xl(i)) for i in range(16)], 16, self.o("w0", 5), WD)
        last = max(per)
        for c in range(5): per.setdefault(last + 1 + c // 2, []).append(self.cs_load(c))
        items = []
        for i in range(16):
            addr = U(i >> 2) + (i & 3) * 1024
            items.append(dict(read=(B + 3, addr), vm=("x", i),
                              mfma=lambda r, i=i: f"v_mfma_f32_32x32x16_bf16 {vr(AB,16)}, {vr(r,4)}, {vr(X+4*i,4)}, {vr(AB,16) if i else '0'}"))
            items.append(dict(read=(B, addr), mfma=lambda r, i=i: f"v_mfma_f32_32x32x16_bf16 {vr(AA,16)}, {vr(r,4)}, {vr(X+4*i,4)}, {vr(AA,16)}"))
            items[-1]["post"] = list(per.get(i, []))
        self.stream_begin(items, 8, RING)
        self.wait(vm="res")
        self.emit(self.res_unpack(R, AA))
        self.poll(12, 13, C_O)
        self.stamp("wo polled")
        self.emit(init)
        self.stream_run()
        self.ks_finish(AA, AB, 20, False)

    def up(self):
        a = self.a
        X = 128; ACC = [16, 32, 48, 64, 80]; RING = 96; D = 6; TM = 120
        MU, CS, EA, EC, PA, PT = 4, 8, 12, 13, 14, 15
        W = (1, 2, 3)
        WD = self.o("uw", 12)
        self.sx(sT1, 0, (sJ, 4, 4), (sW, 1))
        self.emit(self.x_flag_addr(PA, PT, sT1))
        a("v_add_u32 v2, 0x10000, v1")
        a("v_add_u32 v3, 0x20000, v1")
        self.publish(PT, C_X1)
        self.stamp("wo done")
        self.forget()
        CSR, csl = self.CSR, self.cs_load
        xl = lambda i: self.fload(X + 4 * i, sUX, i * 1024, ("x", i), tmp=sT5)
        STT = ACC[3]
        seq = [(i, xl(i)) for i in range(32)]
        for q in range(4): seq.insert(10 + 2 * q, (10 + q, self.fload(STT + 4 * q, sUS, q * 1024, "st", tmp=sT2)))
        init, per = self.ramp(seq, 32, self.o("u0", 4), WD)
        def epi(c, acc):
            L = []
            for i in range(8): L += [f"v_mul_f32 v{TM+i}, v{EA}, v{acc+i}", f"v_exp_f32 v{TM+i}, v{TM+i}", f"v_mul_f32 v{acc+8+i}, v{acc+i}, v{acc+8+i}"]
            for i in range(8):
                L += [f"v_fma_f32 v{TM+i}, v{TM+i}, v{EC}, v{EC}", f"v_rcp_f32 v{TM+i}, v{TM+i}"]
                if i: L.append(f"v_mul_f32 v{acc+7+i}, v{TM+i-1}, v{acc+7+i}")
            L.append(f"s_add_u32 s{sT3}, s{sHD}, {c*16384}")
            L.append(f"v_mul_f32 v{acc+15}, v{TM+7}, v{acc+15}")
            for i in range(4): L.append(f"v_cvt_pk_bf16_f32 v{acc+i}, v{acc+8+2*i}, v{acc+9+2*i}")
            L.append(lambda: self.vm(f"buffer_store_dwordx4 {vr(acc,4)}, v1, {SRD(WS)}, s{sT3} offen", ("h", c)))
            return L
        items = []; c0 = 0; start = []
        acc = lambda c: vr(ACC[c % 5], 16)
        corr = lambda c, first: dict(vm=("cs", c), mfma=lambda r: f"v_mfma_f32_32x32x16_bf16 {acc(c)}, {vr(CSR[c],4)}, {vr(MU,4)}, {'0' if first else acc(c)}")
        for pi, n in enumerate((3, 2, 1, 1)):
            tiles = list(range(c0, c0 + n)); c0 += n
            start.append(len(items))
            if pi:
                for c in tiles: items.append(corr(c, True))
                if pi < 3: items[-1]["post"] = [csl(c0)]
            for ks in range(32):
                for c in tiles:
                    addr = U(self.T13U[c][ks >> 4]) + (ks & 15) * 1024
                    it = dict(read=(W[addr >> 16], addr & 0xffff),
                              mfma=lambda r, ks=ks, c=c, z=(ks == 0 and pi == 0): f"v_mfma_f32_32x32x16_bf16 {acc(c)}, {vr(r,4)}, {vr(X+4*ks,4)}, {'0' if z else acc(c)}")
                    if ks == 0 and c == tiles[0]: it["bar"] = True
                    if pi == 0 and c == 0: it["vm"] = ("x", ks)
                    if pi == 0 and c < 2: it["post"] = list(per.get(ks, [])[c::2])
                    items.append(it)
                if pi == 0 and ks == self.o("ub", 16): items[-1].setdefault("post", []).append("s_barrier")
                if pi == 0 and ks == 27:
                    for c in tiles: items.append(corr(c, False))
        start.append(len(items))
        st = [lambda: self.wait(vm="st")] + self.stats_ops(STT, MU, EA, EC) + [f"v_mul_f32 v{EA}, {hex(f2u(-LOG2E))}, v{EA}"]
        self.spread(items, 45, 80, st)
        lo = 5
        self.spread(items, start[1] + lo, start[2], epi(0, ACC[0]) + epi(1, ACC[1]) + epi(2, ACC[2]))
        e34 = epi(3, ACC[3]) + epi(4, ACC[4]); nsplit = start[3] + 13
        self.spread(items, start[2] + lo, nsplit, e34)
        self.spread(items, nsplit, start[4], epi(5, ACC[0]))
        AA, AB, R, B = 48, 64, 80, 4
        DW = self.o("dw", 8)
        hl = lambda i: self.fload(X + 4 * (i % 32), sHS, (i >> 3) * 16384 + (i & 7) * 1024, ("y", i), tmp=sT5)
        p4 = start[3] + 1
        def ins(k, fs, front=False):
            L = items[k].setdefault("post", [])
            if front: L[:0] = fs
            else: L.extend(fs)
        ins(start[1] + 2, ["v_and_b32 v14, 7, v0", lambda: self.sx(sT0, 0, (sJ, 512, 4), (sKH, 256), (sTL, 4, 0, 3)), f"v_lshl_add_u32 v14, v14, 5, s{sT0}"])
        ins(start[2] + self.o("h2", 10), [lambda: self.publish(PT, C_H2, tag=("h", 2))], True)
        ins(start[3] - self.o("l2", 5), [lambda: self.poll_issue(PA, PT)], True)
        k0 = 31 - self.o("dw0", DW)
        ins(p4 + k0 - 4, self.ks_bases(B))
        ins(p4 + k0, [lambda: self.poll_check(PA, PT, C_H2), lambda: self.publish(PT, C_H4, tag=("h", 4))], True)
        init2, per2 = self.ramp([(i, hl(i)) for i in range(56)], 56, 31 - k0, DW)
        for i, f in enumerate(init2): ins(p4 + k0 + 1 + i, [f], True)
        d0 = len(items)
        for i in range(56):
            addr = U(self.C2U[i >> 3][(i >> 2) & 1]) + (i & 3) * 1024
            xr = vr(X + 4 * (i % 32), 4)
            it = dict(read=(B + 3 + (addr >> 16), addr & 0xffff), vm=("y", i),
                      mfma=lambda r, i=i, xr=xr: f"v_mfma_f32_32x32x16_bf16 {vr(AB,16)}, {vr(r,4)}, {xr}, {vr(AB,16) if i else '0'}")
            if i in (0, 16, 32, 40): it["bar"] = True
            items.append(it)
            it = dict(read=(B + (addr >> 16), addr & 0xffff), mfma=lambda r, i=i, xr=xr: f"v_mfma_f32_32x32x16_bf16 {vr(AA,16)}, {vr(r,4)}, {xr}, {vr(AA,16) if i else '0'}")
            it["post"] = []
            if i in (24 - 2 * DW, 40 - 2 * DW): it["post"].append(lambda: self.poll_issue(PA, PT))
            if i in (24 - DW, 40 - DW): it["post"].append(lambda i=i: self.poll_check(PA, PT, C_H4 if i == 24 - DW else C_H6))
            it["post"] += per2.get(i, [])
            if i == 20: it["post"].append(lambda: self.res_load(R))
            if i == 42: it["post"] += self.scr_addr()
            items.append(it)
        e6 = self.o("e6", 14)
        self.spread(items, d0 + 3, d0 + 3 + e6, epi(6, ACC[1]))
        ins(d0 + 3 + e6 + self.o("h6", 8), [lambda: self.publish(11, C_H6, tag=("h", 6))])
        self.spread(items, d0 + 66, d0 + 82, [lambda: self.wait(vm='res')] + self.res_unpack(R, ACC[1]))
        self.stream_begin(items, D, RING)
        self.poll(PA, PT, C_X1)
        self.stamp("up polled")
        self.emit(init)
        self.stream_run()
        self.stamp("down main")
        self.ks_finish(AA, AB, 20, True, res=ACC[1])

    def final(self):
        a = self.a
        a.label("L_final")
        self.srd(SB, P_OUT, 2 * MB)
        a("v_and_b32 v14, 31, v0")
        a("v_lshlrev_b32 v14, 10, v14")
        a("v_lshrrev_b32 v15, 5, v0")
        a("v_lshl_add_u32 v14, v15, 4, v14")
        for b in (20, 24):
            a(f"v_permlane32_swap_b32 v{b}, v{b+2}")
            a(f"v_permlane32_swap_b32 v{b+1}, v{b+3}")
        a(f"buffer_store_dwordx4 v[20:23], v14, {SRD(SB)}, s{sOUT} offen {['', 'sc1', 'nt', 'sc1 nt'][self.o('op', 0)]}")
        a(f"buffer_store_dwordx4 v[24:27], v14, {SRD(SB)}, s{sOUT} offen offset:32 {['', 'sc1', 'nt', 'sc1 nt'][self.o('op', 0)]}")
        self.stamp("end")
        if "hold" in self.opt:
            if self.o("hold", 8) < 8:
                a(f"s_cmp_lg_u32 s{sG}, {self.o('hold', 8)}")
                a("s_cbranch_scc1 L_exit")
            a.label("L_hold")
            a(f"s_memrealtime s[{sTR}:{sTR+1}]")
            a("s_waitcnt lgkmcnt(0)")
            a(f"s_sub_u32 s{sT0}, s{sTR}, s{sE1}")
            a(f"s_cmp_lt_u32 s{sT0}, 10000")
            a("s_cbranch_scc1 L_hold")
        a.label("L_exit")
        a("s_endpgm")

    def build(self):
        a = self.a
        self.tails = []; self.tails2 = []
        self.entry()
        self.qkv1()
        s0 = self.seq; self.seq = []
        self.attention(); self.wo(); self.up()
        s1 = self.seq; self.seq = []
        self.qkv2()
        s2 = self.seq; self.seq = []
        self.final()
        cseq = s0 + s1 + s2 + s1 + self.seq; self.seq = []
        self.start_loader()
        for layer in range(2):
            self.side(layer); self.loader(layer)
        lseq = self.seq
        self.fallback()
        self.publish_tails(); self.res_tails()
        a.label("L_end")
        body = a.finish()
        refp = "cdna_kernels/" + NAME + ".s.ref"
        hdr = open(refp).read().split("; Override launch")[0] if os.path.exists(refp) else ""
        txt = hdr + f"; @launch grid=(256,1,1) block=(512,1,1) lds={LDS_TOTAL}\n"
        if self.stamps: txt += "; cseq " + "|".join(cseq) + "\n; lseq " + "|".join(lseq) + "\n"
        txt += f""".amdgcn_target "amdgcn-amd-amdhsa--gfx950"
.text
.globl {NAME}_kernel
.p2align 8
.type {NAME}_kernel,@function
{NAME}_kernel:
{body}.section .rodata,"a"
.p2align 6
.amdhsa_kernel {NAME}_kernel
  .amdhsa_next_free_vgpr 256
  .amdhsa_next_free_sgpr 98
  .amdhsa_accum_offset 256
  .amdhsa_group_segment_fixed_size 0
  .amdhsa_kernarg_size 80
  .amdhsa_user_sgpr_count 2
  .amdhsa_user_sgpr_kernarg_segment_ptr 1
  .amdhsa_system_sgpr_workgroup_id_x 1
.end_amdhsa_kernel
"""
        return txt

def from_spec(spec):
    opt = dict((kv.split('=') + ['1'])[:2] for kv in spec.split(',') if kv)
    return Gen(stop=opt.pop("stop", None), stamps=bool(opt.pop("stamps", 0)), force_slow=bool(opt.pop("slow", 0)),
               force_fallback=bool(opt.pop("fallback", 0)), remap=bool(opt.pop("remap", 0)), opt=opt).build()

if __name__ == "__main__":
    out = sys.argv[2] if len(sys.argv) > 2 else "cdna_kernels/" + NAME + ".s"
    open(out, "w").write(from_spec(sys.argv[1].lstrip(":") if len(sys.argv) > 1 else ""))
```

```python
import sys, math, struct, os
from asmlib import *

NAME = "interleave_layers__softmax_full_mha__glu_gated_swiglu__prompt"
MB = 1 << 20; KB = 1 << 10
XF = 0
HF = 2 * MB
ST = 9 * MB
PWO = 9 * MB + 512 * KB
PW13 = 10 * MB
CS13 = 13 * MB + 512 * KB
PW2 = 14 * MB
KVG = 16 * MB; KV_STR = 4 * MB
FL = 24 * MB; FL_STR = 16 * KB
HT = 112 * 1024
F_LF, F_SF, F_KV = 0, 1024, 4096
TSB = 25 * MB
WS_USED = 27 * MB
OOB = 0x7ff00000
D_GRDY, D_SHOUT = 0, 128
U = lambda i: i * 16384
LDS_TOTAL = 163840
TSTR = 2064; SLOT = 8 * TSTR; KVB = LDS_TOTAL - 2 * SLOT
SLICE = U(3)
WRING = 65536; WSTG = 24576
QA = U(2)
KSL = KVB - 64; LSY = KVB - 32; MODE = KVB - 28
WS, SA, SB, DBG = 4, 8, 12, 16
P_X, P_WQKV, P_WO, P_BX, P_W1, P_W3, P_W2, P_OUT, P_DBG, P_WS = 20, 22, 24, 26, 28, 30, 32, 34, 36, 38
sG, sJ, sW, sXCC, sLAY, sSLOW, sTMO, sFB, sMYF, sCODE = range(40, 50)
sT0, sT1, sT2, sT3, sT4, sT5, sT6, sT7 = range(50, 58)
sFG, sKVH, sKVA = 58, 59, 60
sQX, sQS, sOD, sKG, sQL, sKT, sKS, sOS, sHS, sOUT, sUX, sUS, sUC, sHD, sKH, sTL = range(61, 77)
sKVF, sL, s13, s2_, sWOs, sQ, sPD, sPA, sPB, sPCS, sPSTR, sTCH = range(61, 73)
sTSI = 77
sEX = 78; sHI = 80; sN16 = 82; sRDY = 84; sBAD = 86; sLO = 86
sTS = 88; sTR = 90; sE0 = 92; sE1 = 94; sPC = 96; sROLE = 3
C_Q, C_O, C_X1, C_H2, C_H4, C_H6, C_X2 = 1, 2, 3, 4, 5, 6, 7
sKL = sXCC
LOG2E = 1.4426950408889634
def f2u(x): return struct.unpack("<I", struct.pack("<f", x))[0]
TBOUND = 48.0
SIG = 0.25 * LOG2E
cost = lambda t: 0 if callable(t) else (8 if t.split()[0] in TRANS else 4)
SRD = lambda r: f"s[{r}:{r+3}]"

class Gen:
    def __init__(self, stop=None, stamps=False, force_slow=False, force_fallback=False, remap=False, opt=None):
        self.a = Asm(); self.stop = stop; self.stamps = stamps
        self.force_slow = force_slow; self.force_fallback = force_fallback
        self.remap = remap; self.opt = opt or {}
        self.dst = []
        self.vq = []; self.dq = []
        self.wpol = ['sc1', '', 'sc0'][self.o('wp', 0)]
        self.thr = 0
        self.RAW = 0; self.dg = self.o('dg', 1)
        self.seq = []
    def o(self, k, d): return int(self.opt.get(k, d))

    def vm(self, text, tag=None):
        self.a(text); self.vq.append(tag)
    def ds(self, text, tag=None):
        self.a(text); self.dq.append(tag)
    def _wait(self, q, tag, name, mx):
        if tag not in q: return None
        i = len(q) - 1 - q[::-1].index(tag)
        n = min(len(q) - 1 - i, mx)
        del q[:len(q) - n]
        return f"{name}({n})"
    def wait(self, vm=None, ds=None):
        w = []
        if vm == "all": w.append("vmcnt(0)"); self.vq.clear()
        elif vm is not None: w.append(self._wait(self.vq, vm, "vmcnt", 63))
        if ds == "all": w.append("lgkmcnt(0)"); self.dq.clear()
        elif ds is not None: w.append(self._wait(self.dq, ds, "lgkmcnt", 15))
        w = [x for x in w if x]
        if w: self.a("s_waitcnt " + " ".join(w))
    def emit(self, L):
        for t in L:
            if callable(t): t()
            else: self.a(t)

    def stamp(self, name):
        if not self.stamps: return
        a = self.a
        self.seq.append(name)
        a(f"s_memtime s[{sTS}:{sTS+1}]")
        a(f"s_memrealtime s[{sTR}:{sTR+1}]")
        a("s_waitcnt lgkmcnt(0)")
        a(f"v_mov_b32 v18, s{sTS}")
        a(f"v_mov_b32 v19, s{sTR}")
        a("s_mov_b64 exec, 1")
        self.vm(f"buffer_store_dwordx2 v[18:19], off, {SRD(WS)}, s{sTSI}")
        a("s_mov_b64 exec, -1")
        a(f"s_add_u32 s{sTSI}, s{sTSI}, 8")
        self.dq.clear()
    def dstamp(self, name, base):
        if not self.stamps: return
        k = len(self.dst); self.dst.append((name, base + 2 * k))
        self.a(f"s_memtime s[{sTS}:{sTS+1}]")
        self.a(f"s_memrealtime s[{sTR}:{sTR+1}]")
        self.a("s_waitcnt lgkmcnt(0)")
        self.a(f"v_mov_b32 v{base+2*k}, s{sTS}")
        self.a(f"v_mov_b32 v{base+2*k+1}, s{sTR}")
    def dflush(self):
        if not self.stamps: return
        a = self.a
        a("s_mov_b64 exec, 1")
        for name, r in self.dst:
            a(f"buffer_store_dwordx2 v[{r}:{r+1}], off, {SRD(WS)}, s{sTSI}")
            self.seq.append(name)
            a(f"s_add_u32 s{sTSI}, s{sTSI}, 8")
        a("s_mov_b64 exec, -1")
        self.dst = []

    def srd(self, d, p, size):
        a = self.a
        a(f"s_mov_b32 s{d}, s{p}")
        a(f"s_and_b32 s{d+1}, s{p+1}, 0xffff")
        a(f"s_mov_b32 s{d+2}, {size}")
        a(f"s_mov_b32 s{d+3}, 0x20000")

    def sx(self, dst, const, *terms):
        a = self.a
        first = True
        for tm in terms:
            r, mul = tm[0], tm[1]; shr = tm[2] if len(tm) > 2 else 0; mask = tm[3] if len(tm) > 3 else None
            t = dst if first else sT7
            assert r != dst or first
            cur = r
            if shr: a(f"s_lshr_b32 s{t}, s{cur}, {shr}"); cur = t
            if mask is not None: a(f"s_and_b32 s{t}, s{cur}, {mask}"); cur = t
            if mul != 1:
                if mul & (mul - 1) == 0: a(f"s_lshl_b32 s{t}, s{cur}, {mul.bit_length()-1}")
                else: a(f"s_mul_i32 s{t}, s{cur}, {mul}")
                cur = t
            if first:
                if cur != dst: a(f"s_mov_b32 s{dst}, s{cur}")
            else: a(f"s_add_u32 s{dst}, s{dst}, s{cur}")
            first = False
        if const: a(f"s_add_u32 s{dst}, s{dst}, {const}")

    def fload(self, dst, base, off, tag, tmp=sT7, flags="sc1"):
        def f():
            key = (base, off >> 12)
            if getattr(self, "_tmpkey", {}).get(tmp) != key:
                self.a(f"s_add_u32 s{tmp}, s{base}, {off & ~4095}")
                self._tmpkey = dict(getattr(self, "_tmpkey", {})); self._tmpkey[tmp] = key
            self.vm(f"buffer_load_dwordx4 {vr(dst,4)}, v1, {SRD(WS)}, s{tmp} offen offset:{off & 4095} {flags}", tag)
        return f
    def forget(self): self._tmpkey = {}

    def dma(self, ldsb, ldsc, src, srcc, idx, tag=None, pol=None):
        a = self.a
        if pol is None: pol = self.wpol
        a(f"s_add_u32 m0, s{ldsb}, {ldsc}")
        a(f"s_add_u32 s{sT7}, s{src}, {srcc}")
        for i in idx:
            if self.thr and len(self.vq) >= self.thr:
                a(f"s_waitcnt vmcnt({self.thr - 1})"); del self.vq[:len(self.vq) - self.thr + 1]
            self.vm(f"buffer_load_dwordx4 v1, {SRD(WS)}, s{sT7} offen offset:{i*1024} {pol} lds", tag)

    def spin(self, body):
        a = self.a
        L, D = a.newlabel("spin"), a.newlabel("spind")
        a.label(L)
        body()
        a(f"s_cbranch_vccz {D}")
        a(f"s_sub_u32 s{sTMO}, s{sTMO}, 1")
        a(f"s_cbranch_scc0 {L}")
        a(f"s_mov_b32 s{sTMO}, 0")
        a.label(D)

    def poll(self, vaddr, vtmp, code):
        a = self.a
        a(f"s_add_u32 s{sT6}, s{sCODE}, {code}")
        def body():
            a(f"buffer_load_dword v{vtmp}, v{vaddr}, {SRD(WS)}, s{sFB} offen sc1")
            a("s_waitcnt vmcnt(0)")
            a(f"v_cmp_gt_u32 vcc, s{sT6}, v{vtmp}")
        self.spin(body)
        self.vq.clear()
        self.acquire()
    def poll_issue(self, vaddr, vtmp):
        self.vm(f"buffer_load_dword v{vtmp}, v{vaddr}, {SRD(WS)}, s{sFB} offen sc1", "poll")
    def poll_check(self, vaddr, vtmp, code):
        a = self.a
        D = a.newlabel("pc")
        a(f"s_add_u32 s{sT6}, s{sCODE}, {code}")
        self.wait(vm="poll")
        a(f"v_cmp_gt_u32 vcc, s{sT6}, v{vtmp}")
        a(f"s_or_b32 vcc_lo, vcc_lo, s{sSLOW}")
        a(f"s_cbranch_scc0 {D}")
        q = list(self.vq)
        self.poll(vaddr, vtmp, code)
        self.vq = q
        a.label(D)

    def acquire(self):
        a = self.a
        F = a.newlabel("acq")
        a(f"s_cmp_eq_u32 s{sSLOW}, 0")
        a(f"s_cbranch_scc1 {F}")
        a("buffer_inv sc1")
        a("s_waitcnt vmcnt(0)")
        a.label(F)

    def publish(self, vtmp, code, tag="all"):
        a = self.a
        S, D = a.newlabel("pubs"), a.newlabel("pubd")
        a(f"s_add_u32 s{sT6}, s{sCODE}, {code}")
        a(f"v_mov_b32 v{vtmp}, s{sT6}")
        a("s_mov_b64 exec, 1")
        a(f"s_cmp_lg_u32 s{sSLOW}, 0")
        a(f"s_cbranch_scc1 {S}")
        self.wait(vm=tag)
        self.vm(f"buffer_store_dword v{vtmp}, off, {SRD(WS)}, s{sMYF}")
        self.tails.append((S, D, vtmp))
        a.label(D)
        a("s_mov_b64 exec, -1")
    def publish_tails(self):
        a = self.a
        for S, D, vtmp in self.tails:
            a.label(S)
            a("s_waitcnt vmcnt(0)")
            a("buffer_wbl2 sc1")
            a("s_waitcnt vmcnt(0)")
            a(f"buffer_store_dword v{vtmp}, off, {SRD(WS)}, s{sMYF} sc1")
            a(f"s_branch {D}")

    def split_pair(self, dst, c, tmp):
        return [f"v_cvt_pk_bf16_f32 v{dst}, v{c}, v{c}", f"v_and_b32 v{tmp}, 0xffff0000, v{dst}",
                f"v_sub_f32 v{tmp}, v{c}, v{tmp}", f"v_cvt_pk_bf16_f32 v{dst+1}, v{tmp}, v{tmp}"]

    def stats_ops(self, st, mu4, rstd, vare):
        L = []
        for k in (8, 4, 2, 1):
            for i in range(k):
                L.append(f"v_add_f32 v{st+i}, v{st+i}, v{st+i+k}")
        t0 = st + 3
        L.append(f"v_mov_b32 v{st+1}, v{st}")
        L.append(f"v_mov_b32 v{st+2}, {hex(f2u(1.0/512))}")
        L.append(f"v_permlane32_swap_b32 v{st}, v{st+1}")
        L.append(f"v_mul_f32 v{st}, {hex(f2u(-1.0/512))}, v{st}")
        L.append(f"v_mul_f32 v{t0}, v{st}, v{st}")
        L.append(f"v_fma_f32 v{vare}, v{st+1}, v{st+2}, -v{t0}")
        L.append(f"v_cvt_pk_bf16_f32 v{t0}, v{st}, v{st}")
        L.append(f"v_max_f32 v{vare}, 0, v{vare}")
        L.append(f"v_and_b32 v{t0}, 0xffff0000, v{t0}")
        L.append(f"v_add_f32 v{vare}, {hex(f2u(1e-5))}, v{vare}")
        L.append(f"v_sub_f32 v{t0}, v{st}, v{t0}")
        L.append(f"v_rsq_f32 v{rstd}, v{vare}")
        for i in range(4): L.append(f"v_cvt_pk_bf16_f32 v{mu4+i}, v{st}, v{t0}")
        return L

    def spread(self, items, lo, hi, fill):
        tot = sum(map(cost, fill)); n = hi - lo; k = 0; acc = 0
        for m in range(n):
            while k < len(fill) and (acc + cost(fill[k]) / 2 <= tot * (m + 1) / n or m == n - 1):
                items[lo + m].setdefault("post", []).append(fill[k]); acc += cost(fill[k]); k += 1

    def stream_begin(self, items, D, ring):
        self.S = dict(items=items, D=D, issued=0)
        rd = [i for i in range(len(items)) if items[i].get("read")]
        self.S.update(rd=rd, slot={i: ring + 4 * (k % D) for k, i in enumerate(rd)}, pos={i: k for k, i in enumerate(rd)})
        self._try(D, 0)
    def _try(self, limit, consumed):
        S = self.S; items, rd = S["items"], S["rd"]
        while S["issued"] < min(limit, len(rd)):
            i = rd[S["issued"]]
            if items[i].get("bar"):
                if S["issued"] - consumed > S["D"] // 2: return
                self.wait(ds="all")
                self.a("s_barrier")
                items[i]["bar"] = False
            va, off = items[i]["read"]
            self.ds(f"ds_read_b128 {vr(S['slot'][i],4)}, v{va} offset:{off}", ("rd", S["issued"]))
            S["issued"] += 1
    def stream_run(self, pair=2):
        S = self.S; items = S["items"]
        for i, it in enumerate(items):
            self.emit(it.get("pre", []))
            dtag = None
            if it.get("read"):
                k = S["pos"][i]
                if k >= S["issued"]: self._try(k + 1, k)
                if ("rd", k) in self.dq: dtag = ("rd", min(k + pair, S["issued"]) - 1)
            self.wait(vm=it.get("vm"), ds=dtag)
            self.a(it["mfma"](S["slot"].get(i)))
            if it.get("read"): self._try(k + 1 + S["D"], k + 1)
            self.emit(it.get("post", []))

    @staticmethod
    def ramp(seq, nsteps, n0, wd):
        init, per, k = [], {}, 0
        lead = lambda step: sum(1 for q, _ in seq[:k] if q > step)
        while k < min(n0, len(seq)): init.append(seq[k][1]); k += 1
        for st in range(nsteps):
            n = 0
            while k < len(seq) and (seq[k][0] <= st + 1 or (n < 2 and lead(st) < wd)):
                per.setdefault(st, []).append(seq[k][1]); k += 1; n += 1
        assert k == len(seq)
        return init, per

    def layer0(self, fn):
        a = self.a
        L = a.newlabel("l0")
        a(f"s_cmp_lg_u32 s{sLAY}, 0")
        a(f"s_cbranch_scc1 {L}")
        vq, dq = list(self.vq), list(self.dq)
        fn()
        self.vq, self.dq = vq, dq
        a.label(L)

    def entry(self):
        a = self.a
        a(f"s_getpc_b64 s[{sPC}:{sPC+1}]")
        a.label("L_pc")
        a("s_load_dwordx16 s[20:35], s[0:1], 0")
        a("v_lshrrev_b32 v2, 5, v0")
        if self.remap: a(f"s_and_b32 s{sJ}, s2, 31")
        else: a(f"s_lshr_b32 s{sJ}, s2, 3")
        a(f"v_lshl_add_u32 v2, s{sJ}, 4, v2")
        a("v_lshlrev_b32 v2, 7, v2")
        a("v_min_u32 v2, L_end-L_pc-4, v2")
        a(f"global_load_dword v14, v2, s[{sPC}:{sPC+1}]")
        a("s_load_dwordx4 s[36:39], s[0:1], 64")
        a("s_cmp_ge_u32 s2, 256")
        a("s_cbranch_scc1 L_exit")
        if self.stamps or "hold" in self.opt:
            a(f"s_memtime s[{sE0}:{sE0+1}]")
            a(f"s_memrealtime s[{sE1}:{sE1+1}]")
        if self.remap: a(f"s_lshr_b32 s{sG}, s2, 5")
        else: a(f"s_and_b32 s{sG}, s2, 7")
        a("v_lshrrev_b32 v1, 6, v0")
        a("v_and_b32 v0, 63, v0")
        a(f"v_readfirstlane_b32 s{sW}, v1")
        a("v_lshlrev_b32 v1, 4, v0")
        a("v_lshrrev_b32 v4, 3, v0")
        a("v_and_b32 v5, 0x70, v1")
        a("v_lshl_add_u32 v6, v4, 10, v5")
        self.sx(sT2, 0, (sG, 256 * 1024), (sJ, 64 * 1024, 0, 3), (sW, 8 * 1024))
        a(f"s_lshr_b32 s{sT3}, s{sJ}, 2")
        a("s_waitcnt lgkmcnt(0)")
        self.srd(SA, P_X, 2 * MB)
        for i in range(8):
            if i: a(f"s_add_u32 s{sT3}, s{sT3}, 1")
            self.sx(sT4, 0, (sT3, 128, 0, 7), (sT2, 1))
            a(f"buffer_load_dwordx4 {vr(self.XR+4*i,4)}, v6, {SRD(SA)}, s{sT4} offen")
        self.srd(WS, P_WS, WS_USED)
        a(f"s_cmp_ge_u32 s{sW}, 4")
        a("s_cbranch_scc1 L_startL")

    XR = 128
    def layernorm(self):
        a = self.a
        X, F = self.XR, 160
        a.label("L_ln")
        for i in range(32):
            a(f"v_lshlrev_b32 v{F+2*i}, 16, v{X+i}")
            a(f"v_and_b32 v{F+2*i+1}, 0xffff0000, v{X+i}")
            if i == 0: a(f"v_pk_mul_f32 v[28:29], {vr(F,2)}, {vr(F,2)}")
            else:
                a(f"v_pk_add_f32 v[26:27], {vr(F+2*i,2)}, {vr(F,2) if i == 1 else 'v[26:27]'}")
                a(f"v_pk_fma_f32 v[28:29], {vr(F+2*i,2)}, {vr(F+2*i,2)}, v[28:29]")
        a("v_add_f32 v26, v26, v27")
        a("v_add_f32 v28, v28, v29")
        for m in ("quad_perm:[1,0,3,2]", "quad_perm:[2,3,0,1]", "row_half_mirror"):
            a(f"v_add_f32_dpp v26, v26, v26 {m} row_mask:0xf bank_mask:0xf")
            a(f"v_add_f32_dpp v28, v28, v28 {m} row_mask:0xf bank_mask:0xf")
        a(f"v_mul_f32 v26, {hex(f2u(-1.0/512))}, v26")
        a(f"v_mul_f32 v28, {hex(f2u(1.0/512))}, v28")
        a("v_fma_f32 v28, -v26, v26, v28")
        a("v_max_f32 v28, 0, v28")
        a(f"v_add_f32 v28, {hex(f2u(1e-5))}, v28")
        a("v_rsq_f32 v28, v28")
        a("v_mul_f32 v26, v26, v28")
        for i in range(32):
            a(f"v_pk_fma_f32 {vr(F+2*i,2)}, {vr(F+2*i,2)}, v[28:29], v[26:27] op_sel_hi:[1,0,0]")
            a(f"v_cvt_pk_bf16_f32 v{X+i}, v{F+2*i}, v{F+2*i+1}")
            if i % 4 == 3: a(f"ds_write_b128 v{224+i//4}, {vr(X+i-3,4)}")
        a(f"s_cmp_lg_u32 s{sROLE}, 0")
        a("s_cbranch_scc1 L_lnL")
    def ln_addr(self):
        a = self.a
        a("v_lshlrev_b32 v6, 4, v4")
        a("v_xor_b32 v6, v6, v5")
        a("v_lshl_add_u32 v6, v5, 5, v6")
        self.sx(sT0, 0, (sW, 32768, 2), (sW, 128, 0, 3))
        a(f"v_add_u32 v6, s{sT0}, v6")
        self.sx(sT3, 0, (sJ, 1, 2), (sJ, 6, 0, 3))
        for i in range(8):
            if i: a(f"s_add_u32 s{sT3}, s{sT3}, 1")
            self.sx(sT0, 0, (sT3, 4096, 0, 7))
            a(f"v_add_u32 v{224+i}, s{sT0}, v6")

    def entry_stamp(self):
        if not self.stamps: return
        a = self.a
        a(f"s_lshl_b32 s{sTSI}, s2, 3")
        self.sx(sTSI, TSB, (sTSI, 1024), (sW, 1024))
        a(f"v_mov_b32 v18, s{sE0}")
        a(f"v_mov_b32 v19, s{sE1}")
        a("s_mov_b64 exec, 1")
        self.vm(f"buffer_store_dwordx2 v[18:19], off, {SRD(WS)}, s{sTSI}")
        a("s_mov_b64 exec, -1")
        a(f"s_add_u32 s{sTSI}, s{sTSI}, 8")
        self.seq.append("entry")

    def consts(self):
        a = self.a
        a(f"s_mov_b32 s{sLAY}, 0")
        a(f"s_mov_b32 s{sSLOW}, 0")
        a(f"s_mov_b32 s{sCODE}, 0")
        a(f"s_mov_b32 s{sTMO}, 100000")
        a(f"s_mov_b32 s{sHI}, 0")
        a(f"s_mov_b32 s{sHI+1}, -1")
        a(f"s_mov_b32 s{sN16}, 0xffff0000")
        a(f"s_mov_b32 s{sN16+1}, 0xffff0000")
        self.sx(sFG, FL, (sG, FL_STR))
        a(f"s_mov_b32 s{sFB}, s{sFG}")
        self.sx(sMYF, 0, (sJ, 32), (sW, 4), (sFG, 1))
        self.sx(sKVH, KVG, (sJ, 131072))

    def flag_watch(self, r, t, layer):
        m = 1 if layer else 3
        return [f"v_bfe_u32 v{r}, v0, 2, 3", f"v_lshlrev_b32 v{r}, 14, v{r}", f"v_and_b32 v{t}, {m}, v0", f"v_lshl_add_u32 v{r}, v{t}, 7, v{r}",
                lambda: self.sx(sKVA, FL + F_KV + 4096 * layer, (sJ, 128, 0, 31 - m), (sJ, 4, 0, m))]

    def wtr_addr(self, r, t, hp_terms, perm):
        a = self.a
        self.sx(sT0, 0, *hp_terms)
        a(f"v_bfe_u32 v{r}, v0, 3, 1")
        a(f"v_lshlrev_b32 v{r}, 6, v{r}")
        a(f"v_xor_b32 v{r}, s{sT0}, v{r}")
        a(f"v_and_b32 v{t}, 3, v0")
        a(f"v_lshl_add_u32 v{r}, v{t}, 3, v{r}")
        a(f"v_bfe_u32 v{t}, v0, 4, 1")
        a(f"v_lshl_add_u32 v{r}, v{t}, 5, v{r}")
        a(f"v_bfe_u32 v{t}, v0, 2, 2")
        a(f"v_lshl_add_u32 v{r}, v{t}, 7, v{r}")
        a(f"v_lshrrev_b32 v{t}, 5, v0")
        a(f"v_mul_u32_u24 v{t}, {512 if perm else 3072}, v{t}")
        a(f"v_add_u32 v{r}, v{r}, v{t}")

    QF, KA, VA0, VA1, IDX, Q2, KM, FA = 8, 16, 17, 20, 21, 22, 24, 25
    S0, S1, CC, OO, KF, VF = 32, 48, (64, 80), (96, 112), 128, 136
    AQ, AK, AV = 32, 48, 64

    def attn_setup(self, layer):
        f = ["v_and_b32 v2, 0x330, v1", "v_bfe_u32 v30, v0, 2, 1", "v_lshl_add_u32 v2, v30, 7, v2",
             "v_bfe_u32 v30, v0, 3, 1", "v_lshl_add_u32 v2, v30, 6, v2",
             "v_lshrrev_b32 v29, 5, v0", "v_and_b32 v30, 0xf0, v1", "v_lshl_add_u32 v30, v29, 8, v30",
             "v_bfe_u32 v28, v0, 4, 1", "v_lshl_add_u32 v3, v28, 17, v30", "v_lshl_add_u32 v4, v28, 11, v30",
             f"s_lshl_b32 s{sT0}, s{sW}, 3", f"s_add_u32 s{sT0}, s{sT0}, {KSL}", f"v_lshl_add_u32 v5, v29, 2, s{sT0}",
             f"v_add_u32 v{self.KA}, {KVB}, v1",
             "v_and_b32 v31, 15, v0", "v_min_u32 v31, 1, v31", f"v_mov_b32 v28, {KVB+2048}",
             "v_lshl_add_u32 v28, v31, 16, v28",
             f"v_add_u32 v30, {KVB+1024}, v30", f"v_cndmask_b32 v{self.VA0}, v30, v28, s[{sN16}:{sN16+1}]",
             "v_add_u32 v30, 512, v30", f"v_cndmask_b32 v{self.VA1}, v30, v28, s[{sN16}:{sN16+1}]",
             f"v_mov_b32 v{self.IDX}, 0xdddddddd"]
        f += self.flag_watch(self.FA, 31, layer)
        f += [f"v_mov_b32 v{self.OO[0]+i}, 0" for i in range(32)]
        return f

    def qkv1(self):
        a = self.a
        a(f"s_mov_b32 s{sROLE}, 0")
        self.vq = ["x"]
        self.entry_stamp()
        self.stamp("issued")
        self.consts()
        a(f"s_lshr_b32 s{sKH}, s{sW}, 1")
        self.sx(sTL, 0, (sJ, 2, 3), (sW, 1, 0, 1))
        self.sx(sT0, 0, (sJ, 2, 0, 7), (sKH, 1))
        self.sx(sT1, 0, (sG, 8), (sTL, 1))
        self.sx(sKT, XF, (sT1, 32768), (sT0, 2048))
        self.sx(sKS, ST, (sT1, 4096), (sT0, 1024, 2), (sT0, 4, 0, 3))
        self.sx(sOS, HF, (sT1, HT), (sKH, 16384))
        self.sx(sHS, HF, (sT1, HT), (sKH, 8192))
        self.sx(sOUT, 0, (sT1, 32768), (sT0, 64))
        self.sx(sT1, 0, (sG, 8), (sJ, 4, 4), (sW, 1))
        self.sx(sUX, XF, (sT1, 32768))
        self.sx(sUS, ST, (sT1, 4096))
        self.sx(sUC, CS13, (sJ, 7 * 1024, 0, 15))
        self.sx(sHD, HF, (sT1, HT), (sJ, 1024, 0, 15))
        self.sx(sT1, 0, (sG, 8), (sJ, 4, 0, 1), (sW, 1))
        self.sx(sQX, XF, (sT1, 32768))
        self.sx(sQS, ST, (sT1, 4096))
        self.sx(sOD, HF, (sG, 8 * HT), (sW, 2 * HT), (sJ, 1024))
        self.sx(sT1, 0, (sG, 8), (sJ, 2, 0, 3), (sW, 1, 0, 1))
        self.sx(sT0, 0, (sJ, 1, 0, 28), (sW, 1, 0, 2))
        self.sx(sKG, KVG, (sT0, 131072), (sT1, 2048))
        self.sx(sQL, HF, (sT1, HT), (sT0, 1024))
        self.sx(sKL, 32768, (sT0, 1024), (sQL, 1))
        self.ln_addr()
        self.sx(sT1, 0, (sW, 32768, 0, 1))
        a("v_lshrrev_b32 v6, 5, v0")
        for k in range(4):
            a(f"v_lshl_add_u32 v7, v6, 4, {32*k}" if k < 3 else "v_lshlrev_b32 v7, 4, v6")
            if k == 3: a("v_add_u32 v7, 96, v7")
            a("v_xor_b32 v7, v7, v1")
            a(f"v_add_u32 v{8+k}, s{sT1}, v7")
        self.wtr_addr(12, 13, [(sW, 64, 1)], False)
        a(f"v_add_u32 v12, {WRING}, v12")
        a(f"v_add_u32 v13, {2*WSTG}, v12")
        self.emit(self.attn_setup(0))
        self.wait(vm="x")
        self.stamp("x landed")
        self.layernorm()
        self.stamp("ln done")
        R = 128
        def reads(k):
            b = R + 16 * (k % 3); st = (k >> 2) & 3
            L = [f"ds_read_b128 {vr(b,4)}, v{8+(k&3)} offset:{k*1024}"]
            for part in range(3):
                for h2 in range(2):
                    L.append(f"ds_read_b64_tr_b16 {vr(b+4+4*part+2*h2,2)}, v{12+(st>>1)} offset:{(st&1)*WSTG+(k&3)*6144+part*1024+h2*512}")
            return L
        a("s_waitcnt lgkmcnt(0)")
        a("s_barrier")
        self.emit(reads(0) + reads(1))
        for k in range(32):
            b = R + 16 * (k % 3)
            nx = reads(k + 2) if k + 2 < 32 else []
            bar = (k & 3) == 2 and nx
            a(f"s_waitcnt lgkmcnt({7 if k < 31 else 0})")
            a(f"v_mfma_f32_32x32x16_bf16 {vr(self.AK,16)}, {vr(b+8,4)}, {vr(b,4)}, {vr(self.AK,16) if k else '0'}")
            if bar:
                a("s_waitcnt lgkmcnt(0)")
                a("s_barrier")
            self.emit(nx[:3])
            a(f"v_mfma_f32_32x32x16_bf16 {vr(self.AV,16)}, {vr(b,4)}, {vr(b+12,4)}, {vr(self.AV,16) if k else '0'}")
            self.emit(nx[3:5])
            a(f"v_mfma_f32_32x32x16_bf16 {vr(self.AQ,16)}, {vr(b+4,4)}, {vr(b,4)}, {vr(self.AQ,16) if k else '0'}")
            self.emit(nx[5:])
        a("s_barrier")
        self.stamp("qkv main")
        a(f"v_mov_b32 v6, {hex(f2u(SIG))}")
        a(f"v_mov_b32 v30, {MODE}")
        a("ds_read_b32 v30, v30")
        self.qkv_epilogue(0, None, 6, None)
        if self.dg:
            self.wait(vm="all", ds="all")
            a("s_barrier")
        self.stamp("qkv done")

    def qkv_epilogue(self, layer, RS, RQ, RR):
        a = self.a
        AQ, AK, AV, T = self.AQ, self.AK, self.AV, 152
        sc = lambda b, r: [a(f"v_pk_mul_f32 {vr(b+i,2)}, {vr(b+i,2)}, {vr(r,2)} op_sel_hi:[1,0]") for i in range(0, 16, 2)]
        cv = lambda b, d: [a(f"v_cvt_pk_bf16_f32 v{d+i}, v{b+2*i}, v{b+2*i+1}") for i in range(8)]
        loc = layer or not self.dg
        if layer: sc(AK, RS)
        cv(AK, T)
        if loc:
            for u in range(2): self.vm(f"buffer_store_dwordx4 {vr(T+4*u,4)}, v2, {SRD(WS)}, s{sKL} offen offset:{2048*u}")
        else: self.kv_global((0, 1))
        if layer:
            for i in range(0, 16, 2): a(f"v_pk_mul_f32 {vr(AV+i,2)}, {vr(AV+i,2)}, {vr(RR+i,2)}")
        cv(AV, T + 8)
        if loc:
            for u in range(2): self.vm(f"buffer_store_dwordx4 {vr(T+8+4*u,4)}, v4, {SRD(WS)}, s{sKL} offen offset:{1024+512*u}")
        else: self.kv_global((2, 3))
        sc(AQ, RQ)
        cv(AQ, T + 16)
        for u in range(2): self.vm(f"buffer_store_dwordx4 {vr(T+16+4*u,4)}, v1, {SRD(WS)}, s{sQL} offen offset:{1024*u} {'' if loc else 'sc1'}", "loc")
        if loc and self.o("gl", 1) == 0: self.kv_global()
        if layer == 0:
            a("s_waitcnt lgkmcnt(0)")
            a(f"v_readfirstlane_b32 s{sSLOW}, v30")
            a(f"s_lshl_b32 s{sT0}, s{sSLOW}, 10")
            a(f"s_add_u32 s{sFB}, s{sFB}, s{sT0}")
            a(f"s_add_u32 s{sMYF}, s{sMYF}, s{sT0}")
        for h in range(2):
            a(f"v_pk_mul_f32 {vr(26+2*h,2)}, {vr(AK+8*h,2)}, {vr(AK+8*h,2)}")
        for i in (2, 4, 6):
            for h in range(2): a(f"v_pk_fma_f32 {vr(26+2*h,2)}, {vr(AK+8*h+i,2)}, {vr(AK+8*h+i,2)}, {vr(26+2*h,2)}")
        a("v_add_f32 v26, v26, v27")
        a("v_add_f32 v28, v28, v29")
        a("v_permlane32_swap_b32 v26, v28")
        a("v_add_f32 v26, v26, v28")
        if loc:
            self.publish(27, C_Q, tag="loc")
            if self.o("gl", 1) == 1: self.kv_global()
        self.emit(self.wave_umax(26, 28))
        a("v_or_b32 v26, 1, v26")
        self.ds("ds_write_b32 v5, v26")

    def kv_global(self, which=(0, 1, 2, 3)):
        T = 152
        for k in which:
            if k == 1: self.a(f"s_add_u32 s{sT1}, s{sKG}, 131072")
            if k < 2: self.vm(f"buffer_store_dwordx4 {vr(T+4*k,4)}, v2, {SRD(WS)}, s{sT1 if k else sKG} offen sc1")
            else: self.vm(f"buffer_store_dwordx4 {vr(T+4*k,4)}, v3, {SRD(WS)}, s{sKG} offen offset:{512*k} sc1")

    def wave_umax(self, r, t):
        L = [f"v_max_u32_dpp v{r}, v{r}, v{r} {m} row_mask:0xf bank_mask:0xf"
             for m in ("quad_perm:[1,0,3,2]", "quad_perm:[2,3,0,1]", "row_half_mirror", "row_mirror")]
        return L + [f"v_mov_b32 v{t}, v{r}", f"v_permlane16_swap_b32 v{r}, v{t}", f"v_max_u32 v{r}, v{r}, v{t}"]

    def qkv2(self):
        a = self.a
        X, NX, WD = 128, 12, self.o("qw", 10)
        AQ, AK, AV = self.AQ, self.AK, self.AV
        RING, STT, RR, MU, RS, RQ = 176, 208, 224, 240, 6, 244
        self.sx(sT1, 0, (sJ, 4, 0, 1), (sW, 1))
        self.emit(self.x_flag_addr(14, 15, sT1))
        a(f"v_add_u32 v12, {SLICE-3072}, v1")
        a(f"v_add_u32 v13, {SLICE+49152}, v1")
        self.publish(11, C_X2)
        self.stamp("down done")
        self.sx(sT1, 0, (sT1, 1), (sG, 8))
        self.sx(sKG, KVG + KV_STR, (sJ, 131072, 0, 30), (sT1, 2048))
        self.sx(sQL, HF, (sT1, HT), (sJ, 1024, 0, 30))
        self.sx(sKL, 32768, (sJ, 1024, 0, 30), (sQL, 1))
        a(f"s_add_u32 s{sKVH}, s{sKVH}, {KV_STR}")
        self.dq.clear(); self.forget()
        def xl(k):
            def f():
                if k % 4 == 0:
                    a(f"s_lshl_b32 s{sT5}, s{sJ}, 1")
                    a(f"s_add_u32 s{sT5}, s{sT5}, {k >> 2}")
                    self.sx(sT5, 0, (sT5, 4096, 0, 7), (sQX, 1))
                self.vm(f"buffer_load_dwordx4 {vr(X+4*(k%NX),4)}, v1, {SRD(WS)}, s{sT5} offen offset:{(k&3)*1024} sc1", ("x", k))
            return f
        seq = [(k, xl(k)) for k in range(32)]
        for q in range(4): seq.insert(8 + 2 * q, (8 + q, self.fload(STT + 4 * q, sQS, q * 1024, "st", tmp=sT4)))
        init, per = self.ramp(seq, 32, self.o("q0", 4), WD)
        items = []
        def trio(rd, xr, z):
            w = lambda acc: (lambda r: f"v_mfma_f32_32x32x16_bf16 {vr(acc,16)}, {vr(r,4)}, {xr}, {'0' if z else vr(acc,16)}")
            return [dict(read=rd(1), mfma=w(AK)),
                    dict(read=rd(2), mfma=lambda r: f"v_mfma_f32_32x32x16_bf16 {vr(AV,16)}, {xr}, {vr(r,4)}, {'0' if z else vr(AV,16)}"),
                    dict(read=rd(0), mfma=w(AQ))]
        for k in range(32):
            t3 = trio(lambda p, k=k: (12, 3072 + k * 3072 + p * 1024) if k < 16 else (13, (k - 16) * 3072 + p * 1024), vr(X + 4 * (k % NX), 4), k == 0)
            t3[0]["vm"] = ("x", k)
            for c in range(2): t3[c]["post"] = list(per.get(k, [])[c::2])
            items += t3
            if k == 24: items += trio(lambda p: (12, p * 1024), vr(MU, 4), False)
        items[0]["bar"] = True
        st = [lambda: self.wait(vm="st")] + self.stats_ops(STT, MU, RS, RQ)
        st += [f"s_lshl_b32 s{sT0}, s{sW}, 7", "v_and_b32 v26, 31, v0", f"v_lshl_add_u32 v26, v26, 2, s{sT0}",
               lambda: self.ds(f"ds_write_b32 v26, v{RS}"),
               "v_lshrrev_b32 v27, 5, v0", f"v_lshl_add_u32 v27, v27, 4, s{sT0}", f"v_mul_f32 v{RQ}, {hex(f2u(SIG))}, v{RS}"]
        st += [lambda i=i: self.ds(f"ds_read_b128 {vr(RR+4*i,4)}, v27 offset:{32*i}") for i in range(4)]
        self.spread(items, 40, 72, st)
        self.spread(items, 4, 40, self.attn_setup(1))
        self.stream_begin(items, 8, RING)
        self.poll(14, 15, C_X2)
        self.stamp("x2 polled")
        self.emit(init)
        self.stream_run()
        a("s_barrier")
        self.stamp("qkv main")
        a(f"s_mov_b32 s{sLAY}, 1")
        a(f"s_mov_b32 s{sCODE}, 16")
        self.qkv_epilogue(1, RS, RQ, RR)
        self.stamp("qkv done")
        a("s_branch L_attn")

    def attention(self):
        a = self.a
        S = [self.S0, self.S1]; K = [self.KF, self.KF + 4]; V = [self.VF, self.VF + 8]
        Q = [self.QF, self.QF + 4]; C, O, IDX, Q2 = self.CC, self.OO, self.IDX, self.Q2
        off = lambda t: ((t >> 3) & 1) * SLOT + (t & 7) * TSTR
        kread = lambda t: f"ds_read_b128 {vr(K[t&1],4)}, v{self.KA} offset:{off(t)}"
        vread = lambda t, u: f"ds_read_b128 {vr(V[t&1]+4*u,4)}, v{self.VA1 if u else self.VA0} offset:{off(t)}"
        qk = lambda t, q: f"v_mfma_f32_32x32x16_bf16 {vr(S[q],16)}, {vr(K[t&1],4)}, {vr(Q[q],4)}, {vr(C[q],16)}"
        pv = lambda t, q, u: f"v_smfmac_f32_32x32x32_bf16 {vr(O[q],16)}, {vr(V[t&1]+4*u,4)}, {vr(S[q]+8*u,8)}, v{IDX}"
        ast = self.o("ast", 0)
        a.label("L_attn")
        self.vq.clear(); self.dq.clear(); self.forget()
        a(f"s_lshl_b32 s{sT0}, s{sW}, 11")
        a(f"v_add_u32 v26, s{sT0}, v1")
        a("s_waitcnt lgkmcnt(0)")
        a("s_barrier")
        self.stamp("A0")
        for q in range(2): a(f"ds_read_b128 {vr(Q[q],4)}, v26 offset:{QA+1024*q}")
        a(kread(0)); a(vread(0, 0)); a(vread(0, 1))
        assert self.o("gl", 1) < 2 or not self.dg
        if self.o("gl", 1) == 2: self.kv_global()
        a("s_waitcnt lgkmcnt(3)")
        for i in range(4):
            for q in range(2): a(f"v_dot2_f32_bf16 v{Q2+q}, v{Q[q]+i}, v{Q[q]+i}, {'v%d' % (Q2+q) if i else '0'}")
        a("s_nop 2")
        a(f"v_permlane32_swap_b32 v{Q2}, v{Q2+1}")
        a(f"v_add_f32 v{Q2}, v{Q2}, v{Q2+1}")
        a(f"v_mul_f32 v26, {hex(f2u(-1.0/SIG))}, v{Q2}")
        a(f"v_max_f32 v26, {hex(f2u(-TBOUND))}, v26")
        a("v_mov_b32 v28, v26")
        a("v_permlane32_swap_b32 v26, v28")
        for i in range(0, 16, 2): a(f"v_pk_mov_b32 {vr(C[0]+i,2)}, v[26:27], v[26:27] op_sel:[0,0]")
        a("s_waitcnt lgkmcnt(0)")
        a(qk(0, 0))
        for i in range(0, 16, 2): a(f"v_pk_mov_b32 {vr(C[1]+i,2)}, v[28:29], v[28:29] op_sel:[0,0]")
        jobs = {}
        def job(t, f): jobs.setdefault(t, []).append(f)
        def e1():
            a("s_waitcnt vmcnt(0)")
            a("s_barrier")
        job(self.o("e1t", 0), e1)
        def res():
            L, D = a.newlabel("rs"), a.newlabel("rd")
            a(f"s_cmp_eq_u32 s{sLAY}, 0")
            a(f"s_cbranch_scc1 {L}")
            for u in range(2): a(f"buffer_load_dwordx4 {vr(192+4*u,4)}, v1, {SRD(WS)}, s{sKT} offen offset:{1024*u} sc1")
            self.tails2.append((L, D))
            a.label(D)
        job(7, res)
        job(56, lambda: a(f"buffer_load_dword v{self.KM}, v{self.FA}, {SRD(WS)}, s{sKVA} offen sc1"))
        def check():
            a("s_waitcnt vmcnt(0)"); self.vq.clear()
            self.emit(self.wave_umax(self.KM, 26))
            a(f"v_mul_f32 v26, v{Q2}, v{self.KM}")
            a(f"v_cmp_nge_f32 s[{sBAD}:{sBAD+1}], s{sT0}, v26")
        job(62, lambda: a(f"s_mov_b32 s{sT0}, {hex(f2u(-1.0 if self.force_fallback else TBOUND*TBOUND))}"))
        job(62, check)
        p1, pq, p0 = self.o("p1", 2), self.o("pqk", 5), self.o("p0", 11)
        def unit(t, q):
            c = S[q]
            tp, qp = (t, 0) if q else (t - 1, 1)
            tn, qn = (t + 1, 0) if q else (t, 1)
            nxt = t < 63 and q == 0
            for i in range(16):
                if i == p1:
                    if tp >= 0: a(pv(tp, qp, 1))
                    if nxt:
                        if (t & 7) == 7:
                            if ast: self.dstamp(f"a{(t+1)>>3} arr", 204)
                            a("s_barrier")
                            if ast: self.dstamp(f"a{(t+1)>>3} bar", 204)
                        a(kread(t + 1))
                    if q: a("s_waitcnt lgkmcnt(0)")
                if i == pq:
                    if tn < 64: a(qk(tn, qn))
                    if nxt: a(vread(t + 1, 0))
                if i == p0:
                    a(pv(t, q, 0))
                    if nxt: a(vread(t + 1, 1))
                    if q:
                        for f in jobs.get(t, []): f()
                a(f"v_exp_f32 v{c+i}, v{c+i}")
        roll = self.o("roll", 1) and not ast
        a("@align")
        for t in range(64):
            if roll and t == 8:
                a(f"s_mov_b32 s{sT5}, 3")
                a.label("L_aloop")
            if roll and 24 <= t < 56: continue
            for q in range(2): unit(t, q)
            if roll and t == 23:
                a(f"s_sub_u32 s{sT5}, s{sT5}, 1")
                a(f"s_cmp_lg_u32 s{sT5}, 0")
                a("s_cbranch_scc1 L_aloop")
        a("@noalign")
        a(pv(63, 1, 1))
        a(f"s_cmp_lg_u64 s[{sBAD}:{sBAD+1}], 0")
        a("s_cbranch_scc1 L_fallback")
        a.label("L_attn_fin")
        if ast: self.dflush()
        self.stamp("attn loop")
        a(f"s_add_u32 s{sT0}, s{sOD}, {HT}")
        for q in range(2):
            a(f"v_mov_b32 v26, v{O[q]+8}")
            a(f"v_permlane32_swap_b32 v26, v{O[q]+8}")
            a("v_rcp_f32 v26, v26")
            for i in range(0, 8, 2): a(f"v_pk_mul_f32 {vr(O[q]+i,2)}, {vr(O[q]+i,2)}, v[26:27] op_sel_hi:[1,0]")
            for i in range(4): a(f"v_cvt_pk_bf16_f32 v{244+4*q+i}, v{O[q]+2*i}, v{O[q]+1+2*i}")
            self.vm(f"buffer_store_dwordx4 {vr(244+4*q,4)}, v1, {SRD(WS)}, s{sT0 if q else sOD} offen", "o")

    def res_tails(self):
        a = self.a
        for L, D in self.tails2:
            a.label(L)
            a("v_and_b32 v26, 31, v0")
            a("v_lshlrev_b32 v26, 10, v26")
            a("v_lshrrev_b32 v28, 5, v0")
            a("v_lshl_add_u32 v26, v28, 3, v26")
            for i in range(4): a(f"buffer_load_dwordx2 {vr(192+2*i,2)}, v26, {SRD(SA)}, s{sOUT} offen offset:{16*i}")
            a(f"s_branch {D}")

    def fallback(self):
        a = self.a
        S, K, V, IDX = self.S0, self.KF, self.VF, self.IDX
        a.label("L_fallback")
        a(f"s_add_u32 s{sT3}, s{sKVH}, 131072")
        a(f"v_subrev_u32 v28, {KVB}, v{self.VA0}")
        a("s_nop 7")
        for i in range(8): a(f"v_mov_b32 v{V+i}, 0x3f803f80")
        for q in range(2):
            Q, C, O = self.QF + 4 * q, self.CC[q], self.OO[q]
            a(f"s_mov_b32 s{sT0}, s{sKVH}")
            a("v_mov_b32 v26, 0xff800000")
            a.label(f"L_fb1_{q}")
            a(f"buffer_load_dwordx4 {vr(K,4)}, v1, {SRD(WS)}, s{sT0} offen sc1")
            a("s_waitcnt vmcnt(0)")
            a(f"v_mfma_f32_32x32x16_bf16 {vr(S,16)}, {vr(K,4)}, {vr(Q,4)}, 0")
            for i in range(8): a(f"v_max3_f32 v26, v{S+2*i}, v{S+2*i+1}, v26")
            a(f"s_add_u32 s{sT0}, s{sT0}, 2048")
            a(f"s_cmp_lt_u32 s{sT0}, s{sT3}")
            a(f"s_cbranch_scc1 L_fb1_{q}")
            a("v_mov_b32 v27, v26")
            a("v_permlane32_swap_b32 v26, v27")
            a("v_max_f32 v26, v26, v27")
            for i in range(16): a(f"v_sub_f32 v{C+i}, 0, v26")
            for i in range(16): a(f"v_mov_b32 v{O+i}, 0")
            a(f"s_mov_b32 s{sT0}, s{sKVH}")
            a.label(f"L_fb2_{q}")
            a(f"buffer_load_dwordx4 {vr(K,4)}, v1, {SRD(WS)}, s{sT0} offen sc1")
            a(f"s_not_b64 exec, s[{sN16}:{sN16+1}]")
            a(f"buffer_load_dwordx4 {vr(V,4)}, v28, {SRD(WS)}, s{sT0} offen sc1")
            a(f"buffer_load_dwordx4 {vr(V+4,4)}, v28, {SRD(WS)}, s{sT0} offen offset:512 sc1")
            a("s_mov_b64 exec, -1")
            a("s_waitcnt vmcnt(0)")
            a(f"v_mfma_f32_32x32x16_bf16 {vr(S,16)}, {vr(K,4)}, {vr(Q,4)}, {vr(C,16)}")
            for i in range(16): a(f"v_exp_f32 v{S+i}, v{S+i}")
            for u in range(2):
                a(f"v_smfmac_f32_32x32x32_bf16 {vr(O,16)}, {vr(V+4*u,4)}, {vr(S+8*u,8)}, v{IDX}")
            a("s_nop 11")
            a(f"s_add_u32 s{sT0}, s{sT0}, 2048")
            a(f"s_cmp_lt_u32 s{sT0}, s{sT3}")
            a(f"s_cbranch_scc1 L_fb2_{q}")
        a("s_branch L_attn_fin")

    RW, HOLD = 24, 152
    def lbar(self, nm, tag=None, ds=None):
        self.wait(vm=tag)
        if ds is not None: self.a(f"s_waitcnt lgkmcnt({ds})")
        on = nm[0] in self.opt.get("ls", "")
        if on: self.stamp(nm + " arr")
        self.a("s_barrier")
        if on: self.stamp(nm)
    def only_w4(self, fn, extra=None):
        a = self.a
        L = a.newlabel("w4")
        q = list(self.vq)
        if extra is None: a(f"s_cmp_lg_u32 s{sL}, 0")
        else: a(f"s_or_b32 s{sT0}, s{sL}, s{extra}")
        a(f"s_cbranch_scc1 {L}")
        fn()
        a.label(L)
        self.vq = q
    def code_touch(self):
        self.vm(f"global_load_dword v14, v5, s[{sPC}:{sPC+1}]")
    def rload(self, slot, src, unit):
        b = self.RW + 16 * slot
        self.a(f"s_add_u32 s{sT7}, s{src}, {unit*16384}")
        for i in range(4): self.vm(f"buffer_load_dwordx4 {vr(b+4*i,4)}, v1, {SRD(WS)}, s{sT7} offen offset:{i*1024} {self.wpol}", ("r", slot))
    def lsync(self, n):
        a = self.a
        a(f"v_mov_b32 v8, {LSY}")
        a("v_mov_b32 v9, 1")
        a("s_mov_b64 exec, 1")
        a("ds_add_u32 v8, v9")
        def body():
            a("ds_read_b32 v9, v8")
            a("s_waitcnt lgkmcnt(0)")
            a(f"v_cmp_gt_u32 vcc, {4*n}, v9")
        self.spin(body)
        a("s_mov_b64 exec, -1")

    def start_loader(self):
        a = self.a
        a.label("L_startL")
        self.vq = ["x"]; self.dq.clear()
        a(f"s_mov_b32 s{sROLE}, 1")
        a("v_mul_u32_u24 v16, 3072, v4")
        a("v_lshlrev_b32 v8, 2, v0")
        a("v_and_b32 v8, 64, v8")
        a("v_xor_b32 v8, v8, v5")
        a("v_add_u32 v16, v16, v8")
        a(f"s_sub_u32 s{sL}, s{sW}, 4")
        self.sx(sQ, 0, (sL, 16 * 3072), (sJ, 128, 2))
        self.sx(sT4, WRING, (sL, 6144))
        a(f"s_lshl_b32 s{sL}, s{sL}, 12")
        self.srd(SB, P_WQKV, 512 * 3072)
        self.srd(DBG, P_DBG, 256)
        self.sx(sFG, FL, (sG, FL_STR))
        a(f"s_getreg_b32 s{sXCC}, hwreg(HW_REG_XCC_ID, 0, 4)")
        if self.force_slow: a(f"s_and_b32 s{sXCC}, s{sJ}, 1")
        a(f"s_or_b32 s{sXCC}, s{sXCC}, 16")
        def clear():
            for r in range(20, 24): a(f"v_mov_b32 v{r}, 0")
            a("v_lshrrev_b32 v8, 1, v0")
            a("v_lshlrev_b32 v8, 7, v8")
            a("v_and_b32 v9, 16, v1")
            a("v_add_u32 v8, v8, v9")
            a(f"s_add_u32 s{sT0}, s{sFG}, {F_KV}")
            a(f"s_add_u32 s{sT1}, s{sFG}, {F_KV+4096}")
            for o in (0, 1024): a(f"buffer_store_dwordx4 v[20:23], v1, {SRD(WS)}, s{sFG} offen offset:{o} sc1")
            for r in (sT0, sT1): a(f"buffer_store_dwordx4 v[20:23], v8, {SRD(WS)}, s{r} offen sc1")
        self.only_w4(clear, sJ)
        def stage(s):
            a(f"s_lshl_b32 s{sT5}, s{sJ}, 1")
            a(f"s_add_u32 s{sT5}, s{sT5}, {s}")
            self.sx(sT5, 0, (sT5, 64 * 3072, 0, 7), (sQ, 1))
            for pc in range(2):
                a(f"s_add_u32 m0, s{sT4}, {(s&3)*WSTG + pc*3072}")
                if pc: a(f"s_add_u32 s{sT5}, s{sT5}, {8*3072}")
                for part in range(3):
                    self.vm(f"buffer_load_dwordx4 v16, {SRD(SB)}, s{sT5} offen offset:{part*1024} lds", ("w", s))
        pre = self.o("wpre", 1); LA = self.o("la", 2)
        for s in range(pre): stage(s)
        self.entry_stamp()
        self.stamp("issued")
        self.consts()
        self.ln_addr()
        self.wtr_addr(17, 8, [(sJ, 64, 1, 1)], True)
        a(f"v_add_u32 v17, s{sT4}, v17")
        a(f"v_add_u32 v15, {2*WSTG}, v17")
        a("v_and_b32 v11, 28, v0")
        self.wait(vm="x")
        def ready():
            a(f"s_lshl_b32 s{sT0}, s{sG}, 2")
            a(f"v_mov_b32 v8, s{sXCC}")
            a("s_mov_b64 exec, 1")
            a(f"buffer_store_dword v8, off, {SRD(DBG)}, s{sT0} offset:{D_GRDY} sc1")
            a("s_mov_b64 exec, -1")
        self.only_w4(ready, sJ)
        mid = self.o("wmid", 2)
        for s in range(pre, mid): stage(s)
        a("s_branch L_ln")
        a.label("L_lnL")
        for s in range(mid, LA): stage(s)
        for s in range(8):
            self.wait(vm=("w", s))
            if s == 0: a("s_waitcnt lgkmcnt(0)")
            for part in range(3):
                for h2 in range(2):
                    a(f"ds_read_b64_tr_b16 {vr(self.HOLD+12*s+4*part+2*h2,2)}, v{15 if s & 2 else 17} offset:{(s&1)*WSTG+part*1024+h2*3072}")
            self.lbar(f"G{s}")
            if s == 1: self.vm(f"buffer_load_dword v13, v11, {SRD(DBG)}, 0 offen offset:{D_GRDY} sc1", "grdy")
            if s == 3: self.hello()
            if s + LA < 8:
                a("s_waitcnt lgkmcnt(6)")
                stage(s + LA)
            if s == 6:
                self.mode_look()
                if not self.dg: self.th(None)
        self.mode()
        self.sx(s13, PW13, (sJ, 7 * 32768, 0, 15), (sL, 1))
        self.sx(s2_, PW2, (sJ, 7 * 32768, 0, 7), (sL, 1))
        self.sx(sWOs, PWO, (sJ, 65536, 0, 7), (sL, 1))
        self.sx(sKVF, F_KV, (sJ, 128), (sFG, 1))

    def th(self, parts):
        a = self.a
        self.sx(sT0, HF, (sG, 8 * HT), (sJ, 4 * 7168), (sL, 7168, 12))
        if parts is None:
            a("v_min_u32 v8, 55, v0")
            a("v_lshlrev_b32 v8, 7, v8")
            self.vm(f"buffer_load_dword v14, v8, {SRD(WS)}, s{sT0} offen sc1")
        else:
            for p in parts:
                a(f"s_add_u32 s{sT1}, s{sT0}, {p*1024}")
                self.vm(f"buffer_load_dword v14, v1, {SRD(WS)}, s{sT1} offen sc1")
    def tx(self):
        a = self.a
        for x in ["v_lshrrev_b32 v8, 5, v0", "v_lshlrev_b32 v8, 15, v8", "v_bfe_u32 v9, v0, 2, 3", "v_lshl_add_u32 v8, v9, 7, v8"]: a(x)
        self.sx(sT0, XF, (sG, 8 * 32768), (sJ, 65536, 3), (sJ, 4096, 0, 7), (sL, 1, 2))
        self.vm(f"buffer_load_dword v14, v8, {SRD(WS)}, s{sT0} offen sc1")
        for x in ["v_lshrrev_b32 v8, 5, v0", "v_lshlrev_b32 v8, 12, v8", "v_lshl_add_u32 v8, v9, 7, v8"]: a(x)
        self.sx(sT0, ST, (sG, 8 * 4096), (sJ, 8192, 3), (sJ, 1024, 1, 3))
        self.vm(f"buffer_load_dword v14, v8, {SRD(WS)}, s{sT0} offen sc1")

    def after_e0(self, layer):
        a = self.a
        self.emit(self.flag_watch(10, 8, layer))
        a(f"s_mov_b64 s[{sRDY}:{sRDY+1}], 0")
        a(f"s_not_b64 s[{sLO}:{sLO+1}], s[{sHI}:{sHI+1}]")
        for r in range(20, 24): a(f"v_mov_b32 v{r}, 0x3f803f80")
        a("v_bfe_u32 v8, v0, 4, 1")
        a(f"v_mul_u32_u24 v8, {TSTR}, v8")
        a("v_lshrrev_b32 v9, 5, v0")
        a(f"v_mul_u32_u24 v9, {SLOT}, v9")
        self.sx(sT1, KVB + 2048, (sL, 1), (sL, 1, 7))
        a(f"v_add3_u32 v8, v8, v9, s{sT1}")
        a("v_and_b32 v12, 1, v0")
        if layer: self.sx(sT0, 0, (sJ, 32, 0, 30), (sL, 32, 13), (sL, 8, 12, 1))
        else: self.sx(sT0, 0, (sJ, 32, 0, 28), (sL, 32, 12), (sJ, 4, 0, 2))
        a(f"v_lshl_add_u32 v12, v12, 2, s{sT0}")
        self.lbar("E0", ds=0)
        a("ds_write_b128 v8, v[20:23]")

    def kv_flag(self, layer):
        a = self.a
        def f():
            a(f"v_mov_b32 v8, {KSL}")
            a("ds_read_b128 v[24:27], v8")
            a("ds_read_b128 v[28:31], v8 offset:16")
            a("s_waitcnt lgkmcnt(0)")
            a("v_max_u32 v24, v24, v26")
            a("v_max_u32 v25, v25, v27")
            a("v_max_u32 v26, v28, v30")
            a("v_max_u32 v27, v29, v31")
            if layer:
                a("v_max_u32 v24, v24, v26")
                a("v_max_u32 v25, v25, v27")
            a("s_mov_b64 exec, 1")
            a(f"buffer_store_dwordx{2 if layer else 4} {vr(24, 2 if layer else 4)}, off, {SRD(WS)}, s{sKVF} sc1")
            a("s_mov_b64 exec, -1")
        self.only_w4(f)

    def kv_need(self, s, layer):
        a = self.a
        L, D, N = a.newlabel("kvn"), a.newlabel("kvd"), a.newlabel("kvr")
        a(f"s_add_u32 s{sT0}, s{sG}, {s}")
        a(f"s_and_b32 s{sT0}, s{sT0}, 7")
        a(f"s_lshl_b32 s{sT1}, s{sT0}, 2")
        a.label(L)
        a(f"s_lshr_b32 s{sT2}, s{sRDY}, s{sT1}")
        a(f"s_andn2_b32 s{sT2}, 15, s{sT2}")
        a(f"s_cbranch_scc0 {D}")
        if layer == 0:
            a(f"s_cmp_eq_u32 s{sEX}, -1")
            a(f"s_cbranch_scc1 {N}")
            a(f"buffer_load_dword v13, v11, {SRD(DBG)}, 0 offen offset:{D_GRDY} sc1")
            a("s_waitcnt vmcnt(0)")
            a(f"v_cmp_ne_u32 s[{sEX}:{sEX+1}], 0, v13")
            a.label(N)
        if s <= self.o("narrow", 1): a(f"s_lshl_b64 exec, 15, s{sT1}")
        else: a(f"s_andn2_b64 exec, s[{sLO}:{sLO+1}], s[{sRDY}:{sRDY+1}]")
        a(f"buffer_load_dword v9, v10, {SRD(WS)}, s{sKVA} offen sc1")
        a("s_waitcnt vmcnt(0)")
        a("v_cmp_ne_u32 vcc, 0, v9")
        a("s_mov_b64 exec, -1")
        a(f"s_and_b32 s{sT2}, vcc_lo, s{sEX}")
        a(f"s_or_b32 s{sRDY}, s{sRDY}, s{sT2}")
        a(f"s_sub_u32 s{sTMO}, s{sTMO}, 1")
        a(f"s_cbranch_scc0 {L}")
        a(f"s_mov_b32 s{sTMO}, 0")
        a.label(D)
    def kv_fetch(self, s, layer):
        a = self.a
        self.kv_need(s, layer)
        self.sx(sT0, 0, (sT0, 16384), (sKVH, 1), (sL, 1))
        self.sx(sT1, 0, (sL, 1), (sL, 1, 7))
        pol = "sc1 nt" if self.o("kvnt", 0) else "sc1"
        self.dma(sT1, KVB + (s & 1) * SLOT, sT0, 0, (0, 1), ("kv", s), pol)
        a("s_add_u32 m0, m0, 16")
        for i in (2, 3):
            self.vm(f"buffer_load_dwordx4 v1, {SRD(WS)}, s{sT7} offen offset:{i*1024} {pol} lds", ("kv", s))
    def q_fetch(self, local):
        a = self.a
        self.sx(sT0, HF, (sG, 8 * HT), (sL, 2 * HT // 4096), (sJ, 1024))
        a(f"s_lshr_b32 s{sT1}, s{sL}, 1")
        for q in range(2): self.dma(sT1, QA + 1024 * q, sT0, q * HT, (0,), ("kv", 0), "sc1")
        if local:
            self.sx(sT0, 32768, (sT0, 1), (sJ, 1024))
            self.sx(sT1, 0, (sL, 1), (sL, 1, 7))
            for q in range(2): self.dma(sT1, KVB + q * TSTR, sT0, q * HT, (0, 1), ("kv", 0), "sc1")

    def prep_flag(self):
        a = self.a
        def f():
            a(f"s_add_u32 s{sT0}, s{sKVF}, 4096")
            a("v_mov_b32 v8, 1")
            a("s_mov_b64 exec, 1")
            a(f"buffer_store_dword v8, off, {SRD(WS)}, s{sT0} offset:16 sc1")
            a("s_mov_b64 exec, -1")
        self.only_w4(f)
    def prep_look(self):
        a = self.a
        a("v_min_u32 v12, 45, v0")
        a("v_lshlrev_b32 v8, 2, v12")
        a(f"s_bfe_u32 s{sT0}, s{sJ}, 0x20001")
        a(f"v_add_u32 v9, s{sT0}, v8")
        a("v_and_b32 v8, 0x70, v8")
        a("v_and_b32 v13, 3, v12")
        a(f"s_and_b32 s{sT0}, s{sJ}, 12")
        a(f"v_add3_u32 v8, v8, v13, s{sT0}")
        a("v_cmp_gt_u32 vcc, 28, v12")
        a("v_cndmask_b32 v8, v9, v8, vcc")
        a("v_and_b32 v12, 7, v8")
        a("v_lshlrev_b32 v12, 14, v12")
        a("v_lshrrev_b32 v8, 3, v8")
        a("v_lshl_add_u32 v12, v8, 7, v12")
        a(f"s_mov_b32 s{sT2}, {FL + F_KV + 4096 + 16}")
        a(f"s_mov_b32 s{sPA}, s{sEX}")
        self.vm(f"buffer_load_dword v15, v12, {SRD(WS)}, s{sT2} offen sc1", "pl")
    def prep_wait(self):
        a = self.a
        D = a.newlabel("pwd")
        self.wait(vm="pl")
        a("v_cmp_eq_u32 vcc, 0, v15")
        a(f"s_orn2_b32 s{sT2}, vcc_lo, s{sPA}")
        a(f"s_or_b32 s{sT2}, s{sT2}, vcc_hi")
        a(f"s_cbranch_scc0 {D}")
        def rdy():
            a(f"buffer_load_dword v13, v11, {SRD(DBG)}, 0 offen offset:{D_GRDY} sc1")
            a("s_waitcnt vmcnt(0)")
            a("v_cmp_eq_u32 vcc, 0, v13")
        self.spin(rdy)
        a(f"s_mov_b32 s{sT2}, {FL + F_KV + 4096 + 16}")
        def body():
            a(f"buffer_load_dword v13, v12, {SRD(WS)}, s{sT2} offen sc1")
            a("s_waitcnt vmcnt(0)")
            a("v_cmp_eq_u32 vcc, 0, v13")
        self.spin(body)
        a.label(D)
        a(f"s_mov_b32 s{sEX}, -1")

    def hello(self):
        a = self.a
        self.wait(vm="grdy")
        a(f"v_cmp_ne_u32 s[{sEX}:{sEX+1}], 0, v13")
        a(f"s_lshl_b32 s{sT1}, s{sG}, 2")
        L = a.newlabel("og")
        a(f"s_bitcmp1_b32 s{sEX}, s{sT1}")
        a(f"s_cbranch_scc1 {L}")
        def rdy():
            a(f"buffer_load_dword v13, off, {SRD(DBG)}, s{sT1} offset:{D_GRDY} sc1")
            a("s_waitcnt vmcnt(0)")
            a("v_cmp_eq_u32 vcc, 0, v13")
        self.spin(rdy)
        a.label(L)
        a(f"v_readlane_b32 s{sT2}, v13, s{sT1}")
        a(f"s_cmp_lg_u32 s{sT2}, s{sXCC}")
        a(f"s_cselect_b32 s{sSLOW}, 1, 0")
        def f():
            S, D = a.newlabel("sh"), a.newlabel("hd")
            a("v_mov_b32 v8, 1")
            a("s_mov_b64 exec, 1")
            a(f"s_cmp_lg_u32 s{sSLOW}, 0")
            a(f"s_cbranch_scc1 {S}")
            a(f"buffer_store_dword v8, off, {SRD(WS)}, s{sMYF}")
            a(f"s_branch {D}")
            a.label(S)
            a(f"buffer_store_dword v8, off, {SRD(DBG)}, s{sT1} offset:{D_SHOUT} sc1")
            a.label(D)
            a("s_mov_b64 exec, -1")
        self.only_w4(f)
    def mode_look(self):
        a = self.a
        a("v_and_b32 v12, 31, v0")
        a("v_lshl_add_u32 v12, v12, 5, 16")
        self.vm(f"buffer_load_dword v13, v12, {SRD(WS)}, s{sFG} offen sc1", "ml")
    def mode(self):
        a = self.a
        L, D = a.newlabel("ml"), a.newlabel("md")
        self.wait(vm="ml")
        a(f"s_lshl_b32 s{sT0}, s{sG}, 2")
        a(f"s_cmp_lg_u32 s{sSLOW}, 0")
        a(f"s_cbranch_scc1 {D}")
        a.label(L)
        a("v_cmp_eq_u32 vcc, 0, v13")
        a(f"s_cbranch_vccz {D}")
        a(f"buffer_load_dword v9, off, {SRD(DBG)}, s{sT0} offset:{D_SHOUT} sc1")
        a(f"buffer_load_dword v13, v12, {SRD(WS)}, s{sFG} offen sc1")
        a("s_waitcnt vmcnt(0)")
        a(f"v_readfirstlane_b32 s{sSLOW}, v9")
        a(f"s_cmp_lg_u32 s{sSLOW}, 0")
        a(f"s_cbranch_scc1 {D}")
        a(f"s_sub_u32 s{sTMO}, s{sTMO}, 1")
        a(f"s_cbranch_scc0 {L}")
        a(f"s_mov_b32 s{sTMO}, 0")
        a.label(D)
        a(f"v_mov_b32 v8, {LSY}")
        a("v_mov_b32 v12, 0")
        a(f"v_mov_b32 v13, s{sSLOW}")
        a("ds_write_b64 v8, v[12:13]")
        a(f"s_lshl_b32 s{sT0}, s{sSLOW}, 10")
        a(f"s_add_u32 s{sFB}, s{sFB}, s{sT0}")
        a(f"s_add_u32 s{sMYF}, s{sMYF}, s{sT0}")

    def side(self, layer):
        a = self.a
        H = self.HOLD
        self.after_e0(layer)
        if layer == 0:
            for part in range(3):
                for s in range(8):
                    a(f"v_mfma_f32_32x32x16_bf16 {vr(24+16*part,16)}, v[20:23], {vr(H+12*s+4*part,4)}, {vr(24+16*part,16) if s else '0'}")
        dg = self.dg and not layer
        if dg:
            for part in range(3): self.emit(self.split_pair(H + 96 + 2 * part, 24 + 16 * part, 9))
            self.lbar("E1")
            self.kv_flag(0)
            self.kv_need(0, 0)
            self.q_fetch(False)
            self.kv_fetch(0, 0)
        else:
            self.poll(12, 13, C_Q + 16 * layer)
            self.q_fetch(True)
        if layer == 0:
            if not dg:
                for part in range(3): self.emit(self.split_pair(H + 96 + 2 * part, 24 + 16 * part, 9))
            self.prep_setup()
            self.sx(sT0, 0, (sJ, 16), (sL, 4, 12))
            a("v_lshrrev_b32 v5, 4, v0")
            a(f"v_add_lshl_u32 v5, v5, s{sT0}, 7")
            a("v_min_u32 v5, L_end-L_pc-4, v5")
            a(f"v_add_u32 v2, s{sL}, v1")
            a("v_add_u32 v3, 0x10000, v2")
            a("v_add_u32 v4, 0x20000, v2")
        self.lbar("A0", ("kv", 0), ds=0)
        self.lbar("E1")
        if not dg: self.kv_flag(layer)
        self.kv_fetch(1, layer)
        pf = [lambda u=u: self.dma(sL, U(u), sWOs, u * 16384, range(4)) for u in range(4)]
        pf += [lambda u=u: self.dma(sL, U(4 + u), s13, u * 16384, range(4)) for u in range(3)]
        def last():
            self.dma(sL, U(7), s13, 3 * 16384, range(3))
            self.vm(f"buffer_load_dwordx4 v[20:23], v1, {SRD(WS)}, s{sT7} offen offset:3072 {self.wpol}")
        pf.append(last)
        pf += [lambda u=u: self.rload(u, s13, 4 + u) for u in range(6)]
        w2 = [lambda u=u: self.rload(6 + u, s2_, 12 + u) for u in range(2)]
        if layer: w2 += [lambda u=u: self.rload(8 + u, s2_, 8 + u) for u in range(4)]
        pf = pf[:4] + w2 + pf[4:]
        steps = {s: [] for s in range(8)}; post = {s: [] for s in range(8)}
        if layer == 0:
            steps[0] += [lambda k=k: self.prep_gather(k) for k in range(4)]
            steps[1] += [lambda: self.wait(vm="pg"), lambda: self.lsync(1)] + self.prep_store()
            steps[2] += [lambda: self.wait(vm="pst"), lambda: self.lsync(2), self.prep_flag]
            first = self.o("pw", 4)
            if self.o("plk", 1): post[first - 1].append(self.prep_look)
            else: steps[first - 1].append(self.prep_look)
            steps[first].append(self.prep_wait)
            steps[2].append(self.tx)
            if dg:
                n = self.o("thn", 0)
                steps[2].append(lambda: self.th(range(0, n))); steps[3].append(lambda: self.th(range(n, 7)))
            cnt = [int(x) for x in self.opt.get("n0", "6541")]
        else:
            first = 1
            cnt = [int(x) for x in self.opt.get("n1", "4433330")]
        assert sum(cnt) == len(pf) and first + len(cnt) == 8
        k = 0
        for i, n in enumerate(cnt):
            steps[first + i] += pf[k:k + n]; k += n
        steps[7] = [lambda: self.th(None), self.tx] + steps[7]
        for s in range(8):
            if s:
                self.lbar(f"p{s}")
                if s < 7: self.kv_fetch(s + 1, layer)
            self.code_touch()
            self.emit(steps[s])
            self.wait(vm=("kv", s + 1))
            self.emit(post[s])
        self.lbar("A1", "all")

    def loader(self, layer):
        a = self.a
        bar = self.lbar
        t = lambda c, h, u: self.dma(sL, U(u), s13, c * 32768 + h * 16384, range(4), ("t", c))
        c2 = lambda c, h, u: self.dma(sL, U(u), s2_, c * 32768 + h * 16384, range(4), ("c", c))
        rc = lambda slot, unit: self.rload(slot, s2_, unit)
        self.pace = 0
        def wr(slot, u):
            self.wait(vm=("r", slot))
            for i in range(4):
                a(f"ds_write_b128 v{2 + (U(u) >> 16)}, {vr(self.RW + 16*slot + 4*i, 4)} offset:{(U(u) & 0xffff) + i*1024}")
                if self.pace: a("s_waitcnt lgkmcnt(0)")
        def sl(ss):
            for s in ss:
                for part in range(3):
                    a(f"ds_write_b128 v{8 + (s >> 2)}, {vr(self.HOLD+12*s+4*part,4)} offset:{(s&3)*12288+part*1024}")
                    if self.pace and s < 6: a("s_waitcnt lgkmcnt(0)")
        a(f"ds_write_b128 v3, v[20:23] offset:{U(7) - 65536 + 3072}")
        wr(0, 8)
        bar("W1")
        wr(1, 0); wr(2, 1); wr(3, 2); wr(4, 3)
        bar("B0", ds=12)
        wr(5, 9)
        a("s_waitcnt lgkmcnt(0)")
        a("s_barrier")
        if not layer: rc(0, 8); rc(1, 9); rc(2, 10); self.code_touch()
        bar("B1")
        self.pace = self.o("pace", 0); self.thr = self.o("thr", 0)
        t(5, 0, 4); t(5, 1, 5); t(6, 0, 6); t(6, 1, 7); c2(0, 0, 8); c2(0, 1, 0)
        bar("B2", ("t", 5))
        c2(1, 0, 1); c2(1, 1, 2); c2(2, 0, 3)
        if self.o("c2b", 1): c2(2, 1, 9)
        bar("B3", ("t", 6))
        if not self.o("c2b", 1): c2(2, 1, 9)
        c2(3, 0, 4); c2(3, 1, 5)
        bar("B4", ("c", 1))
        if not layer: rc(3, 11); self.code_touch()
        o = 8 if layer else 0
        wr(o, 6); wr(o + 1, 7)
        bar("D1", ("c", 3))
        if layer and self.o("wb", 0):
            self.only_w4(lambda: a("buffer_wbl2 sc1"), sJ)
        wr(o + 2, 8); wr(o + 3, 0); wr(6, 1)
        if not layer:
            self.sx(sT0, SLICE, (sL, 3072, 12))
            a(f"v_add_u32 v8, s{sT0}, v1")
            a("v_add_u32 v9, 49152, v8")
            self.sx(sT0, SLICE - 3072, (sL, 512, 13), (sL, 8, 12, 1))
            a("v_and_b32 v12, 0x1f0, v1")
            a(f"v_add_u32 v12, s{sT0}, v12")
        bar("D3", ds=8)
        wr(7, 2)
        if not layer: sl(range(0, self.o("sl1", 1)))
        bar("D4", ds=0)
        if not layer: sl(range(self.o("sl1", 1), 6))
        bar("D6")
        self.thr = 0
        if layer:
            a("s_endpgm")
            return
        sl((6, 7))
        for part in range(3): a(f"ds_write_b64 v12, {vr(self.HOLD+96+2*part,2)} offset:{part*1024}")
        a(f"s_add_u32 s{sKVH}, s{sKVH}, {KV_STR}")
        a(f"s_add_u32 s{sKVF}, s{sKVF}, 4096")
        bar("Q0", ds=0)

    def prep_setup(self):
        a = self.a
        a(f"s_lshr_b32 s{sT4}, s{sL}, 12")
        self.sx(sT0, 0, (sJ, 8), (sG, 1))
        a(f"s_mov_b32 s{sPCS}, {OOB}")
        a(f"s_cmp_ge_u32 s{sJ}, 23")
        a("s_cbranch_scc1 L_pr_none")
        a(f"s_cmp_ge_u32 s{sT0}, 112")
        a("s_cbranch_scc1 L_pr_o")
        self.srd(SA, P_W1, 512 * 3584)
        self.srd(SB, P_W3, 512 * 3584)
        a(f"s_mov_b32 s{sPSTR}, 3584")
        self.sx(sPA, 0, (sT0, 128, 2), (sT0, 128 * 3584, 0, 3))
        a(f"s_mov_b32 s{sPB}, s{sPA}")
        self.sx(sT2, 0, (sT0, 4, 2), (sT4, 1))
        self.sx(sT1, 0, (sT2, 7, 0, 15), (sT2, 1, 4))
        self.sx(sPCS, CS13, (sT1, 1024), (sT0, 512, 1, 1), (sT0, 8, 0, 1))
        self.sx(sPD, PW13, (sT1, 32768), (sT0, 8192, 0, 3))
        a(f"s_mov_b32 s{sTCH}, 4096")
        a(f"s_lshl_b32 s{sT2}, s{sT4}, 5")
        a(f"s_mov_b32 s{sT3}, 16384")
        a("s_branch L_pr_go")
        a.label("L_pr_o")
        self.sx(sT2, 0, (sT0, 2, 0, 3), (sT4, 1, 1))
        a(f"s_cmp_ge_u32 s{sT0}, 128")
        a("s_cbranch_scc1 L_pr_2")
        self.srd(SA, P_WO, 512 * 1024)
        self.srd(SB, P_WO, 512 * 1024)
        a(f"s_sub_u32 s{sT0}, s{sT0}, 112")
        self.sx(sPD, PWO, (sT2, 65536), (sT0, 32768, 2, 1), (sT0, 8192, 3), (sT4, 4096, 0, 1))
        a("s_branch L_pr_o2")
        a.label("L_pr_2")
        self.srd(SA, P_W2, 1792 * 1024)
        self.srd(SB, P_W2, 1792 * 1024)
        a(f"s_sub_u32 s{sT0}, s{sT0}, 128")
        self.sx(sPD, PW2, (sT2, 7 * 32768), (sT0, 32768, 3), (sT0, 8192, 2, 1), (sT4, 4096, 0, 1))
        a("s_branch L_pr_o2")
        a.label("L_pr_none")
        self.srd(SA, P_WO, 0)
        self.srd(SB, P_WO, 0)
        a(f"s_mov_b32 s{sT0}, 0")
        a(f"s_mov_b32 s{sPD}, {OOB}")
        a.label("L_pr_o2")
        a(f"s_mov_b32 s{sPSTR}, 1024")
        a(f"s_mov_b32 s{sTCH}, 16384")
        self.sx(sPA, 0, (sT0, 256, 0, 3), (sT0, 128 * 1024, 2))
        a(f"s_add_u32 s{sPB}, s{sPA}, 128")
        self.sx(sT2, 0, (sT4, 16384, 1), (sT4, 64, 0, 1))
        a(f"s_mov_b32 s{sT3}, 32")
        a.label("L_pr_go")
        a("v_lshrrev_b32 v6, 3, v0")
        a(f"v_mul_lo_u32 v6, v6, s{sPSTR}")
        a("v_and_b32 v8, 0x70, v1")
        a("v_add_u32 v6, v6, v8")
        a(f"s_lshl_b32 s{sPSTR}, s{sPSTR}, 3")
        a(f"s_mul_i32 s{sT1}, s{sPSTR}, s{sT4}")
        a(f"s_lshl_b32 s{sT1}, s{sT1}, 2")
        a(f"s_add_u32 s{sPA}, s{sPA}, s{sT1}")
        a(f"s_add_u32 s{sPB}, s{sPB}, s{sT1}")
        a("v_bfe_u32 v7, v0, 4, 1")
        a(f"v_mul_lo_u32 v7, v7, s{sT3}")
        a("v_and_b32 v8, 3, v0")
        a("v_lshl_add_u32 v7, v8, 3, v7")
        a("v_bfe_u32 v8, v0, 2, 2")
        a("v_lshl_add_u32 v7, v8, 7, v7")
        a("v_and_b32 v8, 0x200, v1")
        a(f"s_add_u32 s{sT2}, s{sT2}, {self.RAW}")
        a(f"v_add3_u32 v7, v7, v8, s{sT2}")

    def prep_gather(self, pc):
        a = self.a
        for part in range(2):
            r = sPB if part else sPA
            a(f"s_add_u32 m0, s{sL}, {self.RAW+pc*1024+part*16384}")
            self.vm(f"buffer_load_dwordx4 v6, {SRD(SB if part else SA)}, s{r} offen {'nt ' if self.o('gnt', 1) else ''}lds", "pg")
            a(f"s_add_u32 s{r}, s{r}, s{sPSTR}")

    def prep_store(self):
        a = self.a
        F = 24
        def rd():
            for i in range(8):
                for h2 in range(2):
                    a(f"ds_read_b64_tr_b16 {vr(F+4*i+2*h2,2)}, v7 offset:{i*2048+h2*1024}")
            for r in range(72, 76): a(f"v_mov_b32 v{r}, 0x3f803f80")
            a(f"s_add_u32 s{sTCH}, s{sPD}, s{sTCH}")
            a("s_waitcnt lgkmcnt(0)")
        def st(i):
            a(f"v_mfma_f32_32x32x16_bf16 v[56:71], v[72:75], {vr(F+4*i,4)}, {'v[56:71]' if i else '0'}")
            self.vm(f"buffer_store_dwordx4 {vr(F+4*i,4)}, v1, {SRD(WS)}, s{sPD if i < 4 else sTCH} offen offset:{(i&3)*1024} sc1")
        def cs():
            a("v_and_b32 v8, 0x1f0, v1")
            self.emit(self.split_pair(58, 56, 57))
            self.vm(f"buffer_store_dwordx2 v[58:59], v8, {SRD(WS)}, s{sPCS} offen sc1", "pst")
        return [rd] + [lambda i=i: st(i) for i in range(8)] + [cs]

    T13U = {0: (4, 5), 1: (6, 7), 2: (8, 0), 3: (1, 2), 4: (3, 9), 5: (4, 5), 6: (6, 7)}
    C2U = {0: (8, 0), 1: (1, 2), 2: (3, 9), 3: (4, 5), 4: (6, 7), 5: (8, 0), 6: (1, 2)}

    def ks_bases(self, b):
        L = [f"s_mul_i32 s{sT0}, s{sKH}, 12288", f"s_lshl_b32 s{sT1}, s{sKH}, 12", f"s_add_u32 s{sT1}, s{sT1}, 4096",
             f"v_add_u32 v{b}, s{sT0}, v1", f"v_add_u32 v{b+3}, s{sT1}, v1"]
        for k in (1, 2): L += [f"v_add_u32 v{b+k}, {65536*k}, v{b}", f"v_add_u32 v{b+3+k}, {65536*k}, v{b+3}"]
        return L
    def res_load(self, R):
        self.vm(f"buffer_load_dwordx4 {vr(R,4)}, v1, {SRD(WS)}, s{sKT} offen sc1", "res")
        self.vm(f"buffer_load_dwordx4 {vr(R+4,4)}, v1, {SRD(WS)}, s{sKT} offen offset:1024 sc1", "res")
        self.vm(f"buffer_load_dword v{R+8}, v1, {SRD(WS)}, s{sKS} offen sc1")
    def res_unpack(self, R, AA):
        L = []
        for i in range(8): L += [f"v_lshlrev_b32 v{AA+2*i}, 16, v{R+i}", f"v_and_b32 v{AA+2*i+1}, 0xffff0000, v{R+i}"]
        return L

    def ks_finish(self, AA, AB, P, final_branch, res=None):
        a = self.a
        for q in range(4): a(f"ds_write_b128 v14, {vr(AB+4*q,4)} offset:{q*1024}")
        if res is not None:
            for i in range(0, 16, 2): a(f"v_pk_add_f32 {vr(AA+i,2)}, {vr(AA+i,2)}, {vr(res+i,2)}")
        a("s_waitcnt lgkmcnt(0)")
        a("s_barrier")
        for q in range(4): a(f"ds_read_b128 {vr(AB+4*q,4)}, v15 offset:{q*1024}")
        for q in range(4):
            a(f"s_waitcnt lgkmcnt({3-q})")
            for i in (0, 2): a(f"v_pk_add_f32 {vr(AA+4*q+i,2)}, {vr(AA+4*q+i,2)}, {vr(AB+4*q+i,2)}")
            for i in range(2): a(f"v_cvt_pk_bf16_f32 v{P+2*q+i}, v{AA+4*q+2*i}, v{AA+4*q+2*i+1}")
            if q == 1 and not final_branch: self.vm(f"buffer_store_dwordx4 {vr(P,4)}, v1, {SRD(WS)}, s{sKT} offen")
        if final_branch:
            a(f"s_cmp_lg_u32 s{sLAY}, 0")
            a("s_cbranch_scc1 L_final")
            self.vm(f"buffer_store_dwordx4 {vr(P,4)}, v1, {SRD(WS)}, s{sKT} offen")
        self.vm(f"buffer_store_dwordx4 {vr(P+4,4)}, v1, {SRD(WS)}, s{sKT} offen offset:1024")
        a(f"v_pk_add_f32 {vr(AB,2)}, {vr(AA,2)}, {vr(AA+2,2)}")
        a(f"v_pk_mul_f32 {vr(AB+2,2)}, {vr(AA,2)}, {vr(AA,2)}")
        a(f"v_pk_fma_f32 {vr(AB+2,2)}, {vr(AA+2,2)}, {vr(AA+2,2)}, {vr(AB+2,2)}")
        for i in range(4, 16, 2):
            a(f"v_pk_add_f32 {vr(AB,2)}, {vr(AB,2)}, {vr(AA+i,2)}")
            a(f"v_pk_fma_f32 {vr(AB+2,2)}, {vr(AA+i,2)}, {vr(AA+i,2)}, {vr(AB+2,2)}")
        a(f"v_add_f32 v{AB}, v{AB}, v{AB+1}")
        a(f"v_add_f32 v{AB+2}, v{AB+2}, v{AB+3}")
        a(f"v_permlane32_swap_b32 v{AB}, v{AB+2}")
        a(f"v_add_f32 v{AB}, v{AB}, v{AB+2}")
        self.vm(f"buffer_store_dword v{AB}, v1, {SRD(WS)}, s{sKS} offen")
    def scr_addr(self):
        return [f"s_lshl_b32 s{sT0}, s{sW}, 12", f"s_add_u32 s{sT0}, s{sT0}, {U(9)}", f"v_add_u32 v14, s{sT0}, v1", "v_xor_b32 v15, 8192, v14"]
    def x_flag_addr(self, r, t, sreg, extra=None):
        return [f"v_and_b32 v{r}, 7, v0", f"v_lshlrev_b32 v{r}, 5, v{r}", f"v_and_b32 v{t}, 8, v0",
                lambda: self.sx(sT0, 0, (sreg, 256, 1), (sreg, 4, 0, 1)), f"v_add3_u32 v{r}, v{r}, v{t}, s{sT0}"]

    CSR = [80, 84, 88, 8, 120, 8, 8]
    def cs_load(self, c): return self.fload(self.CSR[c], sUC, c * 1024, ("cs", c), tmp=sT4)

    def wo(self):
        a = self.a
        AA, AB, RING, X, R, B = 32, 48, 208, 128, 192, 2
        WD = self.o("ww", 8)
        self.emit(self.ks_bases(B))
        self.emit(self.scr_addr())
        a("v_and_b32 v12, 15, v0")
        self.sx(sT0, 0, (sKH, 512), (sTL, 4, 1))
        a(f"v_lshl_add_u32 v12, v12, 5, s{sT0}")
        if self.o("cprio", 0): a(f"s_setprio {self.o('cprio', 0)}")
        self.publish(26, C_O, tag="o")
        a("s_barrier")
        self.stamp("attn done")
        self.dq.clear(); self.forget()
        xl = lambda i: self.fload(X + 4 * i, sOS, i * 1024, ("x", i), tmp=sT5)
        init, per = self.ramp([(i, xl(i)) for i in range(16)], 16, self.o("w0", 5), WD)
        last = max(per)
        for c in range(5): per.setdefault(last + 1 + c // 2, []).append(self.cs_load(c))
        items = []
        for i in range(16):
            addr = U(i >> 2) + (i & 3) * 1024
            items.append(dict(read=(B + 3, addr), vm=("x", i),
                              mfma=lambda r, i=i: f"v_mfma_f32_32x32x16_bf16 {vr(AB,16)}, {vr(r,4)}, {vr(X+4*i,4)}, {vr(AB,16) if i else '0'}"))
            items.append(dict(read=(B, addr), mfma=lambda r, i=i: f"v_mfma_f32_32x32x16_bf16 {vr(AA,16)}, {vr(r,4)}, {vr(X+4*i,4)}, {vr(AA,16)}"))
            items[-1]["post"] = list(per.get(i, []))
        self.stream_begin(items, 8, RING)
        self.wait(vm="res")
        self.emit(self.res_unpack(R, AA))
        self.poll(12, 13, C_O)
        self.stamp("wo polled")
        self.emit(init)
        self.stream_run()
        self.ks_finish(AA, AB, 20, False)

    def up(self):
        a = self.a
        X = 128; ACC = [16, 32, 48, 64, 80]; RING = 96; D = 6; TM = 120
        MU, CS, EA, EC, PA, PT = 4, 8, 12, 13, 14, 15
        W = (1, 2, 3)
        WD = self.o("uw", 12)
        self.sx(sT1, 0, (sJ, 4, 4), (sW, 1))
        self.emit(self.x_flag_addr(PA, PT, sT1))
        a("v_add_u32 v2, 0x10000, v1")
        a("v_add_u32 v3, 0x20000, v1")
        self.publish(PT, C_X1)
        self.stamp("wo done")
        self.forget()
        CSR, csl = self.CSR, self.cs_load
        xl = lambda i: self.fload(X + 4 * i, sUX, i * 1024, ("x", i), tmp=sT5)
        STT = ACC[3]
        seq = [(i, xl(i)) for i in range(32)]
        for q in range(4): seq.insert(10 + 2 * q, (10 + q, self.fload(STT + 4 * q, sUS, q * 1024, "st", tmp=sT2)))
        init, per = self.ramp(seq, 32, self.o("u0", 4), WD)
        def epi(c, acc):
            L = []
            for i in range(8): L += [f"v_mul_f32 v{TM+i}, v{EA}, v{acc+i}", f"v_exp_f32 v{TM+i}, v{TM+i}", f"v_mul_f32 v{acc+8+i}, v{acc+i}, v{acc+8+i}"]
            for i in range(8):
                L += [f"v_fma_f32 v{TM+i}, v{TM+i}, v{EC}, v{EC}", f"v_rcp_f32 v{TM+i}, v{TM+i}"]
                if i: L.append(f"v_mul_f32 v{acc+7+i}, v{TM+i-1}, v{acc+7+i}")
            L.append(f"s_add_u32 s{sT3}, s{sHD}, {c*16384}")
            L.append(f"v_mul_f32 v{acc+15}, v{TM+7}, v{acc+15}")
            for i in range(4): L.append(f"v_cvt_pk_bf16_f32 v{acc+i}, v{acc+8+2*i}, v{acc+9+2*i}")
            L.append(lambda: self.vm(f"buffer_store_dwordx4 {vr(acc,4)}, v1, {SRD(WS)}, s{sT3} offen", ("h", c)))
            return L
        items = []; c0 = 0; start = []
        acc = lambda c: vr(ACC[c % 5], 16)
        corr = lambda c, first: dict(vm=("cs", c), mfma=lambda r: f"v_mfma_f32_32x32x16_bf16 {acc(c)}, {vr(CSR[c],4)}, {vr(MU,4)}, {'0' if first else acc(c)}")
        for pi, n in enumerate((3, 2, 1, 1)):
            tiles = list(range(c0, c0 + n)); c0 += n
            start.append(len(items))
            if pi:
                for c in tiles: items.append(corr(c, True))
                if pi < 3: items[-1]["post"] = [csl(c0)]
            for ks in range(32):
                for c in tiles:
                    addr = U(self.T13U[c][ks >> 4]) + (ks & 15) * 1024
                    it = dict(read=(W[addr >> 16], addr & 0xffff),
                              mfma=lambda r, ks=ks, c=c, z=(ks == 0 and pi == 0): f"v_mfma_f32_32x32x16_bf16 {acc(c)}, {vr(r,4)}, {vr(X+4*ks,4)}, {'0' if z else acc(c)}")
                    if ks == 0 and c == tiles[0]: it["bar"] = True
                    if pi == 0 and c == 0: it["vm"] = ("x", ks)
                    if pi == 0 and c < 2: it["post"] = list(per.get(ks, [])[c::2])
                    items.append(it)
                if pi == 0 and ks == self.o("ub", 16): items[-1].setdefault("post", []).append("s_barrier")
                if pi == 0 and ks == 27:
                    for c in tiles: items.append(corr(c, False))
        start.append(len(items))
        st = [lambda: self.wait(vm="st")] + self.stats_ops(STT, MU, EA, EC) + [f"v_mul_f32 v{EA}, {hex(f2u(-LOG2E))}, v{EA}"]
        self.spread(items, 45, 80, st)
        lo = 5
        self.spread(items, start[1] + lo, start[2], epi(0, ACC[0]) + epi(1, ACC[1]) + epi(2, ACC[2]))
        e34 = epi(3, ACC[3]) + epi(4, ACC[4]); nsplit = start[3] + 13
        self.spread(items, start[2] + lo, nsplit, e34)
        self.spread(items, nsplit, start[4], epi(5, ACC[0]))
        AA, AB, R, B = 48, 64, 80, 4
        DW = self.o("dw", 8)
        hl = lambda i: self.fload(X + 4 * (i % 32), sHS, (i >> 3) * 16384 + (i & 7) * 1024, ("y", i), tmp=sT5)
        p4 = start[3] + 1
        def ins(k, fs, front=False):
            L = items[k].setdefault("post", [])
            if front: L[:0] = fs
            else: L.extend(fs)
        ins(start[1] + 2, ["v_and_b32 v14, 7, v0", lambda: self.sx(sT0, 0, (sJ, 512, 4), (sKH, 256), (sTL, 4, 0, 3)), f"v_lshl_add_u32 v14, v14, 5, s{sT0}"])
        ins(start[2] + self.o("h2", 10), [lambda: self.publish(PT, C_H2, tag=("h", 2))], True)
        ins(start[3] - self.o("l2", 5), [lambda: self.poll_issue(PA, PT)], True)
        k0 = 31 - self.o("dw0", DW)
        ins(p4 + k0 - 4, self.ks_bases(B))
        ins(p4 + k0, [lambda: self.poll_check(PA, PT, C_H2), lambda: self.publish(PT, C_H4, tag=("h", 4))], True)
        init2, per2 = self.ramp([(i, hl(i)) for i in range(56)], 56, 31 - k0, DW)
        for i, f in enumerate(init2): ins(p4 + k0 + 1 + i, [f], True)
        d0 = len(items)
        for i in range(56):
            addr = U(self.C2U[i >> 3][(i >> 2) & 1]) + (i & 3) * 1024
            xr = vr(X + 4 * (i % 32), 4)
            it = dict(read=(B + 3 + (addr >> 16), addr & 0xffff), vm=("y", i),
                      mfma=lambda r, i=i, xr=xr: f"v_mfma_f32_32x32x16_bf16 {vr(AB,16)}, {vr(r,4)}, {xr}, {vr(AB,16) if i else '0'}")
            if i in (0, 16, 32, 40): it["bar"] = True
            items.append(it)
            it = dict(read=(B + (addr >> 16), addr & 0xffff), mfma=lambda r, i=i, xr=xr: f"v_mfma_f32_32x32x16_bf16 {vr(AA,16)}, {vr(r,4)}, {xr}, {vr(AA,16) if i else '0'}")
            it["post"] = []
            if i in (24 - 2 * DW, 40 - 2 * DW): it["post"].append(lambda: self.poll_issue(PA, PT))
            if i in (24 - DW, 40 - DW): it["post"].append(lambda i=i: self.poll_check(PA, PT, C_H4 if i == 24 - DW else C_H6))
            it["post"] += per2.get(i, [])
            if i == 20: it["post"].append(lambda: self.res_load(R))
            if i == 42: it["post"] += self.scr_addr()
            items.append(it)
        e6 = self.o("e6", 14)
        self.spread(items, d0 + 3, d0 + 3 + e6, epi(6, ACC[1]))
        ins(d0 + 3 + e6 + self.o("h6", 8), [lambda: self.publish(11, C_H6, tag=("h", 6))])
        self.spread(items, d0 + 66, d0 + 82, [lambda: self.wait(vm='res')] + self.res_unpack(R, ACC[1]))
        self.stream_begin(items, D, RING)
        self.poll(PA, PT, C_X1)
        self.stamp("up polled")
        self.emit(init)
        self.stream_run()
        self.stamp("down main")
        self.ks_finish(AA, AB, 20, True, res=ACC[1])

    def final(self):
        a = self.a
        a.label("L_final")
        self.srd(SB, P_OUT, 2 * MB)
        a("v_and_b32 v14, 31, v0")
        a("v_lshlrev_b32 v14, 10, v14")
        a("v_lshrrev_b32 v15, 5, v0")
        a("v_lshl_add_u32 v14, v15, 4, v14")
        for b in (20, 24):
            a(f"v_permlane32_swap_b32 v{b}, v{b+2}")
            a(f"v_permlane32_swap_b32 v{b+1}, v{b+3}")
        a(f"buffer_store_dwordx4 v[20:23], v14, {SRD(SB)}, s{sOUT} offen {['', 'sc1', 'nt', 'sc1 nt'][self.o('op', 0)]}")
        a(f"buffer_store_dwordx4 v[24:27], v14, {SRD(SB)}, s{sOUT} offen offset:32 {['', 'sc1', 'nt', 'sc1 nt'][self.o('op', 0)]}")
        self.stamp("end")
        if "hold" in self.opt:
            if self.o("hold", 8) < 8:
                a(f"s_cmp_lg_u32 s{sG}, {self.o('hold', 8)}")
                a("s_cbranch_scc1 L_exit")
            if self.o("holdwb", 0):
                a("s_waitcnt vmcnt(0)")
                a("buffer_wbl2 sc1")
                a("s_waitcnt vmcnt(0)")
            a.label("L_hold")
            a(f"s_memrealtime s[{sTR}:{sTR+1}]")
            a("s_waitcnt lgkmcnt(0)")
            a(f"s_sub_u32 s{sT0}, s{sTR}, s{sE1}")
            a(f"s_cmp_lt_u32 s{sT0}, 10000")
            a("s_cbranch_scc1 L_hold")
        a.label("L_exit")
        a("s_endpgm")

    def build(self):
        a = self.a
        self.tails = []; self.tails2 = []
        self.entry()
        self.qkv1()
        s0 = self.seq; self.seq = []
        self.attention(); self.wo(); self.up()
        s1 = self.seq; self.seq = []
        self.qkv2()
        s2 = self.seq; self.seq = []
        self.final()
        cseq = s0 + s1 + s2 + s1 + self.seq; self.seq = []
        self.start_loader()
        for layer in range(2):
            self.side(layer); self.loader(layer)
        lseq = self.seq
        self.fallback()
        self.publish_tails(); self.res_tails()
        a.label("L_end")
        body = a.finish()
        refp = "cdna_kernels/" + NAME + ".s.ref"
        hdr = open(refp).read().split("; Override launch")[0] if os.path.exists(refp) else ""
        txt = hdr + f"; @launch grid=(256,1,1) block=(512,1,1) lds={LDS_TOTAL}\n"
        if self.stamps: txt += "; cseq " + "|".join(cseq) + "\n; lseq " + "|".join(lseq) + "\n"
        txt += f""".amdgcn_target "amdgcn-amd-amdhsa--gfx950"
.text
.globl {NAME}_kernel
.p2align 8
.type {NAME}_kernel,@function
{NAME}_kernel:
{body}.section .rodata,"a"
.p2align 6
.amdhsa_kernel {NAME}_kernel
  .amdhsa_next_free_vgpr 256
  .amdhsa_next_free_sgpr 98
  .amdhsa_accum_offset 256
  .amdhsa_group_segment_fixed_size 0
  .amdhsa_kernarg_size 80
  .amdhsa_user_sgpr_count 2
  .amdhsa_user_sgpr_kernarg_segment_ptr 1
  .amdhsa_system_sgpr_workgroup_id_x 1
.end_amdhsa_kernel
"""
        return txt

def from_spec(spec):
    opt = dict((kv.split('=') + ['1'])[:2] for kv in spec.split(',') if kv)
    return Gen(stop=opt.pop("stop", None), stamps=bool(opt.pop("stamps", 0)), force_slow=bool(opt.pop("slow", 0)),
               force_fallback=bool(opt.pop("fallback", 0)), remap=bool(opt.pop("remap", 0)), opt=opt).build()

if __name__ == "__main__":
    out = sys.argv[2] if len(sys.argv) > 2 else "cdna_kernels/" + NAME + ".s"
    open(out, "w").write(from_spec(sys.argv[1].lstrip(":") if len(sys.argv) > 1 else ""))
```

```python
import sys, math, struct, os
from asmlib import *

NAME = "interleave_layers__softmax_full_mha__glu_gated_swiglu__prompt"
MB = 1 << 20; KB = 1 << 10
XF = 0
HF = 2 * MB
ST = 9 * MB
PWO = 9 * MB + 512 * KB
PW13 = 10 * MB
CS13 = 13 * MB + 512 * KB
PW2 = 14 * MB
KVG = 16 * MB; KV_STR = 4 * MB
FL = 24 * MB; FL_STR = 16 * KB
HT = 112 * 1024
F_LF, F_SF, F_KV = 0, 1024, 4096
TSB = 25 * MB
WS_USED = 27 * MB
OOB = 0x7ff00000
D_GRDY, D_SHOUT = 0, 128
U = lambda i: i * 16384
LDS_TOTAL = 163840
TSTR = 2064; SLOT = 8 * TSTR; KVB = LDS_TOTAL - 2 * SLOT
SLICE = U(3)
WRING = 65536; WSTG = 24576
QA = U(2)
MBX = U(8)
VRD = KVB - 96
KSL = KVB - 64; LSY = KVB - 32; MODE = KVB - 28
WS, SA, SB, DBG = 4, 8, 12, 16
P_X, P_WQKV, P_WO, P_BX, P_W1, P_W3, P_W2, P_OUT, P_DBG, P_WS = 20, 22, 24, 26, 28, 30, 32, 34, 36, 38
sG, sJ, sW, sXCC, sLAY, sSLOW, sTMO, sFB, sMYF, sCODE = range(40, 50)
sT0, sT1, sT2, sT3, sT4, sT5, sT6, sT7 = range(50, 58)
sFG, sKVH, sKVA = 58, 59, 60
sQX, sQS, sOD, sKG, sQL, sKT, sKS, sOS, sHS, sOUT, sUX, sUS, sUC, sHD, sKH, sTL = range(61, 77)
sKVF, sL, s13, s2_, sWOs, sQ, sPD, sPA, sPB, sPCS, sPSTR, sTCH, sREM = range(61, 74)
sTSI = 77
sEX = 78; sHI = 80; sN16 = 82; sRDY = 84; sBAD = 86; sLO = 86
sTS = 88; sTR = 90; sE0 = 92; sE1 = 94; sPC = 96; sROLE = 3
C_Q, C_O, C_X1, C_X2 = 1, 2, 3, 4
C_H = 2
sKL = sXCC
LOG2E = 1.4426950408889634
def f2u(x): return struct.unpack("<I", struct.pack("<f", x))[0]
TBOUND = 48.0
SIG = 0.25 * LOG2E
cost = lambda t: 0 if callable(t) else (8 if t.split()[0] in TRANS else 4)
SRD = lambda r: f"s[{r}:{r+3}]"

class Gen:
    def __init__(self, stop=None, stamps=False, force_slow=False, force_fallback=False, remap=False, opt=None):
        self.a = Asm(); self.stop = stop; self.stamps = stamps
        self.force_slow = force_slow; self.force_fallback = force_fallback
        self.remap = remap; self.opt = opt or {}
        self.dst = []
        self.vq = []; self.dq = []
        self.wpol = ['sc1', '', 'sc0'][self.o('wp', 0)]
        self.inL = False
        self.thr = 0; self.kop = False; self.seen = set()
        self.RAW = 0; self.dg = self.o('dg', 1)
        self.seq = []
    def o(self, k, d): return int(self.opt.get(k, d))

    def vm(self, text, tag=None):
        self.a(text); self.vq.append(tag); self.seen.add(tag)
    def ds(self, text, tag=None):
        self.a(text); self.dq.append(tag)
    def _wait(self, q, tag, name, mx):
        if tag not in q: return None
        i = len(q) - 1 - q[::-1].index(tag)
        n = min(len(q) - 1 - i, mx)
        del q[:len(q) - n]
        return f"{name}({n})"
    def wait(self, vm=None, ds=None):
        w = []
        if vm == "all": w.append("vmcnt(0)"); self.vq.clear()
        elif vm is not None: w.append(self._wait(self.vq, vm, "vmcnt", 63))
        if ds == "all": w.append("lgkmcnt(0)"); self.dq.clear()
        elif ds is not None: w.append(self._wait(self.dq, ds, "lgkmcnt", 15))
        w = [x for x in w if x]
        if w: self.a("s_waitcnt " + " ".join(w))
    def emit(self, L):
        for t in L:
            if callable(t): t()
            else: self.a(t)

    def stamp(self, name):
        if "pt" in self.opt and self.opt["pt"].split("@")[0].replace("_", " ") == name and not self.inL:
            L = self.a.newlabel("pt")
            self.a(f"s_cmp_lg_u32 s{sLAY}, {self.opt['pt'].split('@')[1]}")
            self.a(f"s_cbranch_scc1 {L}")
            self.a(f"{'s_memtime' if self.o('ptc', 0) else 's_memrealtime'} s[{sTS}:{sTS+1}]")
            self.a("s_waitcnt lgkmcnt(0)")
            self.a.label(L)
        if not self.stamps: return
        a = self.a
        self.seq.append(name)
        a(f"s_memtime s[{sTS}:{sTS+1}]")
        a(f"s_memrealtime s[{sTR}:{sTR+1}]")
        a("s_waitcnt lgkmcnt(0)")
        a(f"v_mov_b32 v18, s{sTS}")
        a(f"v_mov_b32 v19, s{sTR}")
        a("s_mov_b64 exec, 1")
        self.vm(f"buffer_store_dwordx2 v[18:19], off, {SRD(WS)}, s{sTSI}")
        a("s_mov_b64 exec, -1")
        a(f"s_add_u32 s{sTSI}, s{sTSI}, 8")
        self.dq.clear()
    def dstamp(self, name, base):
        if not self.stamps: return
        k = len(self.dst); self.dst.append((name, base + 2 * k))
        self.a(f"s_memtime s[{sTS}:{sTS+1}]")
        self.a(f"s_memrealtime s[{sTR}:{sTR+1}]")
        self.a("s_waitcnt lgkmcnt(0)")
        self.a(f"v_mov_b32 v{base+2*k}, s{sTS}")
        self.a(f"v_mov_b32 v{base+2*k+1}, s{sTR}")
    def dflush(self):
        if not self.stamps: return
        a = self.a
        a("s_mov_b64 exec, 1")
        for name, r in self.dst:
            a(f"buffer_store_dwordx2 v[{r}:{r+1}], off, {SRD(WS)}, s{sTSI}")
            self.seq.append(name)
            a(f"s_add_u32 s{sTSI}, s{sTSI}, 8")
        a("s_mov_b64 exec, -1")
        self.dst = []

    def srd(self, d, p, size):
        a = self.a
        a(f"s_mov_b32 s{d}, s{p}")
        a(f"s_and_b32 s{d+1}, s{p+1}, 0xffff")
        a(f"s_mov_b32 s{d+2}, {size}")
        a(f"s_mov_b32 s{d+3}, 0x20000")

    def sx(self, dst, const, *terms):
        a = self.a
        first = True
        for tm in terms:
            r, mul = tm[0], tm[1]; shr = tm[2] if len(tm) > 2 else 0; mask = tm[3] if len(tm) > 3 else None
            t = dst if first else sT7
            assert r != dst or first
            cur = r
            if shr: a(f"s_lshr_b32 s{t}, s{cur}, {shr}"); cur = t
            if mask is not None: a(f"s_and_b32 s{t}, s{cur}, {mask}"); cur = t
            if mul != 1:
                if mul & (mul - 1) == 0: a(f"s_lshl_b32 s{t}, s{cur}, {mul.bit_length()-1}")
                else: a(f"s_mul_i32 s{t}, s{cur}, {mul}")
                cur = t
            if first:
                if cur != dst: a(f"s_mov_b32 s{dst}, s{cur}")
            else: a(f"s_add_u32 s{dst}, s{dst}, s{cur}")
            first = False
        if const: a(f"s_add_u32 s{dst}, s{dst}, {const}")

    def fload(self, dst, base, off, tag, tmp=sT7, flags="sc1"):
        def f():
            key = (base, off >> 12)
            if getattr(self, "_tmpkey", {}).get(tmp) != key:
                self.a(f"s_add_u32 s{tmp}, s{base}, {off & ~4095}")
                self._tmpkey = dict(getattr(self, "_tmpkey", {})); self._tmpkey[tmp] = key
            self.vm(f"buffer_load_dwordx4 {vr(dst,4)}, v1, {SRD(WS)}, s{tmp} offen offset:{off & 4095} {flags}", tag)
        return f
    def forget(self): self._tmpkey = {}

    def dma(self, ldsb, ldsc, src, srcc, idx, tag=None, pol=None):
        a = self.a
        if pol is None: pol = self.wpol
        a(f"s_add_u32 m0, s{ldsb}, {ldsc}")
        a(f"s_add_u32 s{sT7}, s{src}, {srcc}")
        for i in idx:
            if self.thr and len(self.vq) >= self.thr:
                a(f"s_waitcnt vmcnt({self.thr - 1})"); del self.vq[:len(self.vq) - self.thr + 1]
            self.vm(f"buffer_load_dwordx4 v1, {SRD(WS)}, s{sT7} offen offset:{i*1024} {pol} lds", tag)

    def spin(self, body):
        a = self.a
        L, D = a.newlabel("spin"), a.newlabel("spind")
        a.label(L)
        body()
        a(f"s_cbranch_vccz {D}")
        a(f"s_sub_u32 s{sTMO}, s{sTMO}, 1")
        a(f"s_cbranch_scc0 {L}")
        a(f"s_mov_b32 s{sTMO}, 0")
        a.label(D)

    def poll(self, vaddr, vtmp, code):
        a = self.a
        a(f"s_add_u32 s{sT6}, s{sCODE}, {code}")
        def body():
            a(f"buffer_load_dword v{vtmp}, v{vaddr}, {SRD(WS)}, s{sFB} offen sc1")
            a("s_waitcnt vmcnt(0)")
            a(f"v_cmp_gt_u32 vcc, s{sT6}, v{vtmp}")
        self.spin(body)
        self.vq.clear()
        self.acquire()
    def poll_issue(self, vaddr, vtmp):
        if self.kop: return
        self.vm(f"buffer_load_dword v{vtmp}, v{vaddr}, {SRD(WS)}, s{sFB} offen sc1", "poll")
    def poll_check(self, vaddr, vtmp, code):
        if self.kop: return
        a = self.a
        D = a.newlabel("pc")
        a(f"s_add_u32 s{sT6}, s{sCODE}, {code}")
        self.wait(vm="poll")
        a(f"v_cmp_gt_u32 vcc, s{sT6}, v{vtmp}")
        a(f"s_or_b32 vcc_lo, vcc_lo, s{sSLOW}")
        a(f"s_cbranch_scc0 {D}")
        q = list(self.vq)
        self.poll(vaddr, vtmp, code)
        self.vq = q
        a.label(D)

    def acquire(self):
        a = self.a
        F = a.newlabel("acq")
        a(f"s_cmp_eq_u32 s{sSLOW}, 0")
        a(f"s_cbranch_scc1 {F}")
        a("buffer_inv sc1")
        a("s_waitcnt vmcnt(0)")
        a.label(F)

    def publish(self, vtmp, code, tag="all"):
        if self.kop: return
        a = self.a
        S, D = a.newlabel("pubs"), a.newlabel("pubd")
        a(f"s_add_u32 s{sT6}, s{sCODE}, {code}")
        a(f"v_mov_b32 v{vtmp}, s{sT6}")
        a("s_mov_b64 exec, 1")
        a(f"s_cmp_lg_u32 s{sSLOW}, 0")
        a(f"s_cbranch_scc1 {S}")
        self.wait(vm=tag)
        self.vm(f"buffer_store_dword v{vtmp}, off, {SRD(WS)}, s{sMYF}")
        self.tails.append((S, D, vtmp))
        a.label(D)
        a("s_mov_b64 exec, -1")
    def publish_tails(self):
        a = self.a
        for S, D, vtmp in self.tails:
            a.label(S)
            a("s_waitcnt vmcnt(0)")
            a("buffer_wbl2 sc1")
            a("s_waitcnt vmcnt(0)")
            a(f"buffer_store_dword v{vtmp}, off, {SRD(WS)}, s{sMYF} sc1")
            a(f"s_branch {D}")

    def split_pair(self, dst, c, tmp):
        return [f"v_cvt_pk_bf16_f32 v{dst}, v{c}, v{c}", f"v_and_b32 v{tmp}, 0xffff0000, v{dst}",
                f"v_sub_f32 v{tmp}, v{c}, v{tmp}", f"v_cvt_pk_bf16_f32 v{dst+1}, v{tmp}, v{tmp}"]

    def stats_ops(self, st, mu4, rstd, vare):
        L = []
        for k in (8, 4, 2, 1):
            for i in range(k):
                L.append(f"v_add_f32 v{st+i}, v{st+i}, v{st+i+k}")
        t0 = st + 3
        L.append(f"v_mov_b32 v{st+1}, v{st}")
        L.append(f"v_mov_b32 v{st+2}, {hex(f2u(1.0/512))}")
        L.append(f"v_permlane32_swap_b32 v{st}, v{st+1}")
        L.append(f"v_mul_f32 v{st}, {hex(f2u(-1.0/512))}, v{st}")
        L.append(f"v_mul_f32 v{t0}, v{st}, v{st}")
        L.append(f"v_fma_f32 v{vare}, v{st+1}, v{st+2}, -v{t0}")
        L.append(f"v_cvt_pk_bf16_f32 v{t0}, v{st}, v{st}")
        L.append(f"v_max_f32 v{vare}, 0, v{vare}")
        L.append(f"v_and_b32 v{t0}, 0xffff0000, v{t0}")
        L.append(f"v_add_f32 v{vare}, {hex(f2u(1e-5))}, v{vare}")
        L.append(f"v_sub_f32 v{t0}, v{st}, v{t0}")
        L.append(f"v_rsq_f32 v{rstd}, v{vare}")
        for i in range(4): L.append(f"v_cvt_pk_bf16_f32 v{mu4+i}, v{st}, v{t0}")
        return L

    def spread(self, items, lo, hi, fill):
        tot = sum(map(cost, fill)); n = hi - lo; k = 0; acc = 0
        for m in range(n):
            while k < len(fill) and (acc + cost(fill[k]) / 2 <= tot * (m + 1) / n or m == n - 1):
                items[lo + m].setdefault("post", []).append(fill[k]); acc += cost(fill[k]); k += 1

    def stream_begin(self, items, D, ring):
        self.S = dict(items=items, D=D, issued=0)
        rd = [i for i in range(len(items)) if items[i].get("read")]
        self.S.update(rd=rd, slot={i: ring + 4 * (k % D) for k, i in enumerate(rd)}, pos={i: k for k, i in enumerate(rd)})
        self._try(D, 0)
    def _try(self, limit, consumed):
        S = self.S; items, rd = S["items"], S["rd"]
        while S["issued"] < min(limit, len(rd)):
            i = rd[S["issued"]]
            if items[i].get("bar"):
                if S["issued"] - consumed > S["D"] // 2: return
                bv = items[i].get("barvm")
                assert bv is None or bv in self.seen, bv
                self.wait(vm=bv, ds="all")
                self.a("s_barrier")
                items[i]["bar"] = False
            va, off = items[i]["read"]
            self.ds(f"ds_read_b128 {vr(S['slot'][i],4)}, v{va} offset:{off}", ("rd", S["issued"]))
            S["issued"] += 1
    def stream_run(self, pair=2):
        S = self.S; items = S["items"]
        for i, it in enumerate(items):
            if it.get("late"):
                bv = it.get("barvm")
                assert bv is None or bv in self.seen, bv
                self.wait(vm=bv)
                self.a("s_barrier")
            self.emit(it.get("pre", []))
            dtag = None
            if it.get("read"):
                k = S["pos"][i]
                if k >= S["issued"]: self._try(k + 1, k)
                if ("rd", k) in self.dq: dtag = ("rd", min(k + pair, S["issued"]) - 1)
            self.wait(vm=it.get("vm"), ds=dtag)
            self.a(it["mfma"](S["slot"].get(i)))
            if it.get("read"): self._try(k + 1 + S["D"], k + 1)
            self.emit(it.get("post", []))

    @staticmethod
    def ramp(seq, nsteps, n0, wd):
        init, per, k = [], {}, 0
        lead = lambda step: sum(1 for q, _ in seq[:k] if q > step)
        while k < min(n0, len(seq)): init.append(seq[k][1]); k += 1
        for st in range(nsteps):
            n = 0
            while k < len(seq) and (seq[k][0] <= st + 1 or (n < 2 and lead(st) < wd)):
                per.setdefault(st, []).append(seq[k][1]); k += 1; n += 1
        assert k == len(seq)
        return init, per

    def layer0(self, fn):
        a = self.a
        L = a.newlabel("l0")
        a(f"s_cmp_lg_u32 s{sLAY}, 0")
        a(f"s_cbranch_scc1 {L}")
        vq, dq = list(self.vq), list(self.dq)
        fn()
        self.vq, self.dq = vq, dq
        a.label(L)

    def entry(self):
        a = self.a
        a(f"s_getpc_b64 s[{sPC}:{sPC+1}]")
        a.label("L_pc")
        a("s_load_dwordx16 s[20:35], s[0:1], 0")
        a("v_lshrrev_b32 v2, 5, v0")
        if self.remap: a(f"s_and_b32 s{sJ}, s2, 31")
        else: a(f"s_lshr_b32 s{sJ}, s2, 3")
        a(f"v_lshl_add_u32 v2, s{sJ}, 4, v2")
        a("v_lshlrev_b32 v2, 7, v2")
        a("v_min_u32 v2, L_end-L_pc-4, v2")
        a(f"global_load_dword v14, v2, s[{sPC}:{sPC+1}]")
        a("s_load_dwordx4 s[36:39], s[0:1], 64")
        a("s_cmp_ge_u32 s2, 256")
        a("s_cbranch_scc1 L_exit")
        if self.stamps or "hold" in self.opt:
            a(f"s_memtime s[{sE0}:{sE0+1}]")
            a(f"s_memrealtime s[{sE1}:{sE1+1}]")
        if self.remap: a(f"s_lshr_b32 s{sG}, s2, 5")
        else: a(f"s_and_b32 s{sG}, s2, 7")
        a("v_lshrrev_b32 v1, 6, v0")
        a("v_and_b32 v0, 63, v0")
        a(f"v_readfirstlane_b32 s{sW}, v1")
        a("v_lshlrev_b32 v1, 4, v0")
        a("v_lshrrev_b32 v4, 3, v0")
        a("v_and_b32 v5, 0x70, v1")
        a("v_lshl_add_u32 v6, v4, 10, v5")
        self.sx(sT2, 0, (sG, 256 * 1024), (sJ, 64 * 1024, 0, 3), (sW, 8 * 1024))
        a(f"s_lshr_b32 s{sT3}, s{sJ}, 2")
        a("s_waitcnt lgkmcnt(0)")
        self.srd(SA, P_X, 2 * MB)
        for i in range(8):
            if i: a(f"s_add_u32 s{sT3}, s{sT3}, 1")
            self.sx(sT4, 0, (sT3, 128, 0, 7), (sT2, 1))
            a(f"buffer_load_dwordx4 {vr(self.XR+4*i,4)}, v6, {SRD(SA)}, s{sT4} offen")
        self.srd(WS, P_WS, WS_USED)
        a(f"s_cmp_ge_u32 s{sW}, 4")
        a("s_cbranch_scc1 L_startL")

    XR = 128
    def layernorm(self):
        a = self.a
        X, F = self.XR, 160
        a.label("L_ln")
        for i in range(32):
            a(f"v_lshlrev_b32 v{F+2*i}, 16, v{X+i}")
            a(f"v_and_b32 v{F+2*i+1}, 0xffff0000, v{X+i}")
            if i == 0: a(f"v_pk_mul_f32 v[28:29], {vr(F,2)}, {vr(F,2)}")
            else:
                a(f"v_pk_add_f32 v[26:27], {vr(F+2*i,2)}, {vr(F,2) if i == 1 else 'v[26:27]'}")
                a(f"v_pk_fma_f32 v[28:29], {vr(F+2*i,2)}, {vr(F+2*i,2)}, v[28:29]")
        a("v_add_f32 v26, v26, v27")
        a("v_add_f32 v28, v28, v29")
        for m in ("quad_perm:[1,0,3,2]", "quad_perm:[2,3,0,1]", "row_half_mirror"):
            a(f"v_add_f32_dpp v26, v26, v26 {m} row_mask:0xf bank_mask:0xf")
            a(f"v_add_f32_dpp v28, v28, v28 {m} row_mask:0xf bank_mask:0xf")
        a(f"v_mul_f32 v26, {hex(f2u(-1.0/512))}, v26")
        a(f"v_mul_f32 v28, {hex(f2u(1.0/512))}, v28")
        a("v_fma_f32 v28, -v26, v26, v28")
        a("v_max_f32 v28, 0, v28")
        a(f"v_add_f32 v28, {hex(f2u(1e-5))}, v28")
        a("v_rsq_f32 v28, v28")
        a("v_mul_f32 v26, v26, v28")
        for i in range(32):
            a(f"v_pk_fma_f32 {vr(F+2*i,2)}, {vr(F+2*i,2)}, v[28:29], v[26:27] op_sel_hi:[1,0,0]")
            a(f"v_cvt_pk_bf16_f32 v{X+i}, v{F+2*i}, v{F+2*i+1}")
            if i % 4 == 3: a(f"ds_write_b128 v{224+i//4}, {vr(X+i-3,4)}")
        a(f"s_cmp_lg_u32 s{sROLE}, 0")
        a("s_cbranch_scc1 L_lnL")
    def ln_addr(self):
        a = self.a
        a("v_lshlrev_b32 v6, 4, v4")
        a("v_xor_b32 v6, v6, v5")
        a("v_lshl_add_u32 v6, v5, 5, v6")
        self.sx(sT0, 0, (sW, 32768, 2), (sW, 128, 0, 3))
        a(f"v_add_u32 v6, s{sT0}, v6")
        win = self.o("win", 0)
        if win: a(f"s_lshr_b32 s{sT3}, s{sJ}, 2")
        else: self.sx(sT3, 0, (sJ, 1, 2), (sJ, 6, 0, 3))
        for i in range(8):
            if i: a(f"s_add_u32 s{sT3}, s{sT3}, 1")
            if win:
                a(f"s_sub_u32 s{sT0}, s{sT3}, s{sJ}")
                self.sx(sT0, 0, (sT0, 4096, 0, 3), (sT3, 4096, 0, 4))
            else: self.sx(sT0, 0, (sT3, 4096, 0, 7))
            a(f"v_add_u32 v{224+i}, s{sT0}, v6")

    def entry_stamp(self):
        if not self.stamps: return
        a = self.a
        a(f"s_lshl_b32 s{sTSI}, s2, 3")
        self.sx(sTSI, TSB, (sTSI, 1024), (sW, 1024))
        a(f"v_mov_b32 v18, s{sE0}")
        a(f"v_mov_b32 v19, s{sE1}")
        a("s_mov_b64 exec, 1")
        self.vm(f"buffer_store_dwordx2 v[18:19], off, {SRD(WS)}, s{sTSI}")
        a("s_mov_b64 exec, -1")
        a(f"s_add_u32 s{sTSI}, s{sTSI}, 8")
        self.seq.append("entry")

    def consts(self):
        a = self.a
        a(f"s_mov_b32 s{sLAY}, 0")
        a(f"s_mov_b32 s{sSLOW}, 0")
        a(f"s_mov_b32 s{sCODE}, 0")
        a(f"s_mov_b32 s{sTMO}, 100000")
        a(f"s_mov_b32 s{sHI}, 0")
        a(f"s_mov_b32 s{sHI+1}, -1")
        a(f"s_mov_b32 s{sN16}, 0xffff0000")
        a(f"s_mov_b32 s{sN16+1}, 0xffff0000")
        self.sx(sFG, FL, (sG, FL_STR))
        a(f"s_mov_b32 s{sFB}, s{sFG}")
        self.sx(sMYF, 0, (sJ, 32), (sW, 4), (sFG, 1))
        self.sx(sKVH, KVG, (sJ, 131072))

    def eighth(self, dst, st):
        a = self.a
        if self.o("win", 0):
            a(f"s_add_u32 s{dst}, s{sJ}, {st}")
            a(f"s_and_b32 s{dst}, s{dst}, 3")
            if st & 4: a(f"s_or_b32 s{dst}, s{dst}, 4")
        else:
            a(f"s_lshl_b32 s{dst}, s{sJ}, 1")
            a(f"s_add_u32 s{dst}, s{dst}, {st}")

    def flag_watch(self, r, t, layer):
        m = 1 if layer else 3
        return [f"v_lshrrev_b32 v{r}, 2, v0", f"v_add_u32 v{r}, s{sG}, v{r}", f"v_and_b32 v{r}, 7, v{r}", f"v_lshlrev_b32 v{r}, 14, v{r}", f"v_and_b32 v{t}, {m}, v0", f"v_lshl_add_u32 v{r}, v{t}, 7, v{r}",
                lambda: self.sx(sKVA, FL + F_KV + 4096 * layer, (sJ, 128, 0, 31 - m), (sJ, 4, 0, m))]

    def wtr_addr(self, r, t, hp_terms, perm):
        a = self.a
        self.sx(sT0, 0, *hp_terms)
        a(f"v_bfe_u32 v{r}, v0, 3, 1")
        a(f"v_lshlrev_b32 v{r}, 6, v{r}")
        a(f"v_xor_b32 v{r}, s{sT0}, v{r}")
        a(f"v_and_b32 v{t}, 3, v0")
        a(f"v_lshl_add_u32 v{r}, v{t}, 3, v{r}")
        a(f"v_bfe_u32 v{t}, v0, 4, 1")
        a(f"v_lshl_add_u32 v{r}, v{t}, 5, v{r}")
        a(f"v_bfe_u32 v{t}, v0, 2, 2")
        a(f"v_lshl_add_u32 v{r}, v{t}, 7, v{r}")
        a(f"v_lshrrev_b32 v{t}, 5, v0")
        a(f"v_mul_u32_u24 v{t}, {512 if perm else 3072}, v{t}")
        a(f"v_add_u32 v{r}, v{r}, v{t}")

    QF, KA, VA0, VA1, IDX, Q2, KM, FA = 8, 16, 17, 20, 21, 22, 24, 25
    S0, S1, CC, OO, KF, VF = 32, 48, (64, 80), (96, 112), 128, 136
    AQ, AK, AV = 32, 48, 64

    def attn_setup(self, layer):
        f = ["v_and_b32 v2, 0x330, v1", "v_bfe_u32 v30, v0, 2, 1", "v_lshl_add_u32 v2, v30, 7, v2",
             "v_bfe_u32 v30, v0, 3, 1", "v_lshl_add_u32 v2, v30, 6, v2",
             "v_lshrrev_b32 v29, 5, v0", "v_and_b32 v30, 0xf0, v1", "v_lshl_add_u32 v30, v29, 8, v30",
             "v_bfe_u32 v28, v0, 4, 1", "v_lshl_add_u32 v3, v28, 17, v30", "v_lshl_add_u32 v4, v28, 11, v30",
             f"s_lshl_b32 s{sT0}, s{sW}, 3", f"s_add_u32 s{sT0}, s{sT0}, {KSL}", f"v_lshl_add_u32 v5, v29, 2, s{sT0}",
             f"v_add_u32 v{self.KA}, {KVB}, v1",
             "v_and_b32 v31, 15, v0", "v_min_u32 v31, 1, v31", f"v_mov_b32 v28, {KVB+2048}",
             "v_lshl_add_u32 v28, v31, 16, v28",
             f"v_add_u32 v30, {KVB+1024}, v30", f"v_cndmask_b32 v{self.VA0}, v30, v28, s[{sN16}:{sN16+1}]",
             "v_add_u32 v30, 512, v30", f"v_cndmask_b32 v{self.VA1}, v30, v28, s[{sN16}:{sN16+1}]",
             f"v_mov_b32 v{self.IDX}, 0xdddddddd"]
        f += [f"s_lshl_b32 s{sT0}, s{sW}, 2", f"s_add_u32 s{sT0}, s{sT0}, {VRD}", f"v_mov_b32 v{self.FA}, s{sT0}"]
        f += [f"v_mov_b32 v{self.OO[0]+i}, 0" for i in range(32)]
        return f

    def qkv1(self):
        a = self.a
        a(f"s_mov_b32 s{sROLE}, 0")
        self.vq = ["x"]
        self.entry_stamp()
        self.stamp("issued")
        self.consts()
        a(f"s_lshr_b32 s{sKH}, s{sW}, 1")
        self.sx(sTL, 0, (sJ, 2, 3), (sW, 1, 0, 1))
        self.sx(sT0, 0, (sJ, 2, 0, 7), (sKH, 1))
        self.sx(sT1, 0, (sG, 8), (sTL, 1))
        self.sx(sKT, XF, (sT1, 32768), (sT0, 2048))
        self.sx(sKS, ST, (sT1, 4096), (sT0, 1024, 2), (sT0, 4, 0, 3))
        self.sx(sOS, HF, (sT1, HT), (sKH, 16384))
        self.sx(sHS, HF, (sT1, HT), (sKH, 8192))
        self.sx(sOUT, 0, (sT1, 32768), (sT0, 64))
        self.sx(sT1, 0, (sG, 8), (sJ, 4, 4), (sW, 1))
        self.sx(sUX, XF, (sT1, 32768))
        self.sx(sUS, ST, (sT1, 4096))
        self.sx(sUC, CS13, (sJ, 7 * 1024, 0, 15))
        self.sx(sHD, HF, (sT1, HT), (sJ, 1024, 0, 15))
        self.sx(sT1, 0, (sG, 8), (sJ, 4, 0, 1), (sW, 1))
        self.sx(sQX, XF, (sT1, 32768))
        self.sx(sQS, ST, (sT1, 4096))
        self.sx(sOD, HF, (sG, 8 * HT), (sW, 2 * HT), (sJ, 1024))
        self.sx(sT1, 0, (sG, 8), (sJ, 2, 0, 3), (sW, 1, 0, 1))
        self.sx(sT0, 0, (sJ, 1, 0, 28), (sW, 1, 0, 2))
        self.sx(sKG, KVG, (sT0, 131072), (sT1, 2048))
        self.sx(sQL, HF, (sT1, HT), (sT0, 1024))
        self.sx(sKL, 32768, (sT0, 1024), (sQL, 1))
        self.ln_addr()
        self.sx(sT1, 0, (sW, 32768, 0, 1))
        a("v_lshrrev_b32 v6, 5, v0")
        for k in range(4):
            a(f"v_lshl_add_u32 v7, v6, 4, {32*k}" if k < 3 else "v_lshlrev_b32 v7, 4, v6")
            if k == 3: a("v_add_u32 v7, 96, v7")
            a("v_xor_b32 v7, v7, v1")
            a(f"v_add_u32 v{8+k}, s{sT1}, v7")
        self.wtr_addr(12, 13, [(sW, 64, 1)], False)
        a(f"v_add_u32 v12, {WRING}, v12")
        a(f"v_add_u32 v13, {2*WSTG}, v12")
        self.emit(self.attn_setup(0))
        self.wait(vm="x")
        self.stamp("x landed")
        self.layernorm()
        self.stamp("ln done")
        R = 128
        def reads(k):
            b = R + 16 * (k % 3); st = (k >> 2) & 3
            L = [f"ds_read_b128 {vr(b,4)}, v{8+(k&3)} offset:{k*1024}"]
            for part in range(3):
                for h2 in range(2):
                    L.append(f"ds_read_b64_tr_b16 {vr(b+4+4*part+2*h2,2)}, v{12+(st>>1)} offset:{(st&1)*WSTG+(k&3)*6144+part*1024+h2*512}")
            return L
        a("s_waitcnt lgkmcnt(0)")
        a("s_barrier")
        self.emit(reads(0) + reads(1))
        for k in range(32):
            b = R + 16 * (k % 3)
            nx = reads(k + 2) if k + 2 < 32 else []
            bar = (k & 3) == 2 and nx
            a(f"s_waitcnt lgkmcnt({7 if k < 31 else 0})")
            a(f"v_mfma_f32_32x32x16_bf16 {vr(self.AK,16)}, {vr(b+8,4)}, {vr(b,4)}, {vr(self.AK,16) if k else '0'}")
            if bar:
                a("s_waitcnt lgkmcnt(0)")
                a("s_barrier")
            self.emit(nx[:3])
            a(f"v_mfma_f32_32x32x16_bf16 {vr(self.AV,16)}, {vr(b,4)}, {vr(b+12,4)}, {vr(self.AV,16) if k else '0'}")
            self.emit(nx[3:5])
            a(f"v_mfma_f32_32x32x16_bf16 {vr(self.AQ,16)}, {vr(b+4,4)}, {vr(b,4)}, {vr(self.AQ,16) if k else '0'}")
            self.emit(nx[5:])
        a("s_barrier")
        self.stamp("qkv main")
        a(f"v_mov_b32 v6, {hex(f2u(SIG))}")
        a(f"v_mov_b32 v30, {MODE}")
        a("ds_read_b32 v30, v30")
        self.qkv_epilogue(0, None, 6, None)
        self.stamp("qkv done")

    def qkv_epilogue(self, layer, RS, RQ, RR):
        a = self.a
        AQ, AK, AV, T = self.AQ, self.AK, self.AV, 152
        sc = lambda b, r: [a(f"v_pk_mul_f32 {vr(b+i,2)}, {vr(b+i,2)}, {vr(r,2)} op_sel_hi:[1,0]") for i in range(0, 16, 2)]
        cv = lambda b, d: [a(f"v_cvt_pk_bf16_f32 v{d+i}, v{b+2*i}, v{b+2*i+1}") for i in range(8)]
        loc = self.dg <= layer
        if layer: sc(AK, RS)
        cv(AK, T)
        if loc:
            for u in range(2): self.vm(f"buffer_store_dwordx4 {vr(T+4*u,4)}, v2, {SRD(WS)}, s{sKL} offen offset:{2048*u}")
        else: self.kv_global((0, 1))
        if layer:
            for i in range(0, 16, 2): a(f"v_pk_mul_f32 {vr(AV+i,2)}, {vr(AV+i,2)}, {vr(RR+i,2)}")
        cv(AV, T + 8)
        if loc:
            for u in range(2): self.vm(f"buffer_store_dwordx4 {vr(T+8+4*u,4)}, v4, {SRD(WS)}, s{sKL} offen offset:{1024+512*u}")
        else: self.kv_global((2, 3))
        sc(AQ, RQ)
        cv(AQ, T + 16)
        for u in range(2): self.vm(f"buffer_store_dwordx4 {vr(T+16+4*u,4)}, v1, {SRD(WS)}, s{sQL} offen offset:{1024*u} {'' if loc or layer else 'sc1'}", "loc")
        if loc and self.o("gl", 1) == 0: self.kv_global()
        if layer == 0:
            a("s_waitcnt lgkmcnt(0)")
            a(f"v_readfirstlane_b32 s{sSLOW}, v30")
            a(f"s_lshl_b32 s{sT0}, s{sSLOW}, 10")
            a(f"s_add_u32 s{sFB}, s{sFB}, s{sT0}")
            a(f"s_add_u32 s{sMYF}, s{sMYF}, s{sT0}")
        for h in range(2):
            a(f"v_pk_mul_f32 {vr(26+2*h,2)}, {vr(AK+8*h,2)}, {vr(AK+8*h,2)}")
        for i in (2, 4, 6):
            for h in range(2): a(f"v_pk_fma_f32 {vr(26+2*h,2)}, {vr(AK+8*h+i,2)}, {vr(AK+8*h+i,2)}, {vr(26+2*h,2)}")
        a("v_add_f32 v26, v26, v27")
        a("v_add_f32 v28, v28, v29")
        a("v_permlane32_swap_b32 v26, v28")
        a("v_add_f32 v26, v26, v28")
        if loc:
            self.publish(27, C_Q, tag="loc")
            if self.o("gl", 1) == 1: self.kv_global()
        self.emit(self.wave_umax(26, 28))
        a("v_or_b32 v26, 1, v26")
        self.ds("ds_write_b32 v5, v26")
        if not loc:
            L = a.newlabel("nf")
            self.publish(27, C_Q)
            self.wait(ds="all")
            self.sx(sT3, F_KV + 4096 * layer, (sJ, 128), (sFG, 1))
            a(f"s_cmp_lg_u32 s{sW}, 0")
            a("s_barrier")
            a(f"s_cbranch_scc1 {L}")
            self.kv_flag(layer, 32, sT3)
            a.label(L)

    def kv_global(self, which=(0, 1, 2, 3)):
        T = 152
        for k in which:
            if k == 1: self.a(f"s_add_u32 s{sT1}, s{sKG}, 131072")
            if k < 2: self.vm(f"buffer_store_dwordx4 {vr(T+4*k,4)}, v2, {SRD(WS)}, s{sT1 if k else sKG} offen sc1")
            else: self.vm(f"buffer_store_dwordx4 {vr(T+4*k,4)}, v3, {SRD(WS)}, s{sKG} offen offset:{512*k} sc1")

    def wave_umax(self, r, t):
        L = [f"v_max_u32_dpp v{r}, v{r}, v{r} {m} row_mask:0xf bank_mask:0xf"
             for m in ("quad_perm:[1,0,3,2]", "quad_perm:[2,3,0,1]", "row_half_mirror", "row_mirror")]
        return L + [f"v_mov_b32 v{t}, v{r}", f"v_permlane16_swap_b32 v{r}, v{t}", f"v_max_u32 v{r}, v{r}, v{t}"]

    def qkv2(self):
        a = self.a
        X, NX, WD = 128, 12, self.o("qw", 10)
        AQ, AK, AV = self.AQ, self.AK, self.AV
        RING, STT, RR, MU, RS, RQ = 176, 208, 224, 240, 6, 244
        self.sx(sT1, 0, (sJ, 4, 0, 1), (sW, 1))
        self.emit(self.x_flag_addr(14, 15, sT1))
        a(f"v_add_u32 v12, {SLICE-3072}, v1")
        a(f"v_add_u32 v13, {SLICE+49152}, v1")
        self.publish(11, C_X2)
        self.stamp("down done")
        self.sx(sT1, 0, (sT1, 1), (sG, 8))
        self.sx(sKG, KVG + KV_STR, (sJ, 131072, 0, 30), (sT1, 2048))
        self.sx(sQL, HF, (sT1, HT), (sJ, 1024, 0, 30))
        self.sx(sKL, 32768, (sJ, 1024, 0, 30), (sQL, 1))
        a(f"s_add_u32 s{sKVH}, s{sKVH}, {KV_STR}")
        self.dq.clear(); self.forget()
        def xl(k):
            def f():
                if k % 4 == 0:
                    self.eighth(sT5, k >> 2)
                    self.sx(sT5, 0, (sT5, 4096, 0, 7), (sQX, 1))
                self.vm(f"buffer_load_dwordx4 {vr(X+4*(k%NX),4)}, v1, {SRD(WS)}, s{sT5} offen offset:{(k&3)*1024} sc1", ("x", k))
            return f
        seq = [(k, xl(k)) for k in range(32)]
        for q in range(4): seq.insert(8 + 2 * q, (8 + q, self.fload(STT + 4 * q, sQS, q * 1024, "st", tmp=sT4)))
        init, per = self.ramp(seq, 32, self.o("q0", 4), WD)
        items = []
        def trio(rd, xr, z):
            w = lambda acc: (lambda r: f"v_mfma_f32_32x32x16_bf16 {vr(acc,16)}, {vr(r,4)}, {xr}, {'0' if z else vr(acc,16)}")
            return [dict(read=rd(1), mfma=w(AK)),
                    dict(read=rd(2), mfma=lambda r: f"v_mfma_f32_32x32x16_bf16 {vr(AV,16)}, {xr}, {vr(r,4)}, {'0' if z else vr(AV,16)}"),
                    dict(read=rd(0), mfma=w(AQ))]
        for k in range(32):
            t3 = trio(lambda p, k=k: (12, 3072 + k * 3072 + p * 1024) if k < 16 else (13, (k - 16) * 3072 + p * 1024), vr(X + 4 * (k % NX), 4), k == 0)
            t3[0]["vm"] = ("x", k)
            for c in range(2): t3[c]["post"] = list(per.get(k, [])[c::2])
            items += t3
            if k == 24: items += trio(lambda p: (12, p * 1024), vr(MU, 4), False)
        items[0]["bar"] = True
        st = [lambda: self.wait(vm="st")] + self.stats_ops(STT, MU, RS, RQ)
        st += [f"s_lshl_b32 s{sT0}, s{sW}, 7", "v_and_b32 v26, 31, v0", f"v_lshl_add_u32 v26, v26, 2, s{sT0}",
               lambda: self.ds(f"ds_write_b32 v26, v{RS}"),
               "v_lshrrev_b32 v27, 5, v0", f"v_lshl_add_u32 v27, v27, 4, s{sT0}", f"v_mul_f32 v{RQ}, {hex(f2u(SIG))}, v{RS}"]
        st += [lambda i=i: self.ds(f"ds_read_b128 {vr(RR+4*i,4)}, v27 offset:{32*i}") for i in range(4)]
        self.spread(items, 40, 72, st)
        self.spread(items, 4, 40, self.attn_setup(1))
        self.stream_begin(items, 8, RING)
        self.poll(14, 15, C_X2)
        self.stamp("x2 polled")
        self.emit(init)
        self.stream_run()
        a("s_barrier")
        self.stamp("qkv main")
        a(f"s_mov_b32 s{sLAY}, 1")
        a(f"s_mov_b32 s{sCODE}, 16")
        self.qkv_epilogue(1, RS, RQ, RR)
        self.stamp("qkv done")
        a("s_branch L_attn")

    def attention(self):
        a = self.a
        S = [self.S0, self.S1]; K = [self.KF, self.KF + 4]; V = [self.VF, self.VF + 8]
        Q = [self.QF, self.QF + 4]; C, O, IDX, Q2 = self.CC, self.OO, self.IDX, self.Q2
        off = lambda t: ((t >> 3) & 1) * SLOT + (t & 7) * TSTR
        kread = lambda t: f"ds_read_b128 {vr(K[t&1],4)}, v{self.KA} offset:{off(t)}"
        vread = lambda t, u: f"ds_read_b128 {vr(V[t&1]+4*u,4)}, v{self.VA1 if u else self.VA0} offset:{off(t)}"
        qk = lambda t, q: f"v_mfma_f32_32x32x16_bf16 {vr(S[q],16)}, {vr(K[t&1],4)}, {vr(Q[q],4)}, {vr(C[q],16)}"
        pv = lambda t, q, u: f"v_smfmac_f32_32x32x32_bf16 {vr(O[q],16)}, {vr(V[t&1]+4*u,4)}, {vr(S[q]+8*u,8)}, v{IDX}"
        ast = self.o("ast", 0)
        a.label("L_attn")
        self.vq.clear(); self.dq.clear(); self.forget()
        a(f"s_lshl_b32 s{sT0}, s{sW}, 11")
        a(f"v_add_u32 v26, s{sT0}, v1")
        a("s_waitcnt lgkmcnt(0)")
        a("s_barrier")
        self.stamp("A0")
        for q in range(2): a(f"ds_read_b128 {vr(Q[q],4)}, v26 offset:{QA+1024*q}")
        a(kread(0)); a(vread(0, 0)); a(vread(0, 1))
        assert self.o("gl", 1) < 2 or not self.dg
        if self.o("gl", 1) == 2: self.kv_global()
        a("s_waitcnt lgkmcnt(3)")
        for i in range(4):
            for q in range(2): a(f"v_dot2_f32_bf16 v{Q2+q}, v{Q[q]+i}, v{Q[q]+i}, {'v%d' % (Q2+q) if i else '0'}")
        a("s_nop 2")
        a(f"v_permlane32_swap_b32 v{Q2}, v{Q2+1}")
        a(f"v_add_f32 v{Q2}, v{Q2}, v{Q2+1}")
        a(f"v_mul_f32 v26, {hex(f2u(-1.0/SIG))}, v{Q2}")
        a(f"v_max_f32 v26, {hex(f2u(-TBOUND))}, v26")
        a("v_mov_b32 v28, v26")
        a("v_permlane32_swap_b32 v26, v28")
        for i in range(0, 16, 2): a(f"v_pk_mov_b32 {vr(C[0]+i,2)}, v[26:27], v[26:27] op_sel:[0,0]")
        a("s_waitcnt lgkmcnt(0)")
        a(qk(0, 0))
        for i in range(0, 16, 2): a(f"v_pk_mov_b32 {vr(C[1]+i,2)}, v[28:29], v[28:29] op_sel:[0,0]")
        jobs = {}
        def job(t, f): jobs.setdefault(t, []).append(f)
        def e1():
            a("s_waitcnt vmcnt(0)")
            a("s_barrier")
        assert self.o("e1t", 0) <= 2
        job(self.o("e1t", 0), e1)
        job(60, lambda: a(f"ds_read_b32 v{self.KM}, v{self.FA}"))
        job(62, lambda: a(f"v_readfirstlane_b32 s{sBAD}, v{self.KM}"))
        p1, pq, p0 = self.o("p1", 2), self.o("pqk", 5), self.o("p0", 11)
        def unit(t, q):
            c = S[q]
            tp, qp = (t, 0) if q else (t - 1, 1)
            tn, qn = (t + 1, 0) if q else (t, 1)
            nxt = t < 63 and q == 0
            for i in range(16):
                if i == p1:
                    if tp >= 0: a(pv(tp, qp, 1))
                    if nxt:
                        if (t & 7) == 7:
                            if ast: self.dstamp(f"a{(t+1)>>3} arr", 204)
                            a("s_barrier")
                            if ast: self.dstamp(f"a{(t+1)>>3} bar", 204)
                        a(kread(t + 1))
                    if q: a("s_waitcnt lgkmcnt(0)")
                if i == pq:
                    if tn < 64: a(qk(tn, qn))
                    if nxt: a(vread(t + 1, 0))
                if i == p0:
                    a(pv(t, q, 0))
                    if nxt: a(vread(t + 1, 1))
                    if q:
                        for f in jobs.get(t, []): f()
                a(f"v_exp_f32 v{c+i}, v{c+i}")
        roll = self.o("roll", 1) and not ast
        a("@align")
        for t in range(64):
            if roll and t == 8:
                a(f"s_mov_b32 s{sT5}, 3")
                a.label("L_aloop")
            if roll and 24 <= t < 56: continue
            for q in range(2): unit(t, q)
            if roll and t == 23:
                a(f"s_sub_u32 s{sT5}, s{sT5}, 1")
                a(f"s_cmp_lg_u32 s{sT5}, 0")
                a("s_cbranch_scc1 L_aloop")
        a("@noalign")
        a(pv(63, 1, 1))
        a(f"s_cmp_lg_u32 s{sBAD}, 0")
        a("s_cbranch_scc1 L_fallback")
        a.label("L_attn_fin")
        if ast: self.dflush()
        self.stamp("attn loop")
        a(f"s_add_u32 s{sT0}, s{sOD}, {HT}")
        for q in range(2):
            a(f"v_mov_b32 v26, v{O[q]+8}")
            a(f"v_permlane32_swap_b32 v26, v{O[q]+8}")
            a("v_rcp_f32 v26, v26")
            for i in range(0, 8, 2): a(f"v_pk_mul_f32 {vr(O[q]+i,2)}, {vr(O[q]+i,2)}, v[26:27] op_sel_hi:[1,0]")
            for i in range(4): a(f"v_cvt_pk_bf16_f32 v{244+4*q+i}, v{O[q]+2*i}, v{O[q]+1+2*i}")
            self.vm(f"buffer_store_dwordx4 {vr(244+4*q,4)}, v1, {SRD(WS)}, s{sT0 if q else sOD} offen", "o")

    def fallback(self):
        a = self.a
        S, K, V, IDX = self.S0, self.KF, self.VF, self.IDX
        a.label("L_fallback")
        a(f"s_add_u32 s{sT3}, s{sKVH}, 131072")
        a(f"v_subrev_u32 v28, {KVB}, v{self.VA0}")
        a("s_nop 7")
        for i in range(8): a(f"v_mov_b32 v{V+i}, 0x3f803f80")
        for q in range(2):
            Q, C, O = self.QF + 4 * q, self.CC[q], self.OO[q]
            a(f"s_mov_b32 s{sT0}, s{sKVH}")
            a("v_mov_b32 v26, 0xff800000")
            a.label(f"L_fb1_{q}")
            a(f"buffer_load_dwordx4 {vr(K,4)}, v1, {SRD(WS)}, s{sT0} offen sc1")
            a("s_waitcnt vmcnt(0)")
            a(f"v_mfma_f32_32x32x16_bf16 {vr(S,16)}, {vr(K,4)}, {vr(Q,4)}, 0")
            for i in range(8): a(f"v_max3_f32 v26, v{S+2*i}, v{S+2*i+1}, v26")
            a(f"s_add_u32 s{sT0}, s{sT0}, 2048")
            a(f"s_cmp_lt_u32 s{sT0}, s{sT3}")
            a(f"s_cbranch_scc1 L_fb1_{q}")
            a("v_mov_b32 v27, v26")
            a("v_permlane32_swap_b32 v26, v27")
            a("v_max_f32 v26, v26, v27")
            for i in range(16): a(f"v_sub_f32 v{C+i}, 0, v26")
            for i in range(16): a(f"v_mov_b32 v{O+i}, 0")
            a(f"s_mov_b32 s{sT0}, s{sKVH}")
            a.label(f"L_fb2_{q}")
            a(f"buffer_load_dwordx4 {vr(K,4)}, v1, {SRD(WS)}, s{sT0} offen sc1")
            a(f"s_not_b64 exec, s[{sN16}:{sN16+1}]")
            a(f"buffer_load_dwordx4 {vr(V,4)}, v28, {SRD(WS)}, s{sT0} offen sc1")
            a(f"buffer_load_dwordx4 {vr(V+4,4)}, v28, {SRD(WS)}, s{sT0} offen offset:512 sc1")
            a("s_mov_b64 exec, -1")
            a("s_waitcnt vmcnt(0)")
            a(f"v_mfma_f32_32x32x16_bf16 {vr(S,16)}, {vr(K,4)}, {vr(Q,4)}, {vr(C,16)}")
            for i in range(16): a(f"v_exp_f32 v{S+i}, v{S+i}")
            for u in range(2):
                a(f"v_smfmac_f32_32x32x32_bf16 {vr(O,16)}, {vr(V+4*u,4)}, {vr(S+8*u,8)}, v{IDX}")
            a("s_nop 11")
            a(f"s_add_u32 s{sT0}, s{sT0}, 2048")
            a(f"s_cmp_lt_u32 s{sT0}, s{sT3}")
            a(f"s_cbranch_scc1 L_fb2_{q}")
        a("s_branch L_attn_fin")

    RW, HOLD = 24, 152
    def lbar(self, nm, tag=None, ds=None):
        self.wait(vm=tag)
        if ds is not None: self.a(f"s_waitcnt lgkmcnt({ds})")
        on = nm[0] in self.opt.get("ls", "")
        if on: self.stamp(nm + " arr")
        self.a("s_barrier")
        if on: self.stamp(nm)
    def only_w4(self, fn, extra=None):
        a = self.a
        L = a.newlabel("w4")
        q = list(self.vq)
        if extra is None: a(f"s_cmp_lg_u32 s{sL}, 0")
        else: a(f"s_or_b32 s{sT0}, s{sL}, s{extra}")
        a(f"s_cbranch_scc1 {L}")
        fn()
        a.label(L)
        self.vq = q
    def code_touch(self):
        self.vm(f"global_load_dword v14, v5, s[{sPC}:{sPC+1}]")
    def rload(self, slot, src, unit):
        b = self.RW + 16 * slot
        self.a(f"s_add_u32 s{sT7}, s{src}, {unit*16384}")
        for i in range(4): self.vm(f"buffer_load_dwordx4 {vr(b+4*i,4)}, v1, {SRD(WS)}, s{sT7} offen offset:{i*1024} {self.wpol}", ("r", slot))
    def lsync(self, n):
        a = self.a
        a(f"v_mov_b32 v8, {LSY}")
        a("v_mov_b32 v9, 1")
        a("s_mov_b64 exec, 1")
        a("ds_add_u32 v8, v9")
        def body():
            a("ds_read_b32 v9, v8")
            a("s_waitcnt lgkmcnt(0)")
            a(f"v_cmp_gt_u32 vcc, {4*n}, v9")
        self.spin(body)
        a("s_mov_b64 exec, -1")

    def start_loader(self):
        a = self.a
        a.label("L_startL")
        self.vq = ["x"]; self.dq.clear()
        a(f"s_mov_b32 s{sROLE}, 1")
        a("v_mul_u32_u24 v16, 3072, v4")
        a("v_lshlrev_b32 v8, 2, v0")
        a("v_and_b32 v8, 64, v8")
        a("v_xor_b32 v8, v8, v5")
        a("v_add_u32 v16, v16, v8")
        a(f"s_sub_u32 s{sL}, s{sW}, 4")
        self.sx(sQ, 0, (sL, 16 * 3072), (sJ, 128, 2))
        self.sx(sT4, WRING, (sL, 6144))
        a(f"s_lshl_b32 s{sL}, s{sL}, 12")
        self.srd(SB, P_WQKV, 512 * 3072)
        self.srd(DBG, P_DBG, 256)
        self.sx(sFG, FL, (sG, FL_STR))
        a(f"s_getreg_b32 s{sXCC}, hwreg(HW_REG_XCC_ID, 0, 4)")
        if self.force_slow: a(f"s_and_b32 s{sXCC}, s{sJ}, 1")
        a(f"s_or_b32 s{sXCC}, s{sXCC}, 16")
        def clear():
            for r in range(20, 24): a(f"v_mov_b32 v{r}, 0")
            a("v_lshrrev_b32 v8, 1, v0")
            a("v_lshlrev_b32 v8, 7, v8")
            a("v_and_b32 v9, 16, v1")
            a("v_add_u32 v8, v8, v9")
            a(f"s_add_u32 s{sT0}, s{sFG}, {F_KV}")
            a(f"s_add_u32 s{sT1}, s{sFG}, {F_KV+4096}")
            for o in (0, 1024): a(f"buffer_store_dwordx4 v[20:23], v1, {SRD(WS)}, s{sFG} offen offset:{o} sc1")
            for r in (sT0, sT1): a(f"buffer_store_dwordx4 v[20:23], v8, {SRD(WS)}, s{r} offen sc1")
        self.only_w4(clear, sJ)
        def stage(s):
            self.eighth(sT5, s)
            self.sx(sT5, 0, (sT5, 64 * 3072, 0, 7), (sQ, 1))
            for pc in range(2):
                a(f"s_add_u32 m0, s{sT4}, {(s&3)*WSTG + pc*3072}")
                if pc: a(f"s_add_u32 s{sT5}, s{sT5}, {8*3072}")
                for part in range(3):
                    self.vm(f"buffer_load_dwordx4 v16, {SRD(SB)}, s{sT5} offen offset:{part*1024} lds", ("w", s))
        pre = self.o("wpre", 1); LA = self.o("la", 2)
        for s in range(pre): stage(s)
        self.entry_stamp()
        self.stamp("issued")
        self.consts()
        self.ln_addr()
        self.wtr_addr(17, 8, [(sJ, 64, 1, 1)], True)
        a(f"v_add_u32 v17, s{sT4}, v17")
        a(f"v_add_u32 v15, {2*WSTG}, v17")
        a(f"v_lshl_add_u32 v11, s{sG}, 2, v0")
        a("v_and_b32 v11, 28, v11")
        self.wait(vm="x")
        def ready():
            a(f"s_lshl_b32 s{sT0}, s{sG}, 2")
            a(f"v_mov_b32 v8, s{sXCC}")
            a("s_mov_b64 exec, 1")
            a(f"buffer_store_dword v8, off, {SRD(DBG)}, s{sT0} offset:{D_GRDY} sc1")
            a("s_mov_b64 exec, -1")
        self.only_w4(ready, sJ)
        mid = self.o("wmid", 2)
        for s in range(pre, mid): stage(s)
        a("s_branch L_ln")
        a.label("L_lnL")
        for s in range(mid, LA): stage(s)
        for s in range(8):
            self.wait(vm=("w", s))
            if s == 0: a("s_waitcnt lgkmcnt(0)")
            for part in range(3):
                for h2 in range(2):
                    a(f"ds_read_b64_tr_b16 {vr(self.HOLD+12*s+4*part+2*h2,2)}, v{15 if s & 2 else 17} offset:{(s&1)*WSTG+part*1024+h2*3072}")
            self.lbar(f"G{s}")
            if s == 1: self.vm(f"buffer_load_dword v13, v11, {SRD(DBG)}, 0 offen offset:{D_GRDY} sc1", "grdy")
            if s == 3: self.hello()
            if s + LA < 8:
                a("s_waitcnt lgkmcnt(6)")
                stage(s + LA)
            if s == 6:
                self.mode_look()
                if not self.dg: self.th(None)
        self.mode()
        self.sx(s13, PW13, (sJ, 7 * 32768, 0, 15), (sL, 1))
        self.sx(s2_, PW2, (sJ, 7 * 32768, 0, 7), (sL, 1))
        self.sx(sWOs, PWO, (sJ, 65536, 0, 7), (sL, 1))
        self.sx(sKVF, F_KV, (sJ, 128), (sFG, 1))

    def th(self, parts):
        a = self.a
        self.sx(sT0, HF, (sG, 8 * HT), (sJ, 4 * 7168), (sL, 7168, 12))
        if parts is None:
            a("v_min_u32 v8, 55, v0")
            a("v_lshlrev_b32 v8, 7, v8")
            self.vm(f"buffer_load_dword v14, v8, {SRD(WS)}, s{sT0} offen sc1")
        else:
            for p in parts:
                a(f"s_add_u32 s{sT1}, s{sT0}, {p*1024}")
                self.vm(f"buffer_load_dword v14, v1, {SRD(WS)}, s{sT1} offen sc1")
    def tx(self):
        a = self.a
        for x in ["v_lshrrev_b32 v8, 5, v0", "v_lshlrev_b32 v8, 15, v8", "v_bfe_u32 v9, v0, 2, 3", "v_lshl_add_u32 v8, v9, 7, v8"]: a(x)
        self.sx(sT0, XF, (sG, 8 * 32768), (sJ, 65536, 3), (sJ, 4096, 0, 7), (sL, 1, 2))
        self.vm(f"buffer_load_dword v14, v8, {SRD(WS)}, s{sT0} offen sc1")
        for x in ["v_lshrrev_b32 v8, 5, v0", "v_lshlrev_b32 v8, 12, v8", "v_lshl_add_u32 v8, v9, 7, v8"]: a(x)
        self.sx(sT0, ST, (sG, 8 * 4096), (sJ, 8192, 3), (sJ, 1024, 1, 3))
        self.vm(f"buffer_load_dword v14, v8, {SRD(WS)}, s{sT0} offen sc1")

    def after_e0(self, layer):
        a = self.a
        self.emit(self.flag_watch(10, 8, layer))
        a(f"s_mov_b64 s[{sRDY}:{sRDY+1}], 0")
        a(f"s_not_b64 s[{sLO}:{sLO+1}], s[{sHI}:{sHI+1}]")
        for r in range(20, 24): a(f"v_mov_b32 v{r}, 0x3f803f80")
        a("v_bfe_u32 v8, v0, 4, 1")
        a(f"v_mul_u32_u24 v8, {TSTR}, v8")
        a("v_lshrrev_b32 v9, 5, v0")
        a(f"v_mul_u32_u24 v9, {SLOT}, v9")
        self.sx(sT1, KVB + 2048, (sL, 1), (sL, 1, 7))
        a(f"v_add3_u32 v8, v8, v9, s{sT1}")
        a("v_and_b32 v12, 1, v0")
        if layer: self.sx(sT0, 0, (sJ, 32, 0, 30), (sL, 32, 13), (sL, 8, 12, 1))
        else: self.sx(sT0, 0, (sJ, 32, 0, 28), (sL, 32, 12), (sJ, 4, 0, 2))
        a(f"v_lshl_add_u32 v12, v12, 2, s{sT0}")
        self.lbar("E0", ds=0)
        a("ds_write_b128 v8, v[20:23]")

    def kv_flag(self, layer, r, dst):
        a = self.a
        a(f"v_mov_b32 v{r}, {KSL}")
        a(f"ds_read_b128 {vr(r+4,4)}, v{r} offset:16")
        a(f"ds_read_b128 {vr(r,4)}, v{r}")
        a("s_waitcnt lgkmcnt(0)")
        a(f"v_max_u32 v{r}, v{r}, v{r+2}")
        a(f"v_max_u32 v{r+1}, v{r+1}, v{r+3}")
        a(f"v_max_u32 v{r+2}, v{r+4}, v{r+6}")
        a(f"v_max_u32 v{r+3}, v{r+5}, v{r+7}")
        if layer:
            a(f"v_max_u32 v{r}, v{r}, v{r+2}")
            a(f"v_max_u32 v{r+1}, v{r+1}, v{r+3}")
        a("s_mov_b64 exec, 1")
        a(f"buffer_store_dwordx{2 if layer else 4} {vr(r, 2 if layer else 4)}, off, {SRD(WS)}, s{dst} sc1")
        a("s_mov_b64 exec, -1")

    def kv_need(self, s, layer):
        a = self.a
        L, D, N = a.newlabel("kvn"), a.newlabel("kvd"), a.newlabel("kvr")
        dyn = self.o("dyn", 0) and s > 0
        if dyn and s == 1: a(f"s_mov_b32 s{sREM}, 0x11111110")
        a.label(L)
        if dyn:
            a(f"s_lshr_b32 s{sT2}, s{sRDY}, 1")
            a(f"s_and_b32 s{sT2}, s{sT2}, s{sRDY}")
            a(f"s_lshr_b32 s{sT1}, s{sT2}, 2")
            a(f"s_and_b32 s{sT2}, s{sT2}, s{sT1}")
            a(f"s_and_b32 s{sT2}, s{sT2}, s{sREM}")
            a(f"s_cbranch_scc1 {D}")
        else:
            a(f"s_andn2_b32 s{sT2}, {hex(15 << (4 * s))}, s{sRDY}")
            a(f"s_cbranch_scc0 {D}")
        if layer == 0:
            a(f"s_cmp_eq_u32 s{sEX}, -1")
            a(f"s_cbranch_scc1 {N}")
            a(f"buffer_load_dword v13, v11, {SRD(DBG)}, 0 offen offset:{D_GRDY} sc1")
            a("s_waitcnt vmcnt(0)")
            a(f"v_cmp_ne_u32 s[{sEX}:{sEX+1}], 0, v13")
            a.label(N)
        if s <= self.o("narrow", 1): a(f"s_mov_b64 exec, {hex(((1 << (4 * (self.o('wide', 3) if dyn else 1))) - 1) << (4 * s))}")
        else: a(f"s_andn2_b64 exec, s[{sLO}:{sLO+1}], s[{sRDY}:{sRDY+1}]")
        a(f"buffer_load_dword v9, v10, {SRD(WS)}, s{sKVA} offen sc1")
        a("s_waitcnt vmcnt(0)")
        a("v_cmp_ne_u32 vcc, 0, v9")
        a("s_mov_b64 exec, -1")
        a(f"s_and_b32 s{sT2}, vcc_lo, s{sEX}")
        a(f"s_or_b32 s{sRDY}, s{sRDY}, s{sT2}")
        a(f"s_sub_u32 s{sTMO}, s{sTMO}, 1")
        a(f"s_cbranch_scc0 {L}")
        a(f"s_mov_b32 s{sTMO}, 0")
        if dyn: a(f"s_mov_b32 s{sT2}, s{sREM}")
        a.label(D)
        if dyn:
            a(f"s_ff1_i32_b32 s{sT0}, s{sT2}")
            a(f"s_bitset0_b32 s{sREM}, s{sT0}")
            a(f"s_lshr_b32 s{sT0}, s{sT0}, 2")
            a(f"s_add_u32 s{sT0}, s{sT0}, s{sG}")
        else: a(f"s_add_u32 s{sT0}, s{sG}, {s}")
        a(f"s_and_b32 s{sT0}, s{sT0}, 7")
    def kv_fetch(self, s, layer):
        a = self.a
        self.kv_need(s, layer)
        self.sx(sT0, 0, (sT0, 16384), (sKVH, 1), (sL, 1))
        self.sx(sT1, 0, (sL, 1), (sL, 1, 7))
        pol = "sc1 nt" if self.o("kvnt", 0) else "sc1"
        self.dma(sT1, KVB + (s & 1) * SLOT, sT0, 0, (0, 1), ("kv", s), pol)
        a("s_add_u32 m0, m0, 16")
        for i in (2, 3):
            self.vm(f"buffer_load_dwordx4 v1, {SRD(WS)}, s{sT7} offen offset:{i*1024} {pol} lds", ("kv", s))
    def q_fetch(self, local):
        a = self.a
        self.sx(sT0, HF, (sG, 8 * HT), (sL, 2 * HT // 4096), (sJ, 1024))
        a(f"s_lshr_b32 s{sT1}, s{sL}, 1")
        for q in range(2): self.dma(sT1, QA + 1024 * q, sT0, q * HT, (0,), ("kv", 0), "sc1")
        if local: self.sx(sT0, 32768, (sT0, 1), (sJ, 1024))
        else: self.sx(sT0, 0, (sG, 16384), (sKVH, 1), (sL, 1))
        self.sx(sT1, 0, (sL, 1, 1), (sL, 1, 8))
        for q in range(2): self.dma(sT1, KVB + 4 * q * TSTR, sT0, q * (HT if local else 2048), (0, 1), ("kv", 0) if q == 0 else "kv0b", "sc1")

    def prep_flag(self):
        a = self.a
        def f():
            a(f"s_add_u32 s{sT0}, s{sKVF}, 4096")
            a("v_mov_b32 v8, 1")
            a("s_mov_b64 exec, 1")
            a(f"buffer_store_dword v8, off, {SRD(WS)}, s{sT0} offset:16 sc1")
            a("s_mov_b64 exec, -1")
        self.only_w4(f)
    def prep_look(self):
        a = self.a
        a("v_min_u32 v12, 45, v0")
        a("v_lshlrev_b32 v8, 2, v12")
        a(f"s_bfe_u32 s{sT0}, s{sJ}, 0x20001")
        a(f"v_add_u32 v9, s{sT0}, v8")
        a("v_and_b32 v8, 0x70, v8")
        a("v_and_b32 v13, 3, v12")
        a(f"s_and_b32 s{sT0}, s{sJ}, 12")
        a(f"v_add3_u32 v8, v8, v13, s{sT0}")
        a("v_cmp_gt_u32 vcc, 28, v12")
        a("v_cndmask_b32 v8, v9, v8, vcc")
        a("v_and_b32 v12, 7, v8")
        a("v_lshlrev_b32 v12, 14, v12")
        a("v_lshrrev_b32 v8, 3, v8")
        a("v_lshl_add_u32 v12, v8, 7, v12")
        a(f"s_mov_b32 s{sT2}, {FL + F_KV + 4096 + 16}")
        a(f"s_mov_b32 s{sPA}, s{sEX}")
        self.vm(f"buffer_load_dword v15, v12, {SRD(WS)}, s{sT2} offen sc1", "pl")
    def prep_wait(self):
        a = self.a
        D = a.newlabel("pwd")
        self.wait(vm="pl")
        a("v_cmp_eq_u32 vcc, 0, v15")
        a(f"s_orn2_b32 s{sT2}, vcc_lo, s{sPA}")
        a(f"s_or_b32 s{sT2}, s{sT2}, vcc_hi")
        a(f"s_cbranch_scc0 {D}")
        def rdy():
            a(f"buffer_load_dword v13, v11, {SRD(DBG)}, 0 offen offset:{D_GRDY} sc1")
            a("s_waitcnt vmcnt(0)")
            a("v_cmp_eq_u32 vcc, 0, v13")
        self.spin(rdy)
        a(f"s_mov_b32 s{sT2}, {FL + F_KV + 4096 + 16}")
        def body():
            a(f"buffer_load_dword v13, v12, {SRD(WS)}, s{sT2} offen sc1")
            a("s_waitcnt vmcnt(0)")
            a("v_cmp_eq_u32 vcc, 0, v13")
        self.spin(body)
        a.label(D)
        a(f"s_mov_b32 s{sEX}, -1")

    def hello(self):
        a = self.a
        self.wait(vm="grdy")
        a(f"v_cmp_ne_u32 s[{sEX}:{sEX+1}], 0, v13")
        a(f"s_lshl_b32 s{sT1}, s{sG}, 2")
        L = a.newlabel("og")
        a(f"s_bitcmp1_b32 s{sEX}, 0")
        a(f"s_cbranch_scc1 {L}")
        def rdy():
            a(f"buffer_load_dword v13, off, {SRD(DBG)}, s{sT1} offset:{D_GRDY} sc1")
            a("s_waitcnt vmcnt(0)")
            a("v_cmp_eq_u32 vcc, 0, v13")
        self.spin(rdy)
        a.label(L)
        a(f"v_readfirstlane_b32 s{sT2}, v13")
        a(f"s_cmp_lg_u32 s{sT2}, s{sXCC}")
        a(f"s_cselect_b32 s{sSLOW}, 1, 0")
        def f():
            S, D = a.newlabel("sh"), a.newlabel("hd")
            a("v_mov_b32 v8, 1")
            a("s_mov_b64 exec, 1")
            a(f"s_cmp_lg_u32 s{sSLOW}, 0")
            a(f"s_cbranch_scc1 {S}")
            a(f"buffer_store_dword v8, off, {SRD(WS)}, s{sMYF}")
            a(f"s_branch {D}")
            a.label(S)
            a(f"buffer_store_dword v8, off, {SRD(DBG)}, s{sT1} offset:{D_SHOUT} sc1")
            a.label(D)
            a("s_mov_b64 exec, -1")
        self.only_w4(f)
    def mode_look(self):
        a = self.a
        a("v_and_b32 v12, 31, v0")
        a("v_lshl_add_u32 v12, v12, 5, 16")
        self.vm(f"buffer_load_dword v13, v12, {SRD(WS)}, s{sFG} offen sc1", "ml")
    def mode(self):
        a = self.a
        L, D = a.newlabel("ml"), a.newlabel("md")
        self.wait(vm="ml")
        a(f"s_lshl_b32 s{sT0}, s{sG}, 2")
        a(f"s_cmp_lg_u32 s{sSLOW}, 0")
        a(f"s_cbranch_scc1 {D}")
        a.label(L)
        a("v_cmp_eq_u32 vcc, 0, v13")
        a(f"s_cbranch_vccz {D}")
        a(f"buffer_load_dword v9, off, {SRD(DBG)}, s{sT0} offset:{D_SHOUT} sc1")
        a(f"buffer_load_dword v13, v12, {SRD(WS)}, s{sFG} offen sc1")
        a("s_waitcnt vmcnt(0)")
        a(f"v_readfirstlane_b32 s{sSLOW}, v9")
        a(f"s_cmp_lg_u32 s{sSLOW}, 0")
        a(f"s_cbranch_scc1 {D}")
        a(f"s_sub_u32 s{sTMO}, s{sTMO}, 1")
        a(f"s_cbranch_scc0 {L}")
        a(f"s_mov_b32 s{sTMO}, 0")
        a.label(D)
        a(f"v_mov_b32 v8, {LSY}")
        a("v_mov_b32 v12, 0")
        a(f"v_mov_b32 v13, s{sSLOW}")
        a("ds_write_b64 v8, v[12:13]")
        a(f"s_lshl_b32 s{sT0}, s{sSLOW}, 10")
        a(f"s_add_u32 s{sFB}, s{sFB}, s{sT0}")
        a(f"s_add_u32 s{sMYF}, s{sMYF}, s{sT0}")

    def side(self, layer):
        a = self.a
        H = self.HOLD
        self.after_e0(layer)
        if layer == 0:
            for part in range(3):
                for s in range(8):
                    a(f"v_mfma_f32_32x32x16_bf16 {vr(24+16*part,16)}, v[20:23], {vr(H+12*s+4*part,4)}, {vr(24+16*part,16) if s else '0'}")
        dg = self.dg > layer
        if dg:
            if layer == 0:
                for part in range(3): self.emit(self.split_pair(H + 96 + 2 * part, 24 + 16 * part, 9))
            self.lbar("E1")
        self.poll(12, 13, C_Q + 16 * layer)
        self.q_fetch(not dg)
        if layer == 0:
            if not dg:
                for part in range(3): self.emit(self.split_pair(H + 96 + 2 * part, 24 + 16 * part, 9))
            self.prep_setup()
            self.sx(sT0, 0, (sJ, 16), (sL, 4, 12))
            a("v_lshrrev_b32 v5, 4, v0")
            a(f"v_add_lshl_u32 v5, v5, s{sT0}, 7")
            a("v_min_u32 v5, L_end-L_pc-4, v5")
            a(f"v_add_u32 v2, s{sL}, v1")
            a("v_add_u32 v3, 0x10000, v2")
            a("v_add_u32 v4, 0x20000, v2")
        self.lbar("A0", ("kv", 0), ds=0)
        a(f"s_lshr_b32 s{sT0}, s{sL}, 1")
        a(f"v_add_u32 v8, s{sT0}, v1")
        for q in range(2): a(f"ds_read_b128 {vr(32+4*q,4)}, v8 offset:{QA+1024*q}")
        self.lbar("E1", "kv0b")
        if not dg: self.only_w4(lambda: self.kv_flag(layer, 24, sKVF))
        self.kv_fetch(1, layer)
        a("s_waitcnt lgkmcnt(0)")
        for i in range(4):
            for q in range(2): a(f"v_dot2_f32_bf16 v{16+q}, v{32+4*q+i}, v{32+4*q+i}, {'v%d' % (16+q) if i else '0'}")
        a("s_nop 2")
        a("v_permlane32_swap_b32 v16, v17")
        a("v_add_f32 v16, v16, v17")
        def km():
            self.kv_need(0, layer)
            self.vm(f"buffer_load_dword v17, v10, {SRD(WS)}, s{sKVA} offen sc1", "km")
        def check():
            self.wait(vm="km")
            self.emit(self.wave_umax(17, 8))
            a("v_mul_f32 v17, v16, v17")
            a(f"v_cmp_nge_f32 vcc, {hex(f2u(-1.0 if self.force_fallback else TBOUND*TBOUND))}, v17")
            self.sx(sT0, VRD, (sL, 1, 10))
            a(f"s_or_b32 s{sT1}, vcc_lo, vcc_hi")
            a(f"v_mov_b32 v8, s{sT0}")
            a(f"v_mov_b32 v9, s{sT1}")
            a("ds_write_b32 v8, v9")
            a("s_waitcnt lgkmcnt(0)")
        def tile_of_c():
            self.sx(sT1, 0, (sG, 8), (sJ, 2, 3), (sL, 1, 12, 1))
            self.sx(sT2, 0, (sJ, 2, 0, 7), (sL, 1, 13))
        def res_raw():
            self.srd(SA, P_X, 2 * MB)
            tile_of_c()
            self.sx(sT0, 0, (sT1, 32768), (sT2, 64))
            a("v_and_b32 v8, 31, v0")
            a("v_lshlrev_b32 v8, 10, v8")
            a("v_lshrrev_b32 v9, 5, v0")
            a("v_lshl_add_u32 v8, v9, 3, v8")
            for i in range(4): self.vm(f"buffer_load_dwordx2 {vr((6, 12, 254, 18)[i],2)}, v8, {SRD(SA)}, s{sT0} offen offset:{16*i}", "rr")
        def mailbox():
            self.sx(sT0, CS13, (sJ, 7 * 1024, 0, 15), (sL, 1, 1))
            a(f"s_lshr_b32 s{sT3}, s{sL}, 1")
            L = a.newlabel("mb"); q = list(self.vq)
            a(f"s_cmp_eq_u32 s{sW}, 7")
            a(f"s_cbranch_scc1 {L}")
            self.dma(sT3, MBX, sT0, 0, (0,), pol="sc1")
            a(f"s_cmp_eq_u32 s{sW}, 6")
            a(f"s_cbranch_scc1 {L}")
            a(f"buffer_load_dwordx4 v1, {SRD(WS)}, s{sT7} offen offset:1024 sc1 lds")
            a.label(L); self.vq = q
            if layer:
                tile_of_c()
                self.sx(sT0, XF, (sT1, 32768), (sT2, 2048))
                self.dma(sT3, MBX + 5120, sT0, 0, (0, 1), pol="sc1")
            else:
                a(f"s_add_u32 s{sT3}, s{sT3}, {MBX+5120}")
                a(f"v_add_u32 v8, s{sT3}, v1")
                self.wait(vm="rr")
                for i in range(4): a(f"ds_write_b64 v8, {vr((6, 12, 254, 18)[i],2)} offset:{(i>>1)*1024+(i&1)*8}")
        pf = [lambda u=u: self.dma(sL, U(u), sWOs, u * 16384, range(4)) for u in range(4)]
        pf += [lambda u=u: self.dma(sL, U(4 + u), s13, u * 16384, range(4)) for u in range(3)]
        def last():
            self.dma(sL, U(7), s13, 3 * 16384, range(3))
            self.vm(f"buffer_load_dwordx4 v[20:23], v1, {SRD(WS)}, s{sT7} offen offset:3072 {self.wpol}")
        pf.append(last)
        pf += [lambda u=u: self.rload(u, s13, 4 + u) for u in range(6)]
        w2 = [lambda u=u: self.rload(6 + u, s2_, 12 + u) for u in range(2)]
        if layer: w2 += [lambda u=u: self.rload(8 + u, s2_, 8 + u) for u in range(4)]
        pf = pf[:4] + w2 + pf[4:]
        steps = {s: [] for s in range(8)}; post = {s: [] for s in range(8)}
        if layer == 0:
            steps[0] += [lambda k=k: self.prep_gather(k) for k in range(4)]
            steps[1] += [lambda: self.wait(vm="pg"), lambda: self.lsync(1)] + self.prep_store()
            steps[2] += [lambda: self.wait(vm="pst"), lambda: self.lsync(2), self.prep_flag]
            first = self.o("pw", 4)
            if self.o("plk", 1): post[first - 1].append(self.prep_look)
            else: steps[first - 1].append(self.prep_look)
            steps[first].append(self.prep_wait)
            steps[2].append(self.tx)
            if dg:
                n = self.o("thn", 0)
                steps[2].append(lambda: self.th(range(0, n))); steps[3].append(lambda: self.th(range(n, 7)))
            cnt = [int(x) for x in self.opt.get("n0", "6541")]
        else:
            first = 1
            cnt = [int(x) for x in self.opt.get("n1", "4433330")]
        assert sum(cnt) == len(pf) and first + len(cnt) == 8
        k = 0
        for i, n in enumerate(cnt):
            steps[first + i] += pf[k:k + n]; k += n
        steps[7] = [mailbox, lambda: self.th(None), self.tx] + steps[7]
        steps[6] = [km] + steps[6] + ([] if layer else [res_raw])
        post[6].append(check)
        for s in range(8):
            if s:
                self.lbar(f"p{s}")
                if s < 7: self.kv_fetch(s + 1, layer)
            self.code_touch()
            self.emit(steps[s])
            self.wait(vm=("kv", s + 1))
            self.emit(post[s])
        self.lbar("A1", "all", ds=0)
        self.lbar("A2")

    def loader(self, layer):
        a = self.a
        bar = self.lbar
        ko = self.opt.get("ko", ""); self.seen = set()
        t = lambda c, h, u: self.dma(sL, U(u), s13, c * 32768 + h * 16384, range(0 if "d" in ko else 4), ("t", c, h))
        c2 = lambda c, h, u: self.dma(sL, U(u), s2_, c * 32768 + h * 16384, range(0 if "d" in ko else 4), ("c", c, h))
        rc = lambda slot, unit: self.rload(slot, s2_, unit)
        self.pace = 0
        def wr(slot, u):
            self.wait(vm=("r", slot))
            for i in range(0 if "w" in ko else 4):
                a(f"ds_write_b128 v{2 + (U(u) >> 16)}, {vr(self.RW + 16*slot + 4*i, 4)} offset:{(U(u) & 0xffff) + i*1024}")
                if self.pace: a("s_waitcnt lgkmcnt(0)")
        def sl(ss):
            for s in ss:
                for part in range(3):
                    a(f"ds_write_b128 v{8 + (s >> 2)}, {vr(self.HOLD+12*s+4*part,4)} offset:{(s&3)*12288+part*1024}")
                    if self.pace and s < 6: a("s_waitcnt lgkmcnt(0)")
        a(f"ds_write_b128 v3, v[20:23] offset:{U(7) - 65536 + 3072}")
        wr(0, 8)
        bar("W1")
        wr(1, 0); wr(2, 1); wr(3, 2); wr(4, 3)
        bar("B0", ds=12)
        wr(5, 9)
        pub = lambda k: self.only_w4(lambda: self.publish(13, C_H + k + 16 * layer, tag=None))
        o = 8 if layer else 0
        ex = iter([int(x) for x in self.opt.get("ex", "101110")]); nx = iter(range(4))
        def extra():
            for _ in range(next(ex)):
                k = next(nx)
                if not layer: rc(k, 8 + k)
        bar("Bm", ds=0)
        self.pace = self.o("pace", 0); self.thr = self.o("thr", 6)
        todo = [(0, lambda: t(5, 0, 4)), (0, lambda: t(6, 0, 6)), (0, lambda: c2(0, 0, 8)), (1, lambda: t(5, 1, 5)), (1, lambda: t(6, 1, 7)),
                (1, lambda: c2(0, 1, 0)), (2, lambda: c2(1, 0, 1)), (2, lambda: c2(2, 0, 3)), (3, lambda: c2(1, 1, 2)), (3, lambda: c2(2, 1, 9)),
                (4, lambda: c2(3, 0, 4)), (4, lambda: c2(3, 1, 5))]
        nd = [int(x) for x in self.opt.get("nd", "332220")]
        assert sum(nd) == 12
        def go(k):
            for _ in range(nd[k]):
                free, f = todo.pop(0); assert free <= k
                f()
            extra()
        go(0)
        if not layer: self.code_touch()
        bar("B1")
        LB = self.o("lb", 1)
        def need(*tags):
            for x in tags: assert x in self.seen; self.wait(vm=x)
        go(1)
        if LB: need(("t", 5, 0))
        bar("Bn")
        go(2)
        need(("t", 5, 1), ("t", 6, 0))
        bar("B2")
        if not self.o("mg", 0): pub(0)
        go(3)
        need(("t", 6, 1), ("c", 0, 0))
        bar("B3")
        pub(1)
        go(4)
        need(("c", 0, 1), ("c", 1, 0), ("c", 1, 1), ("c", 2, 0))
        bar("B4")
        pub(2)
        go(5)
        if not layer: self.code_touch()
        wr(o, 6); wr(o + 1, 7)
        need(("c", 2, 1), ("c", 3, 0), ("c", 3, 1))
        bar("D1", ds=4)
        pub(3)
        wr(o + 2, 8); wr(6, 1); wr(o + 3, 0)
        if not layer:
            self.sx(sT0, SLICE, (sL, 3072, 12))
            a(f"v_add_u32 v8, s{sT0}, v1")
            a("v_add_u32 v9, 49152, v8")
            self.sx(sT0, SLICE - 3072, (sL, 512, 13), (sL, 8, 12, 1))
            a("v_and_b32 v12, 0x1f0, v1")
            a(f"v_add_u32 v12, s{sT0}, v12")
        bar("D3", ds=8)
        wr(7, 2)
        if not layer: sl(range(0, self.o("sl1", 1)))
        bar("D4", ds=0)
        if not layer: sl(range(self.o("sl1", 1), 6))
        bar("D6")
        self.thr = 0
        if layer:
            a("s_endpgm")
            return
        sl((6, 7))
        for part in range(3): a(f"ds_write_b64 v12, {vr(self.HOLD+96+2*part,2)} offset:{part*1024}")
        a(f"s_add_u32 s{sKVH}, s{sKVH}, {KV_STR}")
        a(f"s_add_u32 s{sKVF}, s{sKVF}, 4096")
        bar("Q0", ds=0)

    def prep_setup(self):
        a = self.a
        a(f"s_lshr_b32 s{sT4}, s{sL}, 12")
        self.sx(sT0, 0, (sJ, 8), (sG, 1))
        a(f"s_mov_b32 s{sPCS}, {OOB}")
        a(f"s_cmp_ge_u32 s{sJ}, 23")
        a("s_cbranch_scc1 L_pr_none")
        a(f"s_cmp_ge_u32 s{sT0}, 112")
        a("s_cbranch_scc1 L_pr_o")
        self.srd(SA, P_W1, 512 * 3584)
        self.srd(SB, P_W3, 512 * 3584)
        a(f"s_mov_b32 s{sPSTR}, 3584")
        self.sx(sPA, 0, (sT0, 128, 2), (sT0, 128 * 3584, 0, 3))
        a(f"s_mov_b32 s{sPB}, s{sPA}")
        self.sx(sT2, 0, (sT0, 4, 2), (sT4, 1))
        self.sx(sT1, 0, (sT2, 7, 0, 15), (sT2, 1, 4))
        self.sx(sPCS, CS13, (sT1, 1024), (sT0, 512, 1, 1), (sT0, 8, 0, 1))
        self.sx(sPD, PW13, (sT1, 32768), (sT0, 8192, 0, 3))
        a(f"s_mov_b32 s{sTCH}, 4096")
        a(f"s_lshl_b32 s{sT2}, s{sT4}, 5")
        a(f"s_mov_b32 s{sT3}, 16384")
        a("s_branch L_pr_go")
        a.label("L_pr_o")
        self.sx(sT2, 0, (sT0, 2, 0, 3), (sT4, 1, 1))
        a(f"s_cmp_ge_u32 s{sT0}, 128")
        a("s_cbranch_scc1 L_pr_2")
        self.srd(SA, P_WO, 512 * 1024)
        self.srd(SB, P_WO, 512 * 1024)
        a(f"s_sub_u32 s{sT0}, s{sT0}, 112")
        self.sx(sPD, PWO, (sT2, 65536), (sT0, 32768, 2, 1), (sT0, 8192, 3), (sT4, 4096, 0, 1))
        a("s_branch L_pr_o2")
        a.label("L_pr_2")
        self.srd(SA, P_W2, 1792 * 1024)
        self.srd(SB, P_W2, 1792 * 1024)
        a(f"s_sub_u32 s{sT0}, s{sT0}, 128")
        self.sx(sPD, PW2, (sT2, 7 * 32768), (sT0, 32768, 3), (sT0, 8192, 2, 1), (sT4, 4096, 0, 1))
        a("s_branch L_pr_o2")
        a.label("L_pr_none")
        self.srd(SA, P_WO, 0)
        self.srd(SB, P_WO, 0)
        a(f"s_mov_b32 s{sT0}, 0")
        a(f"s_mov_b32 s{sPD}, {OOB}")
        a.label("L_pr_o2")
        a(f"s_mov_b32 s{sPSTR}, 1024")
        a(f"s_mov_b32 s{sTCH}, 16384")
        self.sx(sPA, 0, (sT0, 256, 0, 3), (sT0, 128 * 1024, 2))
        a(f"s_add_u32 s{sPB}, s{sPA}, 128")
        self.sx(sT2, 0, (sT4, 16384, 1), (sT4, 64, 0, 1))
        a(f"s_mov_b32 s{sT3}, 32")
        a.label("L_pr_go")
        a("v_lshrrev_b32 v6, 3, v0")
        a(f"v_mul_lo_u32 v6, v6, s{sPSTR}")
        a("v_and_b32 v8, 0x70, v1")
        a("v_add_u32 v6, v6, v8")
        a(f"s_lshl_b32 s{sPSTR}, s{sPSTR}, 3")
        a(f"s_mul_i32 s{sT1}, s{sPSTR}, s{sT4}")
        a(f"s_lshl_b32 s{sT1}, s{sT1}, 2")
        a(f"s_add_u32 s{sPA}, s{sPA}, s{sT1}")
        a(f"s_add_u32 s{sPB}, s{sPB}, s{sT1}")
        a("v_bfe_u32 v7, v0, 4, 1")
        a(f"v_mul_lo_u32 v7, v7, s{sT3}")
        a("v_and_b32 v8, 3, v0")
        a("v_lshl_add_u32 v7, v8, 3, v7")
        a("v_bfe_u32 v8, v0, 2, 2")
        a("v_lshl_add_u32 v7, v8, 7, v7")
        a("v_and_b32 v8, 0x200, v1")
        a(f"s_add_u32 s{sT2}, s{sT2}, {self.RAW}")
        a(f"v_add3_u32 v7, v7, v8, s{sT2}")

    def prep_gather(self, pc):
        a = self.a
        for part in range(2):
            r = sPB if part else sPA
            a(f"s_add_u32 m0, s{sL}, {self.RAW+pc*1024+part*16384}")
            self.vm(f"buffer_load_dwordx4 v6, {SRD(SB if part else SA)}, s{r} offen {'nt ' if self.o('gnt', 1) else ''}lds", "pg")
            a(f"s_add_u32 s{r}, s{r}, s{sPSTR}")

    def prep_store(self):
        a = self.a
        F = 24
        def rd():
            for i in range(8):
                for h2 in range(2):
                    a(f"ds_read_b64_tr_b16 {vr(F+4*i+2*h2,2)}, v7 offset:{i*2048+h2*1024}")
            for r in range(72, 76): a(f"v_mov_b32 v{r}, 0x3f803f80")
            a(f"s_add_u32 s{sTCH}, s{sPD}, s{sTCH}")
            a("s_waitcnt lgkmcnt(0)")
        def st(i):
            a(f"v_mfma_f32_32x32x16_bf16 v[56:71], v[72:75], {vr(F+4*i,4)}, {'v[56:71]' if i else '0'}")
            self.vm(f"buffer_store_dwordx4 {vr(F+4*i,4)}, v1, {SRD(WS)}, s{sPD if i < 4 else sTCH} offen offset:{(i&3)*1024} sc1")
        def cs():
            a("v_and_b32 v8, 0x1f0, v1")
            self.emit(self.split_pair(58, 56, 57))
            self.vm(f"buffer_store_dwordx2 v[58:59], v8, {SRD(WS)}, s{sPCS} offen sc1", "pst")
        return [rd] + [lambda i=i: st(i) for i in range(8)] + [cs]

    T13U = {0: (4, 5), 1: (6, 7), 2: (8, 0), 3: (1, 2), 4: (3, 9), 5: (4, 5), 6: (6, 7)}
    C2U = {0: (8, 0), 1: (1, 2), 2: (3, 9), 3: (4, 5), 4: (6, 7), 5: (8, 0), 6: (1, 2)}

    def ks_bases(self, b):
        L = [f"s_mul_i32 s{sT0}, s{sKH}, 12288", f"s_lshl_b32 s{sT1}, s{sKH}, 12", f"s_add_u32 s{sT1}, s{sT1}, 4096",
             f"v_add_u32 v{b}, s{sT0}, v1", f"v_add_u32 v{b+3}, s{sT1}, v1"]
        for k in (1, 2): L += [f"v_add_u32 v{b+k}, {65536*k}, v{b}", f"v_add_u32 v{b+3+k}, {65536*k}, v{b+3}"]
        return L
    def res_load(self, R):
        self.vm(f"buffer_load_dwordx4 {vr(R,4)}, v1, {SRD(WS)}, s{sKT} offen sc1", "res")
        self.vm(f"buffer_load_dwordx4 {vr(R+4,4)}, v1, {SRD(WS)}, s{sKT} offen offset:1024 sc1", "res")
        self.vm(f"buffer_load_dword v{R+8}, v1, {SRD(WS)}, s{sKS} offen sc1")
    def res_unpack(self, R, AA):
        L = []
        for i in range(8): L += [f"v_lshlrev_b32 v{AA+2*i}, 16, v{R+i}", f"v_and_b32 v{AA+2*i+1}, 0xffff0000, v{R+i}"]
        return L

    def ks_finish(self, AA, AB, P, final_branch, res=None):
        a = self.a
        for q in range(4): a(f"ds_write_b128 v14, {vr(AB+4*q,4)} offset:{q*1024}")
        if res is not None:
            for i in range(0, 16, 2): a(f"v_pk_add_f32 {vr(AA+i,2)}, {vr(AA+i,2)}, {vr(res+i,2)}")
        a("s_waitcnt lgkmcnt(0)")
        a("s_barrier")
        for q in range(4): a(f"ds_read_b128 {vr(AB+4*q,4)}, v15 offset:{q*1024}")
        for q in range(4):
            a(f"s_waitcnt lgkmcnt({3-q})")
            for i in (0, 2): a(f"v_pk_add_f32 {vr(AA+4*q+i,2)}, {vr(AA+4*q+i,2)}, {vr(AB+4*q+i,2)}")
            for i in range(2): a(f"v_cvt_pk_bf16_f32 v{P+2*q+i}, v{AA+4*q+2*i}, v{AA+4*q+2*i+1}")
            if q == 1 and not final_branch: self.vm(f"buffer_store_dwordx4 {vr(P,4)}, v1, {SRD(WS)}, s{sKT} offen")
        if final_branch:
            a(f"s_cmp_lg_u32 s{sLAY}, 0")
            a("s_cbranch_scc1 L_final")
            self.vm(f"buffer_store_dwordx4 {vr(P,4)}, v1, {SRD(WS)}, s{sKT} offen")
        self.vm(f"buffer_store_dwordx4 {vr(P+4,4)}, v1, {SRD(WS)}, s{sKT} offen offset:1024")
        a(f"v_pk_add_f32 {vr(AB,2)}, {vr(AA,2)}, {vr(AA+2,2)}")
        a(f"v_pk_mul_f32 {vr(AB+2,2)}, {vr(AA,2)}, {vr(AA,2)}")
        a(f"v_pk_fma_f32 {vr(AB+2,2)}, {vr(AA+2,2)}, {vr(AA+2,2)}, {vr(AB+2,2)}")
        for i in range(4, 16, 2):
            a(f"v_pk_add_f32 {vr(AB,2)}, {vr(AB,2)}, {vr(AA+i,2)}")
            a(f"v_pk_fma_f32 {vr(AB+2,2)}, {vr(AA+i,2)}, {vr(AA+i,2)}, {vr(AB+2,2)}")
        a(f"v_add_f32 v{AB}, v{AB}, v{AB+1}")
        a(f"v_add_f32 v{AB+2}, v{AB+2}, v{AB+3}")
        a(f"v_permlane32_swap_b32 v{AB}, v{AB+2}")
        a(f"v_add_f32 v{AB}, v{AB}, v{AB+2}")
        self.vm(f"buffer_store_dword v{AB}, v1, {SRD(WS)}, s{sKS} offen")
    def scr_addr(self):
        return [f"s_lshl_b32 s{sT0}, s{sW}, 12", f"s_add_u32 s{sT0}, s{sT0}, {U(9)}", f"v_add_u32 v14, s{sT0}, v1", "v_xor_b32 v15, 8192, v14"]
    def x_flag_addr(self, r, t, sreg, extra=None):
        return [f"v_and_b32 v{r}, 7, v0", f"v_lshlrev_b32 v{r}, 5, v{r}", f"v_and_b32 v{t}, 8, v0",
                lambda: self.sx(sT0, 0, (sreg, 256, 1), (sreg, 4, 0, 1)), f"v_add3_u32 v{r}, v{r}, v{t}, s{sT0}"]

    CSR = [80, 84, 88, 8, 120, 8, 8]; CST = 172
    def cs_load(self, c): return self.fload(self.CSR[c], sUC, c * 1024, ("cs", c), tmp=sT4)

    def wo(self):
        a = self.a
        AA, AB, RING, X, R, B = 32, 48, 208, 128, 192, 2
        WD = self.o("ww", 8)
        self.emit(self.ks_bases(B))
        self.emit(self.scr_addr())
        a("v_and_b32 v12, 15, v0")
        self.sx(sT0, 0, (sKH, 512), (sTL, 4, 1))
        a(f"v_lshl_add_u32 v12, v12, 5, s{sT0}")
        a(f"v_add_u32 v16, {MBX}, v1")
        a(f"v_lshl_add_u32 v17, s{sW}, 11, v16")
        if self.o("cprio", 0): a(f"s_setprio {self.o('cprio', 0)}")
        self.publish(26, C_O, tag="o")
        a("s_barrier")
        self.stamp("attn done")
        self.dq.clear(); self.forget()
        NX = 16
        xl = lambda i: self.fload(X + 4 * (i % NX), sOS, i * 1024, ("x", i), tmp=sT5)
        init, per = self.ramp([(i, xl(i)) for i in range(16)], 16, self.o("w0", 5), WD)

        items = []
        for i in range(16):
            addr = U(i >> 2) + (i & 3) * 1024
            items.append(dict(read=(B + 3, addr), vm=("x", i),
                              mfma=lambda r, i=i: f"v_mfma_f32_32x32x16_bf16 {vr(AB,16)}, {vr(r,4)}, {vr(X+4*(i%NX),4)}, {vr(AB,16) if i else '0'}"))
            items.append(dict(read=(B, addr), mfma=lambda r, i=i: f"v_mfma_f32_32x32x16_bf16 {vr(AA,16)}, {vr(r,4)}, {vr(X+4*(i%NX),4)}, {vr(AA,16)}"))
            items[-1]["post"] = list(per.get(i, []))
        self.poll_issue(12, 13)
        for u in range(2): self.ds(f"ds_read_b128 {vr(R+4*u,4)}, v17 offset:{5120+1024*u}", "res")
        for c in range(5): self.ds(f"ds_read_b128 {vr(self.CSR[c],4)}, v16 offset:{1024*c}", "cs")
        self.stream_begin(items, 8, RING)
        self.wait(ds="res")
        self.emit(self.res_unpack(R, AA))
        self.wait(ds="cs")
        a("s_barrier")
        self.poll_check(12, 13, C_O)
        self.stamp("wo polled")
        self.emit(init)
        self.stream_run()
        self.ks_finish(AA, AB, 20, False)

    def up(self):
        a = self.a
        X = 128; ACC = [16, 32, 48, 64, 80]; RING = 96; D = 6; TM = 120
        MU, CS, EA, EC, PA, PT = 4, 8, 12, 13, 14, 15
        W = (1, 2, 3)
        WD = self.o("uw", 12)
        self.sx(sT1, 0, (sJ, 4, 4), (sW, 1))
        self.emit(self.x_flag_addr(PA, PT, sT1))
        a("v_add_u32 v2, 0x10000, v1")
        a("v_add_u32 v3, 0x20000, v1")
        self.publish(PT, C_X1)
        self.stamp("wo done")
        self.forget()
        CSR, csl = self.CSR, self.cs_load
        xl = lambda i: self.fload(X + 4 * i, sUX, i * 1024, ("x", i), tmp=sT5)
        STT = ACC[3]
        seq = [(i, xl(i)) for i in range(32)]
        for q in range(4): seq.insert(10 + 2 * q, (10 + q, self.fload(STT + 4 * q, sUS, q * 1024, "st", tmp=sT2)))
        init, per = self.ramp(seq, 32, self.o("u0", 4), WD)
        def epi(c, acc):
            L = []
            for i in range(8): L += [f"v_mul_f32 v{TM+i}, v{EA}, v{acc+i}", f"v_exp_f32 v{TM+i}, v{TM+i}", f"v_mul_f32 v{acc+8+i}, v{acc+i}, v{acc+8+i}"]
            for i in range(8):
                L += [f"v_fma_f32 v{TM+i}, v{TM+i}, v{EC}, v{EC}", f"v_rcp_f32 v{TM+i}, v{TM+i}"]
                if i: L.append(f"v_mul_f32 v{acc+7+i}, v{TM+i-1}, v{acc+7+i}")
            L.append(f"s_add_u32 s{sT3}, s{sHD}, {c*16384}")
            L.append(f"v_mul_f32 v{acc+15}, v{TM+7}, v{acc+15}")
            for i in range(4): L.append(f"v_cvt_pk_bf16_f32 v{acc+i}, v{acc+8+2*i}, v{acc+9+2*i}")
            if "s" not in self.opt.get("ko", ""): L.append(lambda: self.vm(f"buffer_store_dwordx4 {vr(acc,4)}, v1, {SRD(WS)}, s{sT3} offen", ("h", c)))
            if "e" in self.opt.get("ko", ""): L = L[-3:]
            return L
        items = []; c0 = 0; start = []; LB = self.o("lb", 1)
        acc = lambda c: vr(ACC[c % 5], 16)
        corr = lambda c, first: dict(vm=("cs", c), mfma=lambda r: f"v_mfma_f32_32x32x16_bf16 {acc(c)}, {vr(CSR[c],4)}, {vr(MU,4)}, {'0' if first else acc(c)}")
        for pi, n in enumerate((3, 2, 1, 1)):
            tiles = list(range(c0, c0 + n)); c0 += n
            start.append(len(items))
            if pi:
                for c in tiles: items.append(corr(c, True))
                if pi < 3: items[-1]["post"] = [csl(c0)]
            for ks in range(32):
                for c in tiles:
                    addr = U(self.T13U[c][ks >> 4]) + (ks & 15) * 1024
                    it = dict(read=(W[addr >> 16], addr & 0xffff),
                              mfma=lambda r, ks=ks, c=c, z=(ks == 0 and pi == 0): f"v_mfma_f32_32x32x16_bf16 {acc(c)}, {vr(r,4)}, {vr(X+4*ks,4)}, {'0' if z else acc(c)}")
                    if (ks == 0 or (ks == 16 and pi < 2)) and c == tiles[0]: it["late" if LB and (pi or ks) else "bar"] = True
                    if pi == 0 and c == 0: it["vm"] = ("x", ks)
                    if pi == 0 and c < 2: it["post"] = list(per.get(ks, [])[c::2])
                    items.append(it)
                if pi == 0 and ks == 27:
                    for c in tiles: items.append(corr(c, False))
        start.append(len(items))
        st = [lambda: self.wait(vm="st")] + self.stats_ops(STT, MU, EA, EC) + [f"v_mul_f32 v{EA}, {hex(f2u(-LOG2E))}, v{EA}"]
        self.spread(items, 45, 80, st)
        lo = 5
        self.spread(items, start[1] + lo, start[2], epi(0, ACC[0]) + epi(1, ACC[1]) + epi(2, ACC[2]))
        e34 = epi(3, ACC[3]) + epi(4, ACC[4]); nsplit = start[3] + self.o("e4", 13)
        self.spread(items, start[2] + lo, nsplit, e34)
        AA, AB, R, B = 48, 64, 80, 4
        DW = self.o("dw", 8)
        hl = lambda i: self.fload(X + 4 * (i % 32), sHS, (i >> 3) * 16384 + (i & 7) * 1024, ("y", i), tmp=sT5)
        p4 = start[3] + 1
        def ins(k, fs, front=False):
            L = items[k].setdefault("post", [])
            if front: L[:0] = fs
            else: L.extend(fs)
        for pi, c in ((2, 1), (3, 2))[self.o("mg", 0):]: items[start[pi] + 1]["barvm"] = ("h", c)
        k0 = 31 - self.o("dw0", DW)
        ins(p4 + k0 - 4, self.ks_bases(B))
        ins(start[1] + 2, ["v_and_b32 v14, 7, v0", lambda: self.sx(sT0, 16, (sJ, 512, 4), (sKH, 256)), f"v_lshl_add_u32 v14, v14, 5, s{sT0}"])
        ins(p4 + self.o("l0", 10), [lambda: self.poll_issue(PA, PT)], True)
        ins(p4 + k0, [lambda: self.poll_check(PA, PT, C_H + self.o("mg", 0))], True)
        assert DW == 8
        init2, per2 = self.ramp([(i, hl(i)) for i in range(56)], 56, 31 - k0, DW)
        for i, f in enumerate(init2): ins(p4 + k0 + 1 + i, [f], True)
        d0 = len(items)
        for i in range(56):
            addr = U(self.C2U[i >> 3][(i >> 2) & 1]) + (i & 3) * 1024
            xr = vr(X + 4 * (i % 32), 4)
            it = dict(read=(B + 3 + (addr >> 16), addr & 0xffff), vm=("y", i),
                      mfma=lambda r, i=i, xr=xr: f"v_mfma_f32_32x32x16_bf16 {vr(AB,16)}, {vr(r,4)}, {xr}, {vr(AB,16) if i else '0'}")
            if i in (0, 16, 32, 40): it["late" if LB else "bar"] = True
            if i in (0, 16): it["barvm"] = ("h", 6 if i else 4)
            items.append(it)
            it = dict(read=(B + (addr >> 16), addr & 0xffff), mfma=lambda r, i=i, xr=xr: f"v_mfma_f32_32x32x16_bf16 {vr(AA,16)}, {vr(r,4)}, {xr}, {vr(AA,16) if i else '0'}")
            it["post"] = []
            lv = {8: 1, 16: 2, 32: 3}
            if self.o("mg", 0): del lv[8]
            if i in lv: it["post"].append(lambda k=lv[i]: self.poll_check(PA, PT, C_H + k))
            if i + 8 in lv: it["post"].append(lambda: self.poll_issue(PA, PT))
            it["post"] += per2.get(i, [])
            if i == 20: it["post"].append(lambda: self.res_load(R))
            if i == 42: it["post"] += self.scr_addr()
            items.append(it)
        e5 = d0 + self.o("e5", 0)
        self.spread(items, nsplit, e5, epi(5, ACC[0]))
        self.spread(items, max(e5, d0 + 3), d0 + self.o("e6", 17), epi(6, ACC[1]))
        self.spread(items, d0 + 66, d0 + 82, [lambda: self.wait(vm='res')] + self.res_unpack(R, ACC[1]))
        self.stream_begin(items, D, RING)
        self.poll(PA, PT, C_X1)
        self.stamp("up polled")
        self.emit(init)
        self.kop = "p" in self.opt.get("ko", "")
        self.stream_run()
        self.kop = False
        self.stamp("down main")
        self.ks_finish(AA, AB, 20, True, res=ACC[1])

    def final(self):
        a = self.a
        a.label("L_final")
        self.srd(SB, P_OUT, 2 * MB)
        a("v_and_b32 v14, 31, v0")
        a("v_lshlrev_b32 v14, 10, v14")
        a("v_lshrrev_b32 v15, 5, v0")
        a("v_lshl_add_u32 v14, v15, 4, v14")
        for b in (20, 24):
            a(f"v_permlane32_swap_b32 v{b}, v{b+2}")
            a(f"v_permlane32_swap_b32 v{b+1}, v{b+3}")
        a(f"buffer_store_dwordx4 v[20:23], v14, {SRD(SB)}, s{sOUT} offen {['', 'sc1', 'nt', 'sc1 nt'][self.o('op', 0)]}")
        a(f"buffer_store_dwordx4 v[24:27], v14, {SRD(SB)}, s{sOUT} offen offset:32 {['', 'sc1', 'nt', 'sc1 nt'][self.o('op', 0)]}")
        self.stamp("end")
        if "hold" in self.opt:
            if self.o("hold", 8) < 8:
                a(f"s_cmp_lg_u32 s{sG}, {self.o('hold', 8)}")
                a("s_cbranch_scc1 L_exit")
            if self.o("holdwb", 0):
                a("s_waitcnt vmcnt(0)")
                a("buffer_wbl2 sc1")
                a("s_waitcnt vmcnt(0)")
            a(f"s_mov_b32 s{sT1}, 0")
            if "pt" in self.opt:
                a(f"s_sub_u32 s{sT1}, s{sTS}, s{sE0 if self.o('ptc', 0) else sE1}")
                if self.o("ptc", 0): a(f"s_lshr_b32 s{sT1}, s{sT1}, 4")
                a(f"s_min_u32 s{sT1}, s{sT1}, 100000")
            a(f"s_add_u32 s{sT1}, s{sT1}, 10000")
            a.label("L_hold")
            a(f"s_memrealtime s[{sTR}:{sTR+1}]")
            a("s_waitcnt lgkmcnt(0)")
            a(f"s_sub_u32 s{sT0}, s{sTR}, s{sE1}")
            a(f"s_cmp_lt_u32 s{sT0}, s{sT1}")
            a("s_cbranch_scc1 L_hold")
        a.label("L_exit")
        a("s_endpgm")

    def build(self):
        a = self.a
        self.tails = []; self.tails2 = []
        self.entry()
        self.qkv1()
        s0 = self.seq; self.seq = []
        self.attention(); self.wo(); self.up()
        s1 = self.seq; self.seq = []
        self.qkv2()
        s2 = self.seq; self.seq = []
        self.final()
        cseq = s0 + s1 + s2 + s1 + self.seq; self.seq = []
        self.inL = True
        self.start_loader()
        for layer in range(2):
            self.side(layer); self.loader(layer)
        lseq = self.seq
        self.fallback()
        self.publish_tails()
        a.label("L_end")
        body = a.finish()
        refp = "cdna_kernels/" + NAME + ".s.ref"
        hdr = open(refp).read().split("; Override launch")[0] if os.path.exists(refp) else ""
        txt = hdr + f"; @launch grid=(256,1,1) block=(512,1,1) lds={LDS_TOTAL}\n"
        if self.stamps: txt += "; cseq " + "|".join(cseq) + "\n; lseq " + "|".join(lseq) + "\n"
        txt += f""".amdgcn_target "amdgcn-amd-amdhsa--gfx950"
.text
.globl {NAME}_kernel
.p2align 8
.type {NAME}_kernel,@function
{NAME}_kernel:
{body}.section .rodata,"a"
.p2align 6
.amdhsa_kernel {NAME}_kernel
  .amdhsa_next_free_vgpr 256
  .amdhsa_next_free_sgpr 98
  .amdhsa_accum_offset 256
  .amdhsa_group_segment_fixed_size 0
  .amdhsa_kernarg_size 80
  .amdhsa_user_sgpr_count 2
  .amdhsa_user_sgpr_kernarg_segment_ptr 1
  .amdhsa_system_sgpr_workgroup_id_x 1
.end_amdhsa_kernel
"""
        return txt

def from_spec(spec):
    opt = dict((kv.split('=') + ['1'])[:2] for kv in spec.split(',') if kv)
    return Gen(stop=opt.pop("stop", None), stamps=bool(opt.pop("stamps", 0)), force_slow=bool(opt.pop("slow", 0)),
               force_fallback=bool(opt.pop("fallback", 0)), remap=bool(opt.pop("remap", 0)), opt=opt).build()

if __name__ == "__main__":
    out = sys.argv[2] if len(sys.argv) > 2 else "cdna_kernels/" + NAME + ".s"
    open(out, "w").write(from_spec(sys.argv[1].lstrip(":") if len(sys.argv) > 1 else ""))
```

```python
import sys, math, struct, os
from asmlib import *

NAME = "interleave_layers__softmax_full_mha__glu_gated_swiglu__prompt"
MB = 1 << 20; KB = 1 << 10
XF = 0
HF = 2 * MB
ST = 9 * MB
PWO = 9 * MB + 512 * KB
PW13 = 10 * MB
CS13 = 13 * MB + 512 * KB
PW2 = 14 * MB
KVG = 16 * MB; KV_STR = 4 * MB
FL = 24 * MB; FL_STR = 16 * KB
HT = 112 * 1024
F_LF, F_SF, F_KV = 0, 1024, 4096
TSB = 25 * MB
WS_USED = 27 * MB
OOB = 0x7ff00000
D_GRDY, D_SHOUT = 0, 128
U = lambda i: i * 16384
LDS_TOTAL = 163840
TSTR = 2064; SLOT = 8 * TSTR; KVB = LDS_TOTAL - 2 * SLOT
SLICE = U(3)
WRING = 65536; WSTG = 24576
QA = U(2)
MBX = U(8)
VRD = KVB - 96
KSL = KVB - 64; LSY = KVB - 32; MODE = KVB - 28
WS, SA, SB, DBG = 4, 8, 12, 16
P_X, P_WQKV, P_WO, P_BX, P_W1, P_W3, P_W2, P_OUT, P_DBG, P_WS = 20, 22, 24, 26, 28, 30, 32, 34, 36, 38
sG, sJ, sW, sXCC, sLAY, sSLOW, sTMO, sFB, sMYF, sCODE = range(40, 50)
sT0, sT1, sT2, sT3, sT4, sT5, sT6, sT7 = range(50, 58)
sFG, sKVH, sKVA = 58, 59, 60
sQX, sQS, sOD, sKG, sQL, sKT, sKS, sOS, sHS, sOUT, sUX, sUS, sUC, sHD, sKH, sTL = range(61, 77)
sKVF, sL, s13, s2_, sWOs, sQ, sPD, sPA, sPB, sPCS, sPSTR, sTCH, sREM = range(61, 74)
sTSI = 77
sEX = 78; sHI = 80; sN16 = 82; sRDY = 84; sBAD = 86; sLO = 86
sTS = 88; sTR = 90; sE0 = 92; sE1 = 94; sPC = 96; sROLE = 3
C_Q, C_O, C_X1, C_X2 = 1, 2, 3, 4
C_H = 2
sKL = sXCC
LOG2E = 1.4426950408889634
def f2u(x): return struct.unpack("<I", struct.pack("<f", x))[0]
TBOUND = 48.0
SIG = 0.25 * LOG2E
cost = lambda t: 0 if callable(t) else (8 if t.split()[0] in TRANS else 4)
SRD = lambda r: f"s[{r}:{r+3}]"

class Gen:
    def __init__(self, stop=None, stamps=False, force_slow=False, force_fallback=False, remap=False, opt=None):
        self.a = Asm(); self.stop = stop; self.stamps = stamps
        self.force_slow = force_slow; self.force_fallback = force_fallback
        self.remap = remap; self.opt = opt or {}
        self.dst = []
        self.vq = []; self.dq = []
        self.wpol = ['sc1', '', 'sc0'][self.o('wp', 0)]
        self.inL = False; self.m16 = self.o('m16', 1)
        self.VP, self.VS = (124, 125) if self.m16 else (1, 1)
        self.thr = 0; self.kop = False; self.seen = set()
        self.RAW = 0; self.dg = self.o('dg', 2)
        self.seq = []
    def o(self, k, d): return int(self.opt.get(k, d))

    def vm(self, text, tag=None):
        self.a(text); self.vq.append(tag); self.seen.add(tag)
    def ds(self, text, tag=None):
        self.a(text); self.dq.append(tag)
    def _wait(self, q, tag, name, mx):
        if tag not in q: return None
        i = len(q) - 1 - q[::-1].index(tag)
        n = min(len(q) - 1 - i, mx)
        del q[:len(q) - n]
        return f"{name}({n})"
    def wait(self, vm=None, ds=None):
        w = []
        if vm == "all": w.append("vmcnt(0)"); self.vq.clear()
        elif vm is not None: w.append(self._wait(self.vq, vm, "vmcnt", 63))
        if ds == "all": w.append("lgkmcnt(0)"); self.dq.clear()
        elif ds is not None: w.append(self._wait(self.dq, ds, "lgkmcnt", 15))
        w = [x for x in w if x]
        if w: self.a("s_waitcnt " + " ".join(w))
    def emit(self, L):
        for t in L:
            if callable(t): t()
            else: self.a(t)

    def stamp(self, name):
        if "pt" in self.opt and self.opt["pt"].split("@")[0].replace("_", " ") == name and not self.inL:
            L = self.a.newlabel("pt")
            self.a(f"s_cmp_lg_u32 s{sLAY}, {self.opt['pt'].split('@')[1]}")
            self.a(f"s_cbranch_scc1 {L}")
            self.a(f"{'s_memtime' if self.o('ptc', 0) else 's_memrealtime'} s[{sTS}:{sTS+1}]")
            self.a("s_waitcnt lgkmcnt(0)")
            self.a.label(L)
        if not self.stamps: return
        a = self.a
        self.seq.append(name)
        a(f"s_memtime s[{sTS}:{sTS+1}]")
        a(f"s_memrealtime s[{sTR}:{sTR+1}]")
        a("s_waitcnt lgkmcnt(0)")
        a(f"v_mov_b32 v18, s{sTS}")
        a(f"v_mov_b32 v19, s{sTR}")
        a("s_mov_b64 exec, 1")
        self.vm(f"buffer_store_dwordx2 v[18:19], off, {SRD(WS)}, s{sTSI}")
        a("s_mov_b64 exec, -1")
        a(f"s_add_u32 s{sTSI}, s{sTSI}, 8")
        self.dq.clear()
    def dstamp(self, name, base):
        if not self.stamps: return
        k = len(self.dst); self.dst.append((name, base + 2 * k))
        self.a(f"s_memtime s[{sTS}:{sTS+1}]")
        self.a(f"s_memrealtime s[{sTR}:{sTR+1}]")
        self.a("s_waitcnt lgkmcnt(0)")
        self.a(f"v_mov_b32 v{base+2*k}, s{sTS}")
        self.a(f"v_mov_b32 v{base+2*k+1}, s{sTR}")
    def dflush(self):
        if not self.stamps: return
        a = self.a
        a("s_mov_b64 exec, 1")
        for name, r in self.dst:
            a(f"buffer_store_dwordx2 v[{r}:{r+1}], off, {SRD(WS)}, s{sTSI}")
            self.seq.append(name)
            a(f"s_add_u32 s{sTSI}, s{sTSI}, 8")
        a("s_mov_b64 exec, -1")
        self.dst = []

    def srd(self, d, p, size):
        a = self.a
        a(f"s_mov_b32 s{d}, s{p}")
        a(f"s_and_b32 s{d+1}, s{p+1}, 0xffff")
        a(f"s_mov_b32 s{d+2}, {size}")
        a(f"s_mov_b32 s{d+3}, 0x20000")

    def sx(self, dst, const, *terms):
        a = self.a
        first = True
        for tm in terms:
            r, mul = tm[0], tm[1]; shr = tm[2] if len(tm) > 2 else 0; mask = tm[3] if len(tm) > 3 else None
            t = dst if first else sT7
            assert r != dst or first
            cur = r
            if shr: a(f"s_lshr_b32 s{t}, s{cur}, {shr}"); cur = t
            if mask is not None: a(f"s_and_b32 s{t}, s{cur}, {mask}"); cur = t
            if mul != 1:
                if mul & (mul - 1) == 0: a(f"s_lshl_b32 s{t}, s{cur}, {mul.bit_length()-1}")
                else: a(f"s_mul_i32 s{t}, s{cur}, {mul}")
                cur = t
            if first:
                if cur != dst: a(f"s_mov_b32 s{dst}, s{cur}")
            else: a(f"s_add_u32 s{dst}, s{dst}, s{cur}")
            first = False
        if const: a(f"s_add_u32 s{dst}, s{dst}, {const}")

    def aload(self, dst, base, blk, i, tag):
        off = (i >> 1) * 2048 + (i & 1) * 256 if self.m16 else i * 1024
        return self.fload(dst, base, blk + off, tag, tmp=sT5, va=self.VP)
    def mm(self, acc, addr, bases, ks, xr, zero):
        if not self.m16:
            return dict(read=(bases[addr >> 16], addr & 0xffff),
                        mfma=lambda r: f"v_mfma_f32_32x32x16_bf16 {vr(acc,16)}, {vr(r,4)}, {vr(xr(ks),4)}, {'0' if zero and ks == 0 else vr(acc,16)}")
        b = ks & 1; addr += b * (256 - 1024)
        f = lambda a: (lambda r: f"v_mfma_f32_16x16x32_bf16 {vr(acc+8*b+4*a,4)}, {vr(r,4)}, {vr(xr(ks-b+a),4)}, {'0' if zero and ks < 2 else vr(acc+8*b+4*a,4)}")
        return dict(read=(bases[addr >> 16], addr & 0xffff), mfma=f(0), mfma2=f(1))
    def xwait(self, it, tag, ks):
        if not self.m16: it["vm"] = (tag, ks)
        elif ks % 2 == 0: it["vm"] = (tag, ks); it["vm2"] = (tag, ks + 1)
    def ks_items(self, n, addr, B, AA, AB, xr, tag, zeroA):
        items = []
        bA, bB = (B, B + 1, B + 2), (B + 3, B + 4, B + 5)
        for i in range(0, n, 2):
            mk = lambda acc, bs, k, z: self.mm(acc, addr(k), bs, k, xr, z)
            q = [mk(AB, bB, i, True), mk(AA, bA, i, zeroA), mk(AB, bB, i + 1, True), mk(AA, bA, i + 1, zeroA)]
            self.xwait(q[0], tag, i); self.xwait(q[2], tag, i + 1)
            if self.m16: q = [q[0], q[2], q[1], q[3]]
            items += q
        return items

    def fload(self, dst, base, off, tag, tmp=sT7, flags="sc1", va=1):
        def f():
            key = (base, off >> 12)
            if getattr(self, "_tmpkey", {}).get(tmp) != key:
                self.a(f"s_add_u32 s{tmp}, s{base}, {off & ~4095}")
                self._tmpkey = dict(getattr(self, "_tmpkey", {})); self._tmpkey[tmp] = key
            self.vm(f"buffer_load_dwordx4 {vr(dst,4)}, v{va}, {SRD(WS)}, s{tmp} offen offset:{off & 4095} {flags}", tag)
        return f
    def forget(self): self._tmpkey = {}

    def dma(self, ldsb, ldsc, src, srcc, idx, tag=None, pol=None):
        a = self.a
        if pol is None: pol = self.wpol
        a(f"s_add_u32 m0, s{ldsb}, {ldsc}")
        a(f"s_add_u32 s{sT7}, s{src}, {srcc}")
        for i in idx:
            if self.thr and len(self.vq) >= self.thr:
                a(f"s_waitcnt vmcnt({self.thr - 1})"); del self.vq[:len(self.vq) - self.thr + 1]
            self.vm(f"buffer_load_dwordx4 v1, {SRD(WS)}, s{sT7} offen offset:{i*1024} {pol} lds", tag)

    def spin(self, body):
        a = self.a
        L, D = a.newlabel("spin"), a.newlabel("spind")
        a.label(L)
        body()
        a(f"s_cbranch_vccz {D}")
        a(f"s_sub_u32 s{sTMO}, s{sTMO}, 1")
        a(f"s_cbranch_scc0 {L}")
        a(f"s_mov_b32 s{sTMO}, 0")
        a.label(D)

    def poll(self, vaddr, vtmp, code):
        a = self.a
        a(f"s_add_u32 s{sT6}, s{sCODE}, {code}")
        def body():
            a(f"buffer_load_dword v{vtmp}, v{vaddr}, {SRD(WS)}, s{sFB} offen sc1")
            a("s_waitcnt vmcnt(0)")
            a(f"v_cmp_gt_u32 vcc, s{sT6}, v{vtmp}")
        self.spin(body)
        self.vq.clear()
        self.acquire()
    def poll_issue(self, vaddr, vtmp):
        if self.kop: return
        self.vm(f"buffer_load_dword v{vtmp}, v{vaddr}, {SRD(WS)}, s{sFB} offen sc1", "poll")
    def poll_check(self, vaddr, vtmp, code):
        if self.kop: return
        a = self.a
        D = a.newlabel("pc")
        a(f"s_add_u32 s{sT6}, s{sCODE}, {code}")
        self.wait(vm="poll")
        a(f"v_cmp_gt_u32 vcc, s{sT6}, v{vtmp}")
        a(f"s_or_b32 vcc_lo, vcc_lo, s{sSLOW}")
        a(f"s_cbranch_scc0 {D}")
        q = list(self.vq)
        self.poll(vaddr, vtmp, code)
        self.vq = q
        a.label(D)

    def acquire(self):
        a = self.a
        F = a.newlabel("acq")
        a(f"s_cmp_eq_u32 s{sSLOW}, 0")
        a(f"s_cbranch_scc1 {F}")
        a("buffer_inv sc1")
        a("s_waitcnt vmcnt(0)")
        a.label(F)

    def publish(self, vtmp, code, tag="all"):
        if self.kop: return
        a = self.a
        S, D = a.newlabel("pubs"), a.newlabel("pubd")
        a(f"s_add_u32 s{sT6}, s{sCODE}, {code}")
        a(f"v_mov_b32 v{vtmp}, s{sT6}")
        a("s_mov_b64 exec, 1")
        a(f"s_cmp_lg_u32 s{sSLOW}, 0")
        a(f"s_cbranch_scc1 {S}")
        self.wait(vm=tag)
        self.vm(f"buffer_store_dword v{vtmp}, off, {SRD(WS)}, s{sMYF}")
        self.tails.append((S, D, vtmp))
        a.label(D)
        a("s_mov_b64 exec, -1")
    def publish_tails(self):
        a = self.a
        for S, D, vtmp in self.tails:
            a.label(S)
            a("s_waitcnt vmcnt(0)")
            a("buffer_wbl2 sc1")
            a("s_waitcnt vmcnt(0)")
            a(f"buffer_store_dword v{vtmp}, off, {SRD(WS)}, s{sMYF} sc1")
            a(f"s_branch {D}")

    def split_pair(self, dst, c, tmp):
        return [f"v_cvt_pk_bf16_f32 v{dst}, v{c}, v{c}", f"v_and_b32 v{tmp}, 0xffff0000, v{dst}",
                f"v_sub_f32 v{tmp}, v{c}, v{tmp}", f"v_cvt_pk_bf16_f32 v{dst+1}, v{tmp}, v{tmp}"]

    def stats_ops(self, st, mu4, rstd, vare):
        L = []
        for k in (8, 4, 2, 1):
            for i in range(k):
                L.append(f"v_add_f32 v{st+i}, v{st+i}, v{st+i+k}")
        t0 = st + 3
        L.append(f"v_mov_b32 v{st+1}, v{st}")
        L.append(f"v_mov_b32 v{st+2}, {hex(f2u(1.0/512))}")
        L.append(f"v_permlane32_swap_b32 v{st}, v{st+1}")
        L.append(f"v_mul_f32 v{st}, {hex(f2u(-1.0/512))}, v{st}")
        L.append(f"v_mul_f32 v{t0}, v{st}, v{st}")
        L.append(f"v_fma_f32 v{vare}, v{st+1}, v{st+2}, -v{t0}")
        L.append(f"v_cvt_pk_bf16_f32 v{t0}, v{st}, v{st}")
        L.append(f"v_max_f32 v{vare}, 0, v{vare}")
        L.append(f"v_and_b32 v{t0}, 0xffff0000, v{t0}")
        L.append(f"v_add_f32 v{vare}, {hex(f2u(1e-5))}, v{vare}")
        L.append(f"v_sub_f32 v{t0}, v{st}, v{t0}")
        L.append(f"v_rsq_f32 v{rstd}, v{vare}")
        for i in range(4): L.append(f"v_cvt_pk_bf16_f32 v{mu4+i}, v{st}, v{t0}")
        return L

    def spread(self, items, lo, hi, fill):
        tot = sum(map(cost, fill)); n = hi - lo; k = 0; acc = 0
        for m in range(n):
            while k < len(fill) and (acc + cost(fill[k]) / 2 <= tot * (m + 1) / n or m == n - 1):
                items[lo + m].setdefault("post", []).append(fill[k]); acc += cost(fill[k]); k += 1

    def stream_begin(self, items, D, ring):
        self.S = dict(items=items, D=D, issued=0)
        rd = [i for i in range(len(items)) if items[i].get("read")]
        self.S.update(rd=rd, slot={i: ring + 4 * (k % D) for k, i in enumerate(rd)}, pos={i: k for k, i in enumerate(rd)})
        self._try(D, 0)
    def _try(self, limit, consumed):
        S = self.S; items, rd = S["items"], S["rd"]
        while S["issued"] < min(limit, len(rd)):
            i = rd[S["issued"]]
            if items[i].get("bar"):
                if S["issued"] - consumed > S["D"] // 2: return
                bv = items[i].get("barvm")
                assert bv is None or bv in self.seen, bv
                self.wait(vm=bv, ds="all")
                self.a("s_barrier")
                items[i]["bar"] = False
            va, off = items[i]["read"]
            self.ds(f"ds_read_b128 {vr(S['slot'][i],4)}, v{va} offset:{off}", ("rd", S["issued"]))
            S["issued"] += 1
    def stream_run(self, pair=2):
        S = self.S; items = S["items"]
        for i, it in enumerate(items):
            if it.get("late"):
                bv = it.get("barvm")
                assert bv is None or bv in self.seen, bv
                self.wait(vm=bv)
                self.a("s_barrier")
            self.emit(it.get("pre", []))
            dtag = None
            if it.get("read"):
                k = S["pos"][i]
                if k >= S["issued"]: self._try(k + 1, k)
                if ("rd", k) in self.dq: dtag = ("rd", min(k + pair, S["issued"]) - 1)
            self.wait(vm=it.get("vm"), ds=dtag)
            self.a(it["mfma"](S["slot"].get(i)))
            post = it.get("post", [])
            if it.get("mfma2"):
                self._try(k + S["D"], k)
                c4 = [cost(x) or 4 for x in post]
                wa = 4 + (4 if it.get("vm2") in self.vq and it.get("vm2") else 0)
                wb = 4 if ("rd", k + 1) in self.dq else 0
                n = min(range(len(post) + 1), key=lambda n: max(8, wa + sum(c4[:n])) + max(8, wb + sum(c4[n:])))
                self.emit(post[:n]); post = post[n:]
                self.wait(vm=it.get("vm2"))
                self.a(it["mfma2"](S["slot"].get(i)))
            elif it.get("read"): self._try(k + 1 + S["D"], k + 1)
            self.emit(post)

    @staticmethod
    def ramp(seq, nsteps, n0, wd):
        init, per, k = [], {}, 0
        lead = lambda step: sum(1 for q, _ in seq[:k] if q > step)
        while k < min(n0, len(seq)): init.append(seq[k][1]); k += 1
        for st in range(nsteps):
            n = 0
            while k < len(seq) and (seq[k][0] <= st + 1 or (n < 2 and lead(st) < wd)):
                per.setdefault(st, []).append(seq[k][1]); k += 1; n += 1
        assert k == len(seq)
        return init, per

    def layer0(self, fn):
        a = self.a
        L = a.newlabel("l0")
        a(f"s_cmp_lg_u32 s{sLAY}, 0")
        a(f"s_cbranch_scc1 {L}")
        vq, dq = list(self.vq), list(self.dq)
        fn()
        self.vq, self.dq = vq, dq
        a.label(L)

    def entry(self):
        a = self.a
        a(f"s_getpc_b64 s[{sPC}:{sPC+1}]")
        a.label("L_pc")
        a("s_load_dwordx16 s[20:35], s[0:1], 0")
        a("v_lshrrev_b32 v2, 5, v0")
        if self.remap: a(f"s_and_b32 s{sJ}, s2, 31")
        else: a(f"s_lshr_b32 s{sJ}, s2, 3")
        a(f"v_lshl_add_u32 v2, s{sJ}, 4, v2")
        a("v_lshlrev_b32 v2, 7, v2")
        a("v_min_u32 v2, L_end-L_pc-4, v2")
        a(f"global_load_dword v14, v2, s[{sPC}:{sPC+1}]")
        a("s_load_dwordx4 s[36:39], s[0:1], 64")
        a("s_cmp_ge_u32 s2, 256")
        a("s_cbranch_scc1 L_exit")
        if self.stamps or "hold" in self.opt:
            a(f"s_memtime s[{sE0}:{sE0+1}]")
            a(f"s_memrealtime s[{sE1}:{sE1+1}]")
        if self.remap: a(f"s_lshr_b32 s{sG}, s2, 5")
        else: a(f"s_and_b32 s{sG}, s2, 7")
        a("v_lshrrev_b32 v1, 6, v0")
        a("v_and_b32 v0, 63, v0")
        a(f"v_readfirstlane_b32 s{sW}, v1")
        a("v_lshlrev_b32 v1, 4, v0")
        a("v_lshrrev_b32 v4, 3, v0")
        a("v_and_b32 v5, 0x70, v1")
        a("v_lshl_add_u32 v6, v4, 10, v5")
        self.sx(sT2, 0, (sG, 256 * 1024), (sJ, 64 * 1024, 0, 3), (sW, 8 * 1024))
        a(f"s_lshr_b32 s{sT3}, s{sJ}, 2")
        a("s_waitcnt lgkmcnt(0)")
        self.srd(SA, P_X, 2 * MB)
        for i in range(8):
            if i: a(f"s_add_u32 s{sT3}, s{sT3}, 1")
            self.sx(sT4, 0, (sT3, 128, 0, 7), (sT2, 1))
            a(f"buffer_load_dwordx4 {vr(self.XR+4*i,4)}, v6, {SRD(SA)}, s{sT4} offen")
        self.srd(WS, P_WS, WS_USED)
        a(f"s_cmp_ge_u32 s{sW}, 4")
        a("s_cbranch_scc1 L_startL")

    XR = 128
    def layernorm(self):
        a = self.a
        X, F = self.XR, 160
        a.label("L_ln")
        for i in range(32):
            a(f"v_lshlrev_b32 v{F+2*i}, 16, v{X+i}")
            a(f"v_and_b32 v{F+2*i+1}, 0xffff0000, v{X+i}")
            if i == 0: a(f"v_pk_mul_f32 v[28:29], {vr(F,2)}, {vr(F,2)}")
            else:
                a(f"v_pk_add_f32 v[26:27], {vr(F+2*i,2)}, {vr(F,2) if i == 1 else 'v[26:27]'}")
                a(f"v_pk_fma_f32 v[28:29], {vr(F+2*i,2)}, {vr(F+2*i,2)}, v[28:29]")
        a("v_add_f32 v26, v26, v27")
        a("v_add_f32 v28, v28, v29")
        for m in ("quad_perm:[1,0,3,2]", "quad_perm:[2,3,0,1]", "row_half_mirror"):
            a(f"v_add_f32_dpp v26, v26, v26 {m} row_mask:0xf bank_mask:0xf")
            a(f"v_add_f32_dpp v28, v28, v28 {m} row_mask:0xf bank_mask:0xf")
        a(f"v_mul_f32 v26, {hex(f2u(-1.0/512))}, v26")
        a(f"v_mul_f32 v28, {hex(f2u(1.0/512))}, v28")
        a("v_fma_f32 v28, -v26, v26, v28")
        a("v_max_f32 v28, 0, v28")
        a(f"v_add_f32 v28, {hex(f2u(1e-5))}, v28")
        a("v_rsq_f32 v28, v28")
        a("v_mul_f32 v26, v26, v28")
        for i in range(32):
            a(f"v_pk_fma_f32 {vr(F+2*i,2)}, {vr(F+2*i,2)}, v[28:29], v[26:27] op_sel_hi:[1,0,0]")
            a(f"v_cvt_pk_bf16_f32 v{X+i}, v{F+2*i}, v{F+2*i+1}")
            if i % 4 == 3: a(f"ds_write_b128 v{224+i//4}, {vr(X+i-3,4)}")
        a(f"s_cmp_lg_u32 s{sROLE}, 0")
        a("s_cbranch_scc1 L_lnL")
    def ln_addr(self):
        a = self.a
        a("v_lshlrev_b32 v6, 4, v4")
        a("v_xor_b32 v6, v6, v5")
        a("v_lshl_add_u32 v6, v5, 5, v6")
        self.sx(sT0, 0, (sW, 32768, 2), (sW, 128, 0, 3))
        a(f"v_add_u32 v6, s{sT0}, v6")
        win = self.o("win", 0)
        if win: a(f"s_lshr_b32 s{sT3}, s{sJ}, 2")
        else: self.sx(sT3, 0, (sJ, 1, 2), (sJ, 6, 0, 3))
        for i in range(8):
            if i: a(f"s_add_u32 s{sT3}, s{sT3}, 1")
            if win:
                a(f"s_sub_u32 s{sT0}, s{sT3}, s{sJ}")
                self.sx(sT0, 0, (sT0, 4096, 0, 3), (sT3, 4096, 0, 4))
            else: self.sx(sT0, 0, (sT3, 4096, 0, 7))
            a(f"v_add_u32 v{224+i}, s{sT0}, v6")

    def entry_stamp(self):
        if not self.stamps: return
        a = self.a
        a(f"s_lshl_b32 s{sTSI}, s2, 3")
        self.sx(sTSI, TSB, (sTSI, 1024), (sW, 1024))
        a(f"v_mov_b32 v18, s{sE0}")
        a(f"v_mov_b32 v19, s{sE1}")
        a("s_mov_b64 exec, 1")
        self.vm(f"buffer_store_dwordx2 v[18:19], off, {SRD(WS)}, s{sTSI}")
        a("s_mov_b64 exec, -1")
        a(f"s_add_u32 s{sTSI}, s{sTSI}, 8")
        self.seq.append("entry")

    def consts(self):
        a = self.a
        a(f"s_mov_b32 s{sLAY}, 0")
        a(f"s_mov_b32 s{sSLOW}, 0")
        a(f"s_mov_b32 s{sCODE}, 0")
        a(f"s_mov_b32 s{sTMO}, 100000")
        a(f"s_mov_b32 s{sHI}, 0")
        a(f"s_mov_b32 s{sHI+1}, -1")
        a(f"s_mov_b32 s{sN16}, 0xffff0000")
        a(f"s_mov_b32 s{sN16+1}, 0xffff0000")
        self.sx(sFG, FL, (sG, FL_STR))
        a(f"s_mov_b32 s{sFB}, s{sFG}")
        self.sx(sMYF, 0, (sJ, 32), (sW, 4), (sFG, 1))
        self.sx(sKVH, KVG, (sJ, 131072))

    def eighth(self, dst, st):
        a = self.a
        if self.o("win", 0):
            a(f"s_add_u32 s{dst}, s{sJ}, {st}")
            a(f"s_and_b32 s{dst}, s{dst}, 3")
            if st & 4: a(f"s_or_b32 s{dst}, s{dst}, 4")
        else:
            a(f"s_lshl_b32 s{dst}, s{sJ}, 1")
            a(f"s_add_u32 s{dst}, s{dst}, {st}")

    def flag_watch(self, r, t, layer):
        m = 1 if layer else 3
        return [f"v_lshrrev_b32 v{r}, 2, v0", f"v_add_u32 v{r}, s{sG}, v{r}", f"v_and_b32 v{r}, 7, v{r}", f"v_lshlrev_b32 v{r}, 14, v{r}", f"v_and_b32 v{t}, {m}, v0", f"v_lshl_add_u32 v{r}, v{t}, 7, v{r}",
                lambda: self.sx(sKVA, FL + F_KV + 4096 * layer, (sJ, 128, 0, 31 - m), (sJ, 4, 0, m))]

    def wtr_addr(self, r, t, hp_terms, perm):
        a = self.a
        self.sx(sT0, 0, *hp_terms)
        a(f"v_bfe_u32 v{r}, v0, 3, 1")
        a(f"v_lshlrev_b32 v{r}, 6, v{r}")
        a(f"v_xor_b32 v{r}, s{sT0}, v{r}")
        a(f"v_and_b32 v{t}, 3, v0")
        a(f"v_lshl_add_u32 v{r}, v{t}, 3, v{r}")
        a(f"v_bfe_u32 v{t}, v0, 4, 1")
        a(f"v_lshl_add_u32 v{r}, v{t}, 5, v{r}")
        a(f"v_bfe_u32 v{t}, v0, 2, 2")
        a(f"v_lshl_add_u32 v{r}, v{t}, 7, v{r}")
        a(f"v_lshrrev_b32 v{t}, 5, v0")
        a(f"v_mul_u32_u24 v{t}, {512 if perm else 3072}, v{t}")
        a(f"v_add_u32 v{r}, v{r}, v{t}")

    QF, KA, VA0, VA1, IDX, Q2, KM, FA = 8, 16, 17, 20, 21, 22, 24, 25
    S0, S1, CC, OO, KF, VF = 32, 48, (64, 80), (96, 112), 128, 136
    AQ, AK, AV = 32, 48, 64

    def attn_setup(self, layer):
        f = ["v_and_b32 v2, 0x330, v1", "v_bfe_u32 v30, v0, 2, 1", "v_lshl_add_u32 v2, v30, 7, v2",
             "v_bfe_u32 v30, v0, 3, 1", "v_lshl_add_u32 v2, v30, 6, v2",
             "v_lshrrev_b32 v29, 5, v0", "v_and_b32 v30, 0xf0, v1", "v_lshl_add_u32 v30, v29, 8, v30",
             "v_bfe_u32 v28, v0, 4, 1", "v_lshl_add_u32 v3, v28, 17, v30", "v_lshl_add_u32 v4, v28, 11, v30",
             f"s_lshl_b32 s{sT0}, s{sW}, 3", f"s_add_u32 s{sT0}, s{sT0}, {KSL}", f"v_lshl_add_u32 v5, v29, 2, s{sT0}",
             f"v_add_u32 v{self.KA}, {KVB}, v1",
             "v_and_b32 v31, 15, v0", "v_min_u32 v31, 1, v31", f"v_mov_b32 v28, {KVB+2048}",
             "v_lshl_add_u32 v28, v31, 16, v28",
             f"v_add_u32 v30, {KVB+1024}, v30", f"v_cndmask_b32 v{self.VA0}, v30, v28, s[{sN16}:{sN16+1}]",
             "v_add_u32 v30, 512, v30", f"v_cndmask_b32 v{self.VA1}, v30, v28, s[{sN16}:{sN16+1}]",
             f"v_mov_b32 v{self.IDX}, 0xdddddddd"]
        f += [f"s_lshl_b32 s{sT0}, s{sW}, 2", f"s_add_u32 s{sT0}, s{sT0}, {VRD}", f"v_mov_b32 v{self.FA}, s{sT0}"]
        f += [f"v_mov_b32 v{self.OO[0]+i}, 0" for i in range(32)]
        return f

    def qkv1(self):
        a = self.a
        a(f"s_mov_b32 s{sROLE}, 0")
        self.vq = ["x"]
        self.entry_stamp()
        self.stamp("issued")
        self.consts()
        a(f"s_lshr_b32 s{sKH}, s{sW}, 1")
        self.sx(sTL, 0, (sJ, 2, 3), (sW, 1, 0, 1))
        self.sx(sT0, 0, (sJ, 2, 0, 7), (sKH, 1))
        self.sx(sT1, 0, (sG, 8), (sTL, 1))
        self.sx(sKT, XF, (sT1, 32768), (sT0, 2048))
        self.sx(sKS, ST, (sT1, 4096), (sT0, 1024, 2), (sT0, 4, 0, 3))
        self.sx(sOS, HF, (sT1, HT), (sKH, 16384))
        self.sx(sHS, HF, (sT1, HT), (sKH, 8192))
        self.sx(sOUT, 0, (sT1, 32768), (sT0, 64))
        self.sx(sT1, 0, (sG, 8), (sJ, 4, 4), (sW, 1))
        self.sx(sUX, XF, (sT1, 32768))
        self.sx(sUS, ST, (sT1, 4096))
        self.sx(sUC, CS13, (sJ, 7 * 1024, 0, 15))
        self.sx(sHD, HF, (sT1, HT), (sJ, 1024, 0, 15))
        self.sx(sT1, 0, (sG, 8), (sJ, 4, 0, 1), (sW, 1))
        self.sx(sQX, XF, (sT1, 32768))
        self.sx(sQS, ST, (sT1, 4096))
        self.sx(sOD, HF, (sG, 8 * HT), (sW, 2 * HT), (sJ, 1024))
        self.sx(sT1, 0, (sG, 8), (sJ, 2, 0, 3), (sW, 1, 0, 1))
        self.sx(sT0, 0, (sJ, 1, 0, 28), (sW, 1, 0, 2))
        self.sx(sKG, KVG, (sT0, 131072), (sT1, 2048))
        self.sx(sQL, HF, (sT1, HT), (sT0, 1024))
        self.sx(sKL, 32768, (sT0, 1024), (sQL, 1))
        self.ln_addr()
        self.sx(sT1, 0, (sW, 32768, 0, 1))
        a("v_lshrrev_b32 v6, 5, v0")
        for k in range(4):
            a(f"v_lshl_add_u32 v7, v6, 4, {32*k}" if k < 3 else "v_lshlrev_b32 v7, 4, v6")
            if k == 3: a("v_add_u32 v7, 96, v7")
            a("v_xor_b32 v7, v7, v1")
            a(f"v_add_u32 v{8+k}, s{sT1}, v7")
        self.wtr_addr(12, 13, [(sW, 64, 1)], False)
        a(f"v_add_u32 v12, {WRING}, v12")
        a(f"v_add_u32 v13, {2*WSTG}, v12")
        self.emit(self.attn_setup(0))
        self.wait(vm="x")
        self.stamp("x landed")
        self.layernorm()
        self.stamp("ln done")
        R = 128
        def reads(k):
            b = R + 16 * (k % 3); st = (k >> 2) & 3
            L = [f"ds_read_b128 {vr(b,4)}, v{8+(k&3)} offset:{k*1024}"]
            for part in range(3):
                for h2 in range(2):
                    L.append(f"ds_read_b64_tr_b16 {vr(b+4+4*part+2*h2,2)}, v{12+(st>>1)} offset:{(st&1)*WSTG+(k&3)*6144+part*1024+h2*512}")
            return L
        a("s_waitcnt lgkmcnt(0)")
        a("s_barrier")
        self.emit(reads(0) + reads(1))
        for k in range(32):
            b = R + 16 * (k % 3)
            nx = reads(k + 2) if k + 2 < 32 else []
            bar = (k & 3) == 2 and nx
            a(f"s_waitcnt lgkmcnt({7 if k < 31 else 0})")
            a(f"v_mfma_f32_32x32x16_bf16 {vr(self.AK,16)}, {vr(b+8,4)}, {vr(b,4)}, {vr(self.AK,16) if k else '0'}")
            if bar:
                a("s_waitcnt lgkmcnt(0)")
                a("s_barrier")
            self.emit(nx[:3])
            a(f"v_mfma_f32_32x32x16_bf16 {vr(self.AV,16)}, {vr(b,4)}, {vr(b+12,4)}, {vr(self.AV,16) if k else '0'}")
            self.emit(nx[3:5])
            a(f"v_mfma_f32_32x32x16_bf16 {vr(self.AQ,16)}, {vr(b+4,4)}, {vr(b,4)}, {vr(self.AQ,16) if k else '0'}")
            self.emit(nx[5:])
        a("s_barrier")
        self.stamp("qkv main")
        a(f"v_mov_b32 v6, {hex(f2u(SIG))}")
        a(f"v_mov_b32 v30, {MODE}")
        a("ds_read_b32 v30, v30")
        self.qkv_epilogue(0, None, 6, None)
        self.stamp("qkv done")

    def qkv_epilogue(self, layer, RS, RQ, RR):
        a = self.a
        AQ, AK, AV, T = self.AQ, self.AK, self.AV, 152
        sc = lambda b, r: [a(f"v_pk_mul_f32 {vr(b+i,2)}, {vr(b+i,2)}, {vr(r,2)} op_sel_hi:[1,0]") for i in range(0, 16, 2)]
        cv = lambda b, d: [a(f"v_cvt_pk_bf16_f32 v{d+i}, v{b+2*i}, v{b+2*i+1}") for i in range(8)]
        loc = self.dg <= layer
        if layer: sc(AK, RS)
        cv(AK, T)
        if loc:
            for u in range(2): self.vm(f"buffer_store_dwordx4 {vr(T+4*u,4)}, v2, {SRD(WS)}, s{sKL} offen offset:{2048*u}")
        else: self.kv_global((0, 1))
        if layer:
            for i in range(0, 16, 2): a(f"v_pk_mul_f32 {vr(AV+i,2)}, {vr(AV+i,2)}, {vr(RR+i,2)}")
        cv(AV, T + 8)
        if loc:
            for u in range(2): self.vm(f"buffer_store_dwordx4 {vr(T+8+4*u,4)}, v4, {SRD(WS)}, s{sKL} offen offset:{1024+512*u}")
        else: self.kv_global((2, 3))
        sc(AQ, RQ)
        cv(AQ, T + 16)
        for u in range(2): self.vm(f"buffer_store_dwordx4 {vr(T+16+4*u,4)}, v1, {SRD(WS)}, s{sQL} offen offset:{1024*u} {'' if loc or layer else 'sc1'}", "loc")
        if loc and self.o("gl", 1) == 0: self.kv_global()
        if layer == 0:
            a("s_waitcnt lgkmcnt(0)")
            a(f"v_readfirstlane_b32 s{sSLOW}, v30")
            a(f"s_lshl_b32 s{sT0}, s{sSLOW}, 10")
            a(f"s_add_u32 s{sFB}, s{sFB}, s{sT0}")
            a(f"s_add_u32 s{sMYF}, s{sMYF}, s{sT0}")
        for h in range(2):
            a(f"v_pk_mul_f32 {vr(26+2*h,2)}, {vr(AK+8*h,2)}, {vr(AK+8*h,2)}")
        for i in (2, 4, 6):
            for h in range(2): a(f"v_pk_fma_f32 {vr(26+2*h,2)}, {vr(AK+8*h+i,2)}, {vr(AK+8*h+i,2)}, {vr(26+2*h,2)}")
        a("v_add_f32 v26, v26, v27")
        a("v_add_f32 v28, v28, v29")
        a("v_permlane32_swap_b32 v26, v28")
        a("v_add_f32 v26, v26, v28")
        if loc:
            self.publish(27, C_Q, tag="loc")
            if self.o("gl", 1) == 1: self.kv_global()
        self.emit(self.wave_umax(26, 28))
        a("v_or_b32 v26, 1, v26")
        self.ds("ds_write_b32 v5, v26")
        if not loc:
            L = a.newlabel("nf")
            self.publish(27, C_Q)
            self.wait(ds="all")
            self.sx(sT3, F_KV + 4096 * layer, (sJ, 128), (sFG, 1))
            a(f"s_cmp_lg_u32 s{sW}, 0")
            a("s_barrier")
            a(f"s_cbranch_scc1 {L}")
            self.kv_flag(layer, 32, sT3)
            a.label(L)

    def kv_global(self, which=(0, 1, 2, 3)):
        T = 152
        for k in which:
            if k == 1: self.a(f"s_add_u32 s{sT1}, s{sKG}, 131072")
            if k < 2: self.vm(f"buffer_store_dwordx4 {vr(T+4*k,4)}, v2, {SRD(WS)}, s{sT1 if k else sKG} offen sc1")
            else: self.vm(f"buffer_store_dwordx4 {vr(T+4*k,4)}, v3, {SRD(WS)}, s{sKG} offen offset:{512*k} sc1")

    def wave_umax(self, r, t):
        L = [f"v_max_u32_dpp v{r}, v{r}, v{r} {m} row_mask:0xf bank_mask:0xf"
             for m in ("quad_perm:[1,0,3,2]", "quad_perm:[2,3,0,1]", "row_half_mirror", "row_mirror")]
        return L + [f"v_mov_b32 v{t}, v{r}", f"v_permlane16_swap_b32 v{r}, v{t}", f"v_max_u32 v{r}, v{r}, v{t}"]

    def qkv2(self):
        a = self.a
        X, NX, WD = 128, 12, self.o("qw", 10)
        AQ, AK, AV = self.AQ, self.AK, self.AV
        RING, STT, RR, MU, RS, RQ = 176, 208, 224, 240, 6, 244
        self.sx(sT1, 0, (sJ, 4, 0, 1), (sW, 1))
        self.emit(self.x_flag_addr(14, 15, sT1))
        a(f"v_add_u32 v12, {SLICE-3072}, v1")
        a(f"v_add_u32 v13, {SLICE+49152}, v1")
        self.publish(11, C_X2)
        self.stamp("down done")
        self.sx(sT1, 0, (sT1, 1), (sG, 8))
        self.sx(sKG, KVG + KV_STR, (sJ, 131072, 0, 30), (sT1, 2048))
        self.sx(sQL, HF, (sT1, HT), (sJ, 1024, 0, 30))
        self.sx(sKL, 32768, (sJ, 1024, 0, 30), (sQL, 1))
        a(f"s_add_u32 s{sKVH}, s{sKVH}, {KV_STR}")
        self.dq.clear(); self.forget()
        def xl(k):
            def f():
                if k % 4 == 0:
                    self.eighth(sT5, k >> 2)
                    self.sx(sT5, 0, (sT5, 4096, 0, 7), (sQX, 1))
                self.vm(f"buffer_load_dwordx4 {vr(X+4*(k%NX),4)}, v1, {SRD(WS)}, s{sT5} offen offset:{(k&3)*1024} sc1", ("x", k))
            return f
        seq = [(k, xl(k)) for k in range(32)]
        for q in range(4): seq.insert(8 + 2 * q, (8 + q, self.fload(STT + 4 * q, sQS, q * 1024, "st", tmp=sT4)))
        init, per = self.ramp(seq, 32, self.o("q0", 4), WD)
        items = []
        def trio(rd, xr, z):
            w = lambda acc: (lambda r: f"v_mfma_f32_32x32x16_bf16 {vr(acc,16)}, {vr(r,4)}, {xr}, {'0' if z else vr(acc,16)}")
            return [dict(read=rd(1), mfma=w(AK)),
                    dict(read=rd(2), mfma=lambda r: f"v_mfma_f32_32x32x16_bf16 {vr(AV,16)}, {xr}, {vr(r,4)}, {'0' if z else vr(AV,16)}"),
                    dict(read=rd(0), mfma=w(AQ))]
        for k in range(32):
            t3 = trio(lambda p, k=k: (12, 3072 + k * 3072 + p * 1024) if k < 16 else (13, (k - 16) * 3072 + p * 1024), vr(X + 4 * (k % NX), 4), k == 0)
            t3[0]["vm"] = ("x", k)
            for c in range(2): t3[c]["post"] = list(per.get(k, [])[c::2])
            items += t3
            if k == 24: items += trio(lambda p: (12, p * 1024), vr(MU, 4), False)
        items[0]["bar"] = True
        st = [lambda: self.wait(vm="st")] + self.stats_ops(STT, MU, RS, RQ)
        st += [f"s_lshl_b32 s{sT0}, s{sW}, 7", "v_and_b32 v26, 31, v0", f"v_lshl_add_u32 v26, v26, 2, s{sT0}",
               lambda: self.ds(f"ds_write_b32 v26, v{RS}"),
               "v_lshrrev_b32 v27, 5, v0", f"v_lshl_add_u32 v27, v27, 4, s{sT0}", f"v_mul_f32 v{RQ}, {hex(f2u(SIG))}, v{RS}"]
        st += [lambda i=i: self.ds(f"ds_read_b128 {vr(RR+4*i,4)}, v27 offset:{32*i}") for i in range(4)]
        self.spread(items, 40, 72, st)
        self.spread(items, 4, 40, self.attn_setup(1))
        self.stream_begin(items, 8, RING)
        self.poll(14, 15, C_X2)
        self.stamp("x2 polled")
        self.emit(init)
        self.stream_run()
        a("s_barrier")
        self.stamp("qkv main")
        a(f"s_mov_b32 s{sLAY}, 1")
        a(f"s_mov_b32 s{sCODE}, 16")
        self.qkv_epilogue(1, RS, RQ, RR)
        self.stamp("qkv done")
        a("s_branch L_attn")

    def attention(self):
        a = self.a
        S = [self.S0, self.S1]; K = [self.KF, self.KF + 4]; V = [self.VF, self.VF + 8]
        Q = [self.QF, self.QF + 4]; C, O, IDX, Q2 = self.CC, self.OO, self.IDX, self.Q2
        off = lambda t: ((t >> 3) & 1) * SLOT + (t & 7) * TSTR
        kread = lambda t: f"ds_read_b128 {vr(K[t&1],4)}, v{self.KA} offset:{off(t)}"
        vread = lambda t, u: f"ds_read_b128 {vr(V[t&1]+4*u,4)}, v{self.VA1 if u else self.VA0} offset:{off(t)}"
        qk = lambda t, q: f"v_mfma_f32_32x32x16_bf16 {vr(S[q],16)}, {vr(K[t&1],4)}, {vr(Q[q],4)}, {vr(C[q],16)}"
        pv = lambda t, q, u: f"v_smfmac_f32_32x32x32_bf16 {vr(O[q],16)}, {vr(V[t&1]+4*u,4)}, {vr(S[q]+8*u,8)}, v{IDX}"
        ast = self.o("ast", 0)
        a.label("L_attn")
        self.vq.clear(); self.dq.clear(); self.forget()
        a(f"s_lshl_b32 s{sT0}, s{sW}, 11")
        a(f"v_add_u32 v26, s{sT0}, v1")
        a("s_waitcnt lgkmcnt(0)")
        a("s_barrier")
        self.stamp("A0")
        for q in range(2): a(f"ds_read_b128 {vr(Q[q],4)}, v26 offset:{QA+1024*q}")
        a(kread(0)); a(vread(0, 0)); a(vread(0, 1))
        assert self.o("gl", 1) < 2 or not self.dg
        if self.o("gl", 1) == 2: self.kv_global()
        a("s_waitcnt lgkmcnt(3)")
        for i in range(4):
            for q in range(2): a(f"v_dot2_f32_bf16 v{Q2+q}, v{Q[q]+i}, v{Q[q]+i}, {'v%d' % (Q2+q) if i else '0'}")
        a("s_nop 2")
        a(f"v_permlane32_swap_b32 v{Q2}, v{Q2+1}")
        a(f"v_add_f32 v{Q2}, v{Q2}, v{Q2+1}")
        a(f"v_mul_f32 v26, {hex(f2u(-1.0/SIG))}, v{Q2}")
        a(f"v_max_f32 v26, {hex(f2u(-TBOUND))}, v26")
        a("v_mov_b32 v28, v26")
        a("v_permlane32_swap_b32 v26, v28")
        for i in range(0, 16, 2): a(f"v_pk_mov_b32 {vr(C[0]+i,2)}, v[26:27], v[26:27] op_sel:[0,0]")
        a("s_waitcnt lgkmcnt(0)")
        a(qk(0, 0))
        for i in range(0, 16, 2): a(f"v_pk_mov_b32 {vr(C[1]+i,2)}, v[28:29], v[28:29] op_sel:[0,0]")
        jobs = {}
        def job(t, f): jobs.setdefault(t, []).append(f)
        def e1():
            a("s_waitcnt vmcnt(0)")
            a("s_barrier")
        assert self.o("e1t", 0) <= 2
        job(self.o("e1t", 0), e1)
        job(60, lambda: a(f"ds_read_b32 v{self.KM}, v{self.FA}"))
        job(62, lambda: a(f"v_readfirstlane_b32 s{sBAD}, v{self.KM}"))
        p1, pq, p0 = self.o("p1", 2), self.o("pqk", 5), self.o("p0", 11)
        def unit(t, q):
            c = S[q]
            tp, qp = (t, 0) if q else (t - 1, 1)
            tn, qn = (t + 1, 0) if q else (t, 1)
            nxt = t < 63 and q == 0
            for i in range(16):
                if i == p1:
                    if tp >= 0: a(pv(tp, qp, 1))
                    if nxt:
                        if (t & 7) == 7:
                            if ast: self.dstamp(f"a{(t+1)>>3} arr", 204)
                            a("s_barrier")
                            if ast: self.dstamp(f"a{(t+1)>>3} bar", 204)
                        a(kread(t + 1))
                    if q: a("s_waitcnt lgkmcnt(0)")
                if i == pq:
                    if tn < 64: a(qk(tn, qn))
                    if nxt: a(vread(t + 1, 0))
                if i == p0:
                    a(pv(t, q, 0))
                    if nxt: a(vread(t + 1, 1))
                    if q:
                        for f in jobs.get(t, []): f()
                a(f"v_exp_f32 v{c+i}, v{c+i}")
        roll = self.o("roll", 1) and not ast
        a("@align")
        for t in range(64):
            if roll and t == 8:
                a(f"s_mov_b32 s{sT5}, 3")
                a.label("L_aloop")
            if roll and 24 <= t < 56: continue
            for q in range(2): unit(t, q)
            if roll and t == 23:
                a(f"s_sub_u32 s{sT5}, s{sT5}, 1")
                a(f"s_cmp_lg_u32 s{sT5}, 0")
                a("s_cbranch_scc1 L_aloop")
        a("@noalign")
        a(pv(63, 1, 1))
        a(f"s_cmp_lg_u32 s{sBAD}, 0")
        a("s_cbranch_scc1 L_fallback")
        a.label("L_attn_fin")
        if ast: self.dflush()
        self.stamp("attn loop")
        a(f"s_add_u32 s{sT0}, s{sOD}, {HT}")
        for q in range(2):
            a(f"v_mov_b32 v26, v{O[q]+8}")
            a(f"v_permlane32_swap_b32 v26, v{O[q]+8}")
            a("v_rcp_f32 v26, v26")
            for i in range(0, 8, 2): a(f"v_pk_mul_f32 {vr(O[q]+i,2)}, {vr(O[q]+i,2)}, v[26:27] op_sel_hi:[1,0]")
            for i in range(4): a(f"v_cvt_pk_bf16_f32 v{244+4*q+i}, v{O[q]+2*i}, v{O[q]+1+2*i}")
            self.vm(f"buffer_store_dwordx4 {vr(244+4*q,4)}, v1, {SRD(WS)}, s{sT0 if q else sOD} offen", "o")

    def fallback(self):
        a = self.a
        S, K, V, IDX = self.S0, self.KF, self.VF, self.IDX
        a.label("L_fallback")
        a(f"s_add_u32 s{sT3}, s{sKVH}, 131072")
        a(f"v_subrev_u32 v28, {KVB}, v{self.VA0}")
        a("s_nop 7")
        for i in range(8): a(f"v_mov_b32 v{V+i}, 0x3f803f80")
        for q in range(2):
            Q, C, O = self.QF + 4 * q, self.CC[q], self.OO[q]
            a(f"s_mov_b32 s{sT0}, s{sKVH}")
            a("v_mov_b32 v26, 0xff800000")
            a.label(f"L_fb1_{q}")
            a(f"buffer_load_dwordx4 {vr(K,4)}, v1, {SRD(WS)}, s{sT0} offen sc1")
            a("s_waitcnt vmcnt(0)")
            a(f"v_mfma_f32_32x32x16_bf16 {vr(S,16)}, {vr(K,4)}, {vr(Q,4)}, 0")
            for i in range(8): a(f"v_max3_f32 v26, v{S+2*i}, v{S+2*i+1}, v26")
            a(f"s_add_u32 s{sT0}, s{sT0}, 2048")
            a(f"s_cmp_lt_u32 s{sT0}, s{sT3}")
            a(f"s_cbranch_scc1 L_fb1_{q}")
            a("v_mov_b32 v27, v26")
            a("v_permlane32_swap_b32 v26, v27")
            a("v_max_f32 v26, v26, v27")
            for i in range(16): a(f"v_sub_f32 v{C+i}, 0, v26")
            for i in range(16): a(f"v_mov_b32 v{O+i}, 0")
            a(f"s_mov_b32 s{sT0}, s{sKVH}")
            a.label(f"L_fb2_{q}")
            a(f"buffer_load_dwordx4 {vr(K,4)}, v1, {SRD(WS)}, s{sT0} offen sc1")
            a(f"s_not_b64 exec, s[{sN16}:{sN16+1}]")
            a(f"buffer_load_dwordx4 {vr(V,4)}, v28, {SRD(WS)}, s{sT0} offen sc1")
            a(f"buffer_load_dwordx4 {vr(V+4,4)}, v28, {SRD(WS)}, s{sT0} offen offset:512 sc1")
            a("s_mov_b64 exec, -1")
            a("s_waitcnt vmcnt(0)")
            a(f"v_mfma_f32_32x32x16_bf16 {vr(S,16)}, {vr(K,4)}, {vr(Q,4)}, {vr(C,16)}")
            for i in range(16): a(f"v_exp_f32 v{S+i}, v{S+i}")
            for u in range(2):
                a(f"v_smfmac_f32_32x32x32_bf16 {vr(O,16)}, {vr(V+4*u,4)}, {vr(S+8*u,8)}, v{IDX}")
            a("s_nop 11")
            a(f"s_add_u32 s{sT0}, s{sT0}, 2048")
            a(f"s_cmp_lt_u32 s{sT0}, s{sT3}")
            a(f"s_cbranch_scc1 L_fb2_{q}")
        a("s_branch L_attn_fin")

    RW, HOLD = 24, 152
    def lbar(self, nm, tag=None, ds=None):
        self.wait(vm=tag)
        if ds is not None: self.a(f"s_waitcnt lgkmcnt({ds})")
        on = nm[0] in self.opt.get("ls", "")
        if on: self.stamp(nm + " arr")
        self.a("s_barrier")
        if on: self.stamp(nm)
    def only_w4(self, fn, extra=None):
        a = self.a
        L = a.newlabel("w4")
        q = list(self.vq)
        if extra is None: a(f"s_cmp_lg_u32 s{sL}, 0")
        else: a(f"s_or_b32 s{sT0}, s{sL}, s{extra}")
        a(f"s_cbranch_scc1 {L}")
        fn()
        a.label(L)
        self.vq = q
    def code_touch(self):
        self.vm(f"global_load_dword v14, v5, s[{sPC}:{sPC+1}]")
    def rload(self, slot, src, unit):
        b = self.RW + 16 * slot
        self.a(f"s_add_u32 s{sT7}, s{src}, {unit*16384}")
        for i in range(4): self.vm(f"buffer_load_dwordx4 {vr(b+4*i,4)}, v1, {SRD(WS)}, s{sT7} offen offset:{i*1024} {self.wpol}", ("r", slot))
    def lsync(self, n):
        a = self.a
        a(f"v_mov_b32 v8, {LSY}")
        a("v_mov_b32 v9, 1")
        a("s_mov_b64 exec, 1")
        a("ds_add_u32 v8, v9")
        def body():
            a("ds_read_b32 v9, v8")
            a("s_waitcnt lgkmcnt(0)")
            a(f"v_cmp_gt_u32 vcc, {4*n}, v9")
        self.spin(body)
        a("s_mov_b64 exec, -1")

    def start_loader(self):
        a = self.a
        a.label("L_startL")
        self.vq = ["x"]; self.dq.clear()
        a(f"s_mov_b32 s{sROLE}, 1")
        a("v_mul_u32_u24 v16, 3072, v4")
        a("v_lshlrev_b32 v8, 2, v0")
        a("v_and_b32 v8, 64, v8")
        a("v_xor_b32 v8, v8, v5")
        a("v_add_u32 v16, v16, v8")
        a(f"s_sub_u32 s{sL}, s{sW}, 4")
        self.sx(sQ, 0, (sL, 16 * 3072), (sJ, 128, 2))
        self.sx(sT4, WRING, (sL, 6144))
        a(f"s_lshl_b32 s{sL}, s{sL}, 12")
        self.srd(SB, P_WQKV, 512 * 3072)
        self.srd(DBG, P_DBG, 256)
        self.sx(sFG, FL, (sG, FL_STR))
        a(f"s_getreg_b32 s{sXCC}, hwreg(HW_REG_XCC_ID, 0, 4)")
        if self.force_slow: a(f"s_and_b32 s{sXCC}, s{sJ}, 1")
        a(f"s_or_b32 s{sXCC}, s{sXCC}, 16")
        def clear():
            for r in range(20, 24): a(f"v_mov_b32 v{r}, 0")
            a("v_lshrrev_b32 v8, 1, v0")
            a("v_lshlrev_b32 v8, 7, v8")
            a("v_and_b32 v9, 16, v1")
            a("v_add_u32 v8, v8, v9")
            a(f"s_add_u32 s{sT0}, s{sFG}, {F_KV}")
            a(f"s_add_u32 s{sT1}, s{sFG}, {F_KV+4096}")
            for o in (0, 1024): a(f"buffer_store_dwordx4 v[20:23], v1, {SRD(WS)}, s{sFG} offen offset:{o} sc1")
            for r in (sT0, sT1): a(f"buffer_store_dwordx4 v[20:23], v8, {SRD(WS)}, s{r} offen sc1")
        self.only_w4(clear, sJ)
        def stage(s):
            self.eighth(sT5, s)
            self.sx(sT5, 0, (sT5, 64 * 3072, 0, 7), (sQ, 1))
            for pc in range(2):
                a(f"s_add_u32 m0, s{sT4}, {(s&3)*WSTG + pc*3072}")
                if pc: a(f"s_add_u32 s{sT5}, s{sT5}, {8*3072}")
                for part in range(3):
                    self.vm(f"buffer_load_dwordx4 v16, {SRD(SB)}, s{sT5} offen offset:{part*1024} lds", ("w", s))
        pre = self.o("wpre", 1); LA = self.o("la", 2)
        for s in range(pre): stage(s)
        self.entry_stamp()
        self.stamp("issued")
        self.consts()
        self.ln_addr()
        self.wtr_addr(17, 8, [(sJ, 64, 1, 1)], True)
        a(f"v_add_u32 v17, s{sT4}, v17")
        a(f"v_add_u32 v15, {2*WSTG}, v17")
        a(f"v_lshl_add_u32 v11, s{sG}, 2, v0")
        a("v_and_b32 v11, 28, v11")
        self.wait(vm="x")
        def ready():
            a(f"s_lshl_b32 s{sT0}, s{sG}, 2")
            a(f"v_mov_b32 v8, s{sXCC}")
            a("s_mov_b64 exec, 1")
            a(f"buffer_store_dword v8, off, {SRD(DBG)}, s{sT0} offset:{D_GRDY} sc1")
            a("s_mov_b64 exec, -1")
        self.only_w4(ready, sJ)
        mid = self.o("wmid", 2)
        for s in range(pre, mid): stage(s)
        a("s_branch L_ln")
        a.label("L_lnL")
        for s in range(mid, LA): stage(s)
        for s in range(8):
            self.wait(vm=("w", s))
            if s == 0: a("s_waitcnt lgkmcnt(0)")
            for part in range(3):
                for h2 in range(2):
                    a(f"ds_read_b64_tr_b16 {vr(self.HOLD+12*s+4*part+2*h2,2)}, v{15 if s & 2 else 17} offset:{(s&1)*WSTG+part*1024+h2*3072}")
            self.lbar(f"G{s}")
            if s == 1: self.vm(f"buffer_load_dword v13, v11, {SRD(DBG)}, 0 offen offset:{D_GRDY} sc1", "grdy")
            if s == 3: self.hello()
            if s + LA < 8:
                a("s_waitcnt lgkmcnt(6)")
                stage(s + LA)
            if s == 6:
                self.mode_look()
                if not self.dg: self.th(None)
        self.mode()
        self.sx(s13, PW13, (sJ, 7 * 32768, 0, 15), (sL, 1))
        self.sx(s2_, PW2, (sJ, 7 * 32768, 0, 7), (sL, 1))
        self.sx(sWOs, PWO, (sJ, 65536, 0, 7), (sL, 1))
        self.sx(sKVF, F_KV, (sJ, 128), (sFG, 1))

    def th(self, parts):
        a = self.a
        self.sx(sT0, HF, (sG, 8 * HT), (sJ, 4 * 7168), (sL, 7168, 12))
        if parts is None:
            a("v_min_u32 v8, 55, v0")
            a("v_lshlrev_b32 v8, 7, v8")
            self.vm(f"buffer_load_dword v14, v8, {SRD(WS)}, s{sT0} offen sc1")
        else:
            for p in parts:
                a(f"s_add_u32 s{sT1}, s{sT0}, {p*1024}")
                self.vm(f"buffer_load_dword v14, v1, {SRD(WS)}, s{sT1} offen sc1")
    def to(self):
        a = self.a
        a("v_lshrrev_b32 v8, 5, v0")
        a(f"v_mul_u32_u24 v8, {HT}, v8")
        a("v_bfe_u32 v9, v0, 2, 3")
        a("v_lshl_add_u32 v8, v9, 7, v8")
        self.sx(sT0, HF, (sG, 8 * HT), (sL, 2 * HT // 4096), (sJ, 1024))
        self.vm(f"buffer_load_dword v14, v8, {SRD(WS)}, s{sT0} offen sc1")
    def th2(self):
        a = self.a
        a("v_min_u32 v8, 39, v0")
        a("v_lshrrev_b32 v9, 3, v8")
        a("v_and_b32 v8, 7, v8")
        a("v_lshlrev_b32 v8, 7, v8")
        a("v_lshl_add_u32 v8, v9, 14, v8")
        self.sx(sT0, HF + 32768, (sG, 8 * HT), (sJ, 4 * HT, 4), (sL, HT // 4096), (sJ, 1024, 0, 15))
        self.vm(f"buffer_load_dword v14, v8, {SRD(WS)}, s{sT0} offen sc1")
    def tx(self):
        a = self.a
        for x in ["v_lshrrev_b32 v8, 5, v0", "v_lshlrev_b32 v8, 15, v8", "v_bfe_u32 v9, v0, 2, 3", "v_lshl_add_u32 v8, v9, 7, v8"]: a(x)
        self.sx(sT0, XF, (sG, 8 * 32768), (sJ, 65536, 3), (sJ, 4096, 0, 7), (sL, 1, 2))
        self.vm(f"buffer_load_dword v14, v8, {SRD(WS)}, s{sT0} offen sc1")
        for x in ["v_lshrrev_b32 v8, 5, v0", "v_lshlrev_b32 v8, 12, v8", "v_lshl_add_u32 v8, v9, 7, v8"]: a(x)
        self.sx(sT0, ST, (sG, 8 * 4096), (sJ, 8192, 3), (sJ, 1024, 1, 3))
        self.vm(f"buffer_load_dword v14, v8, {SRD(WS)}, s{sT0} offen sc1")

    def after_e0(self, layer):
        a = self.a
        self.emit(self.flag_watch(10, 8, layer))
        a(f"s_mov_b64 s[{sRDY}:{sRDY+1}], 0")
        a(f"s_not_b64 s[{sLO}:{sLO+1}], s[{sHI}:{sHI+1}]")
        for r in range(20, 24): a(f"v_mov_b32 v{r}, 0x3f803f80")
        a("v_bfe_u32 v8, v0, 4, 1")
        a(f"v_mul_u32_u24 v8, {TSTR}, v8")
        a("v_lshrrev_b32 v9, 5, v0")
        a(f"v_mul_u32_u24 v9, {SLOT}, v9")
        self.sx(sT1, KVB + 2048, (sL, 1), (sL, 1, 7))
        a(f"v_add3_u32 v8, v8, v9, s{sT1}")
        a("v_and_b32 v12, 1, v0")
        if layer: self.sx(sT0, 0, (sJ, 32, 0, 30), (sL, 32, 13), (sL, 8, 12, 1))
        else: self.sx(sT0, 0, (sJ, 32, 0, 28), (sL, 32, 12), (sJ, 4, 0, 2))
        a(f"v_lshl_add_u32 v12, v12, 2, s{sT0}")
        self.lbar("E0", ds=0)
        a("ds_write_b128 v8, v[20:23]")

    def kv_flag(self, layer, r, dst):
        a = self.a
        a(f"v_mov_b32 v{r}, {KSL}")
        a(f"ds_read_b128 {vr(r+4,4)}, v{r} offset:16")
        a(f"ds_read_b128 {vr(r,4)}, v{r}")
        a("s_waitcnt lgkmcnt(0)")
        a(f"v_max_u32 v{r}, v{r}, v{r+2}")
        a(f"v_max_u32 v{r+1}, v{r+1}, v{r+3}")
        a(f"v_max_u32 v{r+2}, v{r+4}, v{r+6}")
        a(f"v_max_u32 v{r+3}, v{r+5}, v{r+7}")
        if layer:
            a(f"v_max_u32 v{r}, v{r}, v{r+2}")
            a(f"v_max_u32 v{r+1}, v{r+1}, v{r+3}")
        a("s_mov_b64 exec, 1")
        a(f"buffer_store_dwordx{2 if layer else 4} {vr(r, 2 if layer else 4)}, off, {SRD(WS)}, s{dst} sc1")
        a("s_mov_b64 exec, -1")

    def kv_need(self, s, layer):
        a = self.a
        L, D, N = a.newlabel("kvn"), a.newlabel("kvd"), a.newlabel("kvr")
        dyn = self.o("dyn", 0) and s > 0
        if dyn and s == 1: a(f"s_mov_b32 s{sREM}, 0x11111110")
        a.label(L)
        if dyn:
            a(f"s_lshr_b32 s{sT2}, s{sRDY}, 1")
            a(f"s_and_b32 s{sT2}, s{sT2}, s{sRDY}")
            a(f"s_lshr_b32 s{sT1}, s{sT2}, 2")
            a(f"s_and_b32 s{sT2}, s{sT2}, s{sT1}")
            a(f"s_and_b32 s{sT2}, s{sT2}, s{sREM}")
            a(f"s_cbranch_scc1 {D}")
        else:
            a(f"s_andn2_b32 s{sT2}, {hex(15 << (4 * s))}, s{sRDY}")
            a(f"s_cbranch_scc0 {D}")
        if layer == 0:
            a(f"s_cmp_eq_u32 s{sEX}, -1")
            a(f"s_cbranch_scc1 {N}")
            a(f"buffer_load_dword v13, v11, {SRD(DBG)}, 0 offen offset:{D_GRDY} sc1")
            a("s_waitcnt vmcnt(0)")
            a(f"v_cmp_ne_u32 s[{sEX}:{sEX+1}], 0, v13")
            a.label(N)
        if s <= self.o("narrow", 1): a(f"s_mov_b64 exec, {hex(((1 << (4 * (self.o('wide', 3) if dyn else 1))) - 1) << (4 * s))}")
        else: a(f"s_andn2_b64 exec, s[{sLO}:{sLO+1}], s[{sRDY}:{sRDY+1}]")
        a(f"buffer_load_dword v9, v10, {SRD(WS)}, s{sKVA} offen sc1")
        a("s_waitcnt vmcnt(0)")
        a("v_cmp_ne_u32 vcc, 0, v9")
        a("s_mov_b64 exec, -1")
        a(f"s_and_b32 s{sT2}, vcc_lo, s{sEX}")
        a(f"s_or_b32 s{sRDY}, s{sRDY}, s{sT2}")
        a(f"s_sub_u32 s{sTMO}, s{sTMO}, 1")
        a(f"s_cbranch_scc0 {L}")
        a(f"s_mov_b32 s{sTMO}, 0")
        if dyn: a(f"s_mov_b32 s{sT2}, s{sREM}")
        a.label(D)
        if dyn:
            a(f"s_ff1_i32_b32 s{sT0}, s{sT2}")
            a(f"s_bitset0_b32 s{sREM}, s{sT0}")
            a(f"s_lshr_b32 s{sT0}, s{sT0}, 2")
            a(f"s_add_u32 s{sT0}, s{sT0}, s{sG}")
        else: a(f"s_add_u32 s{sT0}, s{sG}, {s}")
        a(f"s_and_b32 s{sT0}, s{sT0}, 7")
    def kv_fetch(self, s, layer):
        a = self.a
        self.kv_need(s, layer)
        self.sx(sT0, 0, (sT0, 16384), (sKVH, 1), (sL, 1))
        self.sx(sT1, 0, (sL, 1), (sL, 1, 7))
        pol = "sc1 nt" if self.o("kvnt", 0) else "sc1"
        self.dma(sT1, KVB + (s & 1) * SLOT, sT0, 0, (0, 1), ("kv", s), pol)
        a("s_add_u32 m0, m0, 16")
        for i in (2, 3):
            self.vm(f"buffer_load_dwordx4 v1, {SRD(WS)}, s{sT7} offen offset:{i*1024} {pol} lds", ("kv", s))
    def q_fetch(self, local):
        a = self.a
        self.sx(sT0, HF, (sG, 8 * HT), (sL, 2 * HT // 4096), (sJ, 1024))
        a(f"s_lshr_b32 s{sT1}, s{sL}, 1")
        for q in range(2): self.dma(sT1, QA + 1024 * q, sT0, q * HT, (0,), ("kv", 0), "sc1")
        if local: self.sx(sT0, 32768, (sT0, 1), (sJ, 1024))
        else: self.sx(sT0, 0, (sG, 16384), (sKVH, 1), (sL, 1))
        self.sx(sT1, 0, (sL, 1, 1), (sL, 1, 8))
        for q in range(2): self.dma(sT1, KVB + 4 * q * TSTR, sT0, q * (HT if local else 2048), (0, 1), ("kv", 0) if q == 0 else "kv0b", "sc1")

    def prep_flag(self):
        a = self.a
        def f():
            a(f"s_add_u32 s{sT0}, s{sKVF}, 4096")
            a("v_mov_b32 v8, 1")
            a("s_mov_b64 exec, 1")
            a(f"buffer_store_dword v8, off, {SRD(WS)}, s{sT0} offset:16 sc1")
            a("s_mov_b64 exec, -1")
        self.only_w4(f)
    def prep_look(self):
        a = self.a
        a("v_min_u32 v12, 45, v0")
        a("v_lshlrev_b32 v8, 2, v12")
        a(f"s_bfe_u32 s{sT0}, s{sJ}, 0x20001")
        a(f"v_add_u32 v9, s{sT0}, v8")
        a("v_and_b32 v8, 0x70, v8")
        a("v_and_b32 v13, 3, v12")
        a(f"s_and_b32 s{sT0}, s{sJ}, 12")
        a(f"v_add3_u32 v8, v8, v13, s{sT0}")
        a("v_cmp_gt_u32 vcc, 28, v12")
        a("v_cndmask_b32 v8, v9, v8, vcc")
        a("v_and_b32 v12, 7, v8")
        a("v_lshlrev_b32 v12, 14, v12")
        a("v_lshrrev_b32 v8, 3, v8")
        a("v_lshl_add_u32 v12, v8, 7, v12")
        a(f"s_mov_b32 s{sT2}, {FL + F_KV + 4096 + 16}")
        a(f"s_mov_b32 s{sPA}, s{sEX}")
        self.vm(f"buffer_load_dword v15, v12, {SRD(WS)}, s{sT2} offen sc1", "pl")
    def prep_wait(self):
        a = self.a
        D = a.newlabel("pwd")
        self.wait(vm="pl")
        a("v_cmp_eq_u32 vcc, 0, v15")
        a(f"s_orn2_b32 s{sT2}, vcc_lo, s{sPA}")
        a(f"s_or_b32 s{sT2}, s{sT2}, vcc_hi")
        a(f"s_cbranch_scc0 {D}")
        def rdy():
            a(f"buffer_load_dword v13, v11, {SRD(DBG)}, 0 offen offset:{D_GRDY} sc1")
            a("s_waitcnt vmcnt(0)")
            a("v_cmp_eq_u32 vcc, 0, v13")
        self.spin(rdy)
        a(f"s_mov_b32 s{sT2}, {FL + F_KV + 4096 + 16}")
        def body():
            a(f"buffer_load_dword v13, v12, {SRD(WS)}, s{sT2} offen sc1")
            a("s_waitcnt vmcnt(0)")
            a("v_cmp_eq_u32 vcc, 0, v13")
        self.spin(body)
        a.label(D)
        a(f"s_mov_b32 s{sEX}, -1")

    def hello(self):
        a = self.a
        self.wait(vm="grdy")
        a(f"v_cmp_ne_u32 s[{sEX}:{sEX+1}], 0, v13")
        a(f"s_lshl_b32 s{sT1}, s{sG}, 2")
        L = a.newlabel("og")
        a(f"s_bitcmp1_b32 s{sEX}, 0")
        a(f"s_cbranch_scc1 {L}")
        def rdy():
            a(f"buffer_load_dword v13, off, {SRD(DBG)}, s{sT1} offset:{D_GRDY} sc1")
            a("s_waitcnt vmcnt(0)")
            a("v_cmp_eq_u32 vcc, 0, v13")
        self.spin(rdy)
        a.label(L)
        a(f"v_readfirstlane_b32 s{sT2}, v13")
        a(f"s_cmp_lg_u32 s{sT2}, s{sXCC}")
        a(f"s_cselect_b32 s{sSLOW}, 1, 0")
        def f():
            S, D = a.newlabel("sh"), a.newlabel("hd")
            a("v_mov_b32 v8, 1")
            a("s_mov_b64 exec, 1")
            a(f"s_cmp_lg_u32 s{sSLOW}, 0")
            a(f"s_cbranch_scc1 {S}")
            a(f"buffer_store_dword v8, off, {SRD(WS)}, s{sMYF}")
            a(f"s_branch {D}")
            a.label(S)
            a(f"buffer_store_dword v8, off, {SRD(DBG)}, s{sT1} offset:{D_SHOUT} sc1")
            a.label(D)
            a("s_mov_b64 exec, -1")
        self.only_w4(f)
    def mode_look(self):
        a = self.a
        a("v_and_b32 v12, 31, v0")
        a("v_lshl_add_u32 v12, v12, 5, 16")
        self.vm(f"buffer_load_dword v13, v12, {SRD(WS)}, s{sFG} offen sc1", "ml")
    def mode(self):
        a = self.a
        L, D = a.newlabel("ml"), a.newlabel("md")
        self.wait(vm="ml")
        a(f"s_lshl_b32 s{sT0}, s{sG}, 2")
        a(f"s_cmp_lg_u32 s{sSLOW}, 0")
        a(f"s_cbranch_scc1 {D}")
        a.label(L)
        a("v_cmp_eq_u32 vcc, 0, v13")
        a(f"s_cbranch_vccz {D}")
        a(f"buffer_load_dword v9, off, {SRD(DBG)}, s{sT0} offset:{D_SHOUT} sc1")
        a(f"buffer_load_dword v13, v12, {SRD(WS)}, s{sFG} offen sc1")
        a("s_waitcnt vmcnt(0)")
        a(f"v_readfirstlane_b32 s{sSLOW}, v9")
        a(f"s_cmp_lg_u32 s{sSLOW}, 0")
        a(f"s_cbranch_scc1 {D}")
        a(f"s_sub_u32 s{sTMO}, s{sTMO}, 1")
        a(f"s_cbranch_scc0 {L}")
        a(f"s_mov_b32 s{sTMO}, 0")
        a.label(D)
        a(f"v_mov_b32 v8, {LSY}")
        a("v_mov_b32 v12, 0")
        a(f"v_mov_b32 v13, s{sSLOW}")
        a("ds_write_b64 v8, v[12:13]")
        a(f"s_lshl_b32 s{sT0}, s{sSLOW}, 10")
        a(f"s_add_u32 s{sFB}, s{sFB}, s{sT0}")
        a(f"s_add_u32 s{sMYF}, s{sMYF}, s{sT0}")

    def side(self, layer):
        a = self.a
        H = self.HOLD
        self.after_e0(layer)
        if layer == 0:
            for part in range(3):
                for s in range(8):
                    a(f"v_mfma_f32_32x32x16_bf16 {vr(24+16*part,16)}, v[20:23], {vr(H+12*s+4*part,4)}, {vr(24+16*part,16) if s else '0'}")
        dg = self.dg > layer
        if dg:
            if layer == 0:
                for part in range(3): self.emit(self.split_pair(H + 96 + 2 * part, 24 + 16 * part, 9))
            self.lbar("E1")
        self.poll(12, 13, C_Q + 16 * layer)
        self.q_fetch(not dg)
        if layer == 0:
            if not dg:
                for part in range(3): self.emit(self.split_pair(H + 96 + 2 * part, 24 + 16 * part, 9))
            self.prep_setup()
            self.sx(sT0, 0, (sJ, 16), (sL, 4, 12))
            a("v_lshrrev_b32 v5, 4, v0")
            a(f"v_add_lshl_u32 v5, v5, s{sT0}, 7")
            a("v_min_u32 v5, L_end-L_pc-4, v5")
            a(f"v_add_u32 v2, s{sL}, v1")
            a("v_add_u32 v3, 0x10000, v2")
            a("v_add_u32 v4, 0x20000, v2")
        self.lbar("A0", ("kv", 0), ds=0)
        a(f"s_lshr_b32 s{sT0}, s{sL}, 1")
        a(f"v_add_u32 v8, s{sT0}, v1")
        QT = 160 if layer else 32
        for q in range(2): a(f"ds_read_b128 {vr(QT+4*q,4)}, v8 offset:{QA+1024*q}")
        self.lbar("E1", "kv0b")
        if not dg: self.only_w4(lambda: self.kv_flag(layer, QT - 8, sKVF))
        self.kv_fetch(1, layer)
        a("s_waitcnt lgkmcnt(0)")
        for i in range(4):
            for q in range(2): a(f"v_dot2_f32_bf16 v{16+q}, v{QT+4*q+i}, v{QT+4*q+i}, {'v%d' % (16+q) if i else '0'}")
        a("s_nop 2")
        a("v_permlane32_swap_b32 v16, v17")
        a("v_add_f32 v16, v16, v17")
        def km():
            self.kv_need(0, layer)
            self.vm(f"buffer_load_dword v17, v10, {SRD(WS)}, s{sKVA} offen sc1", "km")
        def check():
            self.wait(vm="km")
            self.emit(self.wave_umax(17, 8))
            a("v_mul_f32 v17, v16, v17")
            a(f"v_cmp_nge_f32 vcc, {hex(f2u(-1.0 if self.force_fallback else TBOUND*TBOUND))}, v17")
            self.sx(sT0, VRD, (sL, 1, 10))
            a(f"s_or_b32 s{sT1}, vcc_lo, vcc_hi")
            a(f"v_mov_b32 v8, s{sT0}")
            a(f"v_mov_b32 v9, s{sT1}")
            a("ds_write_b32 v8, v9")
            a("s_waitcnt lgkmcnt(0)")
        def tile_of_c():
            self.sx(sT1, 0, (sG, 8), (sJ, 2, 3), (sL, 1, 12, 1))
            self.sx(sT2, 0, (sJ, 2, 0, 7), (sL, 1, 13))
        def res_raw():
            self.srd(SA, P_X, 2 * MB)
            tile_of_c()
            self.sx(sT0, 0, (sT1, 32768), (sT2, 64))
            a("v_and_b32 v8, 31, v0")
            a("v_lshlrev_b32 v8, 10, v8")
            a("v_lshrrev_b32 v9, 5, v0")
            a("v_lshl_add_u32 v8, v9, 3, v8")
            for i in range(4): self.vm(f"buffer_load_dwordx2 {vr((6, 12, 254, 18)[i],2)}, v8, {SRD(SA)}, s{sT0} offen offset:{16*i}", "rr")
        def mailbox():
            self.sx(sT0, CS13, (sJ, 7 * 1024, 0, 15), (sL, 1, 1))
            a(f"s_lshr_b32 s{sT3}, s{sL}, 1")
            L = a.newlabel("mb"); q = list(self.vq)
            a(f"s_cmp_eq_u32 s{sW}, 7")
            a(f"s_cbranch_scc1 {L}")
            self.dma(sT3, MBX, sT0, 0, (0,), pol="sc1")
            a(f"s_cmp_eq_u32 s{sW}, 6")
            a(f"s_cbranch_scc1 {L}")
            a(f"buffer_load_dwordx4 v1, {SRD(WS)}, s{sT7} offen offset:1024 sc1 lds")
            a.label(L); self.vq = q
            if layer:
                tile_of_c()
                self.sx(sT0, XF, (sT1, 32768), (sT2, 2048))
                self.dma(sT3, MBX + 5120, sT0, 0, (0, 1), pol="sc1")
            else:
                a(f"s_add_u32 s{sT3}, s{sT3}, {MBX+5120}")
                a(f"v_add_u32 v8, s{sT3}, v1")
                self.wait(vm="rr")
                for i in range(4): a(f"ds_write_b64 v8, {vr((6, 12, 254, 18)[i],2)} offset:{(i>>1)*1024+(i&1)*8}")
        pf = [lambda u=u: self.dma(sL, U(u), sWOs, u * 16384, range(4)) for u in range(4)]
        pf += [lambda u=u: self.dma(sL, U(4 + u), s13, u * 16384, range(4)) for u in range(3)]
        def last():
            self.dma(sL, U(7), s13, 3 * 16384, range(3))
            self.vm(f"buffer_load_dwordx4 v[20:23], v1, {SRD(WS)}, s{sT7} offen offset:3072 {self.wpol}")
        pf.append(last)
        if layer:
            pf += [lambda u=u: self.rload(8 + u, s13, 4 + u) for u in range(4)]
        else:
            pf += [lambda u=u: self.rload(u, s13, 4 + u) for u in range(6)]
            pf = pf[:4] + [lambda u=u: self.rload(6 + u, s2_, 12 + u) for u in range(2)] + pf[4:]
        steps = {s: [] for s in range(8)}; post = {s: [] for s in range(8)}
        if layer == 0:
            steps[0] += [lambda k=k: self.prep_gather(k) for k in range(4)]
            steps[1] += [lambda: self.wait(vm="pg"), lambda: self.lsync(1)] + self.prep_store()
            steps[2] += [lambda: self.wait(vm="pst"), lambda: self.lsync(2), self.prep_flag]
            first = self.o("pw", 4)
            if self.o("plk", 1): post[first - 1].append(self.prep_look)
            else: steps[first - 1].append(self.prep_look)
            steps[first].append(self.prep_wait)
            if self.o("coldx", 2): steps[self.o("coldx", 2)].append(self.tx)
            if dg:
                if self.o("cold", 0): steps[self.o("cold", 0)].append(self.th2)
            cnt = [int(x) for x in self.opt.get("n0", "6541")]
        else:
            first = 1
            cnt = [int(x) for x in self.opt.get("n1", "0333300")]
        assert sum(cnt) == len(pf) and first + len(cnt) == 8
        k = 0
        for i, n in enumerate(cnt):
            steps[first + i] += pf[k:k + n]; k += n
        tm = self.opt.get("tm", "aa")[layer]
        steps[7] = [mailbox, self.to, self.tx] + steps[7] + ([self.th2] if tm == "a" else [])
        steps[6] = [km] + steps[6] + ([] if layer else [res_raw])
        post[6].append(check)
        for s in range(8):
            if s:
                self.lbar(f"p{s}")
                if s < 7: self.kv_fetch(s + 1, layer)
            self.code_touch()
            self.emit(steps[s])
            self.wait(vm=("kv", s + 1))
            self.emit(post[s])
        self.lbar("A1", "all", ds=0)
        self.lbar("A2")

    def loader(self, layer):
        a = self.a
        bar = self.lbar
        ko = self.opt.get("ko", ""); self.seen = set()
        t = lambda c, h, u: self.dma(sL, U(u), s13, c * 32768 + h * 16384, range(0 if "d" in ko else 4), ("t", c, h))
        c2 = lambda c, h, u: self.dma(sL, U(u), s2_, c * 32768 + h * 16384, range(0 if "d" in ko else 4), ("c", c, h))
        rc = lambda slot, unit: self.rload(slot, s2_, unit)
        self.pace = 0
        def wr(slot, u):
            self.wait(vm=("r", slot))
            for i in range(0 if "w" in ko else 4):
                a(f"ds_write_b128 v{2 + (U(u) >> 16)}, {vr(self.RW + 16*slot + 4*i, 4)} offset:{(U(u) & 0xffff) + i*1024}")
                if self.pace: a("s_waitcnt lgkmcnt(0)")
        def sl(ss):
            for s in ss:
                for part in range(3):
                    a(f"ds_write_b128 v{8 + (s >> 2)}, {vr(self.HOLD+12*s+4*part,4)} offset:{(s&3)*12288+part*1024}")
                    if self.pace and s < 6: a("s_waitcnt lgkmcnt(0)")
        a(f"ds_write_b128 v3, v[20:23] offset:{U(7) - 65536 + 3072}")
        o = 8 if layer else 0
        wr(o, 8)
        bar("W1")
        wr(o + 1, 0); wr(o + 2, 1); wr(o + 3, 2); wr(4, 3)
        bar("B0", ds=12)
        wr(5, 9)
        pub = lambda k: self.only_w4(lambda: self.publish(13, C_H + k + 16 * layer, tag=None))
        o = 0
        ex = iter([int(x) for x in self.opt.get("ex", "101110")]); nx = iter(range(4))
        def extra():
            for _ in range(next(ex)):
                k = next(nx)
                if not layer: rc(k, 8 + k)
        bar("Bm", ds=0)
        self.pace = self.o("pace", 0); self.thr = self.o("thr", 6)
        todo = [(0, lambda: t(5, 0, 4)), (0, lambda: t(6, 0, 6)), (0, lambda: c2(0, 0, 8)), (1, lambda: t(5, 1, 5)), (1, lambda: t(6, 1, 7)),
                (1, lambda: c2(0, 1, 0)), (2, lambda: c2(1, 0, 1)), (2, lambda: c2(2, 0, 3)), (3, lambda: c2(1, 1, 2)), (3, lambda: c2(2, 1, 9)),
                (4, lambda: c2(3, 0, 4)), (4, lambda: c2(3, 1, 5))]
        nd = [int(x) for x in self.opt.get("nd", "332220")]
        assert sum(nd) == 12
        def go(k):
            for _ in range(nd[k]):
                free, f = todo.pop(0); assert free <= k
                f()
            extra()
        if self.opt.get("tm", "aa")[layer] == "b": self.th2()
        go(0)
        if not layer: self.code_touch()
        bar("B1")
        LB = self.o("lb", 1)
        def need(*tags):
            for x in tags: assert x in self.seen; self.wait(vm=x)
        go(1)
        if LB: need(("t", 5, 0))
        bar("Bn")
        go(2)
        need(("t", 5, 1), ("t", 6, 0))
        bar("B2")
        if not self.o("mg", 0): pub(0)
        go(3)
        need(("t", 6, 1), ("c", 0, 0))
        bar("B3")
        pub(1)
        go(4)
        need(("c", 0, 1), ("c", 1, 0), ("c", 1, 1), ("c", 2, 0))
        bar("B4")
        pub(2)
        go(5)
        if not layer: self.code_touch()
        wr(o, 6); wr(o + 1, 7)
        need(("c", 2, 1), ("c", 3, 0), ("c", 3, 1))
        bar("D1", ds=4)
        pub(3)
        wr(o + 2, 8); wr(6, 1); wr(o + 3, 0)
        if not layer:
            self.sx(sT0, SLICE, (sL, 3072, 12))
            a(f"v_add_u32 v8, s{sT0}, v1")
            a("v_add_u32 v9, 49152, v8")
            self.sx(sT0, SLICE - 3072, (sL, 512, 13), (sL, 8, 12, 1))
            a("v_and_b32 v12, 0x1f0, v1")
            a(f"v_add_u32 v12, s{sT0}, v12")
        bar("D3", ds=8)
        wr(7, 2)
        if not layer: sl(range(0, self.o("sl1", 1)))
        bar("D4", ds=0)
        if not layer: sl(range(self.o("sl1", 1), 6))
        bar("D6")
        self.thr = 0
        if layer:
            a("s_endpgm")
            return
        sl((6, 7))
        for part in range(3): a(f"ds_write_b64 v12, {vr(self.HOLD+96+2*part,2)} offset:{part*1024}")
        a(f"s_add_u32 s{sKVH}, s{sKVH}, {KV_STR}")
        a(f"s_add_u32 s{sKVF}, s{sKVF}, 4096")
        bar("Q0", ds=0)

    def prep_setup(self):
        a = self.a
        a(f"s_lshr_b32 s{sT4}, s{sL}, 12")
        self.sx(sT0, 0, (sJ, 8), (sG, 1))
        a(f"s_mov_b32 s{sPCS}, {OOB}")
        a(f"s_cmp_ge_u32 s{sJ}, 23")
        a("s_cbranch_scc1 L_pr_none")
        a(f"s_cmp_ge_u32 s{sT0}, 112")
        a("s_cbranch_scc1 L_pr_o")
        self.srd(SA, P_W1, 512 * 3584)
        self.srd(SB, P_W3, 512 * 3584)
        a(f"s_mov_b32 s{sPSTR}, 3584")
        self.sx(sPA, 0, (sT0, 128, 2), (sT0, 128 * 3584, 0, 3))
        a(f"s_mov_b32 s{sPB}, s{sPA}")
        self.sx(sT2, 0, (sT0, 4, 2), (sT4, 1))
        self.sx(sT1, 0, (sT2, 7, 0, 15), (sT2, 1, 4))
        if self.m16: self.sx(sPCS, CS13, (sT1, 1024), (sT0, 256, 0, 3))
        else: self.sx(sPCS, CS13, (sT1, 1024), (sT0, 512, 1, 1), (sT0, 8, 0, 1))
        self.sx(sPD, PW13, (sT1, 32768), (sT0, 8192, 0, 3))
        a(f"s_mov_b32 s{sTCH}, 4096")
        a(f"s_lshl_b32 s{sT2}, s{sT4}, 5")
        a(f"s_mov_b32 s{sT3}, 16384")
        a("s_branch L_pr_go")
        a.label("L_pr_o")
        self.sx(sT2, 0, (sT0, 2, 0, 3), (sT4, 1, 1))
        a(f"s_cmp_ge_u32 s{sT0}, 128")
        a("s_cbranch_scc1 L_pr_2")
        self.srd(SA, P_WO, 512 * 1024)
        self.srd(SB, P_WO, 512 * 1024)
        a(f"s_sub_u32 s{sT0}, s{sT0}, 112")
        self.sx(sPD, PWO, (sT2, 65536), (sT0, 32768, 2, 1), (sT0, 8192, 3), (sT4, 4096, 0, 1))
        a("s_branch L_pr_o2")
        a.label("L_pr_2")
        self.srd(SA, P_W2, 1792 * 1024)
        self.srd(SB, P_W2, 1792 * 1024)
        a(f"s_sub_u32 s{sT0}, s{sT0}, 128")
        self.sx(sPD, PW2, (sT2, 7 * 32768), (sT0, 32768, 3), (sT0, 8192, 2, 1), (sT4, 4096, 0, 1))
        a("s_branch L_pr_o2")
        a.label("L_pr_none")
        self.srd(SA, P_WO, 0)
        self.srd(SB, P_WO, 0)
        a(f"s_mov_b32 s{sT0}, 0")
        a(f"s_mov_b32 s{sPD}, {OOB}")
        a.label("L_pr_o2")
        a(f"s_mov_b32 s{sPSTR}, 1024")
        a(f"s_mov_b32 s{sTCH}, 16384")
        self.sx(sPA, 0, (sT0, 256, 0, 3), (sT0, 128 * 1024, 2))
        a(f"s_add_u32 s{sPB}, s{sPA}, 128")
        self.sx(sT2, 0, (sT4, 16384, 1), (sT4, 64, 0, 1))
        a(f"s_mov_b32 s{sT3}, 32")
        a.label("L_pr_go")
        a("v_lshrrev_b32 v6, 3, v0")
        a(f"v_mul_lo_u32 v6, v6, s{sPSTR}")
        a("v_and_b32 v8, 0x70, v1")
        a("v_add_u32 v6, v6, v8")
        a(f"s_lshl_b32 s{sPSTR}, s{sPSTR}, 3")
        a(f"s_mul_i32 s{sT1}, s{sPSTR}, s{sT4}")
        a(f"s_lshl_b32 s{sT1}, s{sT1}, 2")
        a(f"s_add_u32 s{sPA}, s{sPA}, s{sT1}")
        a(f"s_add_u32 s{sPB}, s{sPB}, s{sT1}")
        a("v_bfe_u32 v7, v0, 4, 1")
        a(f"v_mul_lo_u32 v7, v7, s{sT3}")
        a("v_and_b32 v8, 3, v0")
        a("v_lshl_add_u32 v7, v8, 3, v7")
        a("v_bfe_u32 v8, v0, 2, 2")
        a("v_lshl_add_u32 v7, v8, 7, v7")
        a("v_and_b32 v8, 0x200, v1")
        a(f"s_add_u32 s{sT2}, s{sT2}, {self.RAW}")
        a(f"v_add3_u32 v7, v7, v8, s{sT2}")

    def prep_gather(self, pc):
        a = self.a
        for part in range(2):
            r = sPB if part else sPA
            a(f"s_add_u32 m0, s{sL}, {self.RAW+pc*1024+part*16384}")
            self.vm(f"buffer_load_dwordx4 v6, {SRD(SB if part else SA)}, s{r} offen {'nt ' if self.o('gnt', 1) else ''}lds", "pg")
            a(f"s_add_u32 s{r}, s{r}, s{sPSTR}")

    def prep_store(self):
        a = self.a
        F = 24
        def rd():
            for i in range(8):
                for h2 in range(2):
                    a(f"ds_read_b64_tr_b16 {vr(F+4*i+2*h2,2)}, v7 offset:{i*2048+h2*1024}")
            for r in range(72, 76): a(f"v_mov_b32 v{r}, 0x3f803f80")
            a(f"s_add_u32 s{sTCH}, s{sPD}, s{sTCH}")
            a("s_waitcnt lgkmcnt(0)")
        def st(i):
            a(f"v_mfma_f32_32x32x16_bf16 v[56:71], v[72:75], {vr(F+4*i,4)}, {'v[56:71]' if i else '0'}")
            self.vm(f"buffer_store_dwordx4 {vr(F+4*i,4)}, v1, {SRD(WS)}, s{sPD if i < 4 else sTCH} offen offset:{(i&3)*1024} sc1")
        def cs():
            if self.m16:
                a("v_and_b32 v8, 0xf0, v1")
                a("v_bfe_u32 v9, v0, 4, 1")
                a("v_lshl_add_u32 v8, v9, 3, v8")
            else: a("v_and_b32 v8, 0x1f0, v1")
            self.emit(self.split_pair(58, 56, 57))
            self.vm(f"buffer_store_dwordx2 v[58:59], v8, {SRD(WS)}, s{sPCS} offen sc1", "pst")
        return [rd] + [lambda i=i: st(i) for i in range(8)] + [cs]

    T13U = {0: (4, 5), 1: (6, 7), 2: (8, 0), 3: (1, 2), 4: (3, 9), 5: (4, 5), 6: (6, 7)}
    C2U = {0: (8, 0), 1: (1, 2), 2: (3, 9), 3: (4, 5), 4: (6, 7), 5: (8, 0), 6: (1, 2)}

    def ks_bases(self, b):
        L = [f"s_mul_i32 s{sT0}, s{sKH}, 12288", f"s_lshl_b32 s{sT1}, s{sKH}, 12", f"s_add_u32 s{sT1}, s{sT1}, 4096",
             f"v_add_u32 v{b}, s{sT0}, v{self.VP}", f"v_add_u32 v{b+3}, s{sT1}, v{self.VP}"]
        for k in (1, 2): L += [f"v_add_u32 v{b+k}, {65536*k}, v{b}", f"v_add_u32 v{b+3+k}, {65536*k}, v{b+3}"]
        return L
    def res_load(self, R):
        self.vm(f"buffer_load_dwordx4 {vr(R,4)}, v{self.VS}, {SRD(WS)}, s{sKT} offen sc1", "res")
        self.vm(f"buffer_load_dwordx4 {vr(R+4,4)}, v{self.VS}, {SRD(WS)}, s{sKT} offen offset:1024 sc1", "res")
        self.vm(f"buffer_load_dword v{R+8}, v1, {SRD(WS)}, s{sKS} offen sc1")
    def swp(self, r):
        return [f"v_permlane32_swap_b32 v{r+i}, v{r+2+i}" for i in range(2)] if self.m16 else []
    def res_unpack(self, R, AA):
        L = self.swp(R) + self.swp(R + 4)
        for i in range(8): L += [f"v_lshlrev_b32 v{AA+2*i}, 16, v{R+i}", f"v_and_b32 v{AA+2*i+1}, 0xffff0000, v{R+i}"]
        return L

    def ks_finish(self, AA, AB, P, final_branch, res=None):
        a = self.a
        for q in range(4): a(f"ds_write_b128 v14, {vr(AB+4*q,4)} offset:{q*1024}")
        if res is not None:
            for i in range(0, 16, 2): a(f"v_pk_add_f32 {vr(AA+i,2)}, {vr(AA+i,2)}, {vr(res+i,2)}")
        a("s_waitcnt lgkmcnt(0)")
        a("s_barrier")
        for q in range(4): a(f"ds_read_b128 {vr(AB+4*q,4)}, v15 offset:{q*1024}")
        def st(u):
            self.emit(self.swp(P + 4 * u))
            self.vm(f"buffer_store_dwordx4 {vr(P+4*u,4)}, v{self.VS}, {SRD(WS)}, s{sKT} offen offset:{1024*u}")
        for q in range(4):
            a(f"s_waitcnt lgkmcnt({3-q})")
            for i in (0, 2): a(f"v_pk_add_f32 {vr(AA+4*q+i,2)}, {vr(AA+4*q+i,2)}, {vr(AB+4*q+i,2)}")
            for i in range(2): a(f"v_cvt_pk_bf16_f32 v{P+2*q+i}, v{AA+4*q+2*i}, v{AA+4*q+2*i+1}")
            if q == 2 and not final_branch: st(0)
        if final_branch:
            a(f"s_cmp_lg_u32 s{sLAY}, 0")
            a("s_cbranch_scc1 L_final")
            st(0)
        st(1)
        groups = [[0, 2, 8, 10], [4, 6, 12, 14]] if self.m16 else [list(range(0, 16, 2))]
        for k, gr in enumerate(groups):
            S, Q = AB + 4 * k, AB + 4 * k + 2
            a(f"v_pk_add_f32 {vr(S,2)}, {vr(AA+gr[0],2)}, {vr(AA+gr[1],2)}")
            a(f"v_pk_mul_f32 {vr(Q,2)}, {vr(AA+gr[0],2)}, {vr(AA+gr[0],2)}")
            a(f"v_pk_fma_f32 {vr(Q,2)}, {vr(AA+gr[1],2)}, {vr(AA+gr[1],2)}, {vr(Q,2)}")
            for i in gr[2:]:
                a(f"v_pk_add_f32 {vr(S,2)}, {vr(S,2)}, {vr(AA+i,2)}")
                a(f"v_pk_fma_f32 {vr(Q,2)}, {vr(AA+i,2)}, {vr(AA+i,2)}, {vr(Q,2)}")
            a(f"v_add_f32 v{S}, v{S}, v{S+1}")
            a(f"v_add_f32 v{Q}, v{Q}, v{Q+1}")
        for k in range(len(groups)): a(f"v_permlane32_swap_b32 v{AB+4*k}, v{AB+4*k+2}")
        for k in range(len(groups)): a(f"v_add_f32 v{AB+4*k}, v{AB+4*k}, v{AB+4*k+2}")
        if self.m16:
            a(f"v_permlane16_swap_b32 v{AB}, v{AB+4}")
            a(f"v_add_f32 v{AB}, v{AB}, v{AB+4}")
        self.vm(f"buffer_store_dword v{AB}, v1, {SRD(WS)}, s{sKS} offen")
    def scr_addr(self):
        return [f"s_lshl_b32 s{sT0}, s{sW}, 12", f"s_add_u32 s{sT0}, s{sT0}, {U(9)}", f"v_add_u32 v14, s{sT0}, v1", "v_xor_b32 v15, 8192, v14"]
    def x_flag_addr(self, r, t, sreg, extra=None):
        return [f"v_and_b32 v{r}, 7, v0", f"v_lshlrev_b32 v{r}, 5, v{r}", f"v_and_b32 v{t}, 8, v0",
                lambda: self.sx(sT0, 0, (sreg, 256, 1), (sreg, 4, 0, 1)), f"v_add3_u32 v{r}, v{r}, v{t}, s{sT0}"]

    CSR = [80, 84, 88, 8, 120, 8, 8]; CST = 172
    def cs_load(self, c): return self.fload(self.CSR[c], sUC, c * 1024, ("cs", c), tmp=sT4)

    def wo(self):
        a = self.a
        AA, AB, RING, X, R, B = 32, 48, 208, 128, 192, 2
        WD = self.o("ww", 8)
        if self.m16:
            a("v_and_b32 v12, 0x300, v1")
            a(f"v_add_u32 v{self.VP}, v12, v1")
            a(f"v_and_b32 v{self.VS}, 0x2f0, v{self.VP}")
            a("v_lshrrev_b32 v12, 5, v0")
            a(f"v_lshl_add_u32 v{self.VS}, v12, 8, v{self.VS}")
        self.emit(self.ks_bases(B))
        self.emit(self.scr_addr())
        a("v_and_b32 v12, 15, v0")
        self.sx(sT0, 0, (sKH, 512), (sTL, 4, 1))
        a(f"v_lshl_add_u32 v12, v12, 5, s{sT0}")
        a(f"v_add_u32 v16, {MBX}, v1")
        a(f"v_add_u32 v17, {MBX}, v{self.VS}")
        a(f"v_lshl_add_u32 v17, s{sW}, 11, v17")
        if self.o("cprio", 0): a(f"s_setprio {self.o('cprio', 0)}")
        self.publish(26, C_O, tag="o")
        a("s_barrier")
        self.stamp("attn done")
        self.dq.clear(); self.forget()
        init, per = self.ramp([(i - (i & self.m16), self.aload(X + 4 * i, sOS, 0, i, ("x", i))) for i in range(16)], 16, self.o("w0", 5), WD)
        items = self.ks_items(16, lambda i: U(i >> 2) + (i & 3) * 1024, B, AA, AB, lambda k: X + 4 * k, "x", False)
        for i in range(16): items[2 * i + 1]["post"] = list(per.get(i, []))
        self.poll_issue(12, 13)
        for u in range(2): self.ds(f"ds_read_b128 {vr(R+4*u,4)}, v17 offset:{5120+1024*u}", "res")
        for c in range(5): self.ds(f"ds_read_b128 {vr(self.CSR[c],4)}, v16 offset:{1024*c}", "cs")
        self.stream_begin(items, 8, RING)
        self.wait(ds="res")
        self.emit(self.res_unpack(R, AA))
        self.wait(ds="cs")
        a("s_barrier")
        self.poll_check(12, 13, C_O)
        self.stamp("wo polled")
        self.emit(init)
        self.stream_run()
        self.ks_finish(AA, AB, 20, False)

    def up(self):
        a = self.a
        X = 128; ACC = [16, 32, 48, 64, 80]; RING = 96; D = 6; TM = 120
        MU, CS, EA, EC, PA, PT = 4, 8, 12, 13, 14, 15
        W = (self.VP, 2, 3); EA1, EC1 = (126, 127) if self.m16 else (EA, EC)
        WD = self.o("uw", 12)
        self.sx(sT1, 0, (sJ, 4, 4), (sW, 1))
        self.emit(self.x_flag_addr(PA, PT, sT1))
        a(f"v_add_u32 v2, 0x10000, v{self.VP}")
        a(f"v_add_u32 v3, 0x20000, v{self.VP}")
        self.publish(PT, C_X1)
        self.stamp("wo done")
        self.forget()
        CSR, csl = self.CSR, self.cs_load
        xl = lambda i: self.aload(X + 4 * i, sUX, 0, i, ("x", i))
        STT = ACC[3]
        seq = [(i - (i & self.m16), xl(i)) for i in range(32)]
        for q in range(4): seq.insert(10 + 2 * q, (10 + q, self.fload(STT + 4 * q, sUS, q * 1024, "st", tmp=sT2)))
        init, per = self.ramp(seq, 32, self.o("u0", 4), WD)
        def epi(c, acc):
            L = []
            for h, ea, ec in ((0, EA, EC), (4, EA1, EC1)):
                g, u = acc + h, acc + 8 + h
                for i in range(4): L += [f"v_mul_f32 v{TM+i}, v{ea}, v{g+i}", f"v_exp_f32 v{TM+i}, v{TM+i}", f"v_mul_f32 v{u+i}, v{g+i}, v{u+i}"]
                for i in range(4):
                    L += [f"v_fma_f32 v{TM+i}, v{TM+i}, v{ec}, v{ec}", f"v_rcp_f32 v{TM+i}, v{TM+i}"]
                    if i: L.append(f"v_mul_f32 v{u+i-1}, v{TM+i-1}, v{u+i-1}")
                L.append(f"v_cvt_pk_bf16_f32 v{acc+h//2}, v{u}, v{u+1}")
                L.append(f"v_mul_f32 v{u+3}, v{TM+3}, v{u+3}")
                L.append(f"v_cvt_pk_bf16_f32 v{acc+h//2+1}, v{u+2}, v{u+3}")
            L.append(f"s_add_u32 s{sT3}, s{sHD}, {c*16384}")
            L += self.swp(acc)
            if "s" not in self.opt.get("ko", ""): L.append(lambda: self.vm(f"buffer_store_dwordx4 {vr(acc,4)}, v{self.VS}, {SRD(WS)}, s{sT3} offen", ("h", c)))
            if "e" in self.opt.get("ko", ""): L = L[-3:]
            return L
        items = []; c0 = 0; start = []; LB = self.o("lb", 1)
        acc = lambda c: vr(ACC[c % 5], 16)
        def corr(c, first):
            if not self.m16: return dict(vm=("cs", c), mfma=lambda r: f"v_mfma_f32_32x32x16_bf16 {acc(c)}, {vr(CSR[c],4)}, {vr(MU,4)}, {'0' if first else acc(c)}")
            d = lambda k: vr(ACC[c % 5] + 4 * k, 4)
            return dict(vm=("cs", c), mfma=lambda r: "\n".join(f"v_mfma_f32_16x16x16_bf16 {d(k)}, {vr(CSR[c]+(k&2),2)}, {vr(MU+2*(k&1),2)}, {'0' if first else d(k)}" for k in range(4)))
        for pi, n in enumerate((3, 2, 1, 1)):
            tiles = list(range(c0, c0 + n)); c0 += n
            start.append(len(items))
            if pi:
                for c in tiles: items.append(corr(c, True))
                if pi < 3: items[-1]["post"] = [csl(c0)]
            for ks in range(32):
                for c in tiles:
                    addr = U(self.T13U[c][ks >> 4]) + (ks & 15) * 1024
                    it = self.mm(ACC[c % 5], addr, W, ks, lambda k: X + 4 * k, pi == 0)
                    if (ks == 0 or (ks == 16 and pi < 2)) and c == tiles[0]: it["late" if LB and (pi or ks) else "bar"] = True
                    if pi == 0 and c == 0: self.xwait(it, "x", ks)
                    if pi == 0 and c < 2: it["post"] = list(per.get(ks, [])[c::2])
                    items.append(it)
                if pi == 0 and ks == 27:
                    for c in tiles: items.append(corr(c, False))
        start.append(len(items))
        st = [lambda: self.wait(vm="st")] + self.stats_ops(STT, MU, EA, EC) + [f"v_mul_f32 v{EA}, {hex(f2u(-LOG2E))}, v{EA}"]
        if self.m16:
            st += [f"v_mov_b32 v{EC1}, v{EC}", f"v_mov_b32 v{EA1}, v{EA}", f"v_permlane16_swap_b32 v{MU}, v{MU+2}", f"v_permlane16_swap_b32 v{MU+1}, v{MU+3}",
                   f"v_permlane16_swap_b32 v{EC}, v{EC1}", f"v_permlane16_swap_b32 v{EA}, v{EA1}"]
        self.spread(items, 45, 80, st)
        lo = 5
        self.spread(items, start[1] + lo, start[2], epi(0, ACC[0]) + epi(1, ACC[1]) + epi(2, ACC[2]))
        e34 = epi(3, ACC[3]) + epi(4, ACC[4]); nsplit = start[3] + self.o("e4", 13)
        self.spread(items, start[2] + lo, nsplit, e34)
        AA, AB, R, B = 48, 64, 80, 4
        DW = self.o("dw", 8)
        hl = lambda i: self.aload(X + 4 * (i % 32), sHS, (i >> 3) * 16384, i & 7, ("y", i))
        p4 = start[3] + 1
        def ins(k, fs, front=False):
            L = items[k].setdefault("post", [])
            if front: L[:0] = fs
            else: L.extend(fs)
        for pi, c in ((2, 1), (3, 2))[self.o("mg", 0):]: items[start[pi] + 1]["barvm"] = ("h", c)
        k0 = 31 - self.o("dw0", DW)
        ins(p4 + k0 - 4, self.ks_bases(B))
        ins(start[1] + 2, ["v_and_b32 v14, 7, v0", lambda: self.sx(sT0, 16, (sJ, 512, 4), (sKH, 256)), f"v_lshl_add_u32 v14, v14, 5, s{sT0}"])
        ins(p4 + self.o("l0", 10), [lambda: self.poll_issue(PA, PT)], True)
        ins(p4 + k0, [lambda: self.poll_check(PA, PT, C_H + self.o("mg", 0))], True)
        assert DW == 8
        init2, per2 = self.ramp([(i, hl(i)) for i in range(56)], 56, 31 - k0, DW)
        for i, f in enumerate(init2): ins(p4 + k0 + 1 + i, [f], True)
        d0 = len(items)
        items += self.ks_items(56, lambda i: U(self.C2U[i >> 3][(i >> 2) & 1]) + (i & 3) * 1024, B, AA, AB, lambda k: X + 4 * (k % 32), "y", True)
        for i in range(56):
            it = items[d0 + 2 * i]
            if i in (0, 16, 32, 40): it["late" if LB else "bar"] = True
            if i in (0, 16): it["barvm"] = ("h", 6 if i else 4)
            it = items[d0 + 2 * i + 1]
            it["post"] = []
            lv = {8: 1, 16: 2, 32: 3}
            if self.o("mg", 0): del lv[8]
            if i in lv: it["post"].append(lambda k=lv[i]: self.poll_check(PA, PT, C_H + k))
            if i + 8 in lv: it["post"].append(lambda: self.poll_issue(PA, PT))
            it["post"] += per2.get(i, [])
            if i == 20: it["post"].append(lambda: self.res_load(R))
            if i == 42: it["post"] += self.scr_addr()
        e5 = d0 + self.o("e5", 0)
        self.spread(items, nsplit, e5, epi(5, ACC[0]))
        self.spread(items, max(e5, d0 + 3), d0 + self.o("e6", 17), epi(6, ACC[1]))
        self.spread(items, d0 + 66, d0 + 82, [lambda: self.wait(vm='res')] + self.res_unpack(R, ACC[1]))
        self.stream_begin(items, D, RING)
        self.poll(PA, PT, C_X1)
        self.stamp("up polled")
        self.emit(init)
        self.kop = "p" in self.opt.get("ko", "")
        self.stream_run(self.o("pair", 2))
        self.kop = False
        self.stamp("down main")
        self.ks_finish(AA, AB, 20, True, res=ACC[1])

    def final(self):
        a = self.a
        a.label("L_final")
        self.srd(SB, P_OUT, 2 * MB)
        a("v_and_b32 v14, 31, v0")
        a("v_lshlrev_b32 v14, 10, v14")
        a("v_lshrrev_b32 v15, 5, v0")
        a("v_lshl_add_u32 v14, v15, 4, v14")
        for b in (20, 24):
            a(f"v_permlane{16 if self.m16 else 32}_swap_b32 v{b}, v{b+2}")
            a(f"v_permlane{16 if self.m16 else 32}_swap_b32 v{b+1}, v{b+3}")
        a(f"buffer_store_dwordx4 v[20:23], v14, {SRD(SB)}, s{sOUT} offen {['', 'sc1', 'nt', 'sc1 nt'][self.o('op', 0)]}")
        a(f"buffer_store_dwordx4 v[24:27], v14, {SRD(SB)}, s{sOUT} offen offset:32 {['', 'sc1', 'nt', 'sc1 nt'][self.o('op', 0)]}")
        self.stamp("end")
        if "hold" in self.opt:
            if self.o("hold", 8) < 8:
                a(f"s_cmp_lg_u32 s{sG}, {self.o('hold', 8)}")
                a("s_cbranch_scc1 L_exit")
            if self.o("holdwb", 0):
                a("s_waitcnt vmcnt(0)")
                a("buffer_wbl2 sc1")
                a("s_waitcnt vmcnt(0)")
            a(f"s_mov_b32 s{sT1}, 0")
            if "pt" in self.opt:
                a(f"s_sub_u32 s{sT1}, s{sTS}, s{sE0 if self.o('ptc', 0) else sE1}")
                if self.o("ptc", 0): a(f"s_lshr_b32 s{sT1}, s{sT1}, 4")
                a(f"s_min_u32 s{sT1}, s{sT1}, 100000")
            a(f"s_add_u32 s{sT1}, s{sT1}, 10000")
            a.label("L_hold")
            a(f"s_memrealtime s[{sTR}:{sTR+1}]")
            a("s_waitcnt lgkmcnt(0)")
            a(f"s_sub_u32 s{sT0}, s{sTR}, s{sE1}")
            a(f"s_cmp_lt_u32 s{sT0}, s{sT1}")
            a("s_cbranch_scc1 L_hold")
        a.label("L_exit")
        a("s_endpgm")

    def build(self):
        a = self.a
        self.tails = []; self.tails2 = []
        self.entry()
        self.qkv1()
        s0 = self.seq; self.seq = []
        self.attention(); self.wo(); self.up()
        s1 = self.seq; self.seq = []
        self.qkv2()
        s2 = self.seq; self.seq = []
        self.final()
        cseq = s0 + s1 + s2 + s1 + self.seq; self.seq = []
        self.inL = True
        self.start_loader()
        for layer in range(2):
            self.side(layer); self.loader(layer)
        lseq = self.seq
        self.fallback()
        self.publish_tails()
        a.label("L_end")
        body = a.finish()
        refp = "cdna_kernels/" + NAME + ".s.ref"
        hdr = open(refp).read().split("; Override launch")[0] if os.path.exists(refp) else ""
        txt = hdr + f"; @launch grid=(256,1,1) block=(512,1,1) lds={LDS_TOTAL}\n"
        if self.stamps: txt += "; cseq " + "|".join(cseq) + "\n; lseq " + "|".join(lseq) + "\n"
        txt += f""".amdgcn_target "amdgcn-amd-amdhsa--gfx950"
.text
.globl {NAME}_kernel
.p2align 8
.type {NAME}_kernel,@function
{NAME}_kernel:
{body}.section .rodata,"a"
.p2align 6
.amdhsa_kernel {NAME}_kernel
  .amdhsa_next_free_vgpr 256
  .amdhsa_next_free_sgpr 98
  .amdhsa_accum_offset 256
  .amdhsa_group_segment_fixed_size 0
  .amdhsa_kernarg_size 80
  .amdhsa_user_sgpr_count 2
  .amdhsa_user_sgpr_kernarg_segment_ptr 1
  .amdhsa_system_sgpr_workgroup_id_x 1
.end_amdhsa_kernel
"""
        return txt

def from_spec(spec):
    opt = dict((kv.split('=') + ['1'])[:2] for kv in spec.split(',') if kv)
    return Gen(stop=opt.pop("stop", None), stamps=bool(opt.pop("stamps", 0)), force_slow=bool(opt.pop("slow", 0)),
               force_fallback=bool(opt.pop("fallback", 0)), remap=bool(opt.pop("remap", 0)), opt=opt).build()

if __name__ == "__main__":
    out = sys.argv[2] if len(sys.argv) > 2 else "cdna_kernels/" + NAME + ".s"
    open(out, "w").write(from_spec(sys.argv[1].lstrip(":") if len(sys.argv) > 1 else ""))
```

```python
import sys, math, struct, os
from asmlib import *

NAME = "interleave_layers__softmax_full_mha__glu_gated_swiglu__prompt"
MB = 1 << 20; KB = 1 << 10
XF = 0
HF = 2 * MB
ST = 9 * MB
PWO = 9 * MB + 512 * KB
PW13 = 10 * MB
CS13 = 13 * MB + 512 * KB
PW2 = 14 * MB
KVG = 16 * MB; KV_STR = 4 * MB
FL = 24 * MB; FL_STR = 16 * KB
HT = 112 * 1024
F_LF, F_SF, F_KV = 0, 1024, 4096
TSB = 25 * MB
WS_USED = 27 * MB
OOB = 0x7ff00000
D_GRDY, D_SHOUT = 0, 128
U = lambda i: i * 16384
LDS_TOTAL = 163840
TSTR = 2064; SLOT = 8 * TSTR; KVB = LDS_TOTAL - 2 * SLOT
KV2 = KVB - 128 - SLOT
SLOTA = (KVB, KVB + SLOT, KV2)
SLICE = U(3)
WRING = 65536; WSTG = 24576
QA = U(2)
MBX = U(8)
VRD = KVB - 96
KSL = KVB - 64; LSY = KVB - 32; MODE = KVB - 28
WS, SA, SB, DBG = 4, 8, 12, 16
P_X, P_WQKV, P_WO, P_BX, P_W1, P_W3, P_W2, P_OUT, P_DBG, P_WS = 20, 22, 24, 26, 28, 30, 32, 34, 36, 38
sG, sJ, sW, sXCC, sLAY, sSLOW, sTMO, sFB, sMYF, sCODE = range(40, 50)
sT0, sT1, sT2, sT3, sT4, sT5, sT6, sT7 = range(50, 58)
sFG, sKVH, sKVA = 58, 59, 60
sQX, sQS, sOD, sKG, sQL, sKT, sKS, sOS, sHS, sOUT, sUX, sUS, sUC, sHD, sKH, sTL = range(61, 77)
sKVF, sL, s13, s2_, sWOs, sQ, sPD, sPA, sPB, sPCS, sPSTR, sTCH, sREM = range(61, 74)
sTSI = 77
sEX = 78; sHI = 80; sN16 = 82; sRDY = 84; sBAD = 86; sLO = 86
sTS = 88; sTR = 90; sE0 = 92; sE1 = 94; sPC = 96; sROLE = 3
C_Q, C_O, C_X1, C_X2 = 1, 2, 3, 4
C_H = 2
sKL = sXCC
LOG2E = 1.4426950408889634
def f2u(x): return struct.unpack("<I", struct.pack("<f", x))[0]
TBOUND = 48.0
SIG = 0.25 * LOG2E
cost = lambda t: 0 if callable(t) else (8 if t.split()[0] in TRANS else 4)
SRD = lambda r: f"s[{r}:{r+3}]"

class Gen:
    def __init__(self, stop=None, stamps=False, force_slow=False, force_fallback=False, remap=False, opt=None):
        self.a = Asm(); self.stop = stop; self.stamps = stamps
        self.force_slow = force_slow; self.force_fallback = force_fallback
        self.remap = remap; self.opt = opt or {}
        self.dst = []
        self.vq = []; self.dq = []
        self.wpol = ['sc1', '', 'sc0'][self.o('wp', 0)]
        self.NS = self.o('ns', 2)
        self.inL = False; self.m16 = self.o('m16', 1)
        self.VP, self.VS = (124, 125) if self.m16 else (1, 1)
        self.thr = 0; self.kop = False; self.seen = set()
        self.RAW = 0; self.dg = self.o('dg', 2)
        self.seq = []
    def o(self, k, d): return int(self.opt.get(k, d))

    def vm(self, text, tag=None):
        self.a(text); self.vq.append(tag); self.seen.add(tag)
    def ds(self, text, tag=None):
        self.a(text); self.dq.append(tag)
    def _wait(self, q, tag, name, mx):
        if tag not in q: return None
        i = len(q) - 1 - q[::-1].index(tag)
        n = min(len(q) - 1 - i, mx)
        del q[:len(q) - n]
        return f"{name}({n})"
    def wait(self, vm=None, ds=None):
        w = []
        if vm == "all": w.append("vmcnt(0)"); self.vq.clear()
        elif vm is not None: w.append(self._wait(self.vq, vm, "vmcnt", 63))
        if ds == "all": w.append("lgkmcnt(0)"); self.dq.clear()
        elif ds is not None: w.append(self._wait(self.dq, ds, "lgkmcnt", 15))
        w = [x for x in w if x]
        if w: self.a("s_waitcnt " + " ".join(w))
    def emit(self, L):
        for t in L:
            if callable(t): t()
            else: self.a(t)

    def stamp(self, name):
        if "pt" in self.opt and self.opt["pt"].split("@")[0].replace("_", " ") == name and not self.inL:
            L = self.a.newlabel("pt")
            self.a(f"s_cmp_lg_u32 s{sLAY}, {self.opt['pt'].split('@')[1]}")
            self.a(f"s_cbranch_scc1 {L}")
            self.a(f"{'s_memtime' if self.o('ptc', 0) else 's_memrealtime'} s[{sTS}:{sTS+1}]")
            self.a("s_waitcnt lgkmcnt(0)")
            self.a.label(L)
        if not self.stamps: return
        a = self.a
        self.seq.append(name)
        a(f"s_memtime s[{sTS}:{sTS+1}]")
        a(f"s_memrealtime s[{sTR}:{sTR+1}]")
        a("s_waitcnt lgkmcnt(0)")
        a(f"v_mov_b32 v18, s{sTS}")
        a(f"v_mov_b32 v19, s{sTR}")
        a("s_mov_b64 exec, 1")
        self.vm(f"buffer_store_dwordx2 v[18:19], off, {SRD(WS)}, s{sTSI}")
        a("s_mov_b64 exec, -1")
        a(f"s_add_u32 s{sTSI}, s{sTSI}, 8")
        self.dq.clear()
    def dstamp(self, name, base):
        if not self.stamps: return
        k = len(self.dst); self.dst.append((name, base + 2 * k))
        self.a(f"s_memtime s[{sTS}:{sTS+1}]")
        self.a(f"s_memrealtime s[{sTR}:{sTR+1}]")
        self.a("s_waitcnt lgkmcnt(0)")
        self.a(f"v_mov_b32 v{base+2*k}, s{sTS}")
        self.a(f"v_mov_b32 v{base+2*k+1}, s{sTR}")
    def dflush(self):
        if not self.stamps: return
        a = self.a
        a("s_mov_b64 exec, 1")
        for name, r in self.dst:
            a(f"buffer_store_dwordx2 v[{r}:{r+1}], off, {SRD(WS)}, s{sTSI}")
            self.seq.append(name)
            a(f"s_add_u32 s{sTSI}, s{sTSI}, 8")
        a("s_mov_b64 exec, -1")
        self.dst = []

    def srd(self, d, p, size):
        a = self.a
        a(f"s_mov_b32 s{d}, s{p}")
        a(f"s_and_b32 s{d+1}, s{p+1}, 0xffff")
        a(f"s_mov_b32 s{d+2}, {size}")
        a(f"s_mov_b32 s{d+3}, 0x20000")

    def sx(self, dst, const, *terms):
        a = self.a
        first = True
        for tm in terms:
            r, mul = tm[0], tm[1]; shr = tm[2] if len(tm) > 2 else 0; mask = tm[3] if len(tm) > 3 else None
            t = dst if first else sT7
            assert r != dst or first
            cur = r
            if shr: a(f"s_lshr_b32 s{t}, s{cur}, {shr}"); cur = t
            if mask is not None: a(f"s_and_b32 s{t}, s{cur}, {mask}"); cur = t
            if mul != 1:
                if mul & (mul - 1) == 0: a(f"s_lshl_b32 s{t}, s{cur}, {mul.bit_length()-1}")
                else: a(f"s_mul_i32 s{t}, s{cur}, {mul}")
                cur = t
            if first:
                if cur != dst: a(f"s_mov_b32 s{dst}, s{cur}")
            else: a(f"s_add_u32 s{dst}, s{dst}, s{cur}")
            first = False
        if const: a(f"s_add_u32 s{dst}, s{dst}, {const}")

    def aload(self, dst, base, blk, i, tag):
        off = (i >> 1) * 2048 + (i & 1) * 256 if self.m16 else i * 1024
        return self.fload(dst, base, blk + off, tag, tmp=sT5, va=self.VP)
    def mm(self, acc, addr, bases, ks, xr, zero):
        if not self.m16:
            return dict(read=(bases[addr >> 16], addr & 0xffff),
                        mfma=lambda r: f"v_mfma_f32_32x32x16_bf16 {vr(acc,16)}, {vr(r,4)}, {vr(xr(ks),4)}, {'0' if zero and ks == 0 else vr(acc,16)}")
        b = ks & 1; addr += b * (256 - 1024)
        f = lambda a: (lambda r: f"v_mfma_f32_16x16x32_bf16 {vr(acc+8*b+4*a,4)}, {vr(r,4)}, {vr(xr(ks-b+a),4)}, {'0' if zero and ks < 2 else vr(acc+8*b+4*a,4)}")
        return dict(read=(bases[addr >> 16], addr & 0xffff), mfma=f(0), mfma2=f(1))
    def xwait(self, it, tag, ks):
        if not self.m16: it["vm"] = (tag, ks)
        elif ks % 2 == 0: it["vm"] = (tag, ks); it["vm2"] = (tag, ks + 1)
    def ks_items(self, n, addr, B, AA, AB, xr, tag, zeroA):
        items = []
        bA, bB = (B, B + 1, B + 2), (B + 3, B + 4, B + 5)
        for i in range(0, n, 2):
            mk = lambda acc, bs, k, z: self.mm(acc, addr(k), bs, k, xr, z)
            q = [mk(AB, bB, i, True), mk(AA, bA, i, zeroA), mk(AB, bB, i + 1, True), mk(AA, bA, i + 1, zeroA)]
            self.xwait(q[0], tag, i); self.xwait(q[2], tag, i + 1)
            if self.m16: q = [q[0], q[2], q[1], q[3]]
            items += q
        return items

    def fload(self, dst, base, off, tag, tmp=sT7, flags="sc1", va=1):
        def f():
            key = (base, off >> 12)
            if getattr(self, "_tmpkey", {}).get(tmp) != key:
                self.a(f"s_add_u32 s{tmp}, s{base}, {off & ~4095}")
                self._tmpkey = dict(getattr(self, "_tmpkey", {})); self._tmpkey[tmp] = key
            self.vm(f"buffer_load_dwordx4 {vr(dst,4)}, v{va}, {SRD(WS)}, s{tmp} offen offset:{off & 4095} {flags}", tag)
        return f
    def forget(self): self._tmpkey = {}

    def dma(self, ldsb, ldsc, src, srcc, idx, tag=None, pol=None):
        a = self.a
        if pol is None: pol = self.wpol
        a(f"s_add_u32 m0, s{ldsb}, {ldsc}")
        a(f"s_add_u32 s{sT7}, s{src}, {srcc}")
        for i in idx:
            if self.thr and len(self.vq) >= self.thr:
                a(f"s_waitcnt vmcnt({self.thr - 1})"); del self.vq[:len(self.vq) - self.thr + 1]
            self.vm(f"buffer_load_dwordx4 v1, {SRD(WS)}, s{sT7} offen offset:{i*1024} {pol} lds", tag)

    def spin(self, body):
        a = self.a
        L, D = a.newlabel("spin"), a.newlabel("spind")
        a.label(L)
        body()
        a(f"s_cbranch_vccz {D}")
        a(f"s_sub_u32 s{sTMO}, s{sTMO}, 1")
        a(f"s_cbranch_scc0 {L}")
        a(f"s_mov_b32 s{sTMO}, 0")
        a.label(D)

    def poll(self, vaddr, vtmp, code):
        a = self.a
        a(f"s_add_u32 s{sT6}, s{sCODE}, {code}")
        def body():
            a(f"buffer_load_dword v{vtmp}, v{vaddr}, {SRD(WS)}, s{sFB} offen sc1")
            a("s_waitcnt vmcnt(0)")
            a(f"v_cmp_gt_u32 vcc, s{sT6}, v{vtmp}")
        self.spin(body)
        self.vq.clear()
        self.acquire()
    def poll_issue(self, vaddr, vtmp):
        if self.kop: return
        self.vm(f"buffer_load_dword v{vtmp}, v{vaddr}, {SRD(WS)}, s{sFB} offen sc1", "poll")
    def poll_check(self, vaddr, vtmp, code):
        if self.kop: return
        a = self.a
        D = a.newlabel("pc")
        a(f"s_add_u32 s{sT6}, s{sCODE}, {code}")
        self.wait(vm="poll")
        a(f"v_cmp_gt_u32 vcc, s{sT6}, v{vtmp}")
        a(f"s_or_b32 vcc_lo, vcc_lo, s{sSLOW}")
        a(f"s_cbranch_scc0 {D}")
        q = list(self.vq)
        self.poll(vaddr, vtmp, code)
        self.vq = q
        a.label(D)

    def acquire(self):
        a = self.a
        F = a.newlabel("acq")
        a(f"s_cmp_eq_u32 s{sSLOW}, 0")
        a(f"s_cbranch_scc1 {F}")
        a("buffer_inv sc1")
        a("s_waitcnt vmcnt(0)")
        a.label(F)

    def publish(self, vtmp, code, tag="all"):
        if self.kop: return
        a = self.a
        S, D = a.newlabel("pubs"), a.newlabel("pubd")
        a(f"s_add_u32 s{sT6}, s{sCODE}, {code}")
        a(f"v_mov_b32 v{vtmp}, s{sT6}")
        a("s_mov_b64 exec, 1")
        a(f"s_cmp_lg_u32 s{sSLOW}, 0")
        a(f"s_cbranch_scc1 {S}")
        self.wait(vm=tag)
        self.vm(f"buffer_store_dword v{vtmp}, off, {SRD(WS)}, s{sMYF}")
        self.tails.append((S, D, vtmp))
        a.label(D)
        a("s_mov_b64 exec, -1")
    def publish_tails(self):
        a = self.a
        for S, D, vtmp in self.tails:
            a.label(S)
            a("s_waitcnt vmcnt(0)")
            a("buffer_wbl2 sc1")
            a("s_waitcnt vmcnt(0)")
            a(f"buffer_store_dword v{vtmp}, off, {SRD(WS)}, s{sMYF} sc1")
            a(f"s_branch {D}")

    def split_pair(self, dst, c, tmp):
        return [f"v_cvt_pk_bf16_f32 v{dst}, v{c}, v{c}", f"v_and_b32 v{tmp}, 0xffff0000, v{dst}",
                f"v_sub_f32 v{tmp}, v{c}, v{tmp}", f"v_cvt_pk_bf16_f32 v{dst+1}, v{tmp}, v{tmp}"]

    def stats_ops(self, st, mu4, rstd, vare):
        L = []
        for k in (8, 4, 2, 1):
            for i in range(k):
                L.append(f"v_add_f32 v{st+i}, v{st+i}, v{st+i+k}")
        t0 = st + 3
        L.append(f"v_mov_b32 v{st+1}, v{st}")
        L.append(f"v_mov_b32 v{st+2}, {hex(f2u(1.0/512))}")
        L.append(f"v_permlane32_swap_b32 v{st}, v{st+1}")
        L.append(f"v_mul_f32 v{st}, {hex(f2u(-1.0/512))}, v{st}")
        L.append(f"v_mul_f32 v{t0}, v{st}, v{st}")
        L.append(f"v_fma_f32 v{vare}, v{st+1}, v{st+2}, -v{t0}")
        L.append(f"v_cvt_pk_bf16_f32 v{t0}, v{st}, v{st}")
        L.append(f"v_max_f32 v{vare}, 0, v{vare}")
        L.append(f"v_and_b32 v{t0}, 0xffff0000, v{t0}")
        L.append(f"v_add_f32 v{vare}, {hex(f2u(1e-5))}, v{vare}")
        L.append(f"v_sub_f32 v{t0}, v{st}, v{t0}")
        L.append(f"v_rsq_f32 v{rstd}, v{vare}")
        for i in range(4): L.append(f"v_cvt_pk_bf16_f32 v{mu4+i}, v{st}, v{t0}")
        return L

    def spread(self, items, lo, hi, fill):
        tot = sum(map(cost, fill)); n = hi - lo; k = 0; acc = 0
        for m in range(n):
            while k < len(fill) and (acc + cost(fill[k]) / 2 <= tot * (m + 1) / n or m == n - 1):
                items[lo + m].setdefault("post", []).append(fill[k]); acc += cost(fill[k]); k += 1

    def stream_begin(self, items, D, ring):
        self.S = dict(items=items, D=D, issued=0)
        rd = [i for i in range(len(items)) if items[i].get("read")]
        self.S.update(rd=rd, slot={i: ring + 4 * (k % D) for k, i in enumerate(rd)}, pos={i: k for k, i in enumerate(rd)})
        self._try(D, 0)
    def _try(self, limit, consumed):
        S = self.S; items, rd = S["items"], S["rd"]
        while S["issued"] < min(limit, len(rd)):
            i = rd[S["issued"]]
            if items[i].get("bar"):
                if S["issued"] - consumed > S["D"] // 2: return
                bv = items[i].get("barvm")
                assert bv is None or bv in self.seen, bv
                self.wait(vm=bv, ds="all")
                self.a("s_barrier")
                items[i]["bar"] = False
            va, off = items[i]["read"]
            self.ds(f"ds_read_b128 {vr(S['slot'][i],4)}, v{va} offset:{off}", ("rd", S["issued"]))
            S["issued"] += 1
    def stream_run(self, pair=2):
        S = self.S; items = S["items"]
        for i, it in enumerate(items):
            if it.get("late"):
                bv = it.get("barvm")
                assert bv is None or bv in self.seen, bv
                self.wait(vm=bv)
                self.a("s_barrier")
            self.emit(it.get("pre", []))
            dtag = None
            if it.get("read"):
                k = S["pos"][i]
                if k >= S["issued"]: self._try(k + 1, k)
                if ("rd", k) in self.dq: dtag = ("rd", min(k + pair, S["issued"]) - 1)
            self.wait(vm=it.get("vm"), ds=dtag)
            self.a(it["mfma"](S["slot"].get(i)))
            post = it.get("post", [])
            if it.get("mfma2"):
                self._try(k + S["D"], k)
                c4 = [cost(x) or 4 for x in post]
                wa = 4 + (4 if it.get("vm2") in self.vq and it.get("vm2") else 0)
                wb = 4 if ("rd", k + 1) in self.dq else 0
                n = min(range(len(post) + 1), key=lambda n: max(8, wa + sum(c4[:n])) + max(8, wb + sum(c4[n:])))
                self.emit(post[:n]); post = post[n:]
                self.wait(vm=it.get("vm2"))
                self.a(it["mfma2"](S["slot"].get(i)))
            elif it.get("read"): self._try(k + 1 + S["D"], k + 1)
            self.emit(post)

    @staticmethod
    def ramp(seq, nsteps, n0, wd):
        init, per, k = [], {}, 0
        lead = lambda step: sum(1 for q, _ in seq[:k] if q > step)
        while k < min(n0, len(seq)): init.append(seq[k][1]); k += 1
        for st in range(nsteps):
            n = 0
            while k < len(seq) and (seq[k][0] <= st + 1 or (n < 2 and lead(st) < wd)):
                per.setdefault(st, []).append(seq[k][1]); k += 1; n += 1
        assert k == len(seq)
        return init, per

    def layer0(self, fn):
        a = self.a
        L = a.newlabel("l0")
        a(f"s_cmp_lg_u32 s{sLAY}, 0")
        a(f"s_cbranch_scc1 {L}")
        vq, dq = list(self.vq), list(self.dq)
        fn()
        self.vq, self.dq = vq, dq
        a.label(L)

    def entry(self):
        a = self.a
        a(f"s_getpc_b64 s[{sPC}:{sPC+1}]")
        a.label("L_pc")
        a("s_load_dwordx16 s[20:35], s[0:1], 0")
        a("v_lshrrev_b32 v2, 5, v0")
        if self.remap: a(f"s_and_b32 s{sJ}, s2, 31")
        else: a(f"s_lshr_b32 s{sJ}, s2, 3")
        a(f"v_lshl_add_u32 v2, s{sJ}, 4, v2")
        a("v_lshlrev_b32 v2, 7, v2")
        a("v_min_u32 v2, L_end-L_pc-4, v2")
        a(f"global_load_dword v14, v2, s[{sPC}:{sPC+1}]")
        a("s_load_dwordx4 s[36:39], s[0:1], 64")
        a("s_cmp_ge_u32 s2, 256")
        a("s_cbranch_scc1 L_exit")
        if self.stamps or "hold" in self.opt:
            a(f"s_memtime s[{sE0}:{sE0+1}]")
            a(f"s_memrealtime s[{sE1}:{sE1+1}]")
        if self.remap: a(f"s_lshr_b32 s{sG}, s2, 5")
        else: a(f"s_and_b32 s{sG}, s2, 7")
        a("v_lshrrev_b32 v1, 6, v0")
        a("v_and_b32 v0, 63, v0")
        a(f"v_readfirstlane_b32 s{sW}, v1")
        a("v_lshlrev_b32 v1, 4, v0")
        a("v_lshrrev_b32 v4, 3, v0")
        a("v_and_b32 v5, 0x70, v1")
        a("v_lshl_add_u32 v6, v4, 10, v5")
        self.sx(sT2, 0, (sG, 256 * 1024), (sJ, 64 * 1024, 0, 3), (sW, 8 * 1024))
        a(f"s_lshr_b32 s{sT3}, s{sJ}, 2")
        a("s_waitcnt lgkmcnt(0)")
        self.srd(SA, P_X, 2 * MB)
        for i in range(8):
            if i: a(f"s_add_u32 s{sT3}, s{sT3}, 1")
            self.sx(sT4, 0, (sT3, 128, 0, 7), (sT2, 1))
            a(f"buffer_load_dwordx4 {vr(self.XR+4*i,4)}, v6, {SRD(SA)}, s{sT4} offen")
        self.srd(WS, P_WS, WS_USED)
        a(f"s_cmp_ge_u32 s{sW}, 4")
        a("s_cbranch_scc1 L_startL")

    XR = 128
    def layernorm(self):
        a = self.a
        X, F = self.XR, 160
        a.label("L_ln")
        for i in range(32):
            a(f"v_lshlrev_b32 v{F+2*i}, 16, v{X+i}")
            a(f"v_and_b32 v{F+2*i+1}, 0xffff0000, v{X+i}")
            if i == 0: a(f"v_pk_mul_f32 v[28:29], {vr(F,2)}, {vr(F,2)}")
            else:
                a(f"v_pk_add_f32 v[26:27], {vr(F+2*i,2)}, {vr(F,2) if i == 1 else 'v[26:27]'}")
                a(f"v_pk_fma_f32 v[28:29], {vr(F+2*i,2)}, {vr(F+2*i,2)}, v[28:29]")
        a("v_add_f32 v26, v26, v27")
        a("v_add_f32 v28, v28, v29")
        for m in ("quad_perm:[1,0,3,2]", "quad_perm:[2,3,0,1]", "row_half_mirror"):
            a(f"v_add_f32_dpp v26, v26, v26 {m} row_mask:0xf bank_mask:0xf")
            a(f"v_add_f32_dpp v28, v28, v28 {m} row_mask:0xf bank_mask:0xf")
        a(f"v_mul_f32 v26, {hex(f2u(-1.0/512))}, v26")
        a(f"v_mul_f32 v28, {hex(f2u(1.0/512))}, v28")
        a("v_fma_f32 v28, -v26, v26, v28")
        a("v_max_f32 v28, 0, v28")
        a(f"v_add_f32 v28, {hex(f2u(1e-5))}, v28")
        a("v_rsq_f32 v28, v28")
        a("v_mul_f32 v26, v26, v28")
        for i in range(32):
            a(f"v_pk_fma_f32 {vr(F+2*i,2)}, {vr(F+2*i,2)}, v[28:29], v[26:27] op_sel_hi:[1,0,0]")
            a(f"v_cvt_pk_bf16_f32 v{X+i}, v{F+2*i}, v{F+2*i+1}")
            if i % 4 == 3: a(f"ds_write_b128 v{224+i//4}, {vr(X+i-3,4)}")
        a(f"s_cmp_lg_u32 s{sROLE}, 0")
        a("s_cbranch_scc1 L_lnL")
    def ln_addr(self):
        a = self.a
        a("v_lshlrev_b32 v6, 4, v4")
        a("v_xor_b32 v6, v6, v5")
        a("v_lshl_add_u32 v6, v5, 5, v6")
        self.sx(sT0, 0, (sW, 32768, 2), (sW, 128, 0, 3))
        a(f"v_add_u32 v6, s{sT0}, v6")
        win = self.o("win", 0)
        if win: a(f"s_lshr_b32 s{sT3}, s{sJ}, 2")
        else: self.sx(sT3, 0, (sJ, 1, 2), (sJ, 6, 0, 3))
        for i in range(8):
            if i: a(f"s_add_u32 s{sT3}, s{sT3}, 1")
            if win:
                a(f"s_sub_u32 s{sT0}, s{sT3}, s{sJ}")
                self.sx(sT0, 0, (sT0, 4096, 0, 3), (sT3, 4096, 0, 4))
            else: self.sx(sT0, 0, (sT3, 4096, 0, 7))
            a(f"v_add_u32 v{224+i}, s{sT0}, v6")

    def entry_stamp(self):
        if not self.stamps: return
        a = self.a
        a(f"s_lshl_b32 s{sTSI}, s2, 3")
        self.sx(sTSI, TSB, (sTSI, 1024), (sW, 1024))
        a(f"v_mov_b32 v18, s{sE0}")
        a(f"v_mov_b32 v19, s{sE1}")
        a("s_mov_b64 exec, 1")
        self.vm(f"buffer_store_dwordx2 v[18:19], off, {SRD(WS)}, s{sTSI}")
        a("s_mov_b64 exec, -1")
        a(f"s_add_u32 s{sTSI}, s{sTSI}, 8")
        self.seq.append("entry")

    def consts(self):
        a = self.a
        a(f"s_mov_b32 s{sLAY}, 0")
        a(f"s_mov_b32 s{sSLOW}, 0")
        a(f"s_mov_b32 s{sCODE}, 0")
        a(f"s_mov_b32 s{sTMO}, 100000")
        a(f"s_mov_b32 s{sHI}, 0")
        a(f"s_mov_b32 s{sHI+1}, -1")
        a(f"s_mov_b32 s{sN16}, 0xffff0000")
        a(f"s_mov_b32 s{sN16+1}, 0xffff0000")
        self.sx(sFG, FL, (sG, FL_STR))
        a(f"s_mov_b32 s{sFB}, s{sFG}")
        self.sx(sMYF, 0, (sJ, 32), (sW, 4), (sFG, 1))
        self.sx(sKVH, KVG, (sJ, 131072))

    def eighth(self, dst, st):
        a = self.a
        if self.o("win", 0):
            a(f"s_add_u32 s{dst}, s{sJ}, {st}")
            a(f"s_and_b32 s{dst}, s{dst}, 3")
            if st & 4: a(f"s_or_b32 s{dst}, s{dst}, 4")
        else:
            a(f"s_lshl_b32 s{dst}, s{sJ}, 1")
            a(f"s_add_u32 s{dst}, s{dst}, {st}")

    def flag_watch(self, r, t, layer):
        m = 1 if layer else 3
        return [f"v_lshrrev_b32 v{r}, 2, v0", f"v_add_u32 v{r}, s{sG}, v{r}", f"v_and_b32 v{r}, 7, v{r}", f"v_lshlrev_b32 v{r}, 14, v{r}", f"v_and_b32 v{t}, {m}, v0", f"v_lshl_add_u32 v{r}, v{t}, 7, v{r}",
                lambda: self.sx(sKVA, FL + F_KV + 4096 * layer, (sJ, 128, 0, 31 - m), (sJ, 4, 0, m))]

    def wtr_addr(self, r, t, hp_terms, perm):
        a = self.a
        self.sx(sT0, 0, *hp_terms)
        a(f"v_bfe_u32 v{r}, v0, 3, 1")
        a(f"v_lshlrev_b32 v{r}, 6, v{r}")
        a(f"v_xor_b32 v{r}, s{sT0}, v{r}")
        a(f"v_and_b32 v{t}, 3, v0")
        a(f"v_lshl_add_u32 v{r}, v{t}, 3, v{r}")
        a(f"v_bfe_u32 v{t}, v0, 4, 1")
        a(f"v_lshl_add_u32 v{r}, v{t}, 5, v{r}")
        a(f"v_bfe_u32 v{t}, v0, 2, 2")
        a(f"v_lshl_add_u32 v{r}, v{t}, 7, v{r}")
        a(f"v_lshrrev_b32 v{t}, 5, v0")
        a(f"v_mul_u32_u24 v{t}, {512 if perm else 3072}, v{t}")
        a(f"v_add_u32 v{r}, v{r}, v{t}")

    QF, KA, VA0, VA1, IDX, Q2, KM, FA = 8, 16, 17, 20, 21, 22, 24, 25
    S0, S1, CC, OO, KF, VF = 32, 48, (64, 80), (96, 112), 128, 136
    AQ, AK, AV = 32, 48, 64

    def attn_setup(self, layer):
        f = ["v_and_b32 v2, 0x330, v1", "v_bfe_u32 v30, v0, 2, 1", "v_lshl_add_u32 v2, v30, 7, v2",
             "v_bfe_u32 v30, v0, 3, 1", "v_lshl_add_u32 v2, v30, 6, v2",
             "v_lshrrev_b32 v29, 5, v0", "v_and_b32 v30, 0xf0, v1", "v_lshl_add_u32 v30, v29, 8, v30",
             "v_bfe_u32 v28, v0, 4, 1", "v_lshl_add_u32 v3, v28, 17, v30", "v_lshl_add_u32 v4, v28, 11, v30",
             f"s_lshl_b32 s{sT0}, s{sW}, 3", f"s_add_u32 s{sT0}, s{sT0}, {KSL}", f"v_lshl_add_u32 v5, v29, 2, s{sT0}",
             f"v_add_u32 v{self.KA}, {KV2}, v1",
             "v_and_b32 v31, 15, v0", "v_min_u32 v31, 1, v31", f"v_mov_b32 v28, {KV2+2048}",
             "v_lshl_add_u32 v28, v31, 16, v28",
             f"v_add_u32 v30, {KV2+1024}, v30", f"v_cndmask_b32 v{self.VA0}, v30, v28, s[{sN16}:{sN16+1}]",
             "v_add_u32 v30, 512, v30", f"v_cndmask_b32 v{self.VA1}, v30, v28, s[{sN16}:{sN16+1}]",
             f"v_mov_b32 v{self.IDX}, 0xdddddddd"]
        f += [f"s_lshl_b32 s{sT0}, s{sW}, 2", f"s_add_u32 s{sT0}, s{sT0}, {VRD}", f"v_mov_b32 v{self.FA}, s{sT0}"]
        f += [f"v_mov_b32 v{self.OO[0]+i}, 0" for i in range(32)]
        return f

    def qkv1(self):
        a = self.a
        a(f"s_mov_b32 s{sROLE}, 0")
        self.vq = ["x"]
        self.entry_stamp()
        self.stamp("issued")
        self.consts()
        a(f"s_lshr_b32 s{sKH}, s{sW}, 1")
        self.sx(sTL, 0, (sJ, 2, 3), (sW, 1, 0, 1))
        self.sx(sT0, 0, (sJ, 2, 0, 7), (sKH, 1))
        self.sx(sT1, 0, (sG, 8), (sTL, 1))
        self.sx(sKT, XF, (sT1, 32768), (sT0, 2048))
        self.sx(sKS, ST, (sT1, 4096), (sT0, 1024, 2), (sT0, 4, 0, 3))
        self.sx(sOS, HF, (sT1, HT), (sKH, 16384))
        self.sx(sHS, HF, (sT1, HT), (sKH, 8192))
        self.sx(sOUT, 0, (sT1, 32768), (sT0, 64))
        self.sx(sT1, 0, (sG, 8), (sJ, 4, 4), (sW, 1))
        self.sx(sUX, XF, (sT1, 32768))
        self.sx(sUS, ST, (sT1, 4096))
        self.sx(sUC, CS13, (sJ, 7 * 1024, 0, 15))
        self.sx(sHD, HF, (sT1, HT), (sJ, 1024, 0, 15))
        self.sx(sT1, 0, (sG, 8), (sJ, 4, 0, 1), (sW, 1))
        self.sx(sQX, XF, (sT1, 32768))
        self.sx(sQS, ST, (sT1, 4096))
        self.sx(sOD, HF, (sG, 8 * HT), (sW, 2 * HT), (sJ, 1024))
        self.sx(sT1, 0, (sG, 8), (sJ, 2, 0, 3), (sW, 1, 0, 1))
        self.sx(sT0, 0, (sJ, 1, 0, 28), (sW, 1, 0, 2))
        self.sx(sKG, KVG, (sT0, 131072), (sT1, 2048))
        self.sx(sQL, HF, (sT1, HT), (sT0, 1024))
        self.sx(sKL, 32768, (sT0, 1024), (sQL, 1))
        self.ln_addr()
        self.sx(sT1, 0, (sW, 32768, 0, 1))
        a("v_lshrrev_b32 v6, 5, v0")
        for k in range(4):
            a(f"v_lshl_add_u32 v7, v6, 4, {32*k}" if k < 3 else "v_lshlrev_b32 v7, 4, v6")
            if k == 3: a("v_add_u32 v7, 96, v7")
            a("v_xor_b32 v7, v7, v1")
            a(f"v_add_u32 v{8+k}, s{sT1}, v7")
        self.wtr_addr(12, 13, [(sW, 64, 1)], False)
        a(f"v_add_u32 v12, {WRING}, v12")
        a(f"v_add_u32 v13, {2*WSTG}, v12")
        self.emit(self.attn_setup(0))
        self.wait(vm="x")
        self.stamp("x landed")
        self.layernorm()
        self.stamp("ln done")
        R = 128
        def reads(k):
            b = R + 16 * (k % 3); st = (k >> 2) & 3
            L = [f"ds_read_b128 {vr(b,4)}, v{8+(k&3)} offset:{k*1024}"]
            for part in range(3):
                for h2 in range(2):
                    L.append(f"ds_read_b64_tr_b16 {vr(b+4+4*part+2*h2,2)}, v{12+(st>>1)} offset:{(st&1)*WSTG+(k&3)*6144+part*1024+h2*512}")
            return L
        a("s_waitcnt lgkmcnt(0)")
        a("s_barrier")
        self.emit(reads(0) + reads(1))
        for k in range(32):
            b = R + 16 * (k % 3)
            nx = reads(k + 2) if k + 2 < 32 else []
            bar = (k & 3) == 2 and nx
            a(f"s_waitcnt lgkmcnt({7 if k < 31 else 0})")
            a(f"v_mfma_f32_32x32x16_bf16 {vr(self.AK,16)}, {vr(b+8,4)}, {vr(b,4)}, {vr(self.AK,16) if k else '0'}")
            if bar:
                a("s_waitcnt lgkmcnt(0)")
                a("s_barrier")
            self.emit(nx[:3])
            a(f"v_mfma_f32_32x32x16_bf16 {vr(self.AV,16)}, {vr(b,4)}, {vr(b+12,4)}, {vr(self.AV,16) if k else '0'}")
            self.emit(nx[3:5])
            a(f"v_mfma_f32_32x32x16_bf16 {vr(self.AQ,16)}, {vr(b+4,4)}, {vr(b,4)}, {vr(self.AQ,16) if k else '0'}")
            self.emit(nx[5:])
        a("s_barrier")
        self.stamp("qkv main")
        a(f"v_mov_b32 v6, {hex(f2u(SIG))}")
        a(f"v_mov_b32 v30, {MODE}")
        a("ds_read_b32 v30, v30")
        self.qkv_epilogue(0, None, 6, None)
        self.stamp("qkv done")

    def qkv_epilogue(self, layer, RS, RQ, RR):
        a = self.a
        AQ, AK, AV, T = self.AQ, self.AK, self.AV, 152
        sc = lambda b, r: [a(f"v_pk_mul_f32 {vr(b+i,2)}, {vr(b+i,2)}, {vr(r,2)} op_sel_hi:[1,0]") for i in range(0, 16, 2)]
        cv = lambda b, d: [a(f"v_cvt_pk_bf16_f32 v{d+i}, v{b+2*i}, v{b+2*i+1}") for i in range(8)]
        loc = self.dg <= layer
        if layer: sc(AK, RS)
        cv(AK, T)
        if loc:
            for u in range(2): self.vm(f"buffer_store_dwordx4 {vr(T+4*u,4)}, v2, {SRD(WS)}, s{sKL} offen offset:{2048*u}")
        else: self.kv_global((0, 1))
        if layer:
            for i in range(0, 16, 2): a(f"v_pk_mul_f32 {vr(AV+i,2)}, {vr(AV+i,2)}, {vr(RR+i,2)}")
        cv(AV, T + 8)
        if loc:
            for u in range(2): self.vm(f"buffer_store_dwordx4 {vr(T+8+4*u,4)}, v4, {SRD(WS)}, s{sKL} offen offset:{1024+512*u}")
        else: self.kv_global((2, 3))
        sc(AQ, RQ)
        cv(AQ, T + 16)
        for u in range(2): self.vm(f"buffer_store_dwordx4 {vr(T+16+4*u,4)}, v1, {SRD(WS)}, s{sQL} offen offset:{1024*u} {'' if loc or layer else 'sc1'}", "loc")
        if loc and self.o("gl", 1) == 0: self.kv_global()
        if layer == 0:
            a("s_waitcnt lgkmcnt(0)")
            a(f"v_readfirstlane_b32 s{sSLOW}, v30")
            a(f"s_lshl_b32 s{sT0}, s{sSLOW}, 10")
            a(f"s_add_u32 s{sFB}, s{sFB}, s{sT0}")
            a(f"s_add_u32 s{sMYF}, s{sMYF}, s{sT0}")
        for h in range(2):
            a(f"v_pk_mul_f32 {vr(26+2*h,2)}, {vr(AK+8*h,2)}, {vr(AK+8*h,2)}")
        for i in (2, 4, 6):
            for h in range(2): a(f"v_pk_fma_f32 {vr(26+2*h,2)}, {vr(AK+8*h+i,2)}, {vr(AK+8*h+i,2)}, {vr(26+2*h,2)}")
        a("v_add_f32 v26, v26, v27")
        a("v_add_f32 v28, v28, v29")
        a("v_permlane32_swap_b32 v26, v28")
        a("v_add_f32 v26, v26, v28")
        if loc:
            self.publish(27, C_Q, tag="loc")
            if self.o("gl", 1) == 1: self.kv_global()
        self.emit(self.wave_umax(26, 28))
        a("v_or_b32 v26, 1, v26")
        self.ds("ds_write_b32 v5, v26")
        if not loc:
            L = a.newlabel("nf")
            self.publish(27, C_Q)
            self.wait(ds="all")
            self.sx(sT3, F_KV + 4096 * layer, (sJ, 128), (sFG, 1))
            a(f"s_cmp_lg_u32 s{sW}, 0")
            a("s_barrier")
            a(f"s_cbranch_scc1 {L}")
            self.kv_flag(layer, 32, sT3)
            a.label(L)

    def kv_global(self, which=(0, 1, 2, 3)):
        T = 152
        for k in which:
            if k == 1: self.a(f"s_add_u32 s{sT1}, s{sKG}, 131072")
            if k < 2: self.vm(f"buffer_store_dwordx4 {vr(T+4*k,4)}, v2, {SRD(WS)}, s{sT1 if k else sKG} offen sc1")
            else: self.vm(f"buffer_store_dwordx4 {vr(T+4*k,4)}, v3, {SRD(WS)}, s{sKG} offen offset:{512*k} sc1")

    def wave_umax(self, r, t):
        L = [f"v_max_u32_dpp v{r}, v{r}, v{r} {m} row_mask:0xf bank_mask:0xf"
             for m in ("quad_perm:[1,0,3,2]", "quad_perm:[2,3,0,1]", "row_half_mirror", "row_mirror")]
        return L + [f"v_mov_b32 v{t}, v{r}", f"v_permlane16_swap_b32 v{r}, v{t}", f"v_max_u32 v{r}, v{r}, v{t}"]

    def qkv2(self):
        a = self.a
        X, NX, WD = 128, 12, self.o("qw", 10)
        AQ, AK, AV = self.AQ, self.AK, self.AV
        RING, STT, RR, MU, RS, RQ = 176, 208, 224, 240, 6, 244
        self.sx(sT1, 0, (sJ, 4, 0, 1), (sW, 1))
        self.emit(self.x_flag_addr(14, 15, sT1))
        a(f"v_add_u32 v12, {SLICE-3072}, v1")
        a(f"v_add_u32 v13, {SLICE+49152}, v1")
        self.publish(11, C_X2)
        self.stamp("down done")
        self.sx(sT1, 0, (sT1, 1), (sG, 8))
        self.sx(sKG, KVG + KV_STR, (sJ, 131072, 0, 30), (sT1, 2048))
        self.sx(sQL, HF, (sT1, HT), (sJ, 1024, 0, 30))
        self.sx(sKL, 32768, (sJ, 1024, 0, 30), (sQL, 1))
        a(f"s_add_u32 s{sKVH}, s{sKVH}, {KV_STR}")
        self.dq.clear(); self.forget()
        def xl(k):
            def f():
                if k % 4 == 0:
                    self.eighth(sT5, k >> 2)
                    self.sx(sT5, 0, (sT5, 4096, 0, 7), (sQX, 1))
                self.vm(f"buffer_load_dwordx4 {vr(X+4*(k%NX),4)}, v1, {SRD(WS)}, s{sT5} offen offset:{(k&3)*1024} sc1", ("x", k))
            return f
        seq = [(k, xl(k)) for k in range(32)]
        for q in range(4): seq.insert(8 + 2 * q, (8 + q, self.fload(STT + 4 * q, sQS, q * 1024, "st", tmp=sT4)))
        init, per = self.ramp(seq, 32, self.o("q0", 4), WD)
        items = []
        def trio(rd, xr, z):
            w = lambda acc: (lambda r: f"v_mfma_f32_32x32x16_bf16 {vr(acc,16)}, {vr(r,4)}, {xr}, {'0' if z else vr(acc,16)}")
            return [dict(read=rd(1), mfma=w(AK)),
                    dict(read=rd(2), mfma=lambda r: f"v_mfma_f32_32x32x16_bf16 {vr(AV,16)}, {xr}, {vr(r,4)}, {'0' if z else vr(AV,16)}"),
                    dict(read=rd(0), mfma=w(AQ))]
        for k in range(32):
            t3 = trio(lambda p, k=k: (12, 3072 + k * 3072 + p * 1024) if k < 16 else (13, (k - 16) * 3072 + p * 1024), vr(X + 4 * (k % NX), 4), k == 0)
            t3[0]["vm"] = ("x", k)
            for c in range(2): t3[c]["post"] = list(per.get(k, [])[c::2])
            items += t3
            if k == 24: items += trio(lambda p: (12, p * 1024), vr(MU, 4), False)
        items[0]["bar"] = True
        st = [lambda: self.wait(vm="st")] + self.stats_ops(STT, MU, RS, RQ)
        st += [f"s_lshl_b32 s{sT0}, s{sW}, 7", "v_and_b32 v26, 31, v0", f"v_lshl_add_u32 v26, v26, 2, s{sT0}",
               lambda: self.ds(f"ds_write_b32 v26, v{RS}"),
               "v_lshrrev_b32 v27, 5, v0", f"v_lshl_add_u32 v27, v27, 4, s{sT0}", f"v_mul_f32 v{RQ}, {hex(f2u(SIG))}, v{RS}"]
        st += [lambda i=i: self.ds(f"ds_read_b128 {vr(RR+4*i,4)}, v27 offset:{32*i}") for i in range(4)]
        self.spread(items, 40, 72, st)
        self.spread(items, 4, 40, self.attn_setup(1))
        self.stream_begin(items, 8, RING)
        self.poll(14, 15, C_X2)
        self.stamp("x2 polled")
        self.emit(init)
        self.stream_run()
        a("s_barrier")
        self.stamp("qkv main")
        a(f"s_mov_b32 s{sLAY}, 1")
        a(f"s_mov_b32 s{sCODE}, 16")
        self.qkv_epilogue(1, RS, RQ, RR)
        self.stamp("qkv done")
        a("s_branch L_attn")

    def attention(self):
        a = self.a
        S = [self.S0, self.S1]; K = [self.KF, self.KF + 4]; V = [self.VF, self.VF + 8]
        Q = [self.QF, self.QF + 4]; C, O, IDX, Q2 = self.CC, self.OO, self.IDX, self.Q2
        NS = self.NS
        off = lambda t: SLOTA[(t >> 3) % NS] - KV2 + (t & 7) * TSTR
        kread = lambda t: f"ds_read_b128 {vr(K[t&1],4)}, v{self.KA} offset:{off(t)}"
        vread = lambda t, u: f"ds_read_b128 {vr(V[t&1]+4*u,4)}, v{self.VA1 if u else self.VA0} offset:{off(t)}"
        qk = lambda t, q: f"v_mfma_f32_32x32x16_bf16 {vr(S[q],16)}, {vr(K[t&1],4)}, {vr(Q[q],4)}, {vr(C[q],16)}"
        pv = lambda t, q, u: f"v_smfmac_f32_32x32x32_bf16 {vr(O[q],16)}, {vr(V[t&1]+4*u,4)}, {vr(S[q]+8*u,8)}, v{IDX}"
        ast = self.o("ast", 0)
        a.label("L_attn")
        self.vq.clear(); self.dq.clear(); self.forget()
        a(f"s_lshl_b32 s{sT0}, s{sW}, 11")
        a(f"v_add_u32 v26, s{sT0}, v1")
        a("s_waitcnt lgkmcnt(0)")
        a("s_barrier")
        self.stamp("A0")
        for q in range(2): a(f"ds_read_b128 {vr(Q[q],4)}, v26 offset:{QA+1024*q}")
        a(kread(0)); a(vread(0, 0)); a(vread(0, 1))
        assert self.o("gl", 1) < 2 or not self.dg
        if self.o("gl", 1) == 2: self.kv_global()
        a("s_waitcnt lgkmcnt(3)")
        for i in range(4):
            for q in range(2): a(f"v_dot2_f32_bf16 v{Q2+q}, v{Q[q]+i}, v{Q[q]+i}, {'v%d' % (Q2+q) if i else '0'}")
        a("s_nop 2")
        a(f"v_permlane32_swap_b32 v{Q2}, v{Q2+1}")
        a(f"v_add_f32 v{Q2}, v{Q2}, v{Q2+1}")
        a(f"v_mul_f32 v26, {hex(f2u(-1.0/SIG))}, v{Q2}")
        a(f"v_max_f32 v26, {hex(f2u(-TBOUND))}, v26")
        a("v_mov_b32 v28, v26")
        a("v_permlane32_swap_b32 v26, v28")
        for i in range(0, 16, 2): a(f"v_pk_mov_b32 {vr(C[0]+i,2)}, v[26:27], v[26:27] op_sel:[0,0]")
        a("s_waitcnt lgkmcnt(0)")
        a(qk(0, 0))
        for i in range(0, 16, 2): a(f"v_pk_mov_b32 {vr(C[1]+i,2)}, v[28:29], v[28:29] op_sel:[0,0]")
        jobs = {}
        def job(t, f): jobs.setdefault(t, []).append(f)
        def e1():
            a("s_waitcnt vmcnt(0)")
            a("s_barrier")
        assert self.o("e1t", 0) <= 2
        job(self.o("e1t", 0), e1)
        job(60, lambda: a(f"ds_read_b32 v{self.KM}, v{self.FA}"))
        job(62, lambda: a(f"v_readfirstlane_b32 s{sBAD}, v{self.KM}"))
        p1, pq, p0 = self.o("p1", 2), self.o("pqk", 5), self.o("p0", 11)
        def unit(t, q):
            c = S[q]
            tp, qp = (t, 0) if q else (t - 1, 1)
            tn, qn = (t + 1, 0) if q else (t, 1)
            nxt = t < 63 and q == 0
            for i in range(16):
                if i == p1:
                    if tp >= 0: a(pv(tp, qp, 1))
                    if nxt:
                        if (t & 7) == 7:
                            if ast: self.dstamp(f"a{(t+1)>>3} arr", 204)
                            a("s_barrier")
                            if ast: self.dstamp(f"a{(t+1)>>3} bar", 204)
                        a(kread(t + 1))
                    if q: a("s_waitcnt lgkmcnt(0)")
                if i == pq:
                    if tn < 64: a(qk(tn, qn))
                    if nxt: a(vread(t + 1, 0))
                if i == p0:
                    a(pv(t, q, 0))
                    if nxt: a(vread(t + 1, 1))
                    if q:
                        for f in jobs.get(t, []): f()
                a(f"v_exp_f32 v{c+i}, v{c+i}")
        roll = self.o("roll", 1) and not ast
        a("@align")
        for t in range(64):
            if roll and t == 8:
                a(f"s_mov_b32 s{sT5}, {6 // NS}")
                a.label("L_aloop")
            if roll and 8 + 8 * NS <= t < 56: continue
            for q in range(2): unit(t, q)
            if roll and t == 7 + 8 * NS:
                a(f"s_sub_u32 s{sT5}, s{sT5}, 1")
                a(f"s_cmp_lg_u32 s{sT5}, 0")
                a("s_cbranch_scc1 L_aloop")
        a("@noalign")
        a(pv(63, 1, 1))
        a(f"s_cmp_lg_u32 s{sBAD}, 0")
        a("s_cbranch_scc1 L_fallback")
        a.label("L_attn_fin")
        if ast: self.dflush()
        self.stamp("attn loop")
        a(f"s_add_u32 s{sT0}, s{sOD}, {HT}")
        for q in range(2):
            a(f"v_mov_b32 v26, v{O[q]+8}")
            a(f"v_permlane32_swap_b32 v26, v{O[q]+8}")
            a("v_rcp_f32 v26, v26")
            for i in range(0, 8, 2): a(f"v_pk_mul_f32 {vr(O[q]+i,2)}, {vr(O[q]+i,2)}, v[26:27] op_sel_hi:[1,0]")
            for i in range(4): a(f"v_cvt_pk_bf16_f32 v{244+4*q+i}, v{O[q]+2*i}, v{O[q]+1+2*i}")
            self.vm(f"buffer_store_dwordx4 {vr(244+4*q,4)}, v1, {SRD(WS)}, s{sT0 if q else sOD} offen", "o")

    def fallback(self):
        a = self.a
        S, K, V, IDX = self.S0, self.KF, self.VF, self.IDX
        a.label("L_fallback")
        a(f"s_add_u32 s{sT3}, s{sKVH}, 131072")
        a(f"v_subrev_u32 v28, {KV2}, v{self.VA0}")
        a("s_nop 7")
        for i in range(8): a(f"v_mov_b32 v{V+i}, 0x3f803f80")
        for q in range(2):
            Q, C, O = self.QF + 4 * q, self.CC[q], self.OO[q]
            a(f"s_mov_b32 s{sT0}, s{sKVH}")
            a("v_mov_b32 v26, 0xff800000")
            a.label(f"L_fb1_{q}")
            a(f"buffer_load_dwordx4 {vr(K,4)}, v1, {SRD(WS)}, s{sT0} offen sc1")
            a("s_waitcnt vmcnt(0)")
            a(f"v_mfma_f32_32x32x16_bf16 {vr(S,16)}, {vr(K,4)}, {vr(Q,4)}, 0")
            for i in range(8): a(f"v_max3_f32 v26, v{S+2*i}, v{S+2*i+1}, v26")
            a(f"s_add_u32 s{sT0}, s{sT0}, 2048")
            a(f"s_cmp_lt_u32 s{sT0}, s{sT3}")
            a(f"s_cbranch_scc1 L_fb1_{q}")
            a("v_mov_b32 v27, v26")
            a("v_permlane32_swap_b32 v26, v27")
            a("v_max_f32 v26, v26, v27")
            for i in range(16): a(f"v_sub_f32 v{C+i}, 0, v26")
            for i in range(16): a(f"v_mov_b32 v{O+i}, 0")
            a(f"s_mov_b32 s{sT0}, s{sKVH}")
            a.label(f"L_fb2_{q}")
            a(f"buffer_load_dwordx4 {vr(K,4)}, v1, {SRD(WS)}, s{sT0} offen sc1")
            a(f"s_not_b64 exec, s[{sN16}:{sN16+1}]")
            a(f"buffer_load_dwordx4 {vr(V,4)}, v28, {SRD(WS)}, s{sT0} offen sc1")
            a(f"buffer_load_dwordx4 {vr(V+4,4)}, v28, {SRD(WS)}, s{sT0} offen offset:512 sc1")
            a("s_mov_b64 exec, -1")
            a("s_waitcnt vmcnt(0)")
            a(f"v_mfma_f32_32x32x16_bf16 {vr(S,16)}, {vr(K,4)}, {vr(Q,4)}, {vr(C,16)}")
            for i in range(16): a(f"v_exp_f32 v{S+i}, v{S+i}")
            for u in range(2):
                a(f"v_smfmac_f32_32x32x32_bf16 {vr(O,16)}, {vr(V+4*u,4)}, {vr(S+8*u,8)}, v{IDX}")
            a("s_nop 11")
            a(f"s_add_u32 s{sT0}, s{sT0}, 2048")
            a(f"s_cmp_lt_u32 s{sT0}, s{sT3}")
            a(f"s_cbranch_scc1 L_fb2_{q}")
        a("s_branch L_attn_fin")

    RW, HOLD = 24, 152
    def lbar(self, nm, tag=None, ds=None):
        self.wait(vm=tag)
        if ds is not None: self.a(f"s_waitcnt lgkmcnt({ds})")
        on = nm[0] in self.opt.get("ls", "")
        if on: self.stamp(nm + " arr")
        self.a("s_barrier")
        if on: self.stamp(nm)
    def only_w4(self, fn, extra=None):
        a = self.a
        L = a.newlabel("w4")
        q = list(self.vq)
        if extra is None: a(f"s_cmp_lg_u32 s{sL}, 0")
        else: a(f"s_or_b32 s{sT0}, s{sL}, s{extra}")
        a(f"s_cbranch_scc1 {L}")
        fn()
        a.label(L)
        self.vq = q
    def code_touch(self):
        self.vm(f"global_load_dword v14, v5, s[{sPC}:{sPC+1}]")
    def rload(self, slot, src, unit):
        b = self.RW + 16 * slot
        self.a(f"s_add_u32 s{sT7}, s{src}, {unit*16384}")
        for i in range(4): self.vm(f"buffer_load_dwordx4 {vr(b+4*i,4)}, v1, {SRD(WS)}, s{sT7} offen offset:{i*1024} {self.wpol}", ("r", slot))
    def lsync(self, n):
        a = self.a
        a(f"v_mov_b32 v8, {LSY}")
        a("v_mov_b32 v9, 1")
        a("s_mov_b64 exec, 1")
        a("ds_add_u32 v8, v9")
        def body():
            a("ds_read_b32 v9, v8")
            a("s_waitcnt lgkmcnt(0)")
            a(f"v_cmp_gt_u32 vcc, {4*n}, v9")
        self.spin(body)
        a("s_mov_b64 exec, -1")

    def start_loader(self):
        a = self.a
        a.label("L_startL")
        self.vq = ["x"]; self.dq.clear()
        a(f"s_mov_b32 s{sROLE}, 1")
        a("v_mul_u32_u24 v16, 3072, v4")
        a("v_lshlrev_b32 v8, 2, v0")
        a("v_and_b32 v8, 64, v8")
        a("v_xor_b32 v8, v8, v5")
        a("v_add_u32 v16, v16, v8")
        a(f"s_sub_u32 s{sL}, s{sW}, 4")
        self.sx(sQ, 0, (sL, 16 * 3072), (sJ, 128, 2))
        self.sx(sT4, WRING, (sL, 6144))
        a(f"s_lshl_b32 s{sL}, s{sL}, 12")
        self.srd(SB, P_WQKV, 512 * 3072)
        self.srd(DBG, P_DBG, 256)
        self.sx(sFG, FL, (sG, FL_STR))
        a(f"s_getreg_b32 s{sXCC}, hwreg(HW_REG_XCC_ID, 0, 4)")
        if self.force_slow: a(f"s_and_b32 s{sXCC}, s{sJ}, 1")
        a(f"s_or_b32 s{sXCC}, s{sXCC}, 16")
        def clear():
            for r in range(20, 24): a(f"v_mov_b32 v{r}, 0")
            a("v_lshrrev_b32 v8, 1, v0")
            a("v_lshlrev_b32 v8, 7, v8")
            a("v_and_b32 v9, 16, v1")
            a("v_add_u32 v8, v8, v9")
            a(f"s_add_u32 s{sT0}, s{sFG}, {F_KV}")
            a(f"s_add_u32 s{sT1}, s{sFG}, {F_KV+4096}")
            for o in (0, 1024): a(f"buffer_store_dwordx4 v[20:23], v1, {SRD(WS)}, s{sFG} offen offset:{o} sc1")
            for r in (sT0, sT1): a(f"buffer_store_dwordx4 v[20:23], v8, {SRD(WS)}, s{r} offen sc1")
        self.only_w4(clear, sJ)
        def stage(s):
            self.eighth(sT5, s)
            self.sx(sT5, 0, (sT5, 64 * 3072, 0, 7), (sQ, 1))
            for pc in range(2):
                a(f"s_add_u32 m0, s{sT4}, {(s&3)*WSTG + pc*3072}")
                if pc: a(f"s_add_u32 s{sT5}, s{sT5}, {8*3072}")
                for part in range(3):
                    self.vm(f"buffer_load_dwordx4 v16, {SRD(SB)}, s{sT5} offen offset:{part*1024} lds", ("w", s))
        pre = self.o("wpre", 1); LA = self.o("la", 2)
        for s in range(pre): stage(s)
        self.entry_stamp()
        self.stamp("issued")
        self.consts()
        self.ln_addr()
        self.wtr_addr(17, 8, [(sJ, 64, 1, 1)], True)
        a(f"v_add_u32 v17, s{sT4}, v17")
        a(f"v_add_u32 v15, {2*WSTG}, v17")
        a(f"v_lshl_add_u32 v11, s{sG}, 2, v0")
        a("v_and_b32 v11, 28, v11")
        self.wait(vm="x")
        def ready():
            a(f"s_lshl_b32 s{sT0}, s{sG}, 2")
            a(f"v_mov_b32 v8, s{sXCC}")
            a("s_mov_b64 exec, 1")
            a(f"buffer_store_dword v8, off, {SRD(DBG)}, s{sT0} offset:{D_GRDY} sc1")
            a("s_mov_b64 exec, -1")
        self.only_w4(ready, sJ)
        mid = self.o("wmid", 2)
        for s in range(pre, mid): stage(s)
        a("s_branch L_ln")
        a.label("L_lnL")
        for s in range(mid, LA): stage(s)
        for s in range(8):
            self.wait(vm=("w", s))
            if s == 0: a("s_waitcnt lgkmcnt(0)")
            for part in range(3):
                for h2 in range(2):
                    a(f"ds_read_b64_tr_b16 {vr(self.HOLD+12*s+4*part+2*h2,2)}, v{15 if s & 2 else 17} offset:{(s&1)*WSTG+part*1024+h2*3072}")
            self.lbar(f"G{s}")
            if s == 1: self.vm(f"buffer_load_dword v13, v11, {SRD(DBG)}, 0 offen offset:{D_GRDY} sc1", "grdy")
            if s == 3: self.hello()
            if s + LA < 8:
                a("s_waitcnt lgkmcnt(6)")
                stage(s + LA)
            if s == 6:
                self.mode_look()
                if not self.dg: self.th(None)
        self.mode()
        self.sx(s13, PW13, (sJ, 7 * 32768, 0, 15), (sL, 1))
        self.sx(s2_, PW2, (sJ, 7 * 32768, 0, 7), (sL, 1))
        self.sx(sWOs, PWO, (sJ, 65536, 0, 7), (sL, 1))
        self.sx(sKVF, F_KV, (sJ, 128), (sFG, 1))

    def th(self, parts):
        a = self.a
        self.sx(sT0, HF, (sG, 8 * HT), (sJ, 4 * 7168), (sL, 7168, 12))
        if parts is None:
            a("v_min_u32 v8, 55, v0")
            a("v_lshlrev_b32 v8, 7, v8")
            self.vm(f"buffer_load_dword v14, v8, {SRD(WS)}, s{sT0} offen sc1")
        else:
            for p in parts:
                a(f"s_add_u32 s{sT1}, s{sT0}, {p*1024}")
                self.vm(f"buffer_load_dword v14, v1, {SRD(WS)}, s{sT1} offen sc1")
    def to(self):
        a = self.a
        a("v_lshrrev_b32 v8, 5, v0")
        a(f"v_mul_u32_u24 v8, {HT}, v8")
        a("v_bfe_u32 v9, v0, 2, 3")
        a("v_lshl_add_u32 v8, v9, 7, v8")
        self.sx(sT0, HF, (sG, 8 * HT), (sL, 2 * HT // 4096), (sJ, 1024))
        self.vm(f"buffer_load_dword v14, v8, {SRD(WS)}, s{sT0} offen sc1")
    def th2(self, lo=0, hi=40):
        a = self.a
        a(f"v_min_u32 v8, {hi-lo-1}, v0")
        a("v_lshlrev_b32 v8, 7, v8")
        self.sx(sT0, HF + 32768 + 128 * lo, (sG, 8 * HT), (sJ, HT, 2), (sJ, 20480, 0, 3), (sL, 5120, 12))
        self.vm(f"buffer_load_dword v14, v8, {SRD(WS)}, s{sT0} offen sc1")
    def tx(self):
        a = self.a
        for x in ["v_lshrrev_b32 v8, 5, v0", "v_lshlrev_b32 v8, 15, v8", "v_bfe_u32 v9, v0, 2, 3", "v_lshl_add_u32 v8, v9, 7, v8"]: a(x)
        self.sx(sT0, XF, (sG, 8 * 32768), (sJ, 65536, 3), (sJ, 4096, 0, 7), (sL, 1, 2))
        self.vm(f"buffer_load_dword v14, v8, {SRD(WS)}, s{sT0} offen sc1")
    def tst(self):
        a = self.a
        a("v_lshrrev_b32 v8, 5, v0")
        a("v_lshlrev_b32 v8, 7, v8")
        self.sx(sT0, ST, (sG, 8 * 4096), (sJ, 1024), (sL, 1, 4))
        self.vm(f"buffer_load_dword v14, v8, {SRD(WS)}, s{sT0} offen sc1")

    def after_e0(self, layer):
        a = self.a
        self.emit(self.flag_watch(10, 8, layer))
        a(f"s_mov_b64 s[{sRDY}:{sRDY+1}], 0")
        a(f"s_not_b64 s[{sLO}:{sLO+1}], s[{sHI}:{sHI+1}]")
        for r in range(20, 24): a(f"v_mov_b32 v{r}, 0x3f803f80")
        a("v_bfe_u32 v8, v0, 4, 1")
        a(f"v_mul_u32_u24 v8, {TSTR}, v8")
        a("v_lshrrev_b32 v9, 5, v0")
        a(f"v_mul_u32_u24 v9, {SLOT}, v9")
        self.sx(sT1, KVB + 2048, (sL, 1), (sL, 1, 7))
        a(f"v_add3_u32 v8, v8, v9, s{sT1}")
        a("v_and_b32 v12, 1, v0")
        if layer: self.sx(sT0, 0, (sJ, 32, 0, 30), (sL, 32, 13), (sL, 8, 12, 1))
        else: self.sx(sT0, 0, (sJ, 32, 0, 28), (sL, 32, 12), (sJ, 4, 0, 2))
        a(f"v_lshl_add_u32 v12, v12, 2, s{sT0}")
        self.lbar("E0", ds=0)
        a("ds_write_b128 v8, v[20:23]")
        if self.NS == 3:
            a(f"v_sub_u32 v8, v8, v9")
            a(f"v_subrev_u32 v8, {KVB - KV2}, v8")
            a("ds_write_b128 v8, v[20:23]")

    def kv_flag(self, layer, r, dst):
        a = self.a
        a(f"v_mov_b32 v{r}, {KSL}")
        a(f"ds_read_b128 {vr(r+4,4)}, v{r} offset:16")
        a(f"ds_read_b128 {vr(r,4)}, v{r}")
        a("s_waitcnt lgkmcnt(0)")
        a(f"v_max_u32 v{r}, v{r}, v{r+2}")
        a(f"v_max_u32 v{r+1}, v{r+1}, v{r+3}")
        a(f"v_max_u32 v{r+2}, v{r+4}, v{r+6}")
        a(f"v_max_u32 v{r+3}, v{r+5}, v{r+7}")
        if layer:
            a(f"v_max_u32 v{r}, v{r}, v{r+2}")
            a(f"v_max_u32 v{r+1}, v{r+1}, v{r+3}")
        a("s_mov_b64 exec, 1")
        a(f"buffer_store_dwordx{2 if layer else 4} {vr(r, 2 if layer else 4)}, off, {SRD(WS)}, s{dst} sc1")
        a("s_mov_b64 exec, -1")

    def kv_need(self, s, layer):
        a = self.a
        L, D, N = a.newlabel("kvn"), a.newlabel("kvd"), a.newlabel("kvr")
        dyn = self.o("dyn", 0) and s > 0
        if dyn and s == 1: a(f"s_mov_b32 s{sREM}, 0x11111110")
        a.label(L)
        if dyn:
            a(f"s_lshr_b32 s{sT2}, s{sRDY}, 1")
            a(f"s_and_b32 s{sT2}, s{sT2}, s{sRDY}")
            a(f"s_lshr_b32 s{sT1}, s{sT2}, 2")
            a(f"s_and_b32 s{sT2}, s{sT2}, s{sT1}")
            a(f"s_and_b32 s{sT2}, s{sT2}, s{sREM}")
            a(f"s_cbranch_scc1 {D}")
        else:
            a(f"s_andn2_b32 s{sT2}, {hex(15 << (4 * s))}, s{sRDY}")
            a(f"s_cbranch_scc0 {D}")
        if layer == 0:
            a(f"s_cmp_eq_u32 s{sEX}, -1")
            a(f"s_cbranch_scc1 {N}")
            a(f"buffer_load_dword v13, v11, {SRD(DBG)}, 0 offen offset:{D_GRDY} sc1")
            a("s_waitcnt vmcnt(0)")
            a(f"v_cmp_ne_u32 s[{sEX}:{sEX+1}], 0, v13")
            a.label(N)
        if s <= self.o("narrow", 1): a(f"s_mov_b64 exec, {hex(((1 << (4 * (self.o('wide', 3) if dyn else 1))) - 1) << (4 * s))}")
        else: a(f"s_andn2_b64 exec, s[{sLO}:{sLO+1}], s[{sRDY}:{sRDY+1}]")
        a(f"buffer_load_dword v9, v10, {SRD(WS)}, s{sKVA} offen sc1")
        a("s_waitcnt vmcnt(0)")
        a("v_cmp_ne_u32 vcc, 0, v9")
        a("s_mov_b64 exec, -1")
        a(f"s_and_b32 s{sT2}, vcc_lo, s{sEX}")
        a(f"s_or_b32 s{sRDY}, s{sRDY}, s{sT2}")
        a(f"s_sub_u32 s{sTMO}, s{sTMO}, 1")
        a(f"s_cbranch_scc0 {L}")
        a(f"s_mov_b32 s{sTMO}, 0")
        if dyn: a(f"s_mov_b32 s{sT2}, s{sREM}")
        a.label(D)
        if dyn:
            a(f"s_ff1_i32_b32 s{sT0}, s{sT2}")
            a(f"s_bitset0_b32 s{sREM}, s{sT0}")
            a(f"s_lshr_b32 s{sT0}, s{sT0}, 2")
            a(f"s_add_u32 s{sT0}, s{sT0}, s{sG}")
        else: a(f"s_add_u32 s{sT0}, s{sG}, {s}")
        a(f"s_and_b32 s{sT0}, s{sT0}, 7")
    def kv_fetch(self, s, layer):
        a = self.a
        self.kv_need(s, layer)
        self.sx(sT0, 0, (sT0, 16384), (sKVH, 1), (sL, 1))
        self.sx(sT1, 0, (sL, 1), (sL, 1, 7))
        pol = "sc1 nt" if self.o("kvnt", 0) else "sc1"
        self.dma(sT1, SLOTA[s % self.NS], sT0, 0, (0, 1), ("kv", s), pol)
        a("s_add_u32 m0, m0, 16")
        for i in (2, 3):
            self.vm(f"buffer_load_dwordx4 v1, {SRD(WS)}, s{sT7} offen offset:{i*1024} {pol} lds", ("kv", s))
    def q_fetch(self, local):
        a = self.a
        self.sx(sT0, HF, (sG, 8 * HT), (sL, 2 * HT // 4096), (sJ, 1024))
        a(f"s_lshr_b32 s{sT1}, s{sL}, 1")
        for q in range(2): self.dma(sT1, QA + 1024 * q, sT0, q * HT, (0,), ("kv", 0), "sc1")
        if local: self.sx(sT0, 32768, (sT0, 1), (sJ, 1024))
        else: self.sx(sT0, 0, (sG, 16384), (sKVH, 1), (sL, 1))
        self.sx(sT1, 0, (sL, 1, 1), (sL, 1, 8))
        for q in range(2): self.dma(sT1, KVB + 4 * q * TSTR, sT0, q * (HT if local else 2048), (0, 1), ("kv", 0) if q == 0 else "kv0b", "sc1")

    def prep_flag(self):
        a = self.a
        def f():
            a(f"s_add_u32 s{sT0}, s{sKVF}, 4096")
            a("v_mov_b32 v8, 1")
            a("s_mov_b64 exec, 1")
            a(f"buffer_store_dword v8, off, {SRD(WS)}, s{sT0} offset:16 sc1")
            a("s_mov_b64 exec, -1")
        self.only_w4(f)
    def prep_look(self):
        a = self.a
        a("v_min_u32 v12, 45, v0")
        a("v_lshlrev_b32 v8, 2, v12")
        a(f"s_bfe_u32 s{sT0}, s{sJ}, 0x20001")
        a(f"v_add_u32 v9, s{sT0}, v8")
        a("v_and_b32 v8, 0x70, v8")
        a("v_and_b32 v13, 3, v12")
        a(f"s_and_b32 s{sT0}, s{sJ}, 12")
        a(f"v_add3_u32 v8, v8, v13, s{sT0}")
        a("v_cmp_gt_u32 vcc, 28, v12")
        a("v_cndmask_b32 v8, v9, v8, vcc")
        a("v_and_b32 v12, 7, v8")
        a("v_lshlrev_b32 v12, 14, v12")
        a("v_lshrrev_b32 v8, 3, v8")
        a("v_lshl_add_u32 v12, v8, 7, v12")
        a(f"s_mov_b32 s{sT2}, {FL + F_KV + 4096 + 16}")
        a(f"s_mov_b32 s{sPA}, s{sEX}")
        self.vm(f"buffer_load_dword v15, v12, {SRD(WS)}, s{sT2} offen sc1", "pl")
    def prep_wait(self):
        a = self.a
        D = a.newlabel("pwd")
        self.wait(vm="pl")
        a("v_cmp_eq_u32 vcc, 0, v15")
        a(f"s_orn2_b32 s{sT2}, vcc_lo, s{sPA}")
        a(f"s_or_b32 s{sT2}, s{sT2}, vcc_hi")
        a(f"s_cbranch_scc0 {D}")
        def rdy():
            a(f"buffer_load_dword v13, v11, {SRD(DBG)}, 0 offen offset:{D_GRDY} sc1")
            a("s_waitcnt vmcnt(0)")
            a("v_cmp_eq_u32 vcc, 0, v13")
        self.spin(rdy)
        a(f"s_mov_b32 s{sT2}, {FL + F_KV + 4096 + 16}")
        def body():
            a(f"buffer_load_dword v13, v12, {SRD(WS)}, s{sT2} offen sc1")
            a("s_waitcnt vmcnt(0)")
            a("v_cmp_eq_u32 vcc, 0, v13")
        self.spin(body)
        a.label(D)
        a(f"s_mov_b32 s{sEX}, -1")

    def hello(self):
        a = self.a
        self.wait(vm="grdy")
        a(f"v_cmp_ne_u32 s[{sEX}:{sEX+1}], 0, v13")
        a(f"s_lshl_b32 s{sT1}, s{sG}, 2")
        L = a.newlabel("og")
        a(f"s_bitcmp1_b32 s{sEX}, 0")
        a(f"s_cbranch_scc1 {L}")
        def rdy():
            a(f"buffer_load_dword v13, off, {SRD(DBG)}, s{sT1} offset:{D_GRDY} sc1")
            a("s_waitcnt vmcnt(0)")
            a("v_cmp_eq_u32 vcc, 0, v13")
        self.spin(rdy)
        a.label(L)
        a(f"v_readfirstlane_b32 s{sT2}, v13")
        a(f"s_cmp_lg_u32 s{sT2}, s{sXCC}")
        a(f"s_cselect_b32 s{sSLOW}, 1, 0")
        def f():
            S, D = a.newlabel("sh"), a.newlabel("hd")
            a("v_mov_b32 v8, 1")
            a("s_mov_b64 exec, 1")
            a(f"s_cmp_lg_u32 s{sSLOW}, 0")
            a(f"s_cbranch_scc1 {S}")
            a(f"buffer_store_dword v8, off, {SRD(WS)}, s{sMYF}")
            a(f"s_branch {D}")
            a.label(S)
            a(f"buffer_store_dword v8, off, {SRD(DBG)}, s{sT1} offset:{D_SHOUT} sc1")
            a.label(D)
            a("s_mov_b64 exec, -1")
        self.only_w4(f)
    def mode_look(self):
        a = self.a
        a("v_and_b32 v12, 31, v0")
        a("v_lshl_add_u32 v12, v12, 5, 16")
        self.vm(f"buffer_load_dword v13, v12, {SRD(WS)}, s{sFG} offen sc1", "ml")
    def mode(self):
        a = self.a
        L, D = a.newlabel("ml"), a.newlabel("md")
        self.wait(vm="ml")
        a(f"s_lshl_b32 s{sT0}, s{sG}, 2")
        a(f"s_cmp_lg_u32 s{sSLOW}, 0")
        a(f"s_cbranch_scc1 {D}")
        a.label(L)
        a("v_cmp_eq_u32 vcc, 0, v13")
        a(f"s_cbranch_vccz {D}")
        a(f"buffer_load_dword v9, off, {SRD(DBG)}, s{sT0} offset:{D_SHOUT} sc1")
        a(f"buffer_load_dword v13, v12, {SRD(WS)}, s{sFG} offen sc1")
        a("s_waitcnt vmcnt(0)")
        a(f"v_readfirstlane_b32 s{sSLOW}, v9")
        a(f"s_cmp_lg_u32 s{sSLOW}, 0")
        a(f"s_cbranch_scc1 {D}")
        a(f"s_sub_u32 s{sTMO}, s{sTMO}, 1")
        a(f"s_cbranch_scc0 {L}")
        a(f"s_mov_b32 s{sTMO}, 0")
        a.label(D)
        a(f"v_mov_b32 v8, {LSY}")
        a("v_mov_b32 v12, 0")
        a(f"v_mov_b32 v13, s{sSLOW}")
        a("ds_write_b64 v8, v[12:13]")
        a(f"s_lshl_b32 s{sT0}, s{sSLOW}, 10")
        a(f"s_add_u32 s{sFB}, s{sFB}, s{sT0}")
        a(f"s_add_u32 s{sMYF}, s{sMYF}, s{sT0}")

    def side(self, layer):
        a = self.a
        H = self.HOLD
        self.after_e0(layer)
        lp = self.o("lprio", 1)
        if layer == 0:
            for part in range(3):
                for s in range(8):
                    a(f"v_mfma_f32_32x32x16_bf16 {vr(24+16*part,16)}, v[20:23], {vr(H+12*s+4*part,4)}, {vr(24+16*part,16) if s else '0'}")
        dg = self.dg > layer
        if dg:
            if layer == 0:
                for part in range(3): self.emit(self.split_pair(H + 96 + 2 * part, 24 + 16 * part, 9))
            self.lbar("E1")
        self.poll(12, 13, C_Q + 16 * layer)
        self.q_fetch(not dg)
        if layer == 0:
            if not dg:
                for part in range(3): self.emit(self.split_pair(H + 96 + 2 * part, 24 + 16 * part, 9))
            self.prep_setup()
            self.sx(sT0, 0, (sJ, 16), (sL, 4, 12))
            a("v_lshrrev_b32 v5, 4, v0")
            a(f"v_add_lshl_u32 v5, v5, s{sT0}, 7")
            a("v_min_u32 v5, L_end-L_pc-4, v5")
            a(f"v_add_u32 v2, s{sL}, v1")
            a("v_add_u32 v3, 0x10000, v2")
            a("v_add_u32 v4, 0x20000, v2")
        if lp: a("s_setprio 1")
        self.lbar("A0", ("kv", 0), ds=0)
        a(f"s_lshr_b32 s{sT0}, s{sL}, 1")
        a(f"v_add_u32 v8, s{sT0}, v1")
        QT = 160 if layer else 32
        for q in range(2): a(f"ds_read_b128 {vr(QT+4*q,4)}, v8 offset:{QA+1024*q}")
        self.lbar("E1", "kv0b")
        if not dg: self.only_w4(lambda: self.kv_flag(layer, QT - 8, sKVF))
        self.kv_fetch(1, layer)
        a("s_waitcnt lgkmcnt(0)")
        for i in range(4):
            for q in range(2): a(f"v_dot2_f32_bf16 v{16+q}, v{QT+4*q+i}, v{QT+4*q+i}, {'v%d' % (16+q) if i else '0'}")
        a("s_nop 2")
        a("v_permlane32_swap_b32 v16, v17")
        a("v_add_f32 v16, v16, v17")
        def km():
            self.kv_need(0, layer)
            self.vm(f"buffer_load_dword v17, v10, {SRD(WS)}, s{sKVA} offen sc1", "km")
        def check():
            self.wait(vm="km")
            self.emit(self.wave_umax(17, 8))
            a("v_mul_f32 v17, v16, v17")
            a(f"v_cmp_nge_f32 vcc, {hex(f2u(-1.0 if self.force_fallback else TBOUND*TBOUND))}, v17")
            self.sx(sT0, VRD, (sL, 1, 10))
            a(f"s_or_b32 s{sT1}, vcc_lo, vcc_hi")
            a(f"v_mov_b32 v8, s{sT0}")
            a(f"v_mov_b32 v9, s{sT1}")
            a("ds_write_b32 v8, v9")
            a("s_waitcnt lgkmcnt(0)")
        def tile_of_c():
            self.sx(sT1, 0, (sG, 8), (sJ, 2, 3), (sL, 1, 12, 1))
            self.sx(sT2, 0, (sJ, 2, 0, 7), (sL, 1, 13))
        def res_raw():
            self.srd(SA, P_X, 2 * MB)
            tile_of_c()
            self.sx(sT0, 0, (sT1, 32768), (sT2, 64))
            a("v_and_b32 v8, 31, v0")
            a("v_lshlrev_b32 v8, 10, v8")
            a("v_lshrrev_b32 v9, 5, v0")
            a("v_lshl_add_u32 v8, v9, 3, v8")
            for i in range(4): self.vm(f"buffer_load_dwordx2 {vr((6, 12, 254, 18)[i],2)}, v8, {SRD(SA)}, s{sT0} offen offset:{16*i}", "rr")
        def mailbox():
            self.sx(sT0, CS13, (sJ, 7 * 1024, 0, 15), (sL, 1, 1))
            a(f"s_lshr_b32 s{sT3}, s{sL}, 1")
            L = a.newlabel("mb"); q = list(self.vq)
            a(f"s_cmp_eq_u32 s{sW}, 7")
            a(f"s_cbranch_scc1 {L}")
            self.dma(sT3, MBX, sT0, 0, (0,), pol="sc1")
            a(f"s_cmp_eq_u32 s{sW}, 6")
            a(f"s_cbranch_scc1 {L}")
            a(f"buffer_load_dwordx4 v1, {SRD(WS)}, s{sT7} offen offset:1024 sc1 lds")
            a.label(L); self.vq = q
            if layer:
                tile_of_c()
                self.sx(sT0, XF, (sT1, 32768), (sT2, 2048))
                self.dma(sT3, MBX + 5120, sT0, 0, (0, 1), pol="sc1")
            else:
                a(f"s_add_u32 s{sT3}, s{sT3}, {MBX+5120}")
                a(f"v_add_u32 v8, s{sT3}, v1")
                self.wait(vm="rr")
                for i in range(4): a(f"ds_write_b64 v8, {vr((6, 12, 254, 18)[i],2)} offset:{(i>>1)*1024+(i&1)*8}")
        pf = [lambda u=u: self.dma(sL, U(u), sWOs, u * 16384, range(4)) for u in range(4)]
        pf += [lambda u=u: self.dma(sL, U(4 + u), s13, u * 16384, range(4)) for u in range(3)]
        def last():
            self.dma(sL, U(7), s13, 3 * 16384, range(3))
            self.vm(f"buffer_load_dwordx4 v[20:23], v1, {SRD(WS)}, s{sT7} offen offset:3072 {self.wpol}")
        pf.append(last)
        if layer:
            pf += [lambda u=u: self.rload(8 + u, s13, 4 + u) for u in range(4)]
        else:
            pf += [lambda u=u: self.rload(u, s13, 4 + u) for u in range(6)]
            pf = pf[:4] + [lambda u=u: self.rload(6 + u, s2_, 12 + u) for u in range(2)] + pf[4:]
        steps = {s: [] for s in range(8)}; post = {s: [] for s in range(8)}
        if layer == 0:
            g0 = self.o("g0", 0)
            steps[g0] += [lambda k=k: self.prep_gather(k) for k in range(4)]
            steps[g0 + 1] += [lambda: self.wait(vm="pg"), lambda: self.lsync(1)] + self.prep_store()
            steps[g0 + 2] += [lambda: self.wait(vm="pst"), lambda: self.lsync(2), self.prep_flag]
            first = self.o("pw", 4)
            if self.o("plk", 1): post[first - 1].append(self.prep_look)
            else: steps[first - 1].append(self.prep_look)
            steps[first].append(self.prep_wait)
            cnt = [int(x) for x in self.opt.get("n0", "6541")]
        else:
            first = 1
            cnt = [int(x) for x in self.opt.get("n1", "0333300")]
        if self.NS == 3:
            k1 = pf.index(last)
            pf = pf[:k1 - 1] + pf[k1 + 1:] + pf[k1 - 1:k1 + 1]
            assert sum(cnt[6 - first:]) >= 2
        assert sum(cnt) == len(pf) and first + len(cnt) == 8
        k = 0
        for i, n in enumerate(cnt):
            steps[first + i] += pf[k:k + n]; k += n
        steps[7].insert(0, mailbox)
        ts = self.opt.get(f"ts{layer}", ("2x2s3h7o7x7s7h", "6h7o7s")[layer])
        for k in range(0, len(ts), 2):
            f = {"o": self.to, "x": self.tx, "s": self.tst, "h": self.th2, "i": lambda: self.th2(0, 20), "j": lambda: self.th2(20, 40)}[ts[k + 1]]
            steps[int(ts[k])].append(f)
        steps[6] = [km] + steps[6] + ([] if layer else [res_raw])
        post[6].append(check)
        for s in range(8):
            if s:
                self.lbar(f"p{s}")
                for b in ([s + 1] if self.NS == 2 else [2, 3] if s == 1 else [s + 2]):
                    if b < 8: self.kv_fetch(b, layer)
            fine = "f" in self.opt.get("ls", "") and layer == 0
            if fine: self.stamp(f"f{s}")
            self.code_touch()
            self.emit(steps[s])
            if fine: self.stamp(f"j{s}")
            self.wait(vm=("kv", s + 1))
            if fine: self.stamp(f"k{s}")
            self.emit(post[s])
        if lp == 1: a("s_setprio 0")
        self.lbar("A1", "all", ds=0)
        self.lbar("A2")

    def loader(self, layer):
        a = self.a
        def bar(nm, *x, **k):
            self.lbar(nm, *x, **k)
            if layer and nm in self.opt.get("wb", ""):
                L = a.newlabel("wb")
                self.sx(sT0, 0, (sJ, 8), (sW, 1))
                a(f"s_cmp_lg_u32 s{sT0}, 7")
                a(f"s_cbranch_scc1 {L}")
                a("buffer_wbl2 sc1")
                a.label(L)
        ko = self.opt.get("ko", ""); self.seen = set()
        t = lambda c, h, u: self.dma(sL, U(u), s13, c * 32768 + h * 16384, range(0 if "d" in ko else 4), ("t", c, h))
        c2 = lambda c, h, u: self.dma(sL, U(u), s2_, c * 32768 + h * 16384, range(0 if "d" in ko else 4), ("c", c, h))
        rc = lambda slot, unit: self.rload(slot, s2_, unit)
        self.pace = 0
        def wr(slot, u):
            self.wait(vm=("r", slot))
            for i in range(0 if "w" in ko else 4):
                a(f"ds_write_b128 v{2 + (U(u) >> 16)}, {vr(self.RW + 16*slot + 4*i, 4)} offset:{(U(u) & 0xffff) + i*1024}")
                if self.pace: a("s_waitcnt lgkmcnt(0)")
        def sl(ss):
            for s in ss:
                for part in range(3):
                    a(f"ds_write_b128 v{8 + (s >> 2)}, {vr(self.HOLD+12*s+4*part,4)} offset:{(s&3)*12288+part*1024}")
                    if self.pace and s < 6: a("s_waitcnt lgkmcnt(0)")
        a(f"ds_write_b128 v3, v[20:23] offset:{U(7) - 65536 + 3072}")
        o = 8 if layer else 0
        wr(o, 8)
        bar("W1")
        if self.o("w2", 0): bar("W2")
        wr(o + 1, 0); wr(o + 2, 1); wr(o + 3, 2); wr(4, 3)
        bar("B0", ds=12)
        wr(5, 9)
        pub = lambda k: self.only_w4(lambda: self.publish(13, C_H + k + 16 * layer, tag=None))
        o = 0
        ex = iter([int(x) for x in self.opt.get("ex", "101110")]); nx = iter(range(4))
        def extra():
            for _ in range(next(ex)):
                k = next(nx)
                if not layer: rc(k, 8 + k)
        bar("Bm", ds=0)
        self.pace = self.o("pace", 0); self.thr = self.o("thr", 6)
        todo = [(0, lambda: t(5, 0, 4)), (0, lambda: t(6, 0, 6)), (0, lambda: c2(0, 0, 8)), (1, lambda: t(5, 1, 5)), (1, lambda: t(6, 1, 7)),
                (1, lambda: c2(0, 1, 0)), (2, lambda: c2(1, 0, 1)), (2, lambda: c2(2, 0, 3)), (3, lambda: c2(1, 1, 2)), (3, lambda: c2(2, 1, 9)),
                (4, lambda: c2(3, 0, 4)), (4, lambda: c2(3, 1, 5))]
        nd = [int(x) for x in self.opt.get("nd", "332220")]
        assert sum(nd) == 12
        def go(k):
            for _ in range(nd[k]):
                free, f = todo.pop(0); assert free <= k
                f()
            extra()
        go(0)
        if not layer: self.code_touch()
        bar("B1")
        LB = self.o("lb", 1)
        def need(*tags):
            for x in tags: assert x in self.seen; self.wait(vm=x)
        go(1)
        if LB: need(("t", 5, 0))
        bar("Bn")
        go(2)
        need(("t", 5, 1), ("t", 6, 0))
        bar("B2")
        if not self.o("mg", 0): pub(0)
        go(3)
        need(("t", 6, 1), ("c", 0, 0))
        bar("B3")
        pub(1)
        go(4)
        need(("c", 0, 1), ("c", 1, 0), ("c", 1, 1), ("c", 2, 0))
        bar("B4")
        pub(2)
        go(5)
        if not layer: self.code_touch()
        wr(o, 6); wr(o + 1, 7)
        need(("c", 2, 1), ("c", 3, 0), ("c", 3, 1))
        bar("D1", ds=4)
        pub(3)
        wr(o + 2, 8); wr(6, 1); wr(o + 3, 0)
        if not layer:
            self.sx(sT0, SLICE, (sL, 3072, 12))
            a(f"v_add_u32 v8, s{sT0}, v1")
            a("v_add_u32 v9, 49152, v8")
            self.sx(sT0, SLICE - 3072, (sL, 512, 13), (sL, 8, 12, 1))
            a("v_and_b32 v12, 0x1f0, v1")
            a(f"v_add_u32 v12, s{sT0}, v12")
        bar("D3", ds=8)
        wr(7, 2)
        if not layer: sl(range(0, self.o("sl1", 0)))
        bar("D4", ds=0)
        if not layer: sl(range(self.o("sl1", 0), self.o("sl2", 3)))
        bar("D6")
        self.thr = 0
        if layer:
            a("s_endpgm")
            return
        if self.o("w2", 0): bar("D7")
        sl(range(self.o("sl2", 3), 8))
        for part in range(3): a(f"ds_write_b64 v12, {vr(self.HOLD+96+2*part,2)} offset:{part*1024}")
        a(f"s_add_u32 s{sKVH}, s{sKVH}, {KV_STR}")
        a(f"s_add_u32 s{sKVF}, s{sKVF}, 4096")
        bar("Q0", ds=0)

    def prep_setup(self):
        a = self.a
        a(f"s_lshr_b32 s{sT4}, s{sL}, 12")
        self.sx(sT0, 0, (sJ, 8), (sG, 1))
        a(f"s_mov_b32 s{sPCS}, {OOB}")
        a(f"s_cmp_ge_u32 s{sJ}, 23")
        a("s_cbranch_scc1 L_pr_none")
        a(f"s_cmp_ge_u32 s{sT0}, 112")
        a("s_cbranch_scc1 L_pr_o")
        self.srd(SA, P_W1, 512 * 3584)
        self.srd(SB, P_W3, 512 * 3584)
        a(f"s_mov_b32 s{sPSTR}, 3584")
        self.sx(sPA, 0, (sT0, 128, 2), (sT0, 128 * 3584, 0, 3))
        a(f"s_mov_b32 s{sPB}, s{sPA}")
        self.sx(sT2, 0, (sT0, 4, 2), (sT4, 1))
        self.sx(sT1, 0, (sT2, 7, 0, 15), (sT2, 1, 4))
        if self.m16: self.sx(sPCS, CS13, (sT1, 1024), (sT0, 256, 0, 3))
        else: self.sx(sPCS, CS13, (sT1, 1024), (sT0, 512, 1, 1), (sT0, 8, 0, 1))
        self.sx(sPD, PW13, (sT1, 32768), (sT0, 8192, 0, 3))
        a(f"s_mov_b32 s{sTCH}, 4096")
        a(f"s_lshl_b32 s{sT2}, s{sT4}, 5")
        a(f"s_mov_b32 s{sT3}, 16384")
        a("s_branch L_pr_go")
        a.label("L_pr_o")
        self.sx(sT2, 0, (sT0, 2, 0, 3), (sT4, 1, 1))
        a(f"s_cmp_ge_u32 s{sT0}, 128")
        a("s_cbranch_scc1 L_pr_2")
        self.srd(SA, P_WO, 512 * 1024)
        self.srd(SB, P_WO, 512 * 1024)
        a(f"s_sub_u32 s{sT0}, s{sT0}, 112")
        self.sx(sPD, PWO, (sT2, 65536), (sT0, 32768, 2, 1), (sT0, 8192, 3), (sT4, 4096, 0, 1))
        a("s_branch L_pr_o2")
        a.label("L_pr_2")
        self.srd(SA, P_W2, 1792 * 1024)
        self.srd(SB, P_W2, 1792 * 1024)
        a(f"s_sub_u32 s{sT0}, s{sT0}, 128")
        self.sx(sPD, PW2, (sT2, 7 * 32768), (sT0, 32768, 3), (sT0, 8192, 2, 1), (sT4, 4096, 0, 1))
        a("s_branch L_pr_o2")
        a.label("L_pr_none")
        self.srd(SA, P_WO, 0)
        self.srd(SB, P_WO, 0)
        a(f"s_mov_b32 s{sT0}, 0")
        a(f"s_mov_b32 s{sPD}, {OOB}")
        a.label("L_pr_o2")
        a(f"s_mov_b32 s{sPSTR}, 1024")
        a(f"s_mov_b32 s{sTCH}, 16384")
        self.sx(sPA, 0, (sT0, 256, 0, 3), (sT0, 128 * 1024, 2))
        a(f"s_add_u32 s{sPB}, s{sPA}, 128")
        self.sx(sT2, 0, (sT4, 16384, 1), (sT4, 64, 0, 1))
        a(f"s_mov_b32 s{sT3}, 32")
        a.label("L_pr_go")
        a("v_lshrrev_b32 v6, 3, v0")
        a(f"v_mul_lo_u32 v6, v6, s{sPSTR}")
        a("v_and_b32 v8, 0x70, v1")
        a("v_add_u32 v6, v6, v8")
        a(f"s_lshl_b32 s{sPSTR}, s{sPSTR}, 3")
        a(f"s_mul_i32 s{sT1}, s{sPSTR}, s{sT4}")
        a(f"s_lshl_b32 s{sT1}, s{sT1}, 2")
        a(f"s_add_u32 s{sPA}, s{sPA}, s{sT1}")
        a(f"s_add_u32 s{sPB}, s{sPB}, s{sT1}")
        a("v_bfe_u32 v7, v0, 4, 1")
        a(f"v_mul_lo_u32 v7, v7, s{sT3}")
        a("v_and_b32 v8, 3, v0")
        a("v_lshl_add_u32 v7, v8, 3, v7")
        a("v_bfe_u32 v8, v0, 2, 2")
        a("v_lshl_add_u32 v7, v8, 7, v7")
        a("v_and_b32 v8, 0x200, v1")
        a(f"s_add_u32 s{sT2}, s{sT2}, {self.RAW}")
        a(f"v_add3_u32 v7, v7, v8, s{sT2}")

    def prep_gather(self, pc):
        a = self.a
        for part in range(2):
            r = sPB if part else sPA
            a(f"s_add_u32 m0, s{sL}, {self.RAW+pc*1024+part*16384}")
            self.vm(f"buffer_load_dwordx4 v6, {SRD(SB if part else SA)}, s{r} offen {'nt ' if self.o('gnt', 1) else ''}lds", "pg")
            a(f"s_add_u32 s{r}, s{r}, s{sPSTR}")

    def prep_store(self):
        a = self.a
        F = 24
        def rd():
            for i in range(8):
                for h2 in range(2):
                    a(f"ds_read_b64_tr_b16 {vr(F+4*i+2*h2,2)}, v7 offset:{i*2048+h2*1024}")
            for r in range(72, 76): a(f"v_mov_b32 v{r}, 0x3f803f80")
            a(f"s_add_u32 s{sTCH}, s{sPD}, s{sTCH}")
            a("s_waitcnt lgkmcnt(0)")
        def st(i):
            a(f"v_mfma_f32_32x32x16_bf16 v[56:71], v[72:75], {vr(F+4*i,4)}, {'v[56:71]' if i else '0'}")
            self.vm(f"buffer_store_dwordx4 {vr(F+4*i,4)}, v1, {SRD(WS)}, s{sPD if i < 4 else sTCH} offen offset:{(i&3)*1024} sc1")
        def cs():
            if self.m16:
                a("v_and_b32 v8, 0xf0, v1")
                a("v_bfe_u32 v9, v0, 4, 1")
                a("v_lshl_add_u32 v8, v9, 3, v8")
            else: a("v_and_b32 v8, 0x1f0, v1")
            self.emit(self.split_pair(58, 56, 57))
            self.vm(f"buffer_store_dwordx2 v[58:59], v8, {SRD(WS)}, s{sPCS} offen sc1", "pst")
        return [rd] + [lambda i=i: st(i) for i in range(8)] + [cs]

    T13U = {0: (4, 5), 1: (6, 7), 2: (8, 0), 3: (1, 2), 4: (3, 9), 5: (4, 5), 6: (6, 7)}
    C2U = {0: (8, 0), 1: (1, 2), 2: (3, 9), 3: (4, 5), 4: (6, 7), 5: (8, 0), 6: (1, 2)}

    def ks_bases(self, b):
        L = [f"s_mul_i32 s{sT0}, s{sKH}, 12288", f"s_lshl_b32 s{sT1}, s{sKH}, 12", f"s_add_u32 s{sT1}, s{sT1}, 4096",
             f"v_add_u32 v{b}, s{sT0}, v{self.VP}", f"v_add_u32 v{b+3}, s{sT1}, v{self.VP}"]
        for k in (1, 2): L += [f"v_add_u32 v{b+k}, {65536*k}, v{b}", f"v_add_u32 v{b+3+k}, {65536*k}, v{b+3}"]
        return L
    def res_load(self, R):
        self.vm(f"buffer_load_dwordx4 {vr(R,4)}, v{self.VS}, {SRD(WS)}, s{sKT} offen sc1", "res")
        self.vm(f"buffer_load_dwordx4 {vr(R+4,4)}, v{self.VS}, {SRD(WS)}, s{sKT} offen offset:1024 sc1", "res")
        self.vm(f"buffer_load_dword v{R+8}, v1, {SRD(WS)}, s{sKS} offen sc1")
    def swp(self, r):
        return [f"v_permlane32_swap_b32 v{r+i}, v{r+2+i}" for i in range(2)] if self.m16 else []
    def res_unpack(self, R, AA):
        L = self.swp(R) + self.swp(R + 4)
        for i in range(8): L += [f"v_lshlrev_b32 v{AA+2*i}, 16, v{R+i}", f"v_and_b32 v{AA+2*i+1}, 0xffff0000, v{R+i}"]
        return L

    def ks_finish(self, AA, AB, P, final_branch, res=None):
        a = self.a
        for q in range(4): a(f"ds_write_b128 v14, {vr(AB+4*q,4)} offset:{q*1024}")
        if res is not None:
            for i in range(0, 16, 2): a(f"v_pk_add_f32 {vr(AA+i,2)}, {vr(AA+i,2)}, {vr(res+i,2)}")
        a("s_waitcnt lgkmcnt(0)")
        a("s_barrier")
        for q in range(4): a(f"ds_read_b128 {vr(AB+4*q,4)}, v15 offset:{q*1024}")
        def st(u):
            self.emit(self.swp(P + 4 * u))
            self.vm(f"buffer_store_dwordx4 {vr(P+4*u,4)}, v{self.VS}, {SRD(WS)}, s{sKT} offen offset:{1024*u}")
        for q in range(4):
            a(f"s_waitcnt lgkmcnt({3-q})")
            if q == 3 and self.o("w2", 0): a("s_barrier")
            for i in (0, 2): a(f"v_pk_add_f32 {vr(AA+4*q+i,2)}, {vr(AA+4*q+i,2)}, {vr(AB+4*q+i,2)}")
            for i in range(2): a(f"v_cvt_pk_bf16_f32 v{P+2*q+i}, v{AA+4*q+2*i}, v{AA+4*q+2*i+1}")
            if q == 2 and not final_branch: st(0)
        if final_branch:
            a(f"s_cmp_lg_u32 s{sLAY}, 0")
            a("s_cbranch_scc1 L_final")
            st(0)
        st(1)
        groups = [[0, 2, 8, 10], [4, 6, 12, 14]] if self.m16 else [list(range(0, 16, 2))]
        for k, gr in enumerate(groups):
            S, Q = AB + 4 * k, AB + 4 * k + 2
            a(f"v_pk_add_f32 {vr(S,2)}, {vr(AA+gr[0],2)}, {vr(AA+gr[1],2)}")
            a(f"v_pk_mul_f32 {vr(Q,2)}, {vr(AA+gr[0],2)}, {vr(AA+gr[0],2)}")
            a(f"v_pk_fma_f32 {vr(Q,2)}, {vr(AA+gr[1],2)}, {vr(AA+gr[1],2)}, {vr(Q,2)}")
            for i in gr[2:]:
                a(f"v_pk_add_f32 {vr(S,2)}, {vr(S,2)}, {vr(AA+i,2)}")
                a(f"v_pk_fma_f32 {vr(Q,2)}, {vr(AA+i,2)}, {vr(AA+i,2)}, {vr(Q,2)}")
            a(f"v_add_f32 v{S}, v{S}, v{S+1}")
            a(f"v_add_f32 v{Q}, v{Q}, v{Q+1}")
        for k in range(len(groups)): a(f"v_permlane32_swap_b32 v{AB+4*k}, v{AB+4*k+2}")
        for k in range(len(groups)): a(f"v_add_f32 v{AB+4*k}, v{AB+4*k}, v{AB+4*k+2}")
        if self.m16:
            a(f"v_permlane16_swap_b32 v{AB}, v{AB+4}")
            a(f"v_add_f32 v{AB}, v{AB}, v{AB+4}")
        self.vm(f"buffer_store_dword v{AB}, v1, {SRD(WS)}, s{sKS} offen")
    def scr_addr(self):
        return [f"s_lshl_b32 s{sT0}, s{sW}, 12", f"s_add_u32 s{sT0}, s{sT0}, {U(9)}", f"v_add_u32 v14, s{sT0}, v1", "v_xor_b32 v15, 8192, v14"]
    def x_flag_addr(self, r, t, sreg, extra=None):
        return [f"v_and_b32 v{r}, 7, v0", f"v_lshlrev_b32 v{r}, 5, v{r}", f"v_and_b32 v{t}, 8, v0",
                lambda: self.sx(sT0, 0, (sreg, 256, 1), (sreg, 4, 0, 1)), f"v_add3_u32 v{r}, v{r}, v{t}, s{sT0}"]

    CSR = [80, 84, 88, 8, 120, 8, 8]; CST = 172
    def cs_load(self, c): return self.fload(self.CSR[c], sUC, c * 1024, ("cs", c), tmp=sT4)

    def wo(self):
        a = self.a
        AA, AB, RING, X, R, B = 32, 48, 208, 128, 192, 2
        WD = self.o("ww", 8)
        if self.m16:
            a("v_and_b32 v12, 0x300, v1")
            a(f"v_add_u32 v{self.VP}, v12, v1")
            a(f"v_and_b32 v{self.VS}, 0x2f0, v{self.VP}")
            a("v_lshrrev_b32 v12, 5, v0")
            a(f"v_lshl_add_u32 v{self.VS}, v12, 8, v{self.VS}")
        self.emit(self.ks_bases(B))
        self.emit(self.scr_addr())
        a("v_and_b32 v12, 15, v0")
        self.sx(sT0, 0, (sKH, 512), (sTL, 4, 1))
        a(f"v_lshl_add_u32 v12, v12, 5, s{sT0}")
        a(f"v_add_u32 v16, {MBX}, v1")
        a(f"v_add_u32 v17, {MBX}, v{self.VS}")
        a(f"v_lshl_add_u32 v17, s{sW}, 11, v17")
        if self.o("cprio", 0): a(f"s_setprio {self.o('cprio', 0)}")
        self.publish(26, C_O, tag="o")
        a("s_barrier")
        self.stamp("attn done")
        self.dq.clear(); self.forget()
        init, per = self.ramp([(i - (i & self.m16), self.aload(X + 4 * i, sOS, 0, i, ("x", i))) for i in range(16)], 16, self.o("w0", 5), WD)
        items = self.ks_items(16, lambda i: U(i >> 2) + (i & 3) * 1024, B, AA, AB, lambda k: X + 4 * k, "x", False)
        for i in range(16): items[2 * i + 1]["post"] = list(per.get(i, []))
        self.poll_issue(12, 13)
        for u in range(2): self.ds(f"ds_read_b128 {vr(R+4*u,4)}, v17 offset:{5120+1024*u}", "res")
        for c in range(5): self.ds(f"ds_read_b128 {vr(self.CSR[c],4)}, v16 offset:{1024*c}", "cs")
        self.stream_begin(items, 8, RING)
        self.wait(ds="res")
        self.emit(self.res_unpack(R, AA))
        self.wait(ds="cs")
        a("s_barrier")
        self.poll_check(12, 13, C_O)
        self.stamp("wo polled")
        self.emit(init)
        if self.o("wst", 0): items[0]["post"] = [lambda: self.dstamp("wo first", 96)] + items[0].get("post", [])
        self.stream_run()
        if self.o("wst", 0): self.dstamp("wo main", 96)
        self.ks_finish(AA, AB, 20, False)
        if self.o("wst", 0): self.dstamp("wo stored", 96)

    def up(self):
        a = self.a
        X = 128; ACC = [16, 32, 48, 64, 80]; RING = 96; D = 6; TM = 120
        MU, CS, EA, EC, PA, PT = 4, 8, 12, 13, 14, 15
        W = (self.VP, 2, 3); EA1, EC1 = (126, 127) if self.m16 else (EA, EC)
        WD = self.o("uw", 12)
        self.sx(sT1, 0, (sJ, 4, 4), (sW, 1))
        self.emit(self.x_flag_addr(PA, PT, sT1))
        a(f"v_add_u32 v2, 0x10000, v{self.VP}")
        a(f"v_add_u32 v3, 0x20000, v{self.VP}")
        self.publish(PT, C_X1)
        if self.o("wst", 0): self.dstamp("wo pub", 96); self.dflush()
        self.stamp("wo done")
        self.forget()
        CSR, csl = self.CSR, self.cs_load
        xl = lambda i: self.aload(X + 4 * i, sUX, 0, i, ("x", i))
        STT = ACC[3]
        seq = [(i - (i & self.m16), xl(i)) for i in range(32)]
        for q in range(4): seq.insert(10 + 2 * q, (10 + q, self.fload(STT + 4 * q, sUS, q * 1024, "st", tmp=sT2)))
        init, per = self.ramp(seq, 32, self.o("u0", 4), WD)
        def epi(c, acc):
            L = []
            for h, ea, ec in ((0, EA, EC), (4, EA1, EC1)):
                g, u = acc + h, acc + 8 + h
                for i in range(4): L += [f"v_mul_f32 v{TM+i}, v{ea}, v{g+i}", f"v_exp_f32 v{TM+i}, v{TM+i}", f"v_mul_f32 v{u+i}, v{g+i}, v{u+i}"]
                for i in range(4):
                    L += [f"v_fma_f32 v{TM+i}, v{TM+i}, v{ec}, v{ec}", f"v_rcp_f32 v{TM+i}, v{TM+i}"]
                    if i: L.append(f"v_mul_f32 v{u+i-1}, v{TM+i-1}, v{u+i-1}")
                L.append(f"v_cvt_pk_bf16_f32 v{acc+h//2}, v{u}, v{u+1}")
                L.append(f"v_mul_f32 v{u+3}, v{TM+3}, v{u+3}")
                L.append(f"v_cvt_pk_bf16_f32 v{acc+h//2+1}, v{u+2}, v{u+3}")
            L.append(f"s_add_u32 s{sT3}, s{sHD}, {c*16384}")
            L += self.swp(acc)
            if "s" not in self.opt.get("ko", ""): L.append(lambda: self.vm(f"buffer_store_dwordx4 {vr(acc,4)}, v{self.VS}, {SRD(WS)}, s{sT3} offen", ("h", c)))
            if "e" in self.opt.get("ko", ""): L = L[-3:]
            return L
        items = []; c0 = 0; start = []; LB = self.o("lb", 1)
        acc = lambda c: vr(ACC[c % 5], 16)
        def corr(c, first):
            if not self.m16: return dict(vm=("cs", c), mfma=lambda r: f"v_mfma_f32_32x32x16_bf16 {acc(c)}, {vr(CSR[c],4)}, {vr(MU,4)}, {'0' if first else acc(c)}")
            d = lambda k: vr(ACC[c % 5] + 4 * k, 4)
            return dict(vm=("cs", c), mfma=lambda r: "\n".join(f"v_mfma_f32_16x16x16_bf16 {d(k)}, {vr(CSR[c]+(k&2),2)}, {vr(MU+2*(k&1),2)}, {'0' if first else d(k)}" for k in range(4)))
        for pi, n in enumerate((3, 2, 1, 1)):
            tiles = list(range(c0, c0 + n)); c0 += n
            start.append(len(items))
            if pi:
                for c in tiles: items.append(corr(c, True))
                if pi < 3: items[-1]["post"] = [csl(c0)]
            for ks in range(32):
                for c in tiles:
                    addr = U(self.T13U[c][ks >> 4]) + (ks & 15) * 1024
                    it = self.mm(ACC[c % 5], addr, W, ks, lambda k: X + 4 * k, pi == 0)
                    if (ks == 0 or (ks == 16 and pi < 2)) and c == tiles[0]: it["late" if LB and (pi or ks) else "bar"] = True
                    if pi == 0 and c == 0: self.xwait(it, "x", ks)
                    if pi == 0 and c < 2: it["post"] = list(per.get(ks, [])[c::2])
                    items.append(it)
                if pi == 0 and ks == 27:
                    for c in tiles: items.append(corr(c, False))
        start.append(len(items))
        st = [lambda: self.wait(vm="st")] + self.stats_ops(STT, MU, EA, EC) + [f"v_mul_f32 v{EA}, {hex(f2u(-LOG2E))}, v{EA}"]
        if self.m16:
            st += [f"v_mov_b32 v{EC1}, v{EC}", f"v_mov_b32 v{EA1}, v{EA}", f"v_permlane16_swap_b32 v{MU}, v{MU+2}", f"v_permlane16_swap_b32 v{MU+1}, v{MU+3}",
                   f"v_permlane16_swap_b32 v{EC}, v{EC1}", f"v_permlane16_swap_b32 v{EA}, v{EA1}"]
        self.spread(items, 45, 80, st)
        lo = 5
        self.spread(items, start[1] + lo, start[2], epi(0, ACC[0]) + epi(1, ACC[1]) + epi(2, ACC[2]))
        e34 = epi(3, ACC[3]) + epi(4, ACC[4]); nsplit = start[3] + self.o("e4", 13)
        self.spread(items, start[2] + lo, nsplit, e34)
        AA, AB, R, B = 48, 64, 80, 4
        DW = self.o("dw", 8)
        hl = lambda i: self.aload(X + 4 * (i % 32), sHS, (i >> 3) * 16384, i & 7, ("y", i))
        p4 = start[3] + 1
        def ins(k, fs, front=False):
            L = items[k].setdefault("post", [])
            if front: L[:0] = fs
            else: L.extend(fs)
        for pi, c in ((2, 1), (3, 2))[self.o("mg", 0):]: items[start[pi] + 1]["barvm"] = ("h", c)
        k0 = 31 - self.o("dw0", DW)
        ins(p4 + k0 - 4, self.ks_bases(B))
        ins(start[1] + 2, ["v_and_b32 v14, 7, v0", lambda: self.sx(sT0, 16, (sJ, 512, 4), (sKH, 256)), f"v_lshl_add_u32 v14, v14, 5, s{sT0}"])
        ins(p4 + self.o("l0", 10), [lambda: self.poll_issue(PA, PT)], True)
        ins(p4 + k0, [lambda: self.poll_check(PA, PT, C_H + self.o("mg", 0))], True)
        assert DW == 8
        init2, per2 = self.ramp([(i, hl(i)) for i in range(56)], 56, 31 - k0, DW)
        for i, f in enumerate(init2): ins(p4 + k0 + 1 + i, [f], True)
        d0 = len(items)
        items += self.ks_items(56, lambda i: U(self.C2U[i >> 3][(i >> 2) & 1]) + (i & 3) * 1024, B, AA, AB, lambda k: X + 4 * (k % 32), "y", True)
        for i in range(56):
            it = items[d0 + 2 * i]
            if i in (0, 16, 32, 40): it["late" if LB else "bar"] = True
            if i in (0, 16): it["barvm"] = ("h", 6 if i else 4)
            it = items[d0 + 2 * i + 1]
            it["post"] = []
            lv = {8: 1, 16: 2, 32: 3}
            if self.o("mg", 0): del lv[8]
            if i in lv: it["post"].append(lambda k=lv[i]: self.poll_check(PA, PT, C_H + k))
            if i + 8 in lv: it["post"].append(lambda: self.poll_issue(PA, PT))
            it["post"] += per2.get(i, [])
            if i == 20: it["post"].append(lambda: self.res_load(R))
            if i == 42: it["post"] += self.scr_addr()
        e5 = d0 + self.o("e5", 0)
        self.spread(items, nsplit, e5, epi(5, ACC[0]))
        self.spread(items, max(e5, d0 + 3), d0 + self.o("e6", 17), epi(6, ACC[1]))
        self.spread(items, d0 + 66, d0 + 82, [lambda: self.wait(vm='res')] + self.res_unpack(R, ACC[1]))
        self.stream_begin(items, D, RING)
        self.poll(PA, PT, C_X1)
        self.stamp("up polled")
        self.emit(init)
        self.kop = "p" in self.opt.get("ko", "")
        self.stream_run(self.o("pair", 2))
        self.kop = False
        self.stamp("down main")
        self.ks_finish(AA, AB, 20, True, res=ACC[1])

    def final(self):
        a = self.a
        a.label("L_final")
        self.srd(SB, P_OUT, 2 * MB)
        a("v_and_b32 v14, 31, v0")
        a("v_lshlrev_b32 v14, 10, v14")
        a("v_lshrrev_b32 v15, 5, v0")
        a("v_lshl_add_u32 v14, v15, 4, v14")
        for b in (20, 24):
            a(f"v_permlane{16 if self.m16 else 32}_swap_b32 v{b}, v{b+2}")
            a(f"v_permlane{16 if self.m16 else 32}_swap_b32 v{b+1}, v{b+3}")
        a(f"buffer_store_dwordx4 v[20:23], v14, {SRD(SB)}, s{sOUT} offen {['', 'sc1', 'nt', 'sc1 nt'][self.o('op', 0)]}")
        a(f"buffer_store_dwordx4 v[24:27], v14, {SRD(SB)}, s{sOUT} offen offset:32 {['', 'sc1', 'nt', 'sc1 nt'][self.o('op', 0)]}")
        self.stamp("end")
        if "hold" in self.opt:
            if self.o("hold", 8) < 8:
                a(f"s_cmp_lg_u32 s{sG}, {self.o('hold', 8)}")
                a("s_cbranch_scc1 L_exit")
            if self.o("holdwb", 0):
                a("s_waitcnt vmcnt(0)")
                a("buffer_wbl2 sc1")
                a("s_waitcnt vmcnt(0)")
            a(f"s_mov_b32 s{sT1}, 0")
            if "pt" in self.opt:
                a(f"s_sub_u32 s{sT1}, s{sTS}, s{sE0 if self.o('ptc', 0) else sE1}")
                if self.o("ptc", 0): a(f"s_lshr_b32 s{sT1}, s{sT1}, 4")
                a(f"s_min_u32 s{sT1}, s{sT1}, 100000")
            a(f"s_add_u32 s{sT1}, s{sT1}, 10000")
            a.label("L_hold")
            a(f"s_memrealtime s[{sTR}:{sTR+1}]")
            a("s_waitcnt lgkmcnt(0)")
            a(f"s_sub_u32 s{sT0}, s{sTR}, s{sE1}")
            a(f"s_cmp_lt_u32 s{sT0}, s{sT1}")
            a("s_cbranch_scc1 L_hold")
        a.label("L_exit")
        a("s_endpgm")

    def build(self):
        a = self.a
        self.tails = []; self.tails2 = []
        self.entry()
        self.qkv1()
        s0 = self.seq; self.seq = []
        self.attention(); self.wo(); self.up()
        s1 = self.seq; self.seq = []
        self.qkv2()
        s2 = self.seq; self.seq = []
        self.final()
        cseq = s0 + s1 + s2 + s1 + self.seq; self.seq = []
        self.inL = True
        self.start_loader()
        for layer in range(2):
            self.side(layer); self.loader(layer)
        lseq = self.seq
        self.fallback()
        self.publish_tails()
        a.label("L_end")
        body = a.finish()
        refp = "cdna_kernels/" + NAME + ".s.ref"
        hdr = open(refp).read().split("; Override launch")[0] if os.path.exists(refp) else ""
        txt = hdr + f"; @launch grid=(256,1,1) block=(512,1,1) lds={LDS_TOTAL}\n"
        if self.stamps: txt += "; cseq " + "|".join(cseq) + "\n; lseq " + "|".join(lseq) + "\n"
        txt += f""".amdgcn_target "amdgcn-amd-amdhsa--gfx950"
.text
.globl {NAME}_kernel
.p2align 8
.type {NAME}_kernel,@function
{NAME}_kernel:
{body}.section .rodata,"a"
.p2align 6
.amdhsa_kernel {NAME}_kernel
  .amdhsa_next_free_vgpr 256
  .amdhsa_next_free_sgpr 98
  .amdhsa_accum_offset 256
  .amdhsa_group_segment_fixed_size 0
  .amdhsa_kernarg_size 80
  .amdhsa_user_sgpr_count 2
  .amdhsa_user_sgpr_kernarg_segment_ptr 1
  .amdhsa_system_sgpr_workgroup_id_x 1
.end_amdhsa_kernel
"""
        return txt

def from_spec(spec):
    opt = dict((kv.split('=') + ['1'])[:2] for kv in spec.split(',') if kv)
    return Gen(stop=opt.pop("stop", None), stamps=bool(opt.pop("stamps", 0)), force_slow=bool(opt.pop("slow", 0)),
               force_fallback=bool(opt.pop("fallback", 0)), remap=bool(opt.pop("remap", 0)), opt=opt).build()

if __name__ == "__main__":
    out = sys.argv[2] if len(sys.argv) > 2 else "cdna_kernels/" + NAME + ".s"
    open(out, "w").write(from_spec(sys.argv[1].lstrip(":") if len(sys.argv) > 1 else ""))
```
